```python
import torch

def _softmax(x, axis=-1):
    return torch.softmax(x, dim=axis)
def _gelu(x):
    return torch.nn.functional.gelu(x, approximate="tanh")
def _silu(x):
    return torch.nn.functional.silu(x)
def _sigmoid(x):
    return torch.sigmoid(x)
def _layernorm(x, axis=-1, eps=1e-5):
    m = x.mean(dim=axis, keepdim=True)
    v = x.var(dim=axis, keepdim=True, unbiased=False)
    return (x - m) / torch.sqrt(v + eps)
def _scatter_add(tgt, idx, src, axis=0):
    return tgt.clone().index_add_(axis, idx, src)
def _segment_sum(src, seg, n):
    out = torch.zeros((n,) + src.shape[1:], dtype=src.dtype)
    return out.index_add_(0, seg, src)
def _pad(x, pw):
    flat = tuple(v for pair in reversed(pw) for v in pair)
    return torch.nn.functional.pad(x, flat)

kernel_name = 'standalone__deep_cross_wide_deep__recsys'

def setup_inputs():

    _w = (lambda a: (lambda t: t.to(torch.bfloat16) if t.is_floating_point() else t)(torch.as_tensor(a)))
    B, F, D = 16384, 100, 64
    V, Nd = min(1000, 100000), 13
    Din = F * D
    H = 4 * D
    return {
        "idx": _w((lambda lo, hi, *s: torch.randint(lo, hi, s))(0, V, B, F).to(torch.int64)),
        "table": _w((lambda *s: torch.randn(*s, dtype=torch.bfloat16) * 1.6)(V, D) * 0.05),
        "x_wide": _w((lambda *s: torch.randn(*s, dtype=torch.bfloat16) * 0.8)(B, Nd)),
        "w_wide": _w((lambda *s: torch.randn(*s, dtype=torch.bfloat16) * 0.8)(Nd) * 0.05),
        "b_wide": _w((lambda *s: torch.randn(*s, dtype=torch.bfloat16) * 0.8)(1) * 0.01),
        "W1": _w((lambda *s: torch.randn(*s, dtype=torch.bfloat16) * 1.6)(Din, H) * (2.0 / Din) ** 0.5),
        "b1": _w((lambda *s: torch.randn(*s, dtype=torch.bfloat16) * 1.6)(H) * 0.01),
        "W2": _w((lambda *s: torch.randn(*s, dtype=torch.bfloat16) * 1.6)(H) * (1.0 / H) ** 0.5),
        "b2": _w((lambda *s: torch.randn(*s, dtype=torch.bfloat16) * 1.6)(1) * 0.01),
    }

def reference(idx, table, x_wide, w_wide, b_wide, W1, b1, W2, b2):
    emb = table[idx]
    deep_in = emb.reshape(emb.shape[0], -1)
    h = deep_in @ W1 + b1
    h = h * (lambda x, dt: x.to(dt))(h > 0, h.dtype)
    deep_logit = h @ W2 + b2
    wide_logit = x_wide @ w_wide + b_wide
    return _sigmoid(wide_logit + deep_logit)
```

```python
import sys
args = dict(a.split("=") for a in sys.argv[1:])
STAMP = int(args.get("STAMP", 0))

NAME = "standalone__deep_cross_wide_deep__recsys"
IDXP = 0
W1P = 0x400000
TABP = 0x800000
WIDE = 0x840000
PART = 0x900000
STMP = 0xE00000
WS_SZ = 0x1000000

out = []
def e(s):
    for l in s.split("\n"):
        out.append(l)

class Cnt:
    def __init__(self): self.n = 0; self.tag = {}
    def issue(self, tag=None):
        self.n += 1
        if tag is not None: self.tag[tag] = self.n
    def younger(self, tag): return self.n - self.tag[tag]

HDR = f"""; Wide & Deep recsys forward, gfx950.
; @launch kernel=prep_kernel grid=(256,1,1) block=(256,1,1) lds=25600
; @launch kernel=main_kernel grid=(256,1,1) block=(512,1,1) lds=131072
; @launch kernel=fin_kernel grid=(256,1,1) block=(64,1,1) lds=0
.amdgcn_target "amdgcn-amd-amdhsa--gfx950"
.text"""
e(HDR)

def begin(name):
    e(f".globl {name}\n.p2align 8\n.type {name},@function\n{name}:")
def srd(d, lo, hi, nbytes):
    e(f"s_mov_b32 s{d}, s{lo}\ns_mov_b32 s{d+1}, s{hi}\ns_mov_b32 s{d+2}, {nbytes:#x}\ns_mov_b32 s{d+3}, 0x20000")
def voff(dst, lane, t):
    e(f"v_and_b32 v{dst}, 3, v{lane}")
    e(f"v_lshlrev_b32 v{dst}, 4, v{dst}")
    e(f"v_and_b32 v{t}, 28, v{lane}")
    e(f"v_lshl_or_b32 v{dst}, v{t}, 8, v{dst}")
    e(f"v_and_b32 v{t}, 32, v{lane}")
    e(f"v_lshl_or_b32 v{dst}, v{t}, 1, v{dst}")

begin("prep_kernel")
e("s_cmp_ge_u32 s2, 256\ns_cbranch_scc1 prep_done")
e("s_load_dwordx8 s[4:11], s[0:1], 0")
e("s_load_dwordx4 s[12:15], s[0:1], 32")
e("s_load_dwordx2 s[16:17], s[0:1], 64")
e("s_load_dwordx2 s[18:19], s[0:1], 88")
e("v_lshrrev_b32 v1, 6, v0")
e("v_and_b32 v2, 63, v0")
e("v_readfirstlane_b32 s3, v1")
e("v_lshlrev_b32 v3, 4, v0")
voff(4, 2, 5)
e("s_waitcnt lgkmcnt(0)")
srd(20, 4, 5, 16384 * 400)
srd(24, 6, 7, 128000)
srd(28, 8, 9, 16384 * 26)
srd(32, 14, 15, 6400 * 512)
srd(36, 18, 19, WS_SZ)
e("s_load_dwordx4 s[40:43], s[10:11], 0")
e("s_load_dwordx2 s[44:45], s[10:11], 16")
srd(48, 10, 11, 26)
srd(52, 12, 13, 2)
srd(56, 16, 17, 2)
e("s_mul_i32 s60, s2, 25600")
for i in range(6):
    e(f"s_add_u32 s61, s60, {i*4096}")
    e(f"buffer_load_dwordx4 v[{16+4*i}:{19+4*i}], v3, s[20:23], s61 offen")
e("s_cmp_lg_u32 s3, 0\ns_cbranch_scc1 prep_l1")
e("s_add_u32 s61, s60, 24576")
e("buffer_load_dwordx4 v[40:43], v3, s[20:23], s61 offen")
e("prep_l1:")
e("s_cmp_ge_u32 s2, 200\ns_cbranch_scc1 prep_notw1")
e("s_cmp_ge_u32 s3, 2\ns_cbranch_scc1 prep_idx")
e("s_lshr_b32 s62, s2, 2\ns_and_b32 s63, s2, 3")
e("s_lshl_b32 s64, s62, 1\ns_add_u32 s64, s64, s3")
e("s_lshl_b32 s64, s64, 15")
e("s_lshl_b32 s65, s63, 7\ns_add_u32 s64, s64, s65")
e("v_lshrrev_b32 v5, 3, v2\nv_and_b32 v6, 7, v2")
e("v_lshlrev_b32 v7, 12, v5\nv_lshl_or_b32 v7, v6, 4, v7")
for j in range(8):
    e(f"buffer_load_dwordx4 v[{48+4*j}:{51+4*j}], v7, s[32:35], s64 offen offset:{j*512}")
e("s_mov_b32 s66, 114688\nv_mul_lo_u32 v8, v6, s66")
e("v_lshl_add_u32 v8, v5, 6, v8")
e("s_mul_i32 s65, s63, 917504")
e("s_lshl_b32 s66, s62, 10\ns_add_u32 s65, s65, s66")
e("s_lshl_b32 s66, s3, 5\ns_add_u32 s65, s65, s66")
e(f"s_add_u32 s65, s65, {W1P:#x}")
e("s_add_u32 s66, s65, 57344")
e("s_mov_b32 s67, 0x05040100\ns_mov_b32 s68, 0x07060302")
e("s_waitcnt vmcnt(0)")
for t in range(4):
    for jj in range(4):
        r0 = 48 + 4 * (2 * jj) + t; r1 = 48 + 4 * (2 * jj + 1) + t
        e(f"v_perm_b32 v{80+4*(2*t)+jj}, v{r1}, v{r0}, s67")
        e(f"v_perm_b32 v{80+4*(2*t+1)+jj}, v{r1}, v{r0}, s68")
e("s_cmp_ge_u32 s62, 48\ns_cselect_b32 s69, 4, 1")
e("prep_w1st:")
for cc in range(8):
    cp = (cc % 4) // 2; par = cc % 2
    e(f"buffer_store_dwordx4 v[{80+4*cc}:{83+4*cc}], v8, s[36:39], s{65 + cc//4} offen offset:{par*512+cp*16}")
e("s_add_u32 s65, s65, 2048\ns_add_u32 s66, s66, 2048")
e("s_sub_u32 s69, s69, 1\ns_cmp_lg_u32 s69, 0\ns_cbranch_scc1 prep_w1st")
e("s_branch prep_idx")
e("prep_notw1:")
e("s_cmp_ge_u32 s2, 232\ns_cbranch_scc1 prep_idx")
e("s_sub_u32 s62, s2, 200\ns_lshr_b32 s63, s62, 2\ns_and_b32 s62, s62, 3")
e("v_and_b32 v5, 24, v2\nv_and_b32 v6, 3, v2\nv_lshl_add_u32 v5, v6, 1, v5")
e("v_bfe_u32 v6, v2, 2, 1\nv_add_u32 v5, v5, v6")
e("v_lshlrev_b32 v5, 7, v5")
e("v_lshrrev_b32 v6, 5, v2\nv_lshl_add_u32 v5, v6, 4, v5")
e("s_lshl_b32 s64, s62, 15\ns_lshl_b32 s65, s63, 12\ns_add_u32 s64, s64, s65\ns_lshl_b32 s65, s3, 5\ns_add_u32 s64, s64, s65")
e("v_add_u32 v5, s64, v5")
e("buffer_load_dwordx4 v[48:51], v5, s[24:27], 0 offen")
e("s_lshl_b32 s64, s63, 14\ns_lshr_b32 s65, s62, 1\ns_lshl_b32 s65, s65, 13\ns_add_u32 s64, s64, s65")
e("s_and_b32 s65, s62, 1\ns_lshl_b32 s65, s65, 2\ns_add_u32 s65, s65, s3\ns_lshl_b32 s65, s65, 7\ns_add_u32 s64, s64, s65")
e(f"s_add_u32 s64, s64, {TABP:#x}")
e("s_waitcnt vmcnt(0)")
e("buffer_store_dwordx4 v[48:51], v4, s[36:39], s64 offen")
e("prep_idx:")
e("s_cmp_lg_u32 s3, 3\ns_cbranch_scc1 prep_idx2")
e("v_mul_u32_u24 v5, 26, v2")
e("s_mul_i32 s62, s2, 1664")
for j in range(13):
    e(f"buffer_load_ushort v{48+j}, v5, s[28:31], s62 offen offset:{2*j}")
e("v_mov_b32 v6, 0")
e("buffer_load_ushort v61, v6, s[48:51], 0 offen offset:24")
e("buffer_load_ushort v62, v6, s[52:55], 0 offen")
e("buffer_load_ushort v63, v6, s[56:59], 0 offen")
e("s_waitcnt vmcnt(0) lgkmcnt(0)")
for r in (60, 61, 62, 63): e(f"v_lshlrev_b32 v{r}, 16, v{r}")
e("v_add_f32 v62, v62, v63")
e("v_fma_f32 v62, v60, v61, v62")
for j in range(12):
    sw = 40 + j // 2
    if j % 2 == 0: e(f"s_lshl_b32 s62, s{sw}, 16")
    else: e(f"s_and_b32 s62, s{sw}, 0xffff0000")
    e(f"v_lshlrev_b32 v{48+j}, 16, v{48+j}")
    e(f"v_fma_f32 v62, v{48+j}, s62, v62")
e("v_lshlrev_b32 v5, 2, v2")
e(f"s_lshl_b32 s62, s2, 8\ns_add_u32 s62, s62, {WIDE:#x}")
e("buffer_store_dword v62, v5, s[36:39], s62 offen")
e("prep_idx2:")
e("s_waitcnt vmcnt(0)")
for i in range(6):
    e(f"ds_write_b128 v3, v[{16+4*i}:{19+4*i}] offset:{i*4096}")
e("s_cmp_lg_u32 s3, 0\ns_cbranch_scc1 prep_l2")
e("ds_write_b128 v3, v[40:43] offset:24576")
e("prep_l2:")
e("v_mul_u32_u24 v5, 400, v2")
e("s_lshl_b32 s62, s3, 6\nv_add_u32 v5, s62, v5")
for t in range(16):
    e(f"v_add_u32 v6, {t}, v2\nv_and_b32 v{64+t}, 15, v6")
    e(f"v_lshl_add_u32 v{16+t}, v{64+t}, 2, v5")
for u in range(8):
    e(f"v_lshl_or_b32 v{32+u}, v{64+2*u+1}, 16, v{64+2*u}")
e("s_lshr_b32 s62, s2, 3\ns_mul_i32 s62, s62, 114688")
e("s_bfe_u32 s63, s2, 0x10002\ns_lshl_b32 s63, s63, 13\ns_add_u32 s64, s62, s63")
e("s_and_b32 s63, s2, 3\ns_lshl_b32 s63, s63, 8\ns_add_u32 s64, s64, s63")
e("s_lshl_b32 s63, s3, 14\ns_add_u32 s64, s64, s63")
e("s_waitcnt lgkmcnt(0)\ns_barrier")
def idx_phase(off):
    for t in range(16):
        e(f"ds_read_b32 v{40+t}, v{16+t} offset:{off}")
    e("s_waitcnt lgkmcnt(0)")
    for u in range(8):
        e(f"v_lshl_add_u32 v{40+2*u}, v{40+2*u+1}, 16, v{40+2*u}")
        e(f"v_lshl_add_u32 v{56+u}, v{40+2*u}, 4, v{32+u}")
    e("buffer_store_dwordx4 v[56:59], v4, s[36:39], s64 offen")
    e("buffer_store_dwordx4 v[60:63], v4, s[36:39], s64 offen offset:128")
idx_phase(0)
e("s_cmp_ge_u32 s3, 2\ns_cbranch_scc1 prep_l3")
e("s_add_u32 s64, s64, 65536")
e("s_nop 1")
idx_phase(256)
e("s_branch prep_done")
e("prep_l3:")
e("s_cmp_lg_u32 s3, 2\ns_cbranch_scc1 prep_done")
e("v_mul_u32_u24 v5, 400, v2")
for t in range(4):
    e(f"v_and_b32 v6, 3, v{64+t}\nv_lshl_add_u32 v6, v6, 2, v5")
    e(f"ds_read_b32 v{40+t}, v6 offset:384")
e("s_waitcnt lgkmcnt(0)")
for u in range(2):
    e(f"v_lshl_add_u32 v{40+2*u}, v{40+2*u+1}, 16, v{40+2*u}")
    e(f"v_lshl_add_u32 v{80+u}, v{40+2*u}, 4, v{32+u}")
e("s_add_u32 s64, s62, 98304")
e("s_bfe_u32 s63, s2, 0x20001\ns_lshl_b32 s63, s63, 7\ns_add_u32 s64, s64, s63")
e("s_and_b32 s63, s2, 1\ns_lshl_b32 s63, s63, 3\ns_add_u32 s64, s64, s63")
e("buffer_store_dwordx2 v[80:81], v4, s[36:39], s64 offen")
e("prep_done:\ns_endpgm")

VOFF = 0; SIDX = 1; T0 = 2; T1 = 3; AC = 4
DAT = 8; TAB = 32; ACC = 96; POOL = 128; D0 = 192; D1 = 208; W1 = 224
S_IDX = 8; S_W1 = 9; S_M0A = 10; S_M0B = 11; S_CNT = 12; S_WAVE = 13
vm = Cnt(); lg = Cnt()
waits = {}
emit = True
def E(s):
    if emit: e(s)
def wait_vm(site, tag):
    n = vm.younger(tag)
    if site in waits: waits[site] = min(waits[site], n)
    else:
        waits[site] = n
    E(f"@VM {site}")
def ldw(i, tag):
    E(f"buffer_load_dwordx4 v[{W1+4*i}:{W1+4*i+3}], v{VOFF}, s[4:7], s{S_W1} offen offset:{i*128}")
    vm.issue(tag)
def ldi(reg, k, tag):
    E(f"buffer_load_dwordx4 v[{reg}:{reg+3}], v{VOFF}, s[4:7], s{S_IDX} offen offset:{k*128}")
    vm.issue(tag)
def mf(vt, i):
    s, par = i // 2, i % 2
    d = D1 if par else D0
    c = "0" if s == 0 else f"v[{d}:{d+15}]"
    E(f"v_mfma_f32_32x32x16_bf16 v[{d}:{d+15}], v[{TAB+16*vt+4*s}:{TAB+16*vt+4*s+3}], v[{W1+16*par+4*s}:{W1+16*par+4*s+3}], {c}")
def frag_of(i): return (i % 2) * 4 + i // 2
def cvt(dst, r): E(f"v_cvt_pk_bf16_f32 v{dst}, v{D0+r}, v{D1+r}")
DELTA = 28800
def wr(src, vt, r):
    off = (vt % 2) * 32768 + r * 256 + (DELTA if vt >= 2 else 0)
    E(f"ds_write_addtid_b32 v{src} offset:{off}")
SD = "dst_sel:DWORD dst_unused:UNUSED_PAD src0_sel:DWORD"
def unpack(w0):
    E(f"v_lshlrev_b32_sdwa v{T0}, 3, v{w0} {SD} src1_sel:WORD_1")
    E(f"v_lshlrev_b32_sdwa v{w0}, 3, v{w0} {SD} src1_sel:WORD_0")
    E(f"v_lshlrev_b32_sdwa v{T1}, 3, v{w0+1} {SD} src1_sel:WORD_1")
    E(f"v_lshlrev_b32_sdwa v{w0+1}, 3, v{w0+1} {SD} src1_sel:WORD_0")
def reads(w0, slot):
    d = DAT + 8 * slot
    for i, a in enumerate((w0, T0, w0 + 1, T1)):
        E(f"ds_read_b64 v[{d+2*i}:{d+2*i+1}], v{a}")
def smf(g, slot):
    d = DAT + 8 * slot; a = ACC + 4 * g
    E(f"v_smfmac_f32_16x16x64_bf16 v[{a}:{a+3}], v[{AC}:{AC+3}], v[{d}:{d+7}], v{SIDX}")
def stamp(i):
    if STAMP:
        E(f"s_memtime s[{40+2*i}:{41+2*i}]")

begin("main_kernel")
e("s_cmp_ge_u32 s2, 256\ns_cbranch_scc1 main_done")
e("s_load_dwordx2 s[16:17], s[0:1], 88")
e("s_load_dwordx4 s[20:23], s[0:1], 48")
if STAMP: e("s_memtime s[40:41]\ns_memrealtime s[38:39]")
e("v_lshrrev_b32 v1, 6, v0\nv_and_b32 v8, 63, v0")
e(f"v_readfirstlane_b32 s{S_WAVE}, v1")
voff(VOFF, 8, 9)
e("s_and_b32 s14, s2, 3\ns_lshr_b32 s15, s2, 2")
e(f"s_lshl_b32 s18, s14, 3\ns_add_u32 s18, s18, s{S_WAVE}\ns_mul_i32 s{S_IDX}, s18, 114688")
e(f"s_mul_i32 s{S_W1}, s15, 57344\ns_add_u32 s{S_W1}, s{S_W1}, {W1P:#x}")
e(f"s_lshl_b32 s18, s{S_WAVE}, 14\ns_add_u32 s18, s18, {TABP:#x}\ns_add_u32 s19, s18, 8192")
e(f"s_lshl_b32 s{S_M0A}, s{S_WAVE}, 12\ns_add_u32 s{S_M0B}, s{S_M0A}, {65536-DELTA}")
e("s_lshl_b32 s24, s15, 3")
e("s_waitcnt lgkmcnt(0)")
srd(4, 16, 17, WS_SZ)
e("s_load_dwordx2 s[26:27], s[20:21], s24")
e("s_load_dwordx2 s[28:29], s[22:23], s24")
for i in range(8): ldw(frag_of(i), ("w", frag_of(i)))
for vt in range(4):
    for s in range(4):
        r = TAB + 16 * vt + 4 * s
        e(f"buffer_load_dwordx4 v[{r}:{r+3}], v{VOFF}, s[4:7], s{18 + vt//2} offen offset:{((vt%2)*4+s)*128}")
        vm.issue(("t", vt, s))
for k in range(8): ldi(POOL + 4 * k, k, ("i", k // 2))
e(f"s_add_u32 s{S_IDX}, s{S_IDX}, 8192\ns_add_u32 s{S_W1}, s{S_W1}, 8192")
e("v_bfe_u32 v9, v8, 2, 2\nv_bfe_u32 v10, v8, 4, 1\nv_lshlrev_b32 v10, 1, v10")
e("v_mov_b32 v11, 0x3f80")
e("v_cmp_eq_u32 vcc, v9, v10\nv_add_u32 v10, 1, v10\ns_nop 0")
e(f"v_cndmask_b32 v{AC}, 0, v11, vcc\nv_cndmask_b32 v{AC+1}, 0, v11, vcc")
e("v_cmp_eq_u32 vcc, v9, v10\nv_and_b32 v9, 3, v8\ns_nop 0")
e(f"v_cndmask_b32 v{AC+2}, 0, v11, vcc\nv_cndmask_b32 v{AC+3}, 0, v11, vcc")
e(f"v_mul_u32_u24 v{SIDX}, 0x5555, v9")
e("s_waitcnt lgkmcnt(0)")
e("s_lshl_b32 s30, s26, 16\ns_and_b32 s31, s26, 0xffff0000\ns_lshl_b32 s32, s27, 16\ns_and_b32 s33, s27, 0xffff0000")
e("s_lshl_b32 s34, s28, 16\ns_and_b32 s35, s28, 0xffff0000\ns_lshl_b32 s36, s29, 16\ns_and_b32 s37, s29, 0xffff0000")
for g in range(8):
    for c in range(4): e(f"v_mov_b32 v{ACC+4*g+c}, s{30+c}")
for vt in range(4):
    if vt % 2 == 0: e(f"s_mov_b32 m0, s{S_M0A if vt == 0 else S_M0B}")
    for i in range(8):
        if i % 2 == 0: wait_vm(("p0", vt, i), ("t", vt, i // 2))
        mf(vt, i)
        if vt == 3: ldw(frag_of(i), ("w", frag_of(i)))
    e("s_nop 7\ns_nop 3")
    for r in range(16):
        cvt(D0 + r, r)
        if r >= 1: wr(D0 + r - 1, vt, r - 1)
    wr(D0 + 15, vt, 15)
e(f"s_add_u32 s{S_W1}, s{S_W1}, 8192")
wait_vm("p0i", ("i", 0))
unpack(POOL)
e(f"s_mov_b32 s{S_CNT}, 3")
e("s_waitcnt lgkmcnt(0)\ns_barrier")
stamp(1)

M0Q = [4, 5, 6, 7, 8, 9, 10, 11]
C0Q = [13, 14]
M1Q = [15, 16, 17, 18, 19, 20, 21, 21]
C1Q = [23, 24]
M2Q = [25, 26, 27, 28, 29, 29, 30, 30]
def phase(par):
    A = POOL + 32 * par; B = POOL + 32 * (1 - par)
    def w0(q): return (A if q < 16 else B) + (q % 16) * 2
    for q in range(32):
        if q >= 3:
            E("s_waitcnt lgkmcnt(8)")
            smf((q - 3) // 4, q % 3)
        reads(w0(q), q % 3)
        for vt, MQ in enumerate((M0Q, M1Q, M2Q)):
            for i in range(8):
                if MQ[i] == q:
                    if vt == 0: wait_vm((par, "w", i), ("w", frag_of(i)))
                    mf(vt, i)
        if q < 8:
            ldi(B + 4 * q, q, ("i", 4 + q // 2))
            if q == 7: E(f"s_add_u32 s{S_IDX}, s{S_IDX}, 8192")
        if q >= 17 and q % 2 == 1:
            k = (q - 17) // 2
            ldi(B + 4 * k, k, ("n", k // 2))
            if q == 31: E(f"s_add_u32 s{S_IDX}, s{S_IDX}, 8192")
        if q < 31:
            if (q + 1) % 4 == 0: wait_vm((par, "i", q), ("i", (q + 1) // 4))
            unpack(w0(q + 1))
        for vt, CQ in enumerate((C0Q, C1Q)):
            for j in range(2):
                if CQ[j] == q:
                    for r in range(8 * j, 8 * j + 8): cvt(A + 16 * vt + r, r)
    for g in range(4): vm.tag[("i", g)] = vm.tag[("n", g)]
    E("s_waitcnt lgkmcnt(8)"); smf(7, 29 % 3)
    E("s_waitcnt lgkmcnt(4)"); smf(7, 30 % 3)
    E(f"s_mov_b32 m0, s{S_M0A}")
    E("s_nop 2")
    S2 = [DAT + 8 * (29 % 3) + r for r in range(8)] + [DAT + 8 * (30 % 3) + r for r in range(8)]
    for r in range(16): cvt(S2[r], r)
    E("s_waitcnt lgkmcnt(0)\ns_barrier")
    smf(7, 31 % 3)
    n = 0
    for vt in range(3):
        if vt == 2: E(f"s_mov_b32 m0, s{S_M0B}\ns_nop 0")
        for r in range(16):
            wr(A + 16 * vt + r if vt < 2 else S2[r], vt, r)
            if n % 4 == 1 and n // 4 < 8:
                i = n // 4
                mf(3, i); ldw(frag_of(i), ("w", frag_of(i)))
            if n >= 40:
                cvt(D0 + 2 * (n - 40), 2 * (n - 40)); cvt(D0 + 2 * (n - 40) + 1, 2 * (n - 40) + 1)
            n += 1
    for r in range(16): wr(D0 + r, 3, r)
    E(f"s_add_u32 s{S_W1}, s{S_W1}, 8192")
    wait_vm((par, "i0"), ("i", 0))
    unpack(B)
    if par == 1: E(f"s_sub_u32 s{S_CNT}, s{S_CNT}, 1\ns_cmp_lg_u32 s{S_CNT}, 0")
    E("s_waitcnt lgkmcnt(0)\ns_barrier")

e(".p2align 6\nmain_loop:")
phase(0); phase(1)
e("s_cbranch_scc1 main_loop")
emit = False
phase(0); phase(1)
emit = True
stamp(2)
for q in range(8):
    if q >= 3:
        e("s_waitcnt lgkmcnt(8)"); smf(q - 3, q % 3)
    reads(POOL + 2 * q, q % 3)
    if q < 7:
        if q == 3: wait_vm(("l", q), ("i", 1))
        unpack(POOL + 2 * (q + 1))
e("s_waitcnt lgkmcnt(8)"); smf(5, 8 % 3)
e("s_waitcnt lgkmcnt(4)"); smf(6, 9 % 3)
e("s_waitcnt lgkmcnt(0)"); smf(7, 10 % 3)
e("v_mbcnt_lo_u32_b32 v8, -1, 0\nv_mbcnt_hi_u32_b32 v8, -1, v8")
e("v_and_b32 v9, 15, v8\nv_lshlrev_b32 v9, 4, v9\nv_lshrrev_b32 v8, 4, v8\nv_lshl_or_b32 v8, v8, 14, v9")
e(f"s_lshl_b32 s18, s14, 20\ns_lshl_b32 s19, s{S_WAVE}, 17\ns_add_u32 s18, s18, s19\ns_lshl_b32 s19, s15, 8\ns_add_u32 s18, s18, s19")
e(f"s_add_u32 s18, s18, {PART:#x}\ns_add_u32 s19, s18, 65536")
for g in range(8):
    a = ACC + 4 * g
    for c in range(4): e(f"v_max_f32 v{a+c}, 0, v{a+c}")
    e(f"v_mul_f32 v{D0+g}, s34, v{a}")
    for c in range(1, 4): e(f"v_fma_f32 v{D0+g}, v{a+c}, s{34+c}, v{D0+g}")
    if g % 4 == 3:
        e(f"buffer_store_dwordx4 v[{D0+g-3}:{D0+g}], v8, s[4:7], s{18 + g//4} offen")
if STAMP:
    stamp(3)
    e("s_memrealtime s[48:49]\ns_waitcnt lgkmcnt(0)")
    e("s_sub_u32 s42, s42, s40\ns_sub_u32 s44, s44, s40\ns_sub_u32 s46, s46, s40\ns_sub_u32 s47, s48, s38")
    e("v_mov_b32 v12, s42\nv_mov_b32 v13, s44\nv_mov_b32 v14, s46\nv_mov_b32 v15, s47")
    e(f"s_lshl_b32 s18, s2, 3\ns_add_u32 s18, s18, s{S_WAVE}\ns_lshl_b32 s18, s18, 5\ns_add_u32 s18, s18, {STMP:#x}")
    e("v_mov_b32 v8, 0\nv_mov_b32 v16, s38\nv_mov_b32 v17, s48")
    e("buffer_store_dwordx4 v[12:15], v8, s[4:7], s18 offen")
    e("buffer_store_dwordx2 v[16:17], v8, s[4:7], s18 offen offset:16")
e("main_done:\ns_endpgm")

begin("fin_kernel")
e("s_cmp_ge_u32 s2, 256\ns_cbranch_scc1 fin_done")
e("s_load_dwordx2 s[16:17], s[0:1], 88")
e("s_load_dwordx2 s[18:19], s[0:1], 72")
e("v_lshlrev_b32 v1, 4, v0")
e("s_lshr_b32 s20, s2, 2\ns_lshl_b32 s20, s20, 8\ns_and_b32 s21, s2, 3\ns_lshl_b32 s21, s21, 4\ns_add_u32 s20, s20, s21")
e("v_lshrrev_b32 v2, 4, v0\nv_and_b32 v3, 15, v0\nv_lshl_add_u32 v2, v2, 6, v3\nv_add_u32 v2, s20, v2")
e("v_lshlrev_b32 v3, 2, v2\nv_lshlrev_b32 v2, 1, v2")
e(f"s_lshl_b32 s20, s2, 14\ns_add_u32 s20, s20, {PART:#x}")
e(f"s_mov_b32 s22, {WIDE:#x}")
e("s_waitcnt lgkmcnt(0)")
srd(4, 16, 17, WS_SZ)
srd(8, 18, 19, 32768)
for i in range(16):
    if i % 4 == 0 and i: e("s_add_u32 s20, s20, 4096")
    e(f"buffer_load_dwordx4 v[{8+4*i}:{11+4*i}], v1, s[4:7], s20 offen offset:{(i%4)*1024}")
e("buffer_load_dword v4, v3, s[4:7], s22 offen")
for i in range(1, 16):
    e(f"s_waitcnt vmcnt({16-i})")
    for c in range(4): e(f"v_add_f32 v{8+c}, v{8+c}, v{8+4*i+c}")
e("s_nop 1")
e("v_permlane32_swap_b32 v8, v10\nv_permlane32_swap_b32 v9, v11")
e("v_add_f32 v8, v8, v10\nv_add_f32 v9, v9, v11\ns_nop 1")
e("v_permlane16_swap_b32 v8, v9")
e("v_add_f32 v8, v8, v9")
e("s_waitcnt vmcnt(0)")
e("v_add_f32 v8, v8, v4")
e("v_mul_f32 v8, 0xbfb8aa3b, v8\nv_exp_f32 v8, v8\ns_nop 0\nv_add_f32 v8, 1.0, v8\nv_rcp_f32 v8, v8\ns_nop 0")
e("v_cvt_pk_bf16_f32 v8, v8, v8")
e("buffer_store_short v8, v2, s[8:11], 0 offen")
e("fin_done:\ns_endpgm")

e('.section .rodata,"a"')
for name, nv, ns in (("prep_kernel", 112, 80), ("main_kernel", 256, 64), ("fin_kernel", 72, 32)):
    e(f""".p2align 6
.amdhsa_kernel {name}
  .amdhsa_next_free_vgpr {nv}
  .amdhsa_next_free_sgpr {ns}
  .amdhsa_accum_offset {nv}
  .amdhsa_group_segment_fixed_size 0
  .amdhsa_kernarg_size 96
  .amdhsa_user_sgpr_count 2
  .amdhsa_user_sgpr_kernarg_segment_ptr 1
  .amdhsa_system_sgpr_workgroup_id_x 1
.end_amdhsa_kernel""")

res = []
bysite = {str(k): v for k, v in waits.items()}
for l in out:
    if l.startswith("@VM "):
        n = bysite[l[4:]]
        assert 0 <= n <= 63
        l = f"s_waitcnt vmcnt({n})"
    res.append(l)
print("\n".join(res))
```

```python
import sys
args = dict(a.split("=") for a in sys.argv[1:])
STAMP = int(args.get("STAMP", 0))
RAWE = int(args.get("RAWE", 0))
TABE = int(args.get("TABE", 2))
MAP = int(args.get("MAP", 0))
PF = int(args.get("PF", 1))
PRIOQ = int(args.get("PRIOQ", -1))
TOUCH = int(args.get("TOUCH", 1))
BARJ = int(args.get("BARJ", 1))
BA = args.get("BA", "r")
BB = args.get("BB", "01")
BC = args.get("BC", "23")
BAR0 = int(args.get("BAR0", 1))
LAFT = int(args.get("LAFT", 1))
CPF = int(args.get("CPF", 0))
W1W = int(args.get("W1W", 0))

KN = "standalone__deep_cross_wide_deep__recsys_kernel"
EPOCH = 0x0
FLG = 0x1000
IDXP = 0x10000
W1P = 0x390000
PART = 0x720000
STMP = 0xE00000
WS_SZ = 0x1000000
L_STG = 130048
L_XCH = 155648
L_RED = 131072

out = []
emit = True
def e(s):
    if emit:
        for l in s.split("\n"): out.append(l)
class Cnt:
    def __init__(self): self.n = 0; self.tag = {}
    def issue(self, tag=None):
        self.n += 1
        if tag is not None: self.tag[tag] = self.n
    def younger(self, tag): return self.n - self.tag[tag]
vm = Cnt()
waits = {}
def wait_vm(site, tag):
    n = vm.younger(tag)
    waits[site] = min(waits.get(site, 99), n)
    e(f"@VM {site}")
def srd(d, lo, nbytes):
    e(f"s_mov_b32 s{d}, s{lo}\ns_mov_b32 s{d+1}, s{lo+1}\ns_mov_b32 s{d+2}, {nbytes:#x}\ns_mov_b32 s{d+3}, 0x20000")
SB = 72
FINE = int(args.get("FINE", 0))
def fstamp(i):
    if STAMP and FINE: e(f"s_memtime s[{SB+2*i}:{SB+1+2*i}]")
def stamp(i):
    if FINE and 8 <= i <= 11: return
    if STAMP: e(f"s_memtime s[{SB+2*i}:{SB+1+2*i}]")

e(f"""; Wide & Deep recsys forward, gfx950: per-field projected tables P[f][v] = table[v] @ W1_f built on MFMA into LDS,
; @launch grid=(256,1,1) block=(512,1,1) lds=163840
.amdgcn_target "amdgcn-amd-amdhsa--gfx950"
.text
.globl {KN}
.p2align 8
.type {KN},@function
{KN}:""")

VOFF = 0; SIDX = 1; T0 = 2; T1 = 3; AC = 4
DAT = 8; TAB = 32; ACC = 96; POOL = 128; D0 = 192; D1 = 208; W1 = 224
S_WAVE = 3; S_IDX = 20; S_IDX2 = 21; S_W1 = 22; S_M0A = 23; S_M0B = 24; S_CNT = 25; S_BS = 26; S_CS = 27; S_PID = 28; S_N = 29
S_T = 30; S_U = 31
S_W2 = 56
LANE = 8; L16 = 9

e("s_cmp_ge_u32 s2, 256\ns_cbranch_scc1 done")
e("s_load_dwordx16 s[32:47], s[0:1], 0")
e("s_load_dwordx8 s[48:55], s[0:1], 64")
if STAMP: e(f"s_memtime s[{SB}:{SB+1}]\ns_memrealtime s[100:101]")
if CPF:
    e("s_getpc_b64 s[70:71]\nv_cmp_gt_u32 vcc, 112, v0\nv_lshlrev_b32 v2, 7, v0\nv_mov_b32 v3, s71\nv_cndmask_b32 v2, 0, v2, vcc")
    e("v_add_co_u32 v2, vcc, s70, v2\ns_nop 1\nv_addc_co_u32 v3, vcc, 0, v3, vcc")
    e("global_load_dword v23, v[2:3], off")
e(f"v_lshrrev_b32 v1, 6, v0\nv_and_b32 v{LANE}, 63, v0")
e(f"v_readfirstlane_b32 s{S_WAVE}, v1")
e(f"v_lshlrev_b32 v{L16}, 4, v{LANE}")
e(f"s_and_b32 s{S_BS}, s2, 3\ns_lshr_b32 s{S_CS}, s2, 2\ns_lshl_b32 s{S_PID}, s{S_BS}, 6\ns_add_u32 s{S_PID}, s{S_PID}, s{S_CS}")
e(f"s_sub_u32 s{S_T}, s{S_WAVE}, 2\ns_cmp_lt_u32 s{S_WAVE}, 2\ns_cselect_b32 s{S_T}, 6, s{S_T}\ns_lshl_b32 s{S_T}, s{S_T}, 12")
e(f"s_add_u32 m0, s{S_T}, {L_STG}")
e(f"s_mul_i32 s{S_U}, s{S_PID}, 25600\ns_add_u32 s{S_U}, s{S_U}, s{S_T}")
if MAP == 0:
    e(f"v_and_b32 v10, 7, v{LANE}\nv_bfe_u32 v11, v{LANE}, 3, 1\nv_lshrrev_b32 v12, 4, v{LANE}")
else:
    e(f"v_bfe_u32 v10, v{LANE}, 2, 3\nv_and_b32 v11, 1, v{LANE}\nv_bfe_u32 v12, v{LANE}, 1, 1\nv_lshrrev_b32 v13, 5, v{LANE}\nv_lshl_or_b32 v12, v13, 1, v12")
e("v_lshlrev_b32 v13, 4, v10\nv_lshl_or_b32 v13, v11, 15, v13\nv_lshl_or_b32 v13, v12, 12, v13")
e("s_waitcnt lgkmcnt(0)")
srd(8, 32, 16384 * 400)
srd(16, 42, 6400 * 512)
e(f"s_cmp_lt_u32 s{S_WAVE}, 2\ns_cbranch_scc1 role_w1")
for i in range(4):
    e(f"buffer_load_dwordx4 v{L16}, s[8:11], s{S_U} offen offset:{i*1024} lds")
e("s_branch role_join")
e("role_w1:")
e(f"s_cmp_lg_u32 s{S_WAVE}, 0\ns_cbranch_scc1 role_w1b")
e(f"buffer_load_dwordx4 v{L16}, s[8:11], s{S_U} offen lds")
e("role_w1b:")
e(f"s_lshl_b32 s{S_T}, s{S_CS}, 16\ns_lshl_b32 s{S_U}, s{S_WAVE}, 14\ns_add_u32 s{S_T}, s{S_T}, s{S_U}\ns_lshl_b32 s{S_U}, s{S_BS}, 7\ns_add_u32 s{S_T}, s{S_T}, s{S_U}")
for j in range(8):
    e(f"buffer_load_dwordx4 v[{TAB+4*j}:{TAB+3+4*j}], v13, s[16:19], s{S_T} offen offset:{j*512}")
def sloads():
    e(f"s_load_dword s{S_N}, s[54:55], {EPOCH}")
    e(f"s_lshl_b32 s{S_T}, s{S_CS}, 3")
    e(f"s_load_dwordx2 s[52:53], s[44:45], s{S_T}")
    e(f"s_load_dwordx2 s[58:59], s[46:47], s{S_T}")
    e("s_load_dwordx8 s[60:67], s[38:39], 0")
    e("s_load_dword s68, s[40:41], 0\ns_load_dword s69, s[48:49], 0")
sloads()
e("role_join:")
srd(4, 54, WS_SZ)
srd(12, 34, 128000)
e(f"v_lshrrev_b32 v16, 4, v{LANE}\nv_and_b32 v17, 7, v{LANE}\nv_xor_b32 v16, v16, v17\nv_lshlrev_b32 v16, 4, v16")
e(f"v_lshrrev_b32 v17, 3, v{LANE}\nv_lshl_or_b32 v14, v17, 7, v16\nv_xor_b32 v15, 64, v14")
e(f"v_bfe_u32 v16, v{LANE}, 1, 4\nv_lshlrev_b32 v18, 15, v16\nv_lshrrev_b32 v16, 5, v{LANE}\nv_lshl_or_b32 v18, v16, 12, v18\nv_and_b32 v16, 1, v{LANE}\nv_lshl_or_b32 v18, v16, 2, v18")
e(f"s_lshl_b32 s{S_M0A}, s{S_WAVE}, 12")
def tab_dma(vt):
    e(f"s_add_u32 s{S_T}, s{S_M0A}, {vt*32768}\ns_mov_b32 m0, s{S_T}\ns_nop 0")
    for i in range(4):
        if vt == 3 and i == 3:
            e(f"s_cmp_eq_u32 s{S_WAVE}, 7\ns_cselect_b32 s{S_U}, 1024, 0\ns_sub_u32 m0, s{S_T}, s{S_U}\ns_nop 0")
        e(f"buffer_load_dwordx4 v{14 + i%2}, s[12:15], s{S_T} offen offset:{i*1024} lds")
        vm.issue(("t", vt))
def batch(items):
    for c in items:
        if c == "r": raw_w1((0, 1, 2, 3))
        elif c == "a": raw_w1((0, 1))
        elif c == "b": raw_w1((2, 3))
        elif c in "0123": tab_dma(int(c))
def raw_w1(js):
    e(f"s_lshr_b32 s{S_T}, s{S_WAVE}, 1\ns_lshl_b32 s{S_T}, s{S_T}, 13\ns_and_b32 s{S_U}, s{S_WAVE}, 1\ns_lshl_b32 s{S_U}, s{S_U}, 11\ns_add_u32 s{S_T}, s{S_T}, s{S_U}")
    e(f"s_lshl_b32 s{S_U}, s{S_CS}, 3\ns_add_u32 s{S_T}, s{S_T}, s{S_U}")
    for j in js:
        e(f"buffer_load_dword v{24+j}, v18, s[16:19], s{S_T} offen offset:{j*512}")
        vm.issue("raw")
vm.issue("crit"); base = vm.n
if BAR0: e("s_barrier")
if TOUCH:
    e(f"v_and_b32 v16, 7, v{LANE}\nv_lshlrev_b32 v16, 18, v16\ns_lshl_b32 s{S_T}, s{S_WAVE}, 21\ns_add_u32 s{S_T}, s{S_T}, 0x800")
    e(f"buffer_load_dword v23, v16, s[4:7], s{S_T} offen"); vm.issue()
if PF:
    e(f"s_lshr_b32 s{S_T}, s2, 3\ns_lshl_b32 s{S_T}, s{S_T}, 3\ns_add_u32 s{S_T}, s{S_T}, s{S_WAVE}")
    e(f"v_and_b32 v16, 15, v{LANE}\nv_lshlrev_b32 v16, 7, v16")
    if "r" not in BA:
        e(f"s_lshl_b32 s{S_U}, s{S_T}, 11")
        e(f"buffer_load_dword v23, v16, s[16:19], s{S_U} offen"); vm.issue()
    e(f"s_lshl_b32 s{S_U}, s{S_T}, 9\nv_and_b32 v16, 0x180, v16")
    e(f"buffer_load_dword v23, v16, s[12:15], s{S_U} offen"); vm.issue()
batch(BA)
n_early = vm.n - base
e(f"v_and_b32 v16, 28, v{LANE}\nv_lshlrev_b32 v{VOFF}, 8, v16\nv_and_b32 v16, 1, v{LANE}\nv_lshl_or_b32 v{VOFF}, v16, 6, v{VOFF}")
e(f"v_and_b32 v16, 32, v{LANE}\nv_or_b32 v{VOFF}, v{VOFF}, v16\nv_and_b32 v16, 2, v{LANE}\nv_lshl_or_b32 v{VOFF}, v16, 3, v{VOFF}")
XA = 192; XF = 208; XC = 224; XD = 232; XO = 248
e(f"v_mul_u32_u24 v16, 400, v{LANE}")
e(f"s_lshl_b32 s{S_T}, s{S_WAVE}, 6\ns_add_u32 s{S_T}, s{S_T}, {L_STG - 128}\nv_add_u32 v17, s{S_T}, v16")
for t in range(16):
    e(f"v_add_u32 v19, {t}, v{LANE}\nv_and_b32 v{XF+t}, 15, v19\nv_lshl_add_u32 v{XA+t}, v{XF+t}, 2, v17")
for u in range(8): e(f"v_lshl_or_b32 v{XC+u}, v{XF+2*u+1}, 16, v{XF+2*u}")
e(f"v_bfe_u32 v19, v{LANE}, 2, 2\nv_bfe_u32 v20, v{LANE}, 4, 1\nv_lshlrev_b32 v20, 1, v20\nv_mov_b32 v21, 0x3f80")
e("v_cmp_eq_u32 vcc, v19, v20\nv_add_u32 v20, 1, v20\ns_nop 0")
e(f"v_cndmask_b32 v{AC}, 0, v21, vcc\nv_cndmask_b32 v{AC+1}, 0, v21, vcc")
e(f"v_cmp_eq_u32 vcc, v19, v20\nv_and_b32 v19, 3, v{LANE}\ns_nop 0")
e(f"v_cndmask_b32 v{AC+2}, 0, v21, vcc\nv_cndmask_b32 v{AC+3}, 0, v21, vcc")
e(f"v_mul_u32_u24 v{SIDX}, 0x5555, v19")
e(f"s_lshl_b32 s{S_T}, s{S_BS}, 3\ns_add_u32 s{S_T}, s{S_T}, s{S_WAVE}\ns_mul_i32 s{S_IDX}, s{S_T}, 114688\ns_add_u32 s{S_IDX}, s{S_IDX}, {IDXP:#x}\ns_add_u32 s{S_IDX2}, s{S_IDX}, 8192")
e(f"s_mul_i32 s{S_W1}, s{S_CS}, 57344\ns_add_u32 s{S_W1}, s{S_W1}, {W1P + 8192:#x}")
DELTA = 28800
e(f"s_add_u32 s{S_M0B}, s{S_M0A}, {65536-DELTA}")
e(f"s_lshr_b32 s70, s{S_PID}, 3\ns_mul_i32 s70, s70, 114688\ns_add_u32 s70, s70, {IDXP:#x}")
e(f"s_cmp_lt_u32 s{S_WAVE}, 2\ns_cbranch_scc1 x_w1")
e(f"s_bfe_u32 s{S_T}, s{S_PID}, 0x10002\ns_lshl_b32 s{S_T}, s{S_T}, 13\ns_add_u32 s70, s70, s{S_T}")
e(f"s_and_b32 s{S_T}, s{S_PID}, 3\ns_lshl_b32 s{S_T}, s{S_T}, 8\ns_add_u32 s70, s70, s{S_T}")
e(f"s_lshl_b32 s{S_T}, s{S_WAVE}, 14\ns_add_u32 s70, s70, s{S_T}\ns_sub_u32 s70, s70, 32768")
e(f"s_waitcnt vmcnt({n_early})")
stamp(1)
e("s_barrier")
fstamp(8)
for t in range(16): e(f"ds_read_b32 v{XD+t}, v{XA+t}")
for u in range(8):
    e(f"s_waitcnt lgkmcnt({14-2*u})")
    if u == 3: fstamp(9)
    if u == 4: fstamp(10)
    if u == 7: fstamp(11)
    e(f"v_lshl_add_u32 v{XD+2*u}, v{XD+2*u+1}, 16, v{XD+2*u}")
    e(f"v_lshl_add_u32 v{XO+u}, v{XD+2*u}, 4, v{XC+u}")
    if u == 3: e(f"buffer_store_dwordx4 v[{XO}:{XO+3}], v{VOFF}, s[4:7], s70 offen sc1")
e(f"buffer_store_dwordx4 v[{XO+4}:{XO+7}], v{VOFF}, s[4:7], s70 offen offset:128 sc1")
stamp(2)
sloads()
e("s_branch x_join")
e("x_w1:")
e(f"s_mov_b32 s{S_T}, 114688\nv_mul_lo_u32 v13, v10, s{S_T}\nv_lshl_add_u32 v13, v11, 4, v13")
e("v_and_b32 v10, 1, v12\nv_lshl_add_u32 v13, v10, 5, v13\nv_lshrrev_b32 v10, 1, v12\nv_lshl_add_u32 v13, v10, 7, v13")
e(f"s_waitcnt vmcnt({n_early + 8})")
stamp(1)
e("s_barrier")
fstamp(8); fstamp(9); fstamp(10); fstamp(11)
e(f"s_cmp_lg_u32 s{S_WAVE}, 0\ns_cbranch_scc1 x_w1b")
e(f"v_add_u32 v17, {L_STG + 384}, v16")
for t in range(4):
    e(f"v_and_b32 v19, 3, v{XF+t}\nv_lshl_add_u32 v19, v19, 2, v17\nds_read_b32 v{XD+t}, v19")
e(f"s_bfe_u32 s{S_T}, s{S_PID}, 0x20001\ns_lshl_b32 s{S_T}, s{S_T}, 7\ns_add_u32 s70, s70, s{S_T}")
e(f"s_and_b32 s{S_T}, s{S_PID}, 1\ns_lshl_b32 s{S_T}, s{S_T}, 3\ns_add_u32 s70, s70, s{S_T}\ns_add_u32 s70, s70, 98304")
e("s_waitcnt lgkmcnt(0)")
for u in range(2):
    e(f"v_lshl_add_u32 v{XD+2*u}, v{XD+2*u+1}, 16, v{XD+2*u}")
    e(f"v_lshl_add_u32 v{XO+u}, v{XD+2*u}, 4, v{XC+u}")
e(f"s_waitcnt vmcnt({n_early})")
e(f"buffer_store_dwordx2 v[{XO}:{XO+1}], v{VOFF}, s[4:7], s70 offen sc1")
e("x_w1b:")
stamp(2)
e(f"s_cmp_ge_u32 s{S_CS}, 50\ns_cbranch_scc1 x_join")
e(f"s_mul_i32 s70, s{S_BS}, 917504\ns_lshl_b32 s{S_T}, s{S_CS}, 10\ns_add_u32 s70, s70, s{S_T}\ns_lshl_b32 s{S_T}, s{S_WAVE}, 8\ns_add_u32 s70, s70, s{S_T}")
e(f"s_add_u32 s70, s70, {W1P:#x}\ns_add_u32 s71, s70, 57344")
e(f"s_mov_b32 s{S_T}, 0x05040100\ns_mov_b32 s{S_U}, 0x07060302")
e(f"s_cmp_eq_u32 s{S_WAVE}, 0\ns_cbranch_scc1 x_w1c\ns_waitcnt vmcnt({n_early})\nx_w1c:")
fstamp(10)
for t in range(4):
    for jj in range(4):
        r0 = TAB + 4 * (2 * jj) + t; r1 = TAB + 4 * (2 * jj + 1) + t
        e(f"v_perm_b32 v{TAB+32+4*(2*t)+jj}, v{r1}, v{r0}, s{S_T}")
        e(f"v_perm_b32 v{TAB+32+4*(2*t+1)+jj}, v{r1}, v{r0}, s{S_U}")
e(f"s_cmp_ge_u32 s{S_CS}, 48\ns_cselect_b32 s{S_CNT}, 4, 1")
fstamp(11)
e("x_w1st:")
for cc in range(8):
    cp = (cc % 4) // 2; par = cc % 2
    e(f"buffer_store_dwordx4 v[{TAB+32+4*cc}:{TAB+35+4*cc}], v13, s[4:7], s{70 + cc//4} offen offset:{par*512+cp*64} sc1")
e(f"s_add_u32 s70, s70, 2048\ns_add_u32 s71, s71, 2048\ns_sub_u32 s{S_CNT}, s{S_CNT}, 1\ns_cmp_lg_u32 s{S_CNT}, 0\ns_cbranch_scc1 x_w1st")
stamp(2)
e("x_join:")
if BARJ: e("s_barrier")
vm.issue("st")
batch(BB)
e(f"s_lshr_b32 s{S_T}, s{S_CS}, 4\ns_lshl_b32 s{S_T}, s{S_T}, 6")
e(f"s_and_b32 s{S_U}, s{S_WAVE}, 1\ns_mul_i32 s{S_U}, s{S_U}, 56")
e(f"v_subrev_u32 v10, s{S_U}, v{LANE}\nv_cmp_gt_u32 vcc, 56, v{LANE}\ns_nop 1\nv_cndmask_b32 v10, v10, v{LANE}, vcc\nv_add_u32 v10, s{S_T}, v10")
e(f"s_lshl_b32 s{S_T}, s{S_BS}, 3\ns_add_u32 s{S_T}, s{S_T}, s{S_WAVE}\ns_lshl_b32 s{S_T}, s{S_T}, 3\nv_add_u32 v11, s{S_T}, v{LANE}")
e(f"v_cmp_gt_u32 vcc, 8, v{LANE}\ns_nop 1\nv_cndmask_b32 v10, v10, v11, vcc\nv_lshlrev_b32 v19, 7, v10")
e(f"v_and_b32 v10, 24, v{LANE}\nv_and_b32 v11, 3, v{LANE}\nv_lshl_add_u32 v10, v11, 1, v10\nv_bfe_u32 v12, v{LANE}, 2, 1\nv_add_u32 v10, v10, v12\nv_lshlrev_b32 v10, 7, v10")
e(f"v_bfe_u32 v12, v{LANE}, 3, 1\nv_lshl_or_b32 v11, v12, 2, v11\nv_lshrrev_b32 v12, 5, v{LANE}\nv_xor_b32 v11, v11, v12\nv_lshl_or_b32 v10, v11, 4, v10")
e(f"v_add_u32 v10, s{S_M0A}, v10")
e("s_waitcnt lgkmcnt(0)")
e(f"s_not_b32 s{S_N}, s{S_N}")
e("s_lshl_b32 s56, s58, 16\ns_and_b32 s57, s58, 0xffff0000\ns_lshl_b32 s58, s59, 16\ns_and_b32 s59, s59, 0xffff0000")
e(f"s_lshl_b32 s{S_T}, s52, 16\ns_and_b32 s{S_U}, s52, 0xffff0000\ns_lshl_b32 s52, s53, 16\ns_and_b32 s53, s53, 0xffff0000")
for g in range(8):
    for c, r in enumerate((S_T, S_U, 52, 53)): e(f"v_mov_b32 v{ACC+4*g+c}, s{r}")
wait_vm("st", "st")
e("s_barrier")
stamp(3)
e(f"s_cmp_lg_u32 s{S_WAVE}, 0\ns_cbranch_scc1 noflag")
e(f"s_lshl_b32 s{S_T}, s{S_PID}, 7\ns_add_u32 s{S_T}, s{S_T}, {FLG:#x}\nv_mov_b32 v11, s{S_N}\nv_mov_b32 v12, 0\ns_mov_b64 exec, 1")
e(f"buffer_store_dword v11, v12, s[4:7], s{S_T} offen sc1\ns_mov_b64 exec, -1")
e("noflag:")
batch(BC)
for s in range(4): e(f"v_xor_b32 v{20+s}, {s*32}, v10")
e(f"s_lshr_b32 s{S_T}, s{S_WAVE}, 1\ns_lshl_b32 s{S_T}, s{S_T}, 10\ns_and_b32 s{S_U}, s{S_WAVE}, 1\ns_lshl_b32 s{S_U}, s{S_U}, 3\ns_add_u32 s{S_T}, s{S_T}, s{S_U}\ns_add_u32 s{S_T}, s{S_T}, {L_XCH}")
e(f"v_add_u32 v11, s{S_T}, v{L16}\nv_add_u32 v12, {L_XCH}, v{L16}")
e(f"s_mov_b32 s{S_T}, 0x05040100\ns_mov_b32 s{S_U}, 0x07060302")
wait_vm("raw", "raw")
e(f"v_perm_b32 v28, v25, v24, s{S_T}\nv_perm_b32 v29, v27, v26, s{S_T}\nv_perm_b32 v30, v25, v24, s{S_U}\nv_perm_b32 v31, v27, v26, s{S_U}")
e("ds_write_b64 v11, v[28:29]\nds_write_b64 v11, v[30:31] offset:4096")
def tab_rd(vt):
    wait_vm(("td", vt), ("t", vt))
    if vt == 2:
        for s in range(4): e(f"v_add_u32 v{20+s}, 0x10000, v{20+s}")
    for s in range(4):
        r = TAB + 16 * vt + 4 * s
        e(f"ds_read_b128 v[{r}:{r+3}], v{20+s} offset:{(vt%2)*32768}")
tab_rd(0)
e("s_waitcnt lgkmcnt(4)\ns_barrier")
stamp(4)
for i in range(8): e(f"ds_read_b128 v[{W1+4*i}:{W1+4*i+3}], v12 offset:{i*1024}")

def ldw(i):
    e(f"buffer_load_dwordx4 v[{W1+4*i}:{W1+4*i+3}], v{VOFF}, s[4:7], s{S_W1} offen offset:{i*128} sc1")
    vm.issue(("w", i))
def ldi(reg, k, tag):
    e(f"buffer_load_dwordx4 v[{reg}:{reg+3}], v{VOFF}, s[4:7], s{S_IDX if k < 8 else S_IDX2} offen offset:{(k%8)*128} sc1")
    vm.issue(tag)
def mf(vt, i):
    s, par = i // 2, i % 2
    d = D1 if par else D0
    c = "0" if s == 0 else f"v[{d}:{d+15}]"
    e(f"v_mfma_f32_32x32x16_bf16 v[{d}:{d+15}], v[{TAB+16*vt+4*s}:{TAB+16*vt+4*s+3}], v[{W1+16*par+4*s}:{W1+16*par+4*s+3}], {c}")
def frag_of(i): return (i % 2) * 4 + i // 2
def cvt(dst, r): e(f"v_cvt_pk_bf16_f32 v{dst}, v{D0+r}, v{D1+r}")
def wr(src, vt, r):
    off = (vt % 2) * 32768 + r * 256 + (DELTA if vt >= 2 else 0)
    e(f"ds_write_addtid_b32 v{src} offset:{off}")
SD = "dst_sel:DWORD dst_unused:UNUSED_PAD src0_sel:DWORD"
def unpack(w0):
    e(f"v_lshlrev_b32_sdwa v{T0}, 3, v{w0} {SD} src1_sel:WORD_1")
    e(f"v_lshlrev_b32_sdwa v{w0}, 3, v{w0} {SD} src1_sel:WORD_0")
    e(f"v_lshlrev_b32_sdwa v{T1}, 3, v{w0+1} {SD} src1_sel:WORD_1")
    e(f"v_lshlrev_b32_sdwa v{w0+1}, 3, v{w0+1} {SD} src1_sel:WORD_0")
def reads(w0, slot):
    d = DAT + 8 * slot
    for i, a in enumerate((w0, T0, w0 + 1, T1)):
        e(f"ds_read_b64 v[{d+2*i}:{d+2*i+1}], v{a}")
def smf(g, slot):
    d = DAT + 8 * slot; a = ACC + 4 * g
    e(f"v_smfmac_f32_16x16x64_bf16 v[{a}:{a+3}], v[{AC}:{AC+3}], v[{d}:{d+7}], v{SIDX}")

for vt in range(4):
    if vt < 3: tab_rd(vt + 1)
    if vt % 2 == 0: e(f"s_mov_b32 m0, s{S_M0A if vt == 0 else S_M0B}")
    e(f"s_waitcnt lgkmcnt({4 if vt < 3 else 15})")
    for i in range(8): mf(vt, i)
    e("s_nop 7\ns_nop 3")
    for r in range(16):
        cvt(D0 + r, r)
        if r >= 1: wr(D0 + r - 1, vt, r - 1)
    wr(D0 + 15, vt, 15)
stamp(5)
e(f"s_mov_b32 s{S_CNT}, 0\ns_mov_b32 s{S_T}, {FLG:#x}")
e("poll1:")
e(f"buffer_load_dword v10, v19, s[4:7], s{S_T} offen sc1")
e(f"s_add_u32 s{S_CNT}, s{S_CNT}, 1\ns_cmp_gt_u32 s{S_CNT}, 0x40000\ns_cbranch_scc1 poll1_done")
e("s_waitcnt vmcnt(0)")
e(f"v_cmp_ne_u32 vcc, s{S_N}, v10\ns_cbranch_vccnz poll1")
e("poll1_done:")
stamp(6)
for k in range(2): ldi(POOL + 4 * k, k, ("i", k))
wait_vm("p0i", ("i", 0))
unpack(POOL)
if LAFT: e("s_waitcnt lgkmcnt(0)\ns_barrier")
ldi(POOL + 8, 2, ("i", 2))
for i in range(4): ldw(frag_of(i))
ldi(POOL + 12, 3, ("i", 3))
for i in range(4, 8): ldw(frag_of(i))
for k in range(4, 8): ldi(POOL + 4 * k, k, ("i", k))
e(f"s_add_u32 s{S_W1}, s{S_W1}, 8192")
e(f"s_mov_b32 s{S_CNT}, 3")
if not LAFT: e("s_waitcnt lgkmcnt(0)\ns_barrier")
stamp(7)
if STAMP: e(f"s_waitcnt lgkmcnt(0)\ns_mov_b32 s40, s{SB+14}\ns_mov_b32 s42, s{SB+14}\ns_mov_b32 s44, 0\ns_mov_b32 s45, 0\ns_mov_b32 s46, 0")

MQ = [1, 1, 2, 2, 3, 4, 5, 6]
def phase(par):
    blk = [POOL + (48 if par else 0), POOL + 16, POOL + 32, POOL + (0 if par else 48)]
    def w0(q): return blk[q // 8] + (q % 8) * 2
    for q in range(32):
        if q == PRIOQ: e(f"s_cmp_ge_u32 s{S_WAVE}, 4\ns_cbranch_scc0 1f\ns_setprio 1\n1:")
        if q >= 3:
            e("s_waitcnt lgkmcnt(8)")
            smf((q - 3) // 4, q % 3)
        reads(w0(q), q % 3)
        vt = q // 8
        for i in range(8):
            if MQ[i] == q % 8:
                if vt == 0: wait_vm((par, "w", i), ("w", frag_of(i)))
                mf(vt, i)
                if vt == 3 and not W1W: ldw(frag_of(i))
        if q < 16 and q % 2 == 0:
            k = 8 + q // 2
            ldi(blk[k // 4] + 4 * (k % 4), k, ("i", k))
        if q == 20: e(f"s_add_u32 s{S_IDX}, s{S_IDX}, 16384\ns_add_u32 s{S_IDX2}, s{S_IDX2}, 16384")
        if q >= 25 and q % 2 == 1:
            k = (q - 25) // 2
            ldi(blk[3] + 4 * k, k, ("n", k))
        if q < 31:
            if (q + 1) % 2 == 0: wait_vm((par, "i", q), ("i", (q + 1) // 2))
            unpack(w0(q + 1))
        if q % 8 == 7 and vt < 3:
            for r in range(8): cvt(blk[vt] + r, r)
        if q % 8 == 0 and vt > 0:
            for r in range(8, 16): cvt(blk[vt - 1] + r, r)
    for k in range(4): vm.tag[("i", k)] = vm.tag[("n", k)]
    e("s_waitcnt lgkmcnt(8)"); smf(7, 29 % 3)
    e("s_waitcnt lgkmcnt(4)"); smf(7, 30 % 3)
    e(f"s_mov_b32 m0, s{S_M0A}")
    for r in range(16): cvt(D0 + r, r)
    if PRIOQ >= 0: e("s_setprio 0")
    if STAMP: e("s_memtime s[48:49]")
    e("s_waitcnt lgkmcnt(0)")
    if STAMP: e("s_sub_u32 s47, s48, s40\ns_add_u32 s46, s46, s47\ns_sub_u32 s47, s40, s42\ns_add_u32 s45, s45, s47")
    e("s_barrier")
    if STAMP: e("s_memtime s[42:43]")
    smf(7, 31 % 3)
    n = 0
    for vt in (1, 0, 2, 3):
        if vt == 2: e(f"s_mov_b32 m0, s{S_M0B}\ns_nop 0")
        for r in range(16):
            wr(blk[vt] + r if vt < 3 else D0 + r, vt, r)
            if W1W and n % 4 == 0 and n < 32: ldw(frag_of(n // 4))
            if n >= 32 and n % 8 == 0:
                k = 4 + (n - 32) // 8
                ldi(blk[1] + 4 * (k % 4), k, ("i", k))
            n += 1
    e(f"s_add_u32 s{S_W1}, s{S_W1}, 8192")
    wait_vm((par, "i0"), ("i", 0))
    unpack(blk[3])
    e("s_waitcnt lgkmcnt(0)")
    if STAMP: e("s_sub_u32 s47, s42, s40\ns_add_u32 s44, s44, s47")
    if par == 1: e(f"s_sub_u32 s{S_CNT}, s{S_CNT}, 1\ns_cmp_lg_u32 s{S_CNT}, 0")
    e("s_barrier")
    if STAMP: e("s_memtime s[40:41]")

e(".p2align 6\nmain_loop:")
phase(0); phase(1)
e("s_cbranch_scc1 main_loop")
emit = False
phase(0); phase(1)
emit = True
stamp(8)
LN = TAB; ROW = TAB + 1; XW = TAB + 4
for q in range(8):
    if q >= 3:
        e("s_waitcnt lgkmcnt(8)"); smf(q - 3, q % 3)
    reads(POOL + 2 * q, q % 3)
    if q < 7:
        if q % 2 == 1: wait_vm(("l", q), ("i", (q + 1) // 2))
        unpack(POOL + 2 * (q + 1))
e(f"v_mbcnt_lo_u32_b32 v{LN}, -1, 0\nv_mbcnt_hi_u32_b32 v{LN}, -1, v{LN}")
srd(8, 36, 16384 * 26)
srd(12, 50, 32768)
e(f"s_cmp_lg_u32 s{S_WAVE}, 0\ns_cbranch_scc1 nowide")
e(f"s_lshr_b32 s{S_T}, s{S_PID}, 2\ns_lshl_b32 s{S_T}, s{S_T}, 8\ns_and_b32 s{S_U}, s{S_PID}, 3\ns_lshl_b32 s{S_U}, s{S_U}, 4\ns_add_u32 s{S_T}, s{S_T}, s{S_U}")
e(f"v_lshrrev_b32 v{ROW}, 4, v{LN}\nv_and_b32 v{ROW+1}, 15, v{LN}\nv_lshl_add_u32 v{ROW}, v{ROW}, 6, v{ROW+1}\nv_add_u32 v{ROW}, s{S_T}, v{ROW}")
e(f"v_mul_u32_u24 v{ROW+1}, 26, v{ROW}")
for j in range(13): e(f"buffer_load_ushort v{XW+j}, v{ROW+1}, s[8:11], 0 offen offset:{2*j}")
e("nowide:")
e("s_waitcnt lgkmcnt(8)"); smf(5, 8 % 3)
e("s_waitcnt lgkmcnt(4)"); smf(6, 9 % 3)
e("s_waitcnt lgkmcnt(0)"); smf(7, 10 % 3)
PV = TAB + 20
e(f"v_and_b32 v{PV+1}, 15, v{LN}\nv_lshlrev_b32 v{PV+1}, 4, v{PV+1}\nv_lshrrev_b32 v{PV}, 4, v{LN}\nv_lshl_or_b32 v{PV}, v{PV}, 14, v{PV+1}")
e(f"s_lshl_b32 s70, s{S_BS}, 20\ns_lshl_b32 s71, s{S_WAVE}, 17\ns_add_u32 s70, s70, s71\ns_lshl_b32 s71, s{S_CS}, 8\ns_add_u32 s70, s70, s71")
e(f"s_add_u32 s70, s70, {PART:#x}\ns_add_u32 s71, s70, 65536")
e(f"s_and_b32 s{S_U}, s{S_N}, 15\nv_mov_b32 v{PV+2}, s{S_U}")
for g in range(8):
    a = ACC + 4 * g
    for c in range(4): e(f"v_max_f32 v{a+c}, 0, v{a+c}")
    e(f"v_mul_f32 v{D0+g}, s56, v{a}")
    for c in range(1, 4): e(f"v_fma_f32 v{D0+g}, v{a+c}, s{56+c}, v{D0+g}")
    e(f"v_and_or_b32 v{D0+g}, v{D0+g}, -16, v{PV+2}")
    if g % 4 == 3:
        e(f"buffer_store_dwordx4 v[{D0+g-3}:{D0+g}], v{PV}, s[4:7], s{70 + g//4} offen sc1")
stamp(9)
e(f"v_lshlrev_b32 v{PV+1}, 4, v{LN}")
e(f"s_lshl_b32 s70, s{S_PID}, 14\ns_lshl_b32 s71, s{S_WAVE}, 11\ns_add_u32 s70, s70, s71\ns_add_u32 s70, s70, {PART:#x}")
e(f"s_lshl_b32 s71, s{S_WAVE}, 8\ns_add_u32 s71, s71, {L_RED}\nv_lshl_add_u32 v{PV+3}, v{LN}, 2, s71")
e(f"s_cmp_lg_u32 s{S_WAVE}, 0\ns_cbranch_scc1 nowide2")
e("s_waitcnt vmcnt(2)")
e(f"s_lshl_b32 s68, s68, 16\ns_lshl_b32 s69, s69, 16\nv_mov_b32 v{XW+13}, s68\nv_add_f32 v{XW+13}, s69, v{XW+13}")
for j in range(13):
    sw = 60 + j // 2
    if j % 2 == 0: e(f"s_lshl_b32 s{S_T}, s{sw}, 16")
    else: e(f"s_and_b32 s{S_T}, s{sw}, 0xffff0000")
    e(f"v_lshlrev_b32 v{XW+j}, 16, v{XW+j}")
    e(f"v_fma_f32 v{XW+13}, v{XW+j}, s{S_T}, v{XW+13}")
e("nowide2:")
e(f"s_mov_b32 s{S_CNT}, 0\ns_waitcnt vmcnt(0)")
stamp(10)
e("poll2:")
e(f"buffer_load_dwordx4 v[{D1}:{D1+3}], v{PV+1}, s[4:7], s70 offen sc1")
e(f"buffer_load_dwordx4 v[{D1+4}:{D1+7}], v{PV+1}, s[4:7], s70 offen offset:1024 sc1")
e(f"s_add_u32 s{S_CNT}, s{S_CNT}, 1\ns_cmp_gt_u32 s{S_CNT}, 0x40000\ns_cbranch_scc1 poll2_done")
e("s_waitcnt vmcnt(0)")
for i in range(8): e(f"v_xor_b32 v{D1+8+i}, v{PV+2}, v{D1+i}")
e(f"v_or3_b32 v{D1+8}, v{D1+8}, v{D1+9}, v{D1+10}\nv_or3_b32 v{D1+11}, v{D1+11}, v{D1+12}, v{D1+13}\nv_or3_b32 v{D1+8}, v{D1+8}, v{D1+14}, v{D1+15}")
e(f"v_or_b32 v{D1+8}, v{D1+8}, v{D1+11}\nv_and_b32 v{D1+8}, 15, v{D1+8}\nv_cmp_ne_u32 vcc, 0, v{D1+8}\ns_cbranch_vccnz poll2")
e("poll2_done:\ns_waitcnt vmcnt(0)")
stamp(11)
for c in range(4): e(f"v_add_f32 v{D1+c}, v{D1+c}, v{D1+4+c}")
e(f"s_nop 1\nv_permlane32_swap_b32 v{D1}, v{D1+2}\nv_permlane32_swap_b32 v{D1+1}, v{D1+3}")
e(f"v_add_f32 v{D1}, v{D1}, v{D1+2}\nv_add_f32 v{D1+1}, v{D1+1}, v{D1+3}\ns_nop 1")
e(f"v_permlane16_swap_b32 v{D1}, v{D1+1}\nv_add_f32 v{D1}, v{D1}, v{D1+1}")
e(f"ds_write_b32 v{PV+3}, v{D1}\ns_waitcnt lgkmcnt(0)\ns_barrier")
e(f"s_cmp_lg_u32 s{S_WAVE}, 0\ns_cbranch_scc1 fin")
for i in range(1, 8): e(f"ds_read_b32 v{D1+i}, v{PV+3} offset:{256*i}")
e(f"v_add_f32 v{D1}, v{D1}, v{XW+13}\nv_lshlrev_b32 v{ROW}, 1, v{ROW}")
e("s_waitcnt lgkmcnt(0)")
e(f"v_add_f32 v{D1+1}, v{D1+1}, v{D1+2}\nv_add_f32 v{D1+3}, v{D1+3}, v{D1+4}\nv_add_f32 v{D1+5}, v{D1+5}, v{D1+6}\nv_add_f32 v{D1}, v{D1}, v{D1+7}")
e(f"v_add_f32 v{D1+1}, v{D1+1}, v{D1+3}\nv_add_f32 v{D1}, v{D1}, v{D1+5}\nv_add_f32 v{D1}, v{D1}, v{D1+1}")
e(f"v_mul_f32 v{D1}, 0xbfb8aa3b, v{D1}\nv_exp_f32 v{D1}, v{D1}\ns_nop 0\nv_add_f32 v{D1}, 1.0, v{D1}\nv_rcp_f32 v{D1}, v{D1}\ns_nop 0")
e(f"v_cvt_pk_bf16_f32 v{D1}, v{D1}, v{D1}")
e(f"buffer_store_short v{D1}, v{ROW}, s[12:15], 0 offen")
e("s_cmp_lg_u32 s2, 0\ns_cbranch_scc1 fin")
e(f"v_mov_b32 v{D1+1}, s{S_N}\nv_mov_b32 v{D1+2}, {EPOCH}\ns_mov_b64 exec, 1")
e(f"buffer_store_dword v{D1+1}, v{D1+2}, s[4:7], 0 offen\ns_mov_b64 exec, -1")
e("fin:")
if STAMP:
    stamp(12)
    e("s_memrealtime s[98:99]\ns_waitcnt lgkmcnt(0)")
    e(f"s_lshl_b32 s70, s2, 3\ns_add_u32 s70, s70, s{S_WAVE}\ns_lshl_b32 s70, s70, 7\ns_add_u32 s70, s70, {STMP:#x}")
    e("v_mov_b32 v8, 0")
    for i in range(1, 13):
        e(f"s_sub_u32 s{SB+2*i}, s{SB+2*i}, s{SB}\nv_mov_b32 v9, s{SB+2*i}")
        e(f"buffer_store_dword v9, v8, s[4:7], s70 offen offset:{4*(i-1)}")
    for i, r in enumerate((44, 45, 46, 100, 98)):
        e(f"v_mov_b32 v9, s{r}\nbuffer_store_dword v9, v8, s[4:7], s70 offen offset:{48+4*i}")
e("done:\ns_endpgm")

e(f""".section .rodata,"a"
.p2align 6
.amdhsa_kernel {KN}
  .amdhsa_next_free_vgpr 256
  .amdhsa_next_free_sgpr 102
  .amdhsa_accum_offset 256
  .amdhsa_group_segment_fixed_size 0
  .amdhsa_kernarg_size 96
  .amdhsa_user_sgpr_count 2
  .amdhsa_user_sgpr_kernarg_segment_ptr 1
  .amdhsa_system_sgpr_workgroup_id_x 1
.end_amdhsa_kernel""")

bysite = {str(k): v for k, v in waits.items()}
res = []
for l in out:
    if l.startswith("@VM "):
        n = bysite[l[4:]]
        assert 0 <= n <= 63
        l = f"s_waitcnt vmcnt({n})"
    res.append(l)
print("\n".join(res))
```

```python
import sys
args = dict(a.split("=") for a in sys.argv[1:])
STAMP = int(args.get("STAMP", 0))
RAWE = int(args.get("RAWE", 0))
TABE = int(args.get("TABE", 2))
MAP = int(args.get("MAP", 0))
PF = int(args.get("PF", 1))
PRIOQ = int(args.get("PRIOQ", -1))
TOUCH = int(args.get("TOUCH", 1))
BARJ = int(args.get("BARJ", 1))
BA = args.get("BA", "r")
BB = args.get("BB", "01")
BC = args.get("BC", "23")
BAR0 = int(args.get("BAR0", 1))
LAFT = int(args.get("LAFT", 1))
CPF = int(args.get("CPF", 0))
W1W = int(args.get("W1W", 0))

KN = "standalone__deep_cross_wide_deep__recsys_kernel"
EPOCH = 0x0
FLG = 0x1000
IDXP = 0x10000
W1P = 0x390000
PART = 0x720000
STMP = 0xE00000
WS_SZ = 0x1000000
L_STG = 130048
L_XCH = 155648
L_RED = 131072

out = []
emit = True
def e(s):
    if emit:
        for l in s.split("\n"): out.append(l)
class Cnt:
    def __init__(self): self.n = 0; self.tag = {}
    def issue(self, tag=None):
        self.n += 1
        if tag is not None: self.tag[tag] = self.n
    def younger(self, tag): return self.n - self.tag[tag]
vm = Cnt()
waits = {}
def wait_vm(site, tag):
    n = vm.younger(tag)
    waits[site] = min(waits.get(site, 99), n)
    e(f"@VM {site}")
def srd(d, lo, nbytes):
    e(f"s_mov_b32 s{d}, s{lo}\ns_mov_b32 s{d+1}, s{lo+1}\ns_mov_b32 s{d+2}, {nbytes:#x}\ns_mov_b32 s{d+3}, 0x20000")
SB = 72
FINE = int(args.get("FINE", 0))
def fstamp(i):
    if STAMP and FINE: e(f"s_memtime s[{SB+2*i}:{SB+1+2*i}]")
def stamp(i):
    if FINE and 8 <= i <= 11: return
    if STAMP: e(f"s_memtime s[{SB+2*i}:{SB+1+2*i}]")

e(f"""; Wide & Deep recsys forward, gfx950: per-field projected tables P[f][v] = table[v] @ W1_f built on MFMA into LDS,
; @launch grid=(256,1,1) block=(512,1,1) lds=163840
.amdgcn_target "amdgcn-amd-amdhsa--gfx950"
.text
.globl {KN}
.p2align 8
.type {KN},@function
{KN}:""")

VOFF = 0; SIDX = 1; T0 = 2; T1 = 3; AC = 4
DAT = 8; TAB = 32; ACC = 96; POOL = 128; D0 = 192; D1 = 208; W1 = 224
S_WAVE = 3; S_IDX = 20; S_IDX2 = 21; S_W1 = 22; S_M0A = 23; S_M0B = 24; S_CNT = 25; S_BS = 26; S_CS = 27; S_PID = 28; S_N = 29
S_T = 30; S_U = 31
S_W2 = 56
LANE = 8; L16 = 9

e("s_cmp_ge_u32 s2, 256\ns_cbranch_scc1 done")
e("s_load_dwordx16 s[32:47], s[0:1], 0")
e("s_load_dwordx8 s[48:55], s[0:1], 64")
if STAMP: e(f"s_memtime s[{SB}:{SB+1}]\ns_memrealtime s[100:101]")
if int(args.get("FIX", 0)): e("s_memrealtime s[100:101]")
if CPF:
    e("s_getpc_b64 s[70:71]\nv_cmp_gt_u32 vcc, 112, v0\nv_lshlrev_b32 v2, 7, v0\nv_mov_b32 v3, s71\nv_cndmask_b32 v2, 0, v2, vcc")
    e("v_add_co_u32 v2, vcc, s70, v2\ns_nop 1\nv_addc_co_u32 v3, vcc, 0, v3, vcc")
    e("global_load_dword v23, v[2:3], off")
e(f"v_lshrrev_b32 v1, 6, v0\nv_and_b32 v{LANE}, 63, v0")
e(f"v_readfirstlane_b32 s{S_WAVE}, v1")
e(f"v_lshlrev_b32 v{L16}, 4, v{LANE}")
e(f"s_and_b32 s{S_BS}, s2, 3\ns_lshr_b32 s{S_CS}, s2, 2\ns_lshl_b32 s{S_PID}, s{S_BS}, 6\ns_add_u32 s{S_PID}, s{S_PID}, s{S_CS}")
e(f"s_sub_u32 s{S_T}, s{S_WAVE}, 2\ns_cmp_lt_u32 s{S_WAVE}, 2\ns_cselect_b32 s{S_T}, 6, s{S_T}\ns_lshl_b32 s{S_T}, s{S_T}, 12")
e(f"s_add_u32 m0, s{S_T}, {L_STG}")
e(f"s_mul_i32 s{S_U}, s{S_PID}, 25600\ns_add_u32 s{S_U}, s{S_U}, s{S_T}")
if MAP == 0:
    e(f"v_and_b32 v10, 7, v{LANE}\nv_bfe_u32 v11, v{LANE}, 3, 1\nv_lshrrev_b32 v12, 4, v{LANE}")
else:
    e(f"v_bfe_u32 v10, v{LANE}, 2, 3\nv_and_b32 v11, 1, v{LANE}\nv_bfe_u32 v12, v{LANE}, 1, 1\nv_lshrrev_b32 v13, 5, v{LANE}\nv_lshl_or_b32 v12, v13, 1, v12")
e("v_lshlrev_b32 v13, 4, v10\nv_lshl_or_b32 v13, v11, 15, v13\nv_lshl_or_b32 v13, v12, 12, v13")
e("s_waitcnt lgkmcnt(0)")
srd(8, 32, 16384 * 400)
srd(16, 42, 6400 * 512)
e(f"s_cmp_lt_u32 s{S_WAVE}, 2\ns_cbranch_scc1 role_w1")
for i in range(4):
    e(f"buffer_load_dwordx4 v{L16}, s[8:11], s{S_U} offen offset:{i*1024} lds")
e("s_branch role_join")
e("role_w1:")
e(f"s_cmp_lg_u32 s{S_WAVE}, 0\ns_cbranch_scc1 role_w1b")
e(f"buffer_load_dwordx4 v{L16}, s[8:11], s{S_U} offen lds")
e("role_w1b:")
e(f"s_lshl_b32 s{S_T}, s{S_CS}, 16\ns_lshl_b32 s{S_U}, s{S_WAVE}, 14\ns_add_u32 s{S_T}, s{S_T}, s{S_U}\ns_lshl_b32 s{S_U}, s{S_BS}, 7\ns_add_u32 s{S_T}, s{S_T}, s{S_U}")
for j in range(8):
    e(f"buffer_load_dwordx4 v[{TAB+4*j}:{TAB+3+4*j}], v13, s[16:19], s{S_T} offen offset:{j*512}")
def sloads():
    e(f"s_load_dword s{S_N}, s[54:55], {EPOCH}")
    e(f"s_lshl_b32 s{S_T}, s{S_CS}, 3")
    e(f"s_load_dwordx2 s[52:53], s[44:45], s{S_T}")
    e(f"s_load_dwordx2 s[58:59], s[46:47], s{S_T}")
    e("s_load_dwordx8 s[60:67], s[38:39], 0")
    e("s_load_dword s68, s[40:41], 0\ns_load_dword s69, s[48:49], 0")
sloads()
e("role_join:")
srd(4, 54, WS_SZ)
srd(12, 34, 128000)
e(f"v_lshrrev_b32 v16, 4, v{LANE}\nv_and_b32 v17, 7, v{LANE}\nv_xor_b32 v16, v16, v17\nv_lshlrev_b32 v16, 4, v16")
e(f"v_lshrrev_b32 v17, 3, v{LANE}\nv_lshl_or_b32 v14, v17, 7, v16\nv_xor_b32 v15, 64, v14")
e(f"v_bfe_u32 v16, v{LANE}, 1, 4\nv_lshlrev_b32 v18, 15, v16\nv_lshrrev_b32 v16, 5, v{LANE}\nv_lshl_or_b32 v18, v16, 12, v18\nv_and_b32 v16, 1, v{LANE}\nv_lshl_or_b32 v18, v16, 2, v18")
e(f"s_lshl_b32 s{S_M0A}, s{S_WAVE}, 12")
def tab_dma(vt):
    e(f"s_add_u32 s{S_T}, s{S_M0A}, {vt*32768}\ns_mov_b32 m0, s{S_T}\ns_nop 0")
    for i in range(4):
        if vt == 3 and i == 3:
            e(f"s_cmp_eq_u32 s{S_WAVE}, 7\ns_cselect_b32 s{S_U}, 1024, 0\ns_sub_u32 m0, s{S_T}, s{S_U}\ns_nop 0")
        e(f"buffer_load_dwordx4 v{14 + i%2}, s[12:15], s{S_T} offen offset:{i*1024} lds")
        vm.issue(("t", vt))
def batch(items):
    for c in items:
        if c == "r": raw_w1((0, 1, 2, 3))
        elif c == "a": raw_w1((0, 1))
        elif c == "b": raw_w1((2, 3))
        elif c in "0123": tab_dma(int(c))
def raw_w1(js):
    e(f"s_lshr_b32 s{S_T}, s{S_WAVE}, 1\ns_lshl_b32 s{S_T}, s{S_T}, 13\ns_and_b32 s{S_U}, s{S_WAVE}, 1\ns_lshl_b32 s{S_U}, s{S_U}, 11\ns_add_u32 s{S_T}, s{S_T}, s{S_U}")
    e(f"s_lshl_b32 s{S_U}, s{S_CS}, 3\ns_add_u32 s{S_T}, s{S_T}, s{S_U}")
    for j in js:
        e(f"buffer_load_dword v{24+j}, v18, s[16:19], s{S_T} offen offset:{j*512}")
        vm.issue("raw")
vm.issue("crit"); base = vm.n
if BAR0: e("s_barrier")
if TOUCH:
    e(f"v_and_b32 v16, 7, v{LANE}\nv_lshlrev_b32 v16, 18, v16\ns_lshl_b32 s{S_T}, s{S_WAVE}, 21\ns_add_u32 s{S_T}, s{S_T}, 0x800")
    e(f"buffer_load_dword v23, v16, s[4:7], s{S_T} offen"); vm.issue()
if PF:
    e(f"s_lshr_b32 s{S_T}, s2, 3\ns_lshl_b32 s{S_T}, s{S_T}, 3\ns_add_u32 s{S_T}, s{S_T}, s{S_WAVE}")
    e(f"v_and_b32 v16, 15, v{LANE}\nv_lshlrev_b32 v16, 7, v16")
    if "r" not in BA:
        e(f"s_lshl_b32 s{S_U}, s{S_T}, 11")
        e(f"buffer_load_dword v23, v16, s[16:19], s{S_U} offen"); vm.issue()
    e(f"s_lshl_b32 s{S_U}, s{S_T}, 9\nv_and_b32 v16, 0x180, v16")
    e(f"buffer_load_dword v23, v16, s[12:15], s{S_U} offen"); vm.issue()
batch(BA)
n_early = vm.n - base
e(f"v_and_b32 v16, 28, v{LANE}\nv_lshlrev_b32 v{VOFF}, 8, v16\nv_and_b32 v16, 1, v{LANE}\nv_lshl_or_b32 v{VOFF}, v16, 6, v{VOFF}")
e(f"v_and_b32 v16, 32, v{LANE}\nv_or_b32 v{VOFF}, v{VOFF}, v16\nv_and_b32 v16, 2, v{LANE}\nv_lshl_or_b32 v{VOFF}, v16, 3, v{VOFF}")
XA = 192; XF = 208; XC = 224; XD = 232; XO = 248
e(f"v_mul_u32_u24 v16, 400, v{LANE}")
e(f"s_lshl_b32 s{S_T}, s{S_WAVE}, 6\ns_add_u32 s{S_T}, s{S_T}, {L_STG - 128}\nv_add_u32 v17, s{S_T}, v16")
for t in range(16):
    e(f"v_add_u32 v19, {t}, v{LANE}\nv_and_b32 v{XF+t}, 15, v19\nv_lshl_add_u32 v{XA+t}, v{XF+t}, 2, v17")
for u in range(8): e(f"v_lshl_or_b32 v{XC+u}, v{XF+2*u+1}, 16, v{XF+2*u}")
e(f"v_bfe_u32 v19, v{LANE}, 2, 2\nv_bfe_u32 v20, v{LANE}, 4, 1\nv_lshlrev_b32 v20, 1, v20\nv_mov_b32 v21, 0x3f80")
e("v_cmp_eq_u32 vcc, v19, v20\nv_add_u32 v20, 1, v20\ns_nop 0")
e(f"v_cndmask_b32 v{AC}, 0, v21, vcc\nv_cndmask_b32 v{AC+1}, 0, v21, vcc")
e(f"v_cmp_eq_u32 vcc, v19, v20\nv_and_b32 v19, 3, v{LANE}\ns_nop 0")
e(f"v_cndmask_b32 v{AC+2}, 0, v21, vcc\nv_cndmask_b32 v{AC+3}, 0, v21, vcc")
e(f"v_mul_u32_u24 v{SIDX}, 0x5555, v19")
e(f"s_lshl_b32 s{S_T}, s{S_BS}, 3\ns_add_u32 s{S_T}, s{S_T}, s{S_WAVE}\ns_mul_i32 s{S_IDX}, s{S_T}, 114688\ns_add_u32 s{S_IDX}, s{S_IDX}, {IDXP:#x}\ns_add_u32 s{S_IDX2}, s{S_IDX}, 8192")
e(f"s_mul_i32 s{S_W1}, s{S_CS}, 57344\ns_add_u32 s{S_W1}, s{S_W1}, {W1P + 8192:#x}")
DELTA = 28800
e(f"s_add_u32 s{S_M0B}, s{S_M0A}, {65536-DELTA}")
e(f"s_lshr_b32 s70, s{S_PID}, 3\ns_mul_i32 s70, s70, 114688\ns_add_u32 s70, s70, {IDXP:#x}")
e(f"s_cmp_lt_u32 s{S_WAVE}, 2\ns_cbranch_scc1 x_w1")
e(f"s_bfe_u32 s{S_T}, s{S_PID}, 0x10002\ns_lshl_b32 s{S_T}, s{S_T}, 13\ns_add_u32 s70, s70, s{S_T}")
e(f"s_and_b32 s{S_T}, s{S_PID}, 3\ns_lshl_b32 s{S_T}, s{S_T}, 8\ns_add_u32 s70, s70, s{S_T}")
e(f"s_lshl_b32 s{S_T}, s{S_WAVE}, 14\ns_add_u32 s70, s70, s{S_T}\ns_sub_u32 s70, s70, 32768")
e(f"s_waitcnt vmcnt({n_early})")
stamp(1)
e("s_barrier")
fstamp(8)
for t in range(16): e(f"ds_read_b32 v{XD+t}, v{XA+t}")
for u in range(8):
    e(f"s_waitcnt lgkmcnt({14-2*u})")
    if u == 3: fstamp(9)
    if u == 4: fstamp(10)
    if u == 7: fstamp(11)
    e(f"v_lshl_add_u32 v{XD+2*u}, v{XD+2*u+1}, 16, v{XD+2*u}")
    e(f"v_lshl_add_u32 v{XO+u}, v{XD+2*u}, 4, v{XC+u}")
    if u == 3: e(f"buffer_store_dwordx4 v[{XO}:{XO+3}], v{VOFF}, s[4:7], s70 offen sc1")
e(f"buffer_store_dwordx4 v[{XO+4}:{XO+7}], v{VOFF}, s[4:7], s70 offen offset:128 sc1")
stamp(2)
sloads()
e("s_branch x_join")
e("x_w1:")
e(f"s_mov_b32 s{S_T}, 114688\nv_mul_lo_u32 v13, v10, s{S_T}\nv_lshl_add_u32 v13, v11, 4, v13")
e("v_and_b32 v10, 1, v12\nv_lshl_add_u32 v13, v10, 5, v13\nv_lshrrev_b32 v10, 1, v12\nv_lshl_add_u32 v13, v10, 7, v13")
e(f"s_waitcnt vmcnt({n_early + 8})")
stamp(1)
e("s_barrier")
fstamp(8); fstamp(9); fstamp(10); fstamp(11)
e(f"s_cmp_lg_u32 s{S_WAVE}, 0\ns_cbranch_scc1 x_w1b")
e(f"v_add_u32 v17, {L_STG + 384}, v16")
for t in range(4):
    e(f"v_and_b32 v19, 3, v{XF+t}\nv_lshl_add_u32 v19, v19, 2, v17\nds_read_b32 v{XD+t}, v19")
e(f"s_bfe_u32 s{S_T}, s{S_PID}, 0x20001\ns_lshl_b32 s{S_T}, s{S_T}, 7\ns_add_u32 s70, s70, s{S_T}")
e(f"s_and_b32 s{S_T}, s{S_PID}, 1\ns_lshl_b32 s{S_T}, s{S_T}, 3\ns_add_u32 s70, s70, s{S_T}\ns_add_u32 s70, s70, 98304")
e("s_waitcnt lgkmcnt(0)")
for u in range(2):
    e(f"v_lshl_add_u32 v{XD+2*u}, v{XD+2*u+1}, 16, v{XD+2*u}")
    e(f"v_lshl_add_u32 v{XO+u}, v{XD+2*u}, 4, v{XC+u}")
e(f"s_waitcnt vmcnt({n_early})")
e(f"buffer_store_dwordx2 v[{XO}:{XO+1}], v{VOFF}, s[4:7], s70 offen sc1")
e("x_w1b:")
stamp(2)
e(f"s_cmp_ge_u32 s{S_CS}, 50\ns_cbranch_scc1 x_join")
e(f"s_mul_i32 s70, s{S_BS}, 917504\ns_lshl_b32 s{S_T}, s{S_CS}, 10\ns_add_u32 s70, s70, s{S_T}\ns_lshl_b32 s{S_T}, s{S_WAVE}, 8\ns_add_u32 s70, s70, s{S_T}")
e(f"s_add_u32 s70, s70, {W1P:#x}\ns_add_u32 s71, s70, 57344")
e(f"s_mov_b32 s{S_T}, 0x05040100\ns_mov_b32 s{S_U}, 0x07060302")
e(f"s_cmp_eq_u32 s{S_WAVE}, 0\ns_cbranch_scc1 x_w1c\ns_waitcnt vmcnt({n_early})\nx_w1c:")
fstamp(10)
for t in range(4):
    for jj in range(4):
        r0 = TAB + 4 * (2 * jj) + t; r1 = TAB + 4 * (2 * jj + 1) + t
        e(f"v_perm_b32 v{TAB+32+4*(2*t)+jj}, v{r1}, v{r0}, s{S_T}")
        e(f"v_perm_b32 v{TAB+32+4*(2*t+1)+jj}, v{r1}, v{r0}, s{S_U}")
e(f"s_cmp_ge_u32 s{S_CS}, 48\ns_cselect_b32 s{S_CNT}, 4, 1")
fstamp(11)
e("x_w1st:")
for cc in range(8):
    cp = (cc % 4) // 2; par = cc % 2
    e(f"buffer_store_dwordx4 v[{TAB+32+4*cc}:{TAB+35+4*cc}], v13, s[4:7], s{70 + cc//4} offen offset:{par*512+cp*64} sc1")
e(f"s_add_u32 s70, s70, 2048\ns_add_u32 s71, s71, 2048\ns_sub_u32 s{S_CNT}, s{S_CNT}, 1\ns_cmp_lg_u32 s{S_CNT}, 0\ns_cbranch_scc1 x_w1st")
stamp(2)
e("x_join:")
if BARJ: e("s_barrier")
vm.issue("st")
batch(BB)
e(f"s_lshr_b32 s{S_T}, s{S_CS}, 4\ns_lshl_b32 s{S_T}, s{S_T}, 6")
e(f"s_and_b32 s{S_U}, s{S_WAVE}, 1\ns_mul_i32 s{S_U}, s{S_U}, 56")
e(f"v_subrev_u32 v10, s{S_U}, v{LANE}\nv_cmp_gt_u32 vcc, 56, v{LANE}\ns_nop 1\nv_cndmask_b32 v10, v10, v{LANE}, vcc\nv_add_u32 v10, s{S_T}, v10")
e(f"s_lshl_b32 s{S_T}, s{S_BS}, 3\ns_add_u32 s{S_T}, s{S_T}, s{S_WAVE}\ns_lshl_b32 s{S_T}, s{S_T}, 3\nv_add_u32 v11, s{S_T}, v{LANE}")
e(f"v_cmp_gt_u32 vcc, 8, v{LANE}\ns_nop 1\nv_cndmask_b32 v10, v10, v11, vcc\nv_lshlrev_b32 v19, 7, v10")
e(f"v_and_b32 v10, 24, v{LANE}\nv_and_b32 v11, 3, v{LANE}\nv_lshl_add_u32 v10, v11, 1, v10\nv_bfe_u32 v12, v{LANE}, 2, 1\nv_add_u32 v10, v10, v12\nv_lshlrev_b32 v10, 7, v10")
e(f"v_bfe_u32 v12, v{LANE}, 3, 1\nv_lshl_or_b32 v11, v12, 2, v11\nv_lshrrev_b32 v12, 5, v{LANE}\nv_xor_b32 v11, v11, v12\nv_lshl_or_b32 v10, v11, 4, v10")
e(f"v_add_u32 v10, s{S_M0A}, v10")
e("s_waitcnt lgkmcnt(0)")
e(f"s_not_b32 s{S_N}, s{S_N}")
e("s_lshl_b32 s56, s58, 16\ns_and_b32 s57, s58, 0xffff0000\ns_lshl_b32 s58, s59, 16\ns_and_b32 s59, s59, 0xffff0000")
e(f"s_lshl_b32 s{S_T}, s52, 16\ns_and_b32 s{S_U}, s52, 0xffff0000\ns_lshl_b32 s52, s53, 16\ns_and_b32 s53, s53, 0xffff0000")
for g in range(8):
    for c, r in enumerate((S_T, S_U, 52, 53)): e(f"v_mov_b32 v{ACC+4*g+c}, s{r}")
wait_vm("st", "st")
e("s_barrier")
stamp(3)
e(f"s_cmp_lg_u32 s{S_WAVE}, 0\ns_cbranch_scc1 noflag")
e(f"s_lshl_b32 s{S_T}, s{S_PID}, 7\ns_add_u32 s{S_T}, s{S_T}, {FLG:#x}\nv_mov_b32 v11, s{S_N}\nv_mov_b32 v12, 0\ns_mov_b64 exec, 1")
e(f"buffer_store_dword v11, v12, s[4:7], s{S_T} offen sc1\ns_mov_b64 exec, -1")
e("noflag:")
batch(BC)
for s in range(4): e(f"v_xor_b32 v{20+s}, {s*32}, v10")
e(f"s_lshr_b32 s{S_T}, s{S_WAVE}, 1\ns_lshl_b32 s{S_T}, s{S_T}, 10\ns_and_b32 s{S_U}, s{S_WAVE}, 1\ns_lshl_b32 s{S_U}, s{S_U}, 3\ns_add_u32 s{S_T}, s{S_T}, s{S_U}\ns_add_u32 s{S_T}, s{S_T}, {L_XCH}")
e(f"v_add_u32 v11, s{S_T}, v{L16}\nv_add_u32 v12, {L_XCH}, v{L16}")
e(f"s_mov_b32 s{S_T}, 0x05040100\ns_mov_b32 s{S_U}, 0x07060302")
wait_vm("raw", "raw")
e(f"v_perm_b32 v28, v25, v24, s{S_T}\nv_perm_b32 v29, v27, v26, s{S_T}\nv_perm_b32 v30, v25, v24, s{S_U}\nv_perm_b32 v31, v27, v26, s{S_U}")
e("ds_write_b64 v11, v[28:29]\nds_write_b64 v11, v[30:31] offset:4096")
def tab_rd(vt):
    wait_vm(("td", vt), ("t", vt))
    if vt == 2:
        for s in range(4): e(f"v_add_u32 v{20+s}, 0x10000, v{20+s}")
    for s in range(4):
        r = TAB + 16 * vt + 4 * s
        e(f"ds_read_b128 v[{r}:{r+3}], v{20+s} offset:{(vt%2)*32768}")
tab_rd(0)
e("s_waitcnt lgkmcnt(4)\ns_barrier")
stamp(4)
for i in range(8): e(f"ds_read_b128 v[{W1+4*i}:{W1+4*i+3}], v12 offset:{i*1024}")

def ldw(i):
    e(f"buffer_load_dwordx4 v[{W1+4*i}:{W1+4*i+3}], v{VOFF}, s[4:7], s{S_W1} offen offset:{i*128} sc1")
    vm.issue(("w", i))
def ldi(reg, k, tag):
    e(f"buffer_load_dwordx4 v[{reg}:{reg+3}], v{VOFF}, s[4:7], s{S_IDX if k < 8 else S_IDX2} offen offset:{(k%8)*128} sc1")
    vm.issue(tag)
def mf(vt, i):
    s, par = i // 2, i % 2
    d = D1 if par else D0
    c = "0" if s == 0 else f"v[{d}:{d+15}]"
    e(f"v_mfma_f32_32x32x16_bf16 v[{d}:{d+15}], v[{TAB+16*vt+4*s}:{TAB+16*vt+4*s+3}], v[{W1+16*par+4*s}:{W1+16*par+4*s+3}], {c}")
def frag_of(i): return (i % 2) * 4 + i // 2
def cvt(dst, r): e(f"v_cvt_pk_bf16_f32 v{dst}, v{D0+r}, v{D1+r}")
def wr(src, vt, r):
    off = (vt % 2) * 32768 + r * 256 + (DELTA if vt >= 2 else 0)
    e(f"ds_write_addtid_b32 v{src} offset:{off}")
SD = "dst_sel:DWORD dst_unused:UNUSED_PAD src0_sel:DWORD"
def unpack(w0):
    e(f"v_lshlrev_b32_sdwa v{T0}, 3, v{w0} {SD} src1_sel:WORD_1")
    e(f"v_lshlrev_b32_sdwa v{w0}, 3, v{w0} {SD} src1_sel:WORD_0")
    e(f"v_lshlrev_b32_sdwa v{T1}, 3, v{w0+1} {SD} src1_sel:WORD_1")
    e(f"v_lshlrev_b32_sdwa v{w0+1}, 3, v{w0+1} {SD} src1_sel:WORD_0")
def reads(w0, slot):
    d = DAT + 8 * slot
    for i, a in enumerate((w0, T0, w0 + 1, T1)):
        e(f"ds_read_b64 v[{d+2*i}:{d+2*i+1}], v{a}")
def smf(g, slot):
    d = DAT + 8 * slot; a = ACC + 4 * g
    e(f"v_smfmac_f32_16x16x64_bf16 v[{a}:{a+3}], v[{AC}:{AC+3}], v[{d}:{d+7}], v{SIDX}")

for vt in range(4):
    if vt < 3: tab_rd(vt + 1)
    if vt % 2 == 0: e(f"s_mov_b32 m0, s{S_M0A if vt == 0 else S_M0B}")
    e(f"s_waitcnt lgkmcnt({4 if vt < 3 else 15})")
    for i in range(8): mf(vt, i)
    e("s_nop 7\ns_nop 3")
    for r in range(16):
        cvt(D0 + r, r)
        if r >= 1: wr(D0 + r - 1, vt, r - 1)
    wr(D0 + 15, vt, 15)
stamp(5)
e(f"s_mov_b32 s{S_CNT}, 0\ns_mov_b32 s{S_T}, {FLG:#x}")
e("poll1:")
e(f"buffer_load_dword v10, v19, s[4:7], s{S_T} offen sc1")
e(f"s_add_u32 s{S_CNT}, s{S_CNT}, 1\ns_cmp_gt_u32 s{S_CNT}, 0x40000\ns_cbranch_scc1 poll1_done")
e("s_waitcnt vmcnt(0)")
e(f"v_cmp_ne_u32 vcc, s{S_N}, v10\ns_cbranch_vccnz poll1")
e("poll1_done:")
stamp(6)
for k in range(2): ldi(POOL + 4 * k, k, ("i", k))
wait_vm("p0i", ("i", 0))
unpack(POOL)
if LAFT: e("s_waitcnt lgkmcnt(0)\ns_barrier")
ldi(POOL + 8, 2, ("i", 2))
for i in range(4): ldw(frag_of(i))
ldi(POOL + 12, 3, ("i", 3))
for i in range(4, 8): ldw(frag_of(i))
for k in range(4, 8): ldi(POOL + 4 * k, k, ("i", k))
e(f"s_add_u32 s{S_W1}, s{S_W1}, 8192")
e(f"s_mov_b32 s{S_CNT}, 3")
if not LAFT: e("s_waitcnt lgkmcnt(0)\ns_barrier")
stamp(7)
if STAMP: e(f"s_waitcnt lgkmcnt(0)\ns_mov_b32 s40, s{SB+14}\ns_mov_b32 s42, s{SB+14}\ns_mov_b32 s44, 0\ns_mov_b32 s45, 0\ns_mov_b32 s46, 0")

MQ = [1, 1, 2, 2, 3, 4, 5, 6]
def phase(par):
    blk = [POOL + (48 if par else 0), POOL + 16, POOL + 32, POOL + (0 if par else 48)]
    def w0(q): return blk[q // 8] + (q % 8) * 2
    for q in range(32):
        if q == PRIOQ: e(f"s_cmp_ge_u32 s{S_WAVE}, 4\ns_cbranch_scc0 1f\ns_setprio 1\n1:")
        if q >= 3:
            e("s_waitcnt lgkmcnt(8)")
            smf((q - 3) // 4, q % 3)
        reads(w0(q), q % 3)
        vt = q // 8
        for i in range(8):
            if MQ[i] == q % 8:
                if vt == 0: wait_vm((par, "w", i), ("w", frag_of(i)))
                mf(vt, i)
                if vt == 3 and not W1W: ldw(frag_of(i))
        if q < 16 and q % 2 == 0:
            k = 8 + q // 2
            ldi(blk[k // 4] + 4 * (k % 4), k, ("i", k))
        if q == 20: e(f"s_add_u32 s{S_IDX}, s{S_IDX}, 16384\ns_add_u32 s{S_IDX2}, s{S_IDX2}, 16384")
        if q >= 25 and q % 2 == 1:
            k = (q - 25) // 2
            ldi(blk[3] + 4 * k, k, ("n", k))
        if q < 31:
            if (q + 1) % 2 == 0: wait_vm((par, "i", q), ("i", (q + 1) // 2))
            unpack(w0(q + 1))
        if q % 8 == 7 and vt < 3:
            for r in range(8): cvt(blk[vt] + r, r)
        if q % 8 == 0 and vt > 0:
            for r in range(8, 16): cvt(blk[vt - 1] + r, r)
    for k in range(4): vm.tag[("i", k)] = vm.tag[("n", k)]
    e("s_waitcnt lgkmcnt(8)"); smf(7, 29 % 3)
    e("s_waitcnt lgkmcnt(4)"); smf(7, 30 % 3)
    e(f"s_mov_b32 m0, s{S_M0A}")
    for r in range(16): cvt(D0 + r, r)
    if PRIOQ >= 0: e("s_setprio 0")
    if STAMP: e("s_memtime s[48:49]")
    e("s_waitcnt lgkmcnt(0)")
    if STAMP: e("s_sub_u32 s47, s48, s40\ns_add_u32 s46, s46, s47\ns_sub_u32 s47, s40, s42\ns_add_u32 s45, s45, s47")
    e("s_barrier")
    if STAMP: e("s_memtime s[42:43]")
    smf(7, 31 % 3)
    n = 0
    for vt in (1, 0, 2, 3):
        if vt == 2: e(f"s_mov_b32 m0, s{S_M0B}\ns_nop 0")
        for r in range(16):
            wr(blk[vt] + r if vt < 3 else D0 + r, vt, r)
            if W1W and n % 4 == 0 and n < 32: ldw(frag_of(n // 4))
            if n >= 32 and n % 8 == 0:
                k = 4 + (n - 32) // 8
                ldi(blk[1] + 4 * (k % 4), k, ("i", k))
            n += 1
    e(f"s_add_u32 s{S_W1}, s{S_W1}, 8192")
    wait_vm((par, "i0"), ("i", 0))
    unpack(blk[3])
    e("s_waitcnt lgkmcnt(0)")
    if STAMP: e("s_sub_u32 s47, s42, s40\ns_add_u32 s44, s44, s47")
    if par == 1: e(f"s_sub_u32 s{S_CNT}, s{S_CNT}, 1\ns_cmp_lg_u32 s{S_CNT}, 0")
    e("s_barrier")
    if STAMP: e("s_memtime s[40:41]")

e(".p2align 6\nmain_loop:")
phase(0); phase(1)
e("s_cbranch_scc1 main_loop")
emit = False
phase(0); phase(1)
emit = True
stamp(8)
LN = TAB; ROW = TAB + 1; XW = TAB + 4
for q in range(8):
    if q >= 3:
        e("s_waitcnt lgkmcnt(8)"); smf(q - 3, q % 3)
    reads(POOL + 2 * q, q % 3)
    if q < 7:
        if q % 2 == 1: wait_vm(("l", q), ("i", (q + 1) // 2))
        unpack(POOL + 2 * (q + 1))
e(f"v_mbcnt_lo_u32_b32 v{LN}, -1, 0\nv_mbcnt_hi_u32_b32 v{LN}, -1, v{LN}")
srd(8, 36, 16384 * 26)
srd(12, 50, 32768)
e(f"s_cmp_lg_u32 s{S_WAVE}, 0\ns_cbranch_scc1 nowide")
e(f"s_lshr_b32 s{S_T}, s{S_PID}, 2\ns_lshl_b32 s{S_T}, s{S_T}, 8\ns_and_b32 s{S_U}, s{S_PID}, 3\ns_lshl_b32 s{S_U}, s{S_U}, 4\ns_add_u32 s{S_T}, s{S_T}, s{S_U}")
e(f"v_lshrrev_b32 v{ROW}, 4, v{LN}\nv_and_b32 v{ROW+1}, 15, v{LN}\nv_lshl_add_u32 v{ROW}, v{ROW}, 6, v{ROW+1}\nv_add_u32 v{ROW}, s{S_T}, v{ROW}")
e(f"v_mul_u32_u24 v{ROW+1}, 26, v{ROW}")
for j in range(13): e(f"buffer_load_ushort v{XW+j}, v{ROW+1}, s[8:11], 0 offen offset:{2*j}")
e("nowide:")
e("s_waitcnt lgkmcnt(8)"); smf(5, 8 % 3)
e("s_waitcnt lgkmcnt(4)"); smf(6, 9 % 3)
e("s_waitcnt lgkmcnt(0)"); smf(7, 10 % 3)
PV = TAB + 20
e(f"v_and_b32 v{PV+1}, 15, v{LN}\nv_lshlrev_b32 v{PV+1}, 4, v{PV+1}\nv_lshrrev_b32 v{PV}, 4, v{LN}\nv_lshl_or_b32 v{PV}, v{PV}, 14, v{PV+1}")
e(f"s_lshl_b32 s70, s{S_BS}, 20\ns_lshl_b32 s71, s{S_WAVE}, 17\ns_add_u32 s70, s70, s71\ns_lshl_b32 s71, s{S_CS}, 8\ns_add_u32 s70, s70, s71")
e(f"s_add_u32 s70, s70, {PART:#x}\ns_add_u32 s71, s70, 65536")
e(f"s_and_b32 s{S_U}, s{S_N}, 15\nv_mov_b32 v{PV+2}, s{S_U}")
for g in range(8):
    a = ACC + 4 * g
    for c in range(4): e(f"v_max_f32 v{a+c}, 0, v{a+c}")
    e(f"v_mul_f32 v{D0+g}, s56, v{a}")
    for c in range(1, 4): e(f"v_fma_f32 v{D0+g}, v{a+c}, s{56+c}, v{D0+g}")
    e(f"v_and_or_b32 v{D0+g}, v{D0+g}, -16, v{PV+2}")
    if g % 4 == 3:
        e(f"buffer_store_dwordx4 v[{D0+g-3}:{D0+g}], v{PV}, s[4:7], s{70 + g//4} offen sc1")
stamp(9)
e(f"v_lshlrev_b32 v{PV+1}, 4, v{LN}")
e(f"s_lshl_b32 s70, s{S_PID}, 14\ns_lshl_b32 s71, s{S_WAVE}, 11\ns_add_u32 s70, s70, s71\ns_add_u32 s70, s70, {PART:#x}")
e(f"s_lshl_b32 s71, s{S_WAVE}, 8\ns_add_u32 s71, s71, {L_RED}\nv_lshl_add_u32 v{PV+3}, v{LN}, 2, s71")
e(f"s_cmp_lg_u32 s{S_WAVE}, 0\ns_cbranch_scc1 nowide2")
e("s_waitcnt vmcnt(2)")
e(f"s_lshl_b32 s68, s68, 16\ns_lshl_b32 s69, s69, 16\nv_mov_b32 v{XW+13}, s68\nv_add_f32 v{XW+13}, s69, v{XW+13}")
for j in range(13):
    sw = 60 + j // 2
    if j % 2 == 0: e(f"s_lshl_b32 s{S_T}, s{sw}, 16")
    else: e(f"s_and_b32 s{S_T}, s{sw}, 0xffff0000")
    e(f"v_lshlrev_b32 v{XW+j}, 16, v{XW+j}")
    e(f"v_fma_f32 v{XW+13}, v{XW+j}, s{S_T}, v{XW+13}")
e("nowide2:")
e(f"s_mov_b32 s{S_CNT}, 0\ns_waitcnt vmcnt(0)")
stamp(10)
e("poll2:")
e(f"buffer_load_dwordx4 v[{D1}:{D1+3}], v{PV+1}, s[4:7], s70 offen sc1")
e(f"buffer_load_dwordx4 v[{D1+4}:{D1+7}], v{PV+1}, s[4:7], s70 offen offset:1024 sc1")
e(f"s_add_u32 s{S_CNT}, s{S_CNT}, 1\ns_cmp_gt_u32 s{S_CNT}, 0x40000\ns_cbranch_scc1 poll2_done")
e("s_waitcnt vmcnt(0)")
for i in range(8): e(f"v_xor_b32 v{D1+8+i}, v{PV+2}, v{D1+i}")
e(f"v_or3_b32 v{D1+8}, v{D1+8}, v{D1+9}, v{D1+10}\nv_or3_b32 v{D1+11}, v{D1+11}, v{D1+12}, v{D1+13}\nv_or3_b32 v{D1+8}, v{D1+8}, v{D1+14}, v{D1+15}")
e(f"v_or_b32 v{D1+8}, v{D1+8}, v{D1+11}\nv_and_b32 v{D1+8}, 15, v{D1+8}\nv_cmp_ne_u32 vcc, 0, v{D1+8}\ns_cbranch_vccnz poll2")
e("poll2_done:\ns_waitcnt vmcnt(0)")
stamp(11)
for c in range(4): e(f"v_add_f32 v{D1+c}, v{D1+c}, v{D1+4+c}")
e(f"s_nop 1\nv_permlane32_swap_b32 v{D1}, v{D1+2}\nv_permlane32_swap_b32 v{D1+1}, v{D1+3}")
e(f"v_add_f32 v{D1}, v{D1}, v{D1+2}\nv_add_f32 v{D1+1}, v{D1+1}, v{D1+3}\ns_nop 1")
e(f"v_permlane16_swap_b32 v{D1}, v{D1+1}\nv_add_f32 v{D1}, v{D1}, v{D1+1}")
e(f"ds_write_b32 v{PV+3}, v{D1}\ns_waitcnt lgkmcnt(0)\ns_barrier")
e(f"s_cmp_lg_u32 s{S_WAVE}, 0\ns_cbranch_scc1 fin")
for i in range(1, 8): e(f"ds_read_b32 v{D1+i}, v{PV+3} offset:{256*i}")
e(f"v_add_f32 v{D1}, v{D1}, v{XW+13}\nv_lshlrev_b32 v{ROW}, 1, v{ROW}")
e("s_waitcnt lgkmcnt(0)")
e(f"v_add_f32 v{D1+1}, v{D1+1}, v{D1+2}\nv_add_f32 v{D1+3}, v{D1+3}, v{D1+4}\nv_add_f32 v{D1+5}, v{D1+5}, v{D1+6}\nv_add_f32 v{D1}, v{D1}, v{D1+7}")
e(f"v_add_f32 v{D1+1}, v{D1+1}, v{D1+3}\nv_add_f32 v{D1}, v{D1}, v{D1+5}\nv_add_f32 v{D1}, v{D1}, v{D1+1}")
e(f"v_mul_f32 v{D1}, 0xbfb8aa3b, v{D1}\nv_exp_f32 v{D1}, v{D1}\ns_nop 0\nv_add_f32 v{D1}, 1.0, v{D1}\nv_rcp_f32 v{D1}, v{D1}\ns_nop 0")
e(f"v_cvt_pk_bf16_f32 v{D1}, v{D1}, v{D1}")
e(f"buffer_store_short v{D1}, v{ROW}, s[12:15], 0 offen")
e("s_cmp_lg_u32 s2, 0\ns_cbranch_scc1 fin")
e(f"v_mov_b32 v{D1+1}, s{S_N}\nv_mov_b32 v{D1+2}, {EPOCH}\ns_mov_b64 exec, 1")
e(f"buffer_store_dword v{D1+1}, v{D1+2}, s[4:7], 0 offen\ns_mov_b64 exec, -1")
e("fin:")
if int(args.get("FIX", 0)):
    e("fixl:\ns_memrealtime s[98:99]\ns_waitcnt lgkmcnt(0)\ns_sub_u32 s98, s98, s100")
    e(f"s_cmp_lt_u32 s98, {int(args.get('FIX'))}\ns_cbranch_scc1 fixl")
if STAMP:
    stamp(12)
    e("s_memrealtime s[98:99]\ns_waitcnt lgkmcnt(0)")
    e(f"s_lshl_b32 s70, s2, 3\ns_add_u32 s70, s70, s{S_WAVE}\ns_lshl_b32 s70, s70, 7\ns_add_u32 s70, s70, {STMP:#x}")
    e("v_mov_b32 v8, 0")
    for i in range(1, 13):
        e(f"s_sub_u32 s{SB+2*i}, s{SB+2*i}, s{SB}\nv_mov_b32 v9, s{SB+2*i}")
        e(f"buffer_store_dword v9, v8, s[4:7], s70 offen offset:{4*(i-1)}")
    for i, r in enumerate((44, 45, 46, 100, 98)):
        e(f"v_mov_b32 v9, s{r}\nbuffer_store_dword v9, v8, s[4:7], s70 offen offset:{48+4*i}")
if STAMP and int(args.get("DBG", 0)):
    e(f"s_cmp_lg_u32 s2, 77\ns_cbranch_scc1 done\ns_cmp_lg_u32 s{S_WAVE}, 0\ns_cbranch_scc1 done")
    e("s_load_dwordx2 s[32:33], s[0:1], 80\ns_waitcnt lgkmcnt(0)")
    srd(16, 32, 256)
    e("s_sub_u32 s98, s98, s100")
    for i in range(1, 13):
        e(f"v_mov_b32 v9, s{SB+2*i}\nbuffer_store_dword v9, v8, s[16:19], 0 offen offset:{4*(i-1)}")
    for i, r in enumerate((44, 45, 46, 98)):
        e(f"v_mov_b32 v9, s{r}\nbuffer_store_dword v9, v8, s[16:19], 0 offen offset:{48+4*i}")
e("done:\ns_endpgm")

e(f""".section .rodata,"a"
.p2align 6
.amdhsa_kernel {KN}
  .amdhsa_next_free_vgpr 256
  .amdhsa_next_free_sgpr 102
  .amdhsa_accum_offset 256
  .amdhsa_group_segment_fixed_size 0
  .amdhsa_kernarg_size 96
  .amdhsa_user_sgpr_count 2
  .amdhsa_user_sgpr_kernarg_segment_ptr 1
  .amdhsa_system_sgpr_workgroup_id_x 1
.end_amdhsa_kernel""")

bysite = {str(k): v for k, v in waits.items()}
res = []
for l in out:
    if l.startswith("@VM "):
        n = bysite[l[4:]]
        assert 0 <= n <= 63
        l = f"s_waitcnt vmcnt({n})"
    res.append(l)
print("\n".join(res))
```

```python
import sys
args = dict(a.split("=") for a in sys.argv[1:])
def A(k, d): return type(d)(args.get(k, d))
STAMP = A("STAMP", 0); PROBE = A("PROBE", 0); FIX = A("FIX", 0)
PRIOQ = A("PRIOQ", -1); W1W = A("W1W", 0); CPF = A("CPF", 1); POLLT = A("POLLT", 2); PRE = A("PRE", 2); BAR0 = A("BAR0", 1); MAP = A("MAP", 1); CPL = A("CPL", 6); KPRE = A("KPRE", 8); DEFT = A("DEFT", -1); PREO = A("PREO", 1); HPQ = A("HPQ", 8); R1 = A("R1", 12); R2 = A("R2", 28); XT = A("XT", 1); PFW = A("PFW", 1); PI = A("PI", 0); XMAP = A("XMAP", 1); DE = A("DE", 1)
MQ = [int(c) for c in A("MQ", "11223456")]

KN = "standalone__deep_cross_wide_deep__recsys_kernel"
EPOCH = 0x0
FLG = 0x1000
IDXP = 0x10000
ISTR = 6 * 16384 + 4096
W1P = 0x340000
WSTR = 42 * 1024
PART = 0x600000
STMP = 0xE00000
WS_SZ = 0x1000000
L_STG = 131072; L_XCH = 155648; L_XT = 131072; L_RED = 0

out = []
emit = True
def e(s):
    if emit:
        for l in s.split("\n"): out.append(l)
class Cnt:
    def __init__(self): self.n = 0; self.tag = {}
    def issue(self, tag=None):
        self.n += 1
        if tag is not None: self.tag[tag] = self.n
    def younger(self, tag): return self.n - self.tag[tag]
vm = Cnt()
waits = {}
def wait_vm(site, tag):
    n = vm.younger(tag)
    waits[site] = min(waits.get(site, 99), n)
    e(f"@VM {site}")
def srd(d, lo, nbytes):
    e(f"s_mov_b32 s{d}, s{lo}\ns_mov_b32 s{d+1}, s{lo+1}\ns_mov_b32 s{d+2}, {nbytes:#x}\ns_mov_b32 s{d+3}, 0x20000")
SB = 72
def stamp(i):
    if PROBE == i: e("s_memrealtime s[96:97]")
    if STAMP: e(f"s_memtime s[{SB+2*i}:{SB+1+2*i}]")

e(f"""; Wide & Deep recsys forward, gfx950: per-field projected tables P[f][v] = table[v] @ W1_f built on MFMA into LDS,
; @launch grid=(256,1,1) block=(512,1,1) lds=163840
.amdgcn_target "amdgcn-amd-amdhsa--gfx950"
.text
.globl {KN}
.p2align 8
.type {KN},@function
{KN}:""")

VOFF = 0; SIDX = 1; T0 = 2; T1 = 3; AC = 4
DAT = 8; TAB = 32; ACC = 96; POOL = 128; D0 = 192; D1 = 208; W1 = 224
S_WAVE = 3; S_IDX = 20; S_IDX2 = 21; S_W1 = 22; S_M0A = 23; S_M0B = 24; S_CNT = 25; S_BS = 26; S_CS = 27; S_PID = 28; S_N = 29
S_T = 30; S_U = 31
LANE = 8; L16 = 9
XA = POOL; XF = POOL + 16; XC = POOL + 48; XD = POOL + 16
PLO = "0x05040100"; PHI = "0x07060302"

e("s_cmp_ge_u32 s2, 256\ns_cbranch_scc1 done")
e("s_load_dwordx16 s[32:47], s[0:1], 0")
e("s_load_dwordx8 s[48:55], s[0:1], 64")
if STAMP: e(f"s_memtime s[{SB}:{SB+1}]")
if STAMP or FIX: e("s_memrealtime s[100:101]")
e(f"v_lshrrev_b32 v1, 6, v0\nv_and_b32 v{LANE}, 63, v0")
e(f"v_readfirstlane_b32 s{S_WAVE}, v1")
if XMAP:
    e(f"s_bfe_u32 s{S_BS}, s2, 0x20002\ns_and_b32 s{S_CS}, s2, 3\ns_lshl_b32 s{S_CS}, s{S_CS}, 4\ns_lshr_b32 s{S_T}, s2, 4\ns_add_u32 s{S_CS}, s{S_CS}, s{S_T}")
else:
    e(f"s_and_b32 s{S_BS}, s2, 3\ns_lshr_b32 s{S_CS}, s2, 2")
e(f"s_lshl_b32 s{S_PID}, s{S_BS}, 6\ns_add_u32 s{S_PID}, s{S_PID}, s{S_CS}")
e(f"s_lshl_b32 s{S_M0A}, s{S_WAVE}, 12")
HOLD = POOL + 32
FLGB = FLG + 0x8000
S_FB = 55; S_HP = 54
def piece_lane():
    e(f"v_bfe_u32 v10, v{LANE}, 2, 3\nv_and_b32 v11, 1, v{LANE}\nv_bfe_u32 v12, v{LANE}, 1, 1\nv_lshrrev_b32 v13, 5, v{LANE}\nv_lshl_or_b32 v12, v13, 1, v12")
    e("v_lshlrev_b32 v13, 4, v10\nv_lshl_or_b32 v13, v11, 15, v13\nv_lshl_or_b32 v13, v12, 12, v13")
def piece_src(fp0):
    e(f"s_lshr_b32 s{S_T}, s{S_CS}, 1\ns_lshl_b32 s{S_T}, s{S_T}, 16\ns_and_b32 s{S_U}, s{S_CS}, 1\ns_lshl_b32 s{S_U}, s{S_U}, 14\ns_add_u32 s{S_T}, s{S_T}, s{S_U}")
    e(f"s_lshl_b32 s{S_U}, s{S_BS}, 7\ns_add_u32 s{S_T}, s{S_T}, s{S_U}\ns_add_u32 s{S_T}, s{S_T}, {fp0*65536:#x}")
def piece_ld(b):
    for j in range(8): e(f"buffer_load_dwordx4 v[{b+4*j}:{b+4*j+3}], v13, s[16:19], s{S_T} offen offset:{j*512}")
def piece_dst(fp0):
    e(f"s_mov_b32 s70, {2*WSTR}\nv_mul_lo_u32 v18, v10, s70\nv_lshl_add_u32 v18, v11, 4, v18")
    e("v_and_b32 v10, 1, v12\nv_lshl_add_u32 v18, v10, 5, v18\nv_lshrrev_b32 v10, 1, v12\nv_lshl_add_u32 v18, v10, 7, v18")
    e(f"s_mul_i32 s70, s{S_BS}, {16*WSTR}\ns_lshr_b32 s71, s{S_CS}, 1\ns_lshl_b32 s71, s71, 10\ns_add_u32 s70, s70, s71")
    e(f"s_and_b32 s71, s{S_CS}, 1\ns_lshl_b32 s71, s71, 8\ns_add_u32 s70, s70, s71\ns_add_u32 s70, s70, {W1P + (fp0-8)*1024:#x}\ns_add_u32 s71, s70, {WSTR}")
def piece_st(cc, b):
    cp = (cc % 4) // 2; par = cc % 2; r = b + 4 * cc
    e(f"buffer_store_dwordx4 v[{r}:{r+3}], v18, s[4:7], s{70 + cc//4} offen offset:{par*512+cp*64} sc1")
def piece_perm(src, dst, store):
    e(f"s_mov_b32 s{S_T}, {PLO}\ns_mov_b32 s{S_U}, {PHI}")
    for t in range(4):
        for jj in range(4):
            r0 = src + 4 * (2 * jj) + t; r1 = r0 + 4
            e(f"v_perm_b32 v{dst+4*(2*t)+jj}, v{r1}, v{r0}, s{S_T}")
            e(f"v_perm_b32 v{dst+4*(2*t+1)+jj}, v{r1}, v{r0}, s{S_U}")
        if store:
            piece_st(2 * t, dst); piece_st(2 * t + 1, dst)
def seg_setup():
    e(f"v_lshrrev_b32 v10, 2, v{LANE}\nv_mul_u32_u24 v10, 400, v10\nv_and_b32 v11, 3, v{LANE}\nv_lshl_add_u32 v10, v11, 4, v10")
    e(f"s_mul_i32 s{S_U}, s{S_PID}, 25600\ns_lshl_b32 s{S_T}, s{S_CNT}, 6\ns_add_u32 s{S_T}, s{S_T}, s{S_U}")
    e(f"s_lshl_b32 s{S_U}, s{S_CNT}, 12\ns_add_u32 m0, s{S_U}, {L_STG}")
def seg_ld(n):
    for i in range(4 * n):
        e(f"buffer_load_dwordx4 v10, s[8:11], s{S_T} offen lds")
        if i < 4 * n - 1:
            if i % 4 == 3: e(f"s_sub_u32 s{S_T}, s{S_T}, {3*6400-64}")
            else: e(f"s_add_u32 s{S_T}, s{S_T}, 6400")
            e("s_add_u32 m0, m0, 1024\ns_nop 0")
def tab_dma(vt, count=True):
    e(f"s_add_u32 s{S_T}, s{S_M0A}, {vt*32768}\ns_mov_b32 m0, s{S_T}\ns_nop 0")
    for i in range(4):
        e(f"buffer_load_dwordx4 v{14 + i%2}, s[12:15], s{S_T} offen offset:{i*1024} lds")
        if count: vm.issue(("t", vt))
e("v_mov_b32 v18, 0\nv_mov_b32 v13, 0")
L_CTR = 128000; L_XC2 = L_STG
def seg2_setup():
    e(f"v_lshrrev_b32 v17, 3, v{LANE}\nv_mul_u32_u24 v17, 400, v17\nv_and_b32 v11, 7, v{LANE}\nv_lshl_add_u32 v17, v11, 4, v17")
    e(f"s_mul_i32 s{S_U}, s{S_PID}, 25600\ns_lshl_b32 s{S_T}, s{S_WAVE}, 7\ns_add_u32 s{S_T}, s{S_T}, s{S_U}")
    e(f"s_lshl_b32 s{S_U}, s{S_WAVE}, 13\ns_add_u32 m0, s{S_U}, {L_STG}\ns_nop 0")
def seg2_ld():
    for i in range(8):
        e(f"buffer_load_dwordx4 v17, s[8:11], s{S_T} offen lds")
        if i < 7: e(f"s_add_u32 s{S_T}, s{S_T}, 3200\ns_add_u32 m0, m0, 1024\ns_nop 0")
def xconsts(rowshift):
    e(f"v_lshl_add_u32 v17, v{LANE}, {rowshift}, s{S_T}")
    for t in range(16):
        e(f"v_add_u32 v16, {t}, v{LANE}\nv_and_b32 v{XF+t}, 15, v16\nv_lshl_add_u32 v{XA+t}, v{XF+t}, 2, v17")
    for u in range(8): e(f"v_lshl_or_b32 v{XC+u}, v{XF+2*u+1}, 16, v{XF+2*u}")
def idx_dst():
    e(f"s_lshr_b32 s70, s{S_PID}, 3\ns_mul_i32 s70, s70, {ISTR}\ns_add_u32 s70, s70, {IDXP:#x}")
    e(f"s_bfe_u32 s{S_T}, s{S_PID}, 0x10002\ns_lshl_b32 s{S_T}, s{S_T}, 13\ns_add_u32 s70, s70, s{S_T}")
    e(f"s_and_b32 s{S_T}, s{S_PID}, 3\ns_lshl_b32 s{S_T}, s{S_T}, 8\ns_add_u32 s70, s70, s{S_T}")
    e(f"s_lshl_b32 s{S_T}, s{S_CNT}, 14\ns_add_u32 s70, s70, s{S_T}\ns_add_u32 s71, s70, 16384")
def xform(off, dst, store):
    for t in range(16): e(f"ds_read_b32 v{XD+t}, v{XA+t} offset:{off}")
    for u in range(8):
        e(f"s_waitcnt lgkmcnt({14-2*u})")
        e(f"v_lshl_add_u32 v{XD+2*u}, v{XD+2*u+1}, 16, v{XD+2*u}")
        e(f"v_lshl_add_u32 v{dst+u}, v{XD+2*u}, 4, v{XC+u}")
        if store and u % 4 == 3: e(f"buffer_store_dwordx4 v[{dst+u-3}:{dst+u}], v{VOFF}, s[4:7], s70 offen offset:{(u//4)*128} sc1")
def role_old(tag, f12, f3, f0):
    e(f"s_cmp_eq_u32 s{S_WAVE}, 0\ns_cbranch_scc1 {tag}_w0\ns_cmp_eq_u32 s{S_WAVE}, 3\ns_cbranch_scc1 {tag}_w3")
    f12(); e(f"s_branch {tag}_join\n{tag}_w3:"); f3(); e(f"s_branch {tag}_join\n{tag}_w0:"); f0(); e(f"{tag}_join:")
def pre12():
    e(f"s_lshl_b32 s{S_T}, s{S_WAVE}, 13\ns_add_u32 s{S_T}, s{S_T}, {L_STG}")
    xconsts(7)
    e(f"s_lshl_b32 s{S_CNT}, s{S_WAVE}, 1")
    idx_dst()
def pre3():
    e(f"s_lshr_b32 s70, s{S_PID}, 3\ns_mul_i32 s70, s70, {ISTR}\ns_add_u32 s70, s70, {IDXP + 6*16384:#x}")
    e(f"s_and_b32 s{S_T}, s{S_PID}, 7\ns_lshl_b32 s{S_T}, s{S_T}, 9\ns_add_u32 s70, s70, s{S_T}")
    e(f"v_lshlrev_b32 v18, 3, v{LANE}")
def pre0():
    piece_dst(24)
def ld12(): seg2_setup(); seg2_ld()
def ld3():
    e(f"v_mul_u32_u24 v17, 400, v{LANE}\ns_mul_i32 s{S_U}, s{S_PID}, 25600")
    e(f"buffer_load_dwordx4 v[28:31], v17, s[8:11], s{S_U} offen offset:384")
def ld0(): piece_lane(); piece_src(24); piece_ld(POOL)
def xf12(): xform(0, HOLD, False); xform(64, HOLD + 8, False)
def xf3():
    e(f"s_mov_b32 s{S_T}, 0x40014000\ns_mov_b32 s{S_U}, 0x40034002")
    e("v_lshl_add_u32 v28, v29, 16, v28\nv_lshl_add_u32 v30, v31, 16, v30")
    e(f"v_lshl_add_u32 v28, v28, 2, s{S_T}\nv_lshl_add_u32 v30, v30, 2, s{S_U}")
    e(f"v_and_b32 v29, 1, v{LANE}\nv_lshlrev_b32 v29, 4, v29\nv_and_b32 v31, 2, v{LANE}\nv_cmp_ne_u32 vcc, 0, v31")
    e("v_alignbit_b32 v28, v28, v28, v29\nv_alignbit_b32 v30, v30, v30, v29")
    e(f"v_cndmask_b32 v{HOLD}, v28, v30, vcc\nv_cndmask_b32 v{HOLD+1}, v30, v28, vcc")
def xf0(): piece_perm(POOL, HOLD, False)
e(f"s_cmp_lt_u32 s{S_WAVE}, 4\ns_cbranch_scc1 a_old")
e("s_setprio 3")
e(f"s_cmp_ge_u32 s{S_WAVE}, 6\ns_cbranch_scc1 a_w67")
e(f"s_sub_u32 s{S_CNT}, s{S_WAVE}, 4")
seg_setup()
e("s_waitcnt lgkmcnt(0)")
srd(8, 32, 16384 * 400)
seg_ld(1)
e("s_barrier\ns_branch a_join")
e("a_w67:")
e(f"s_cmp_eq_u32 s{S_WAVE}, 7\ns_cbranch_scc1 a_w7")
piece_lane(); piece_src(8)
e("s_waitcnt lgkmcnt(0)")
srd(16, 42, 24 * 65536)
piece_ld(TAB)
e("s_barrier\ns_branch a_join")
e("a_w7:")
if CPF:
    e(f"s_getpc_b64 s[70:71]\ncpf_base:\ns_lshr_b32 s{S_U}, s2, 3\ns_mul_i32 s{S_U}, s{S_U}, {CPL*128}\nv_min_u32 v2, {CPL-1}, v{LANE}\nv_lshl_add_u32 v2, v2, 7, s{S_U}\nv_min_u32 v2, done-cpf_base, v2\nv_mov_b32 v3, s71")
    e("v_add_co_u32 v2, vcc, s70, v2\ns_nop 1\nv_addc_co_u32 v3, vcc, 0, v3, vcc")
    e("global_load_dword v23, v[2:3], off")
e("s_setprio 2")
e(f"v_bfe_u32 v16, v{LANE}, 1, 4\nv_lshlrev_b32 v18, 15, v16\nv_lshrrev_b32 v16, 5, v{LANE}\nv_lshl_or_b32 v18, v16, 12, v18\nv_and_b32 v16, 1, v{LANE}\nv_lshl_or_b32 v18, v16, 2, v18")
e(f"v_and_b32 v16, 31, v{LANE}\nv_lshlrev_b32 v16, 7, v16\ns_lshr_b32 s{S_U}, s2, 3\ns_lshl_b32 s{S_U}, s{S_U}, 12")
e(f"s_lshl_b32 s{S_T}, s{S_CS}, 3")
e("s_waitcnt lgkmcnt(0)")
srd(16, 42, 6400 * 512)
srd(12, 34, 128000)
e("s_barrier")
e(f"buffer_load_dword v23, v16, s[12:15], s{S_U} offen")
e(f"s_mov_b32 s71, s{S_T}")
def raw(lo, hi):
    for n in range(lo, hi):
        s_, j = n // 8, n % 8
        e(f"buffer_load_dword v{POOL+n}, v18, s[16:19], s71 offen offset:{j*512}")
        if j == 7 and s_ < 3: e("s_add_u32 s71, s71, 8192")
raw(0, R1)
e("s_branch a_join")
e("a_old:")
e(f"v_and_b32 v16, 31, v{LANE}\nv_lshlrev_b32 v16, 9, v16\ns_lshr_b32 s{S_U}, s2, 3\ns_lshl_b32 s{S_U}, s{S_U}, 14\ns_lshl_b32 s{S_T}, s{S_CS}, 3\ns_add_u32 s{S_U}, s{S_U}, s{S_T}")
e("s_waitcnt lgkmcnt(0)")
srd(16, 42, 6400 * 512)
srd(8, 32, 16384 * 400)
if PFW:
    e(f"s_cmp_lg_u32 s{S_WAVE}, 3\ns_cbranch_scc1 1f\nbuffer_load_dword v{D0}, v16, s[16:19], s{S_U} offen\n1:")
e("s_barrier")
role_old("d", ld12, ld3, ld0)
e("a_join:")
srd(4, 54, WS_SZ)
srd(8, 32, 16384 * 400)
srd(12, 34, 128000)
srd(16, 42, 6400 * 512)
e(f"s_load_dword s{S_N}, s[54:55], {EPOCH}")
e(f"s_lshl_b32 s{S_T}, s{S_CS}, 3")
e(f"s_load_dwordx2 s[52:53], s[44:45], s{S_T}")
e(f"s_load_dwordx2 s[58:59], s[46:47], s{S_T}")
e("s_load_dwordx8 s[60:67], s[38:39], 0")
e("s_load_dword s68, s[40:41], 0\ns_load_dword s69, s[48:49], 0")
e(f"v_lshlrev_b32 v{L16}, 4, v{LANE}")
e(f"v_and_b32 v16, 28, v{LANE}\nv_lshlrev_b32 v{VOFF}, 8, v16\nv_and_b32 v16, 1, v{LANE}\nv_lshl_or_b32 v{VOFF}, v16, 6, v{VOFF}")
e(f"v_and_b32 v16, 32, v{LANE}\nv_or_b32 v{VOFF}, v{VOFF}, v16\nv_and_b32 v16, 2, v{LANE}\nv_lshl_or_b32 v{VOFF}, v16, 3, v{VOFF}")
e(f"v_lshrrev_b32 v16, 4, v{LANE}\nv_and_b32 v17, 7, v{LANE}\nv_xor_b32 v16, v16, v17\nv_lshlrev_b32 v16, 4, v16")
e(f"v_lshrrev_b32 v17, 3, v{LANE}\nv_lshl_or_b32 v14, v17, 7, v16\nv_xor_b32 v15, 64, v14")
stamp(1)
e(f"s_cmp_ge_u32 s{S_WAVE}, 4\ns_cbranch_scc1 b_young")
role_old("c", pre12, pre3, pre0)
e("s_barrier\ns_waitcnt vmcnt(0)")
role_old("e", xf12, xf3, xf0)
e("s_barrier")
stamp(2)
e("s_branch b_join2")
e("b_young:")
e(f"s_cmp_eq_u32 s{S_WAVE}, 6\ns_cbranch_scc1 b_w6\ns_cmp_eq_u32 s{S_WAVE}, 7\ns_cbranch_scc1 b_w7")
e(f"s_lshl_b32 s{S_T}, s{S_CNT}, 12\ns_add_u32 s{S_T}, s{S_T}, {L_STG}")
xconsts(6); idx_dst()
e("s_waitcnt vmcnt(0)")
stamp(1)
xform(0, HOLD, True)
e("s_branch b_sig")
e("b_w6:")
e(f"s_cmp_ge_u32 s{S_CS}, 32\ns_cbranch_scc1 b_sig")
piece_dst(8)
e("s_waitcnt vmcnt(0)")
stamp(1)
piece_perm(TAB, HOLD, True)
e("b_sig:")
e("s_barrier")
e(f"s_lshl_b32 s{S_T}, s{S_PID}, 7\ns_add_u32 s{S_T}, s{S_T}, {FLG:#x}\nv_mov_b32 v13, 0\ns_waitcnt vmcnt(0) lgkmcnt(0)")
e(f"v_not_b32 v11, s{S_N}\ns_barrier")
e(f"s_cmp_lg_u32 s{S_WAVE}, 4\ns_cbranch_scc1 b_nosig\ns_mov_b64 exec, 1")
e(f"buffer_store_dword v11, v13, s[4:7], s{S_T} offen sc1")
e("s_mov_b64 exec, -1\nb_nosig:\ns_setprio 0")
e("s_branch b_join")
e("b_w7:")
e("s_barrier"); raw(R1, R2); e("s_barrier"); raw(R2, 32)
e(f"s_mov_b32 s{S_T}, {PLO}\ns_mov_b32 s{S_U}, {PHI}")
e(f"v_add_u32 v12, {L_XCH}, v{L16}")
for s in range(4):
    e(f"s_waitcnt vmcnt({24-8*s})")
    for jj in range(4):
        r0 = POOL + 8 * s + 2 * jj
        e(f"v_perm_b32 v{POOL+32+8*s+jj}, v{r0+1}, v{r0}, s{S_T}")
        e(f"v_perm_b32 v{POOL+36+8*s+jj}, v{r0+1}, v{r0}, s{S_U}")
    e(f"ds_write_b128 v12, v[{POOL+32+8*s}:{POOL+35+8*s}] offset:{s*1024}")
    e(f"ds_write_b128 v12, v[{POOL+36+8*s}:{POOL+39+8*s}] offset:{4096+s*1024}")
e("b_join:")
stamp(2)
e("b_join2:")
for vt in range(PRE): tab_dma(vt)
e("s_setprio 0")
e("b_all:")
e(f"v_bfe_u32 v19, v{LANE}, 2, 2\nv_bfe_u32 v20, v{LANE}, 4, 1\nv_lshlrev_b32 v20, 1, v20\nv_mov_b32 v21, 0x3f80")
e("v_cmp_eq_u32 vcc, v19, v20\nv_add_u32 v20, 1, v20\ns_nop 0")
e(f"v_cndmask_b32 v{AC}, 0, v21, vcc\nv_cndmask_b32 v{AC+1}, 0, v21, vcc")
e(f"v_cmp_eq_u32 vcc, v19, v20\nv_and_b32 v19, 3, v{LANE}\ns_nop 0")
e(f"v_cndmask_b32 v{AC+2}, 0, v21, vcc\nv_cndmask_b32 v{AC+3}, 0, v21, vcc")
e(f"v_mul_u32_u24 v{SIDX}, 0x5555, v19")
e(f"s_lshl_b32 s{S_T}, s{S_BS}, 3\ns_add_u32 s{S_T}, s{S_T}, s{S_WAVE}\ns_mul_i32 s{S_IDX}, s{S_T}, {ISTR}\ns_add_u32 s{S_IDX}, s{S_IDX}, {IDXP:#x}\ns_add_u32 s{S_IDX2}, s{S_IDX}, 8192")
e(f"s_mul_i32 s{S_W1}, s{S_CS}, {WSTR}\ns_add_u32 s{S_W1}, s{S_W1}, {W1P:#x}")
DELTA = 28800
e(f"s_add_u32 s{S_M0B}, s{S_M0A}, {65536-DELTA}")
e(f"s_lshr_b32 s{S_T}, s{S_CS}, 4\ns_lshl_b32 s{S_T}, s{S_T}, 6\ns_lshl_b32 s{S_U}, s{S_WAVE}, 3\nv_and_b32 v3, 7, v{LANE}\nv_add_u32 v10, s{S_U}, v3")
e(f"s_bfe_u32 s{S_U}, s{S_WAVE}, 0x10001\nv_lshl_add_u32 v11, v3, 1, s{S_U}\nv_lshrrev_b32 v3, 3, v{LANE}\nv_cmp_eq_u32 vcc, 1, v3\ns_nop 1\nv_cndmask_b32 v10, v10, v11, vcc")
e(f"s_lshl_b32 s{S_U}, s{S_BS}, 6\nv_mov_b32 v11, s{S_T}\nv_mov_b32 v16, s{S_U}\nv_cmp_eq_u32 vcc, 0, v3\ns_nop 1\nv_cndmask_b32 v11, v11, v16, vcc\nv_add_lshl_u32 v19, v10, v11, 7")
e(f"v_and_b32 v10, 24, v{LANE}\nv_and_b32 v11, 3, v{LANE}\nv_lshl_add_u32 v10, v11, 1, v10\nv_bfe_u32 v12, v{LANE}, 2, 1\nv_add_u32 v10, v10, v12\nv_lshlrev_b32 v10, 7, v10")
e(f"v_bfe_u32 v12, v{LANE}, 3, 1\nv_lshl_or_b32 v11, v12, 2, v11\nv_lshrrev_b32 v12, 5, v{LANE}\nv_xor_b32 v11, v11, v12\nv_lshl_or_b32 v10, v11, 4, v10")
e(f"v_add_u32 v10, s{S_M0A}, v10\nv_add_u32 v12, {L_XCH}, v{L16}")
e("s_waitcnt lgkmcnt(0)")
e(f"s_not_b32 s{S_N}, s{S_N}")
e("s_lshl_b32 s56, s58, 16\ns_and_b32 s57, s58, 0xffff0000\ns_lshl_b32 s58, s59, 16\ns_and_b32 s59, s59, 0xffff0000")
e("s_lshl_b32 s32, s52, 16\ns_and_b32 s33, s52, 0xffff0000\ns_lshl_b32 s34, s53, 16\ns_and_b32 s35, s53, 0xffff0000")
e(f"s_cmp_eq_u32 s{S_WAVE}, 0\ns_cselect_b32 s{S_FB}, 1, 0\ns_cmp_lt_u32 s{S_WAVE}, 4\ns_cselect_b32 s{S_HP}, 1, 0")
def tab_rd(vt):
    if False:
        n = vm.younger(("t", vt))
        e(f"s_waitcnt vmcnt({n+8})\ns_cmp_lt_u32 s{S_WAVE}, 3\ns_cbranch_scc1 1f\ns_waitcnt vmcnt({n})\n1:")
    else: wait_vm(("td", vt), ("t", vt))
    if vt == 2:
        for s in range(4): e(f"v_add_u32 v{20+s}, 0x10000, v{20+s}")
    for s in range(4):
        r = TAB + 16 * vt + 4 * s
        e(f"ds_read_b128 v[{r}:{r+3}], v{20+s} offset:{(vt%2)*32768}")

def ldw(i):
    e(f"buffer_load_dwordx4 v[{W1+4*i}:{W1+4*i+3}], v{VOFF}, s[4:7], s{S_W1} offen offset:{i*128} sc1")
    vm.issue(("w", i))
def ldi(reg, k, tag):
    e(f"buffer_load_dwordx4 v[{reg}:{reg+3}], v{VOFF}, s[4:7], s{S_IDX if k < 8 else S_IDX2} offen offset:{(k%8)*128} sc1")
    vm.issue(tag)
def mf(vt, i, swap=False, base=D0):
    s, par = i // 2, i % 2
    d = base + 16 * par
    c = "0" if s == 0 else f"v[{d}:{d+15}]"
    a = f"v[{TAB+16*vt+4*s}:{TAB+16*vt+4*s+3}]"; b = f"v[{W1+16*par+4*s}:{W1+16*par+4*s+3}]"
    if swap: a, b = b, a
    e(f"v_mfma_f32_32x32x16_bf16 v[{d}:{d+15}], {a}, {b}, {c}")
def frag_of(i): return (i % 2) * 4 + i // 2
def cvt(dst, r, base=D0): e(f"v_cvt_pk_bf16_f32 v{dst}, v{base+r}, v{base+16+r}")
def wr(src, vt, r):
    off = (vt % 2) * 32768 + r * 256 + (DELTA if vt >= 2 else 0)
    e(f"ds_write_addtid_b32 v{src} offset:{off}")
SD = "dst_sel:DWORD dst_unused:UNUSED_PAD src0_sel:DWORD"
def unpack(w0):
    e(f"v_lshlrev_b32_sdwa v{T0}, 3, v{w0} {SD} src1_sel:WORD_1")
    e(f"v_lshlrev_b32_sdwa v{w0}, 3, v{w0} {SD} src1_sel:WORD_0")
    e(f"v_lshlrev_b32_sdwa v{T1}, 3, v{w0+1} {SD} src1_sel:WORD_1")
    e(f"v_lshlrev_b32_sdwa v{w0+1}, 3, v{w0+1} {SD} src1_sel:WORD_0")
def reads(w0, slot):
    d = DAT + 8 * slot
    for i, a in enumerate((w0, T0, w0 + 1, T1)):
        e(f"ds_read_b64 v[{d+2*i}:{d+2*i+1}], v{a}")
def smf(g, slot):
    d = DAT + 8 * slot; a = ACC + 4 * g
    e(f"v_smfmac_f32_16x16x64_bf16 v[{a}:{a+3}], v[{AC}:{AC+3}], v[{d}:{d+7}], v{SIDX}")
def poll_issue():
    stamp(5)
    e(f"s_mov_b32 s{S_T}, {FLG:#x}")
    e(f"buffer_load_dword v10, v19, s[4:7], s{S_T} offen sc1"); vm.issue("poll")
def poll_check():
    e(f"s_mov_b32 s{S_CNT}, 0\ns_mov_b32 s{S_T}, {FLG:#x}")
    wait_vm("pollw", "poll")
    e("poll1:")
    e(f"v_cmp_ne_u32 vcc, s{S_N}, v10\ns_cbranch_vccz poll1_done")
    e(f"s_sleep 8\nbuffer_load_dword v10, v19, s[4:7], s{S_T} offen sc1")
    e(f"s_add_u32 s{S_CNT}, s{S_CNT}, 1\ns_waitcnt vmcnt(0)\ns_cmp_lt_u32 s{S_CNT}, 0x40000\ns_cbranch_scc1 poll1")
    e("poll1_done:")
    stamp(6)
    e(f"s_lshl_b32 s{S_T}, s{S_WAVE}, 7\ns_add_u32 s{S_T}, s{S_T}, s{S_W1}")
    e(f"buffer_load_dwordx4 v[24:27], v{VOFF}, s[4:7], s{S_T} offen sc1"); vm.issue("w1x")
    for i in range(8): vm.tag[("w", i)] = vm.n

for s_ in range(4): e(f"v_xor_b32 v{20+s_}, {s_*32}, v10")
assert PRE == 2
e("s_barrier")
stamp(3)
for i in range(8): e(f"ds_read_b128 v[{W1+4*i}:{W1+4*i+3}], v12 offset:{i*1024}")
tab_dma(2)
tab_rd(0)
stamp(4)
DB = [ACC, D0, ACC, D0]
for vt in range(5):
    if vt % 2 == 1: e(f"s_mov_b32 m0, s{S_M0A if vt == 1 else S_M0B}")
    if vt < 4: e("s_waitcnt lgkmcnt(0)")
    for i in range(8):
        if vt < 4: mf(vt, i, base=DB[vt])
        if vt > 0 and i == 0: e("s_nop 5")
        if vt > 0:
            b = DB[vt - 1]
            for r in (2 * i, 2 * i + 1): cvt(b + r, r, b)
            for r in (2 * i, 2 * i + 1): wr(b + r, vt - 1, r)
    if vt == 0: tab_dma(3)
    if vt == PI: poll_issue()
    if vt < 3: tab_rd(vt + 1)
    if vt == PI + 1: poll_check()
    if vt == XT:
        assert XT >= 1 and XT >= PI + 1
        for k in range(KPRE): ldi(POOL + 4 * k, k, ("i", k))
    if vt == 3:
        for g in range(8):
            for c in range(4): e(f"v_mov_b32 v{ACC+4*g+c}, s{32+c}")
e(f"s_add_u32 s{S_W1}, s{S_W1}, 8192")
e(f"v_add_u32 v12, {L_XC2}, v{L16}\ns_lshl_b32 s{S_U}, s{S_WAVE}, 10\nv_add_u32 v13, s{S_U}, v12")
wait_vm("p0i", ("i", 1))
e("ds_write_b128 v13, v[24:27]")
unpack(POOL)
e(f"s_mov_b32 s{S_CNT}, 3")
e("s_waitcnt lgkmcnt(0)\ns_barrier")
for i in range(8): e(f"ds_read_b128 v[{W1+4*i}:{W1+4*i+3}], v12 offset:{i*1024}")
for k in range(KPRE, 8): ldi(POOL + 4 * k, k, ("i", k))
e(f"s_cmp_ge_u32 s{S_WAVE}, 4\ns_cbranch_scc1 g_join\ns_cmp_eq_u32 s{S_WAVE}, 0\ns_cbranch_scc1 g_w0\ns_cmp_eq_u32 s{S_WAVE}, 3\ns_cbranch_scc1 g_w3")
for u in range(4): e(f"buffer_store_dwordx4 v[{HOLD+4*u}:{HOLD+4*u+3}], v{VOFF}, s[4:7], s{70+u//2} offen offset:{(u%2)*128} sc1")
e("s_branch g_join")
e(f"g_w3:\nbuffer_store_dwordx2 v[{HOLD}:{HOLD+1}], v18, s[4:7], s70 offen sc1\ns_branch g_join")
e(f"g_w0:\ns_cmp_ge_u32 s{S_CS}, 52\ns_cbranch_scc1 g_join")
for cc in range(8): piece_st(cc, HOLD)
e("g_join:")
e("s_waitcnt lgkmcnt(0)")
stamp(7)
if STAMP: e(f"s_waitcnt lgkmcnt(0)\ns_mov_b32 s40, s{SB+14}\ns_mov_b32 s42, s{SB+14}\ns_mov_b32 s44, 0\ns_mov_b32 s45, 0\ns_mov_b32 s46, 0")

def blocks(par): return [POOL + (48 if par else 0), POOL + 16, POOL + 32, POOL + (0 if par else 48)]
def prio(q):
    if q == PRIOQ: e(f"s_cmp_ge_u32 s{S_WAVE}, 4\ns_cbranch_scc0 1f\ns_setprio 1\n1:")
def phase(par):
    blk = blocks(par)
    def w0(q): return blk[q // 8] + (q % 8) * 2
    for q in range(32):
        prio(q)
        if q >= 3:
            e("s_waitcnt lgkmcnt(8)")
            smf((q - 3) // 4, q % 3)
        reads(w0(q), q % 3)
        vt = q // 8
        for i in range(8):
            if MQ[i] == q % 8:
                if vt == 0 and i % 2 == 0: wait_vm((par, "w", i), ("w", frag_of(i + 1)))
                mf(vt, i)
                if vt == 3 and not W1W: ldw(frag_of(i))
        if q < 16 and q % 2 == 0:
            k = 8 + q // 2
            ldi(blk[k // 4] + 4 * (k % 4), k, ("i", k))
        if q == 20: e(f"s_add_u32 s{S_IDX}, s{S_IDX}, 16384\ns_add_u32 s{S_IDX2}, s{S_IDX2}, 16384")
        if q >= 25 and q % 2 == 1:
            k = (q - 25) // 2
            ldi(blk[3] + 4 * k, k, ("n", k))
        if q < 31:
            if (q + 1) % 4 == 0: wait_vm((par, "i", q), ("i", (q + 1) // 2 + 1))
            unpack(w0(q + 1))
        if q % 8 == 7 and vt < 3:
            for r in range(8): cvt(blk[vt] + r, r)
        if q % 8 == 0 and vt > 0:
            for r in range(8, 16): cvt(blk[vt - 1] + r, r)
        if q == HPQ and par == 1: e(f"s_cmp_eq_u32 s{S_HP}, 1\ns_cbranch_scc1 hook_p\nhook_p_ret:")
        if q == 24 and par == 1: e(f"s_cmp_eq_u32 s{S_CNT}, 2\ns_cbranch_scc1 hook_c\nhook_c_ret:")
    for k in range(4): vm.tag[("i", k)] = vm.tag[("n", k)]
    e("s_waitcnt lgkmcnt(8)"); smf(7, 29 % 3)
    e("s_waitcnt lgkmcnt(4)"); smf(7, 30 % 3)
    e(f"s_mov_b32 m0, s{S_M0A}")
    for r in range(16): cvt(D0 + r, r)
    if PRIOQ >= 0: e("s_setprio 0")
    if STAMP: e("s_memtime s[48:49]")
    e("s_waitcnt lgkmcnt(0)")
    if STAMP: e("s_sub_u32 s47, s48, s40\ns_add_u32 s46, s46, s47\ns_sub_u32 s47, s40, s42\ns_add_u32 s45, s45, s47")
    e("s_barrier")
    if STAMP: e("s_memtime s[42:43]")
    smf(7, 31 % 3)
    if par == 0: e(f"s_cmp_eq_u32 s{S_FB}, 1\ns_cbranch_scc1 hook_f\nhook_f_ret:")
    n = 0
    for vt in (1, 0, 2, 3):
        if vt == 2: e(f"s_mov_b32 m0, s{S_M0B}\ns_nop 0")
        for r in range(16):
            wr(blk[vt] + r if vt < 3 else D0 + r, vt, r)
            if W1W and n % 4 == 0 and n < 32: ldw(frag_of(n // 4))
            if n >= 32 and n % 8 == 0:
                k = 4 + (n - 32) // 8
                ldi(blk[1] + 4 * (k % 4), k, ("i", k))
            n += 1
    e(f"s_add_u32 s{S_W1}, s{S_W1}, 8192")
    wait_vm((par, "i0"), ("i", 1))
    unpack(blk[3])
    e("s_waitcnt lgkmcnt(0)")
    if STAMP: e(f"s_sub_u32 s47, s42, s40\ns_add_u32 s44, s44, s47\ns_cmp_eq_u32 s{S_CNT}, {3-par}\ns_cselect_b32 s{38+par}, s47, s{38+par}")
    if par == 0: e(f"s_sub_u32 s{S_CNT}, s{S_CNT}, 1\ns_cmp_eq_u32 s{S_CNT}, 0")
    e("s_barrier")
    if STAMP: e("s_memtime s[40:41]")

e(".p2align 6\nmain_loop:")
phase(0)
e("s_cbranch_scc1 last_phase")
phase(1)
e("s_branch main_loop")
e("hook_f:")
e(f"s_mov_b32 s{S_FB}, 0\ns_lshl_b32 s{S_T}, s{S_PID}, 7\ns_add_u32 s{S_T}, s{S_T}, {FLGB:#x}\nv_mov_b32 v{T0}, s{S_N}\nv_mov_b32 v{T1}, 0\ns_mov_b64 exec, 1")
e(f"buffer_store_dword v{T0}, v{T1}, s[4:7], s{S_T} offen sc1\nv_mov_b32 v{T0}, {L_XCH}\nds_write_b32 v{T0}, v{T1}\ns_mov_b64 exec, -1\ns_branch hook_f_ret")
e("hook_p:")
e(f"s_mov_b32 s{S_HP}, 0\nv_mbcnt_lo_u32_b32 v{D0}, -1, 0\nv_mbcnt_hi_u32_b32 v{D0}, -1, v{D0}")
e(f"s_lshr_b32 s{S_T}, s{S_CS}, 4\nv_mov_b32 v{D0+1}, s{S_T}\nv_mov_b32 v{D0+2}, s{S_BS}\nv_cmp_gt_u32 vcc, 16, v{D0}\nv_and_b32 v{D0}, 15, v{D0}\ns_lshl_b32 s{S_T}, s{S_WAVE}, 11")
e(f"v_cndmask_b32 v{D0+1}, v{D0+1}, v{D0+2}, vcc\nv_lshl_add_u32 v{D0}, v{D0+1}, 6, v{D0}\nv_lshlrev_b32 v{D0}, 7, v{D0}\ns_add_u32 s{S_T}, s{S_T}, {FLGB:#x}\ns_mov_b32 s{S_U}, 0")
e("hook_p_loop:")
e(f"buffer_load_dword v{D0+1}, v{D0}, s[4:7], s{S_T} offen sc1")
e(f"s_add_u32 s{S_U}, s{S_U}, 1\ns_waitcnt vmcnt(0)\ns_cmp_gt_u32 s{S_U}, 0x40000\ns_cbranch_scc1 hook_p_out")
e(f"v_cmp_ne_u32 vcc, s{S_N}, v{D0+1}\ns_cbranch_vccnz hook_p_loop")
e(f"hook_p_out:\nv_mov_b32 v{D0}, {L_XCH}\nv_mov_b32 v{D0+1}, 1\ns_mov_b64 exec, 1\nds_add_u32 v{D0}, v{D0+1}\ns_mov_b64 exec, -1\ns_branch hook_p_ret")
e("hook_c:")
e(f"v_mov_b32 v{D0}, {L_XCH}\ns_mov_b32 s{S_U}, 0")
e(f"hook_c_loop:\nds_read_b32 v{D0+1}, v{D0}\ns_add_u32 s{S_U}, s{S_U}, 1\ns_waitcnt lgkmcnt(0)\ns_cmp_gt_u32 s{S_U}, 0x1000000\ns_cbranch_scc1 hook_c_ret")
e(f"v_cmp_ne_u32 vcc, 4, v{D0+1}\ns_cbranch_vccnz hook_c_loop\ns_branch hook_c_ret")
emit = False
phase(0); phase(1); phase(0)
emit = True
e("last_phase:")
stamp(8)
blk = blocks(1)
XI = blk[0]
SC = blk[1]
XB = 22
units = [("q", q) for q in range(XB)] + [("x", g) for g in range(8)] + [("q", q) for q in range(XB, 32)]
VX = W1 + 16; WA = W1 + 17; TL = W1 + 18; TM = W1 + 19
def uw0(u): return blk[u[1] // 8] + (u[1] % 8) * 2 if u[0] == "q" else XI + 2 * u[1]
def ugrp(u): return u[1] // 4 if u[0] == "q" else u[1]
XW = W1; LN = SC; ROW = SC + 1; PV = SC + 4; RES = SC + 8
XM = [0, 0, 0, 1, 1, 1, 2, 2]
extra = {i: [] for i in range(len(units) + 3)}
def epi(g):
    a = ACC + 4 * g
    l = [f"v_max_f32 v{a+c}, 0, v{a+c}" for c in range(4)]
    l.append(f"v_mul_f32 v{RES+g}, s56, v{a}")
    l += [f"v_fma_f32 v{RES+g}, v{a+c}, s{56+c}, v{RES+g}" for c in range(1, 4)]
    l.append(f"v_and_or_b32 v{RES+g}, v{RES+g}, -16, v{PV+2}")
    if g % 4 == 3: l.append(f"buffer_store_dwordx4 v[{RES+g-3}:{RES+g}], v{PV}, s[4:7], s{70 + g//4} offen sc1")
    return l
for i, u in enumerate(units):
    prio(i)
    if i >= 3:
        e("s_waitcnt lgkmcnt(8)")
        smf(ugrp(units[i - 3]), i % 3)
    if i == XB: e("s_barrier")
    reads(uw0(u), i % 3)
    if i == 0:
        wait_vm(("L", "junk"), ("w", frag_of(7)))
        e(f"v_mbcnt_lo_u32_b32 v{TL}, -1, 0\nv_mbcnt_hi_u32_b32 v{TL}, -1, v{TL}")
        e(f"v_and_b32 v{VX}, 32, v{TL}\nv_and_b32 v{TM}, 4, v{TL}\nv_lshl_or_b32 v{VX}, v{TM}, 8, v{VX}\nv_and_b32 v{TM}, 1, v{TL}\nv_lshl_or_b32 v{VX}, v{TM}, 9, v{VX}")
        e(f"v_and_b32 v{TM}, 2, v{TL}\nv_lshl_or_b32 v{VX}, v{TM}, 5, v{VX}\nv_and_b32 v{TM}, 8, v{TL}\nv_lshl_or_b32 v{VX}, v{TM}, 1, v{VX}")
        e(f"s_sub_u32 s{S_W1}, s{S_W1}, 8192")
        for sx in range(4):
            e(f"buffer_load_dwordx4 v[{W1+4*sx}:{W1+4*sx+3}], v{VX}, s[4:7], s{S_W1} offen offset:{sx*128} sc1"); vm.issue("xw")
    if i == 1:
        e(f"v_and_b32 v{WA}, 24, v{TL}\nv_and_b32 v{TM}, 3, v{TL}\nv_lshl_add_u32 v{WA}, v{TM}, 1, v{WA}\nv_bfe_u32 v{TM}, v{TL}, 2, 1\nv_add_u32 v{WA}, v{WA}, v{TM}")
        e(f"v_lshrrev_b32 v{TM}, 5, v{TL}\nv_lshl_add_u32 v{WA}, v{WA}, 1, v{TM}\ns_lshl_b32 s{S_T}, s{S_WAVE}, 10\ns_add_u32 s{S_T}, s{S_T}, {L_XT}\nv_lshl_add_u32 v{WA}, v{WA}, 4, s{S_T}")
    if 6 <= i < 18:
        vt = (i - 6) // 3
        if i == 6: wait_vm(("L", "xw"), "xw")
        d = D0 + 16 * (vt % 2)
        for sx in ((0, 1), (2,), (3,))[(i - 6) % 3]:
            c = "0" if sx == 0 else f"v[{d}:{d+15}]"
            e(f"v_mfma_f32_32x32x16_bf16 v[{d}:{d+15}], v[{W1+4*sx}:{W1+4*sx+3}], v[{TAB+16*vt+4*sx}:{TAB+16*vt+4*sx+3}], {c}")
    if i < 16 and i % 2 == 0:
        k = 8 + i // 2
        ldi(blk[k // 4] + 4 * (k % 4), k, ("i", k))
    if i == 8:
        e(f"v_mbcnt_lo_u32_b32 v{XI+15}, -1, 0\nv_mbcnt_hi_u32_b32 v{XI+15}, -1, v{XI+15}\nv_lshlrev_b32 v{XI+15}, 3, v{XI+15}")
        e(f"s_add_u32 s{S_IDX}, s{S_IDX}, 16384")
    if 9 <= i <= 16:
        g = i - 9
        e(f"buffer_load_dwordx2 v[{XI+2*g}:{XI+2*g+1}], v{XI+15}, s[4:7], s{S_IDX} offen offset:{g*512} sc1"); vm.issue(("x", g))
    if i + 1 < len(units):
        nu = units[i + 1]
        if nu[0] == "q" and nu[1] % 4 == 0 and nu[1] <= 20: wait_vm(("L", "i", i), ("i", nu[1] // 2 + 1))
        if nu == ("x", 0): wait_vm(("L", "x"), ("x", 7))
        unpack(uw0(nu))
    if i in (10, 13, 16, 19):
        vt = (i - 10) // 3
        d = D0 + 16 * (vt % 2)
        for r in range(4): e(f"v_cvt_pk_bf16_f32 v{d+r}, v{d+2*r}, v{d+2*r+1}")
        e(f"ds_write_b128 v{WA}, v[{d}:{d+3}] offset:{vt*8192}")
    if i == 17:
        e(f"v_mbcnt_lo_u32_b32 v{LN}, -1, 0\nv_mbcnt_hi_u32_b32 v{LN}, -1, v{LN}")
        e(f"v_and_b32 v{PV+1}, 15, v{LN}\nv_lshlrev_b32 v{PV+1}, 4, v{PV+1}\nv_lshrrev_b32 v{PV}, 4, v{LN}\nv_lshl_or_b32 v{PV}, v{PV}, 14, v{PV+1}")
        e(f"s_lshl_b32 s70, s{S_BS}, 20\ns_lshl_b32 s71, s{S_WAVE}, 17\ns_add_u32 s70, s70, s71\ns_lshl_b32 s71, s{S_CS}, 8\ns_add_u32 s70, s70, s71")
        e(f"s_add_u32 s70, s70, {PART:#x}\ns_add_u32 s71, s70, 65536")
        e(f"s_and_b32 s{S_U}, s{S_N}, 15\nv_mov_b32 v{PV+2}, s{S_U}")
        srd(8, 36, 16384 * 26)
        srd(12, 50, 32768)
    if i == 21:
        e(f"s_cmp_lg_u32 s{S_WAVE}, 0\ns_cbranch_scc1 nowide")
        e(f"s_lshr_b32 s{S_T}, s{S_PID}, 2\ns_lshl_b32 s{S_T}, s{S_T}, 8\ns_and_b32 s{S_U}, s{S_PID}, 3\ns_lshl_b32 s{S_U}, s{S_U}, 4\ns_add_u32 s{S_T}, s{S_T}, s{S_U}")
        e(f"v_lshrrev_b32 v{ROW}, 4, v{LN}\nv_and_b32 v{ROW+1}, 15, v{LN}\nv_lshl_add_u32 v{ROW}, v{ROW}, 6, v{ROW+1}\nv_add_u32 v{ROW}, s{S_T}, v{ROW}")
        e(f"v_mul_u32_u24 v{ROW+1}, 26, v{ROW}")
        for j in range(13): e(f"buffer_load_ushort v{XW+j}, v{ROW+1}, s[8:11], 0 offen offset:{2*j}")
        e("nowide:")
    for g, step in enumerate((27, 28, 29, 30, 31, 36)):
        if i == step:
            for x in epi(g): e(x)
n = len(units)
e("s_waitcnt lgkmcnt(8)"); smf(7, n % 3)
e("s_waitcnt lgkmcnt(4)"); smf(7, (n + 1) % 3)
for x in epi(6): e(x)
e("s_waitcnt lgkmcnt(0)"); smf(7, (n + 2) % 3)
e(f"v_lshlrev_b32 v{PV+1}, 4, v{LN}")
e(f"s_lshl_b32 s70, s{S_PID}, 14\ns_lshl_b32 s{S_T}, s{S_WAVE}, 11\ns_add_u32 s70, s70, s{S_T}\ns_add_u32 s70, s70, {PART:#x}")
e(f"s_lshl_b32 s{S_T}, s{S_WAVE}, 8\ns_add_u32 s{S_T}, s{S_T}, {128000}\nv_lshl_add_u32 v{PV+3}, v{LN}, 2, s{S_T}")
e("s_nop 0")
for x in epi(7): e(x)
if PRIOQ >= 0: e("s_setprio 0")
stamp(9)
e(f"s_cmp_lg_u32 s{S_WAVE}, 0\ns_cbranch_scc1 nowide2")
e("s_waitcnt vmcnt(2)")
e(f"s_lshl_b32 s68, s68, 16\ns_lshl_b32 s69, s69, 16\nv_mov_b32 v{XW+13}, s68\nv_add_f32 v{XW+13}, s69, v{XW+13}")
for j in range(13):
    sw = 60 + j // 2
    if j % 2 == 0: e(f"s_lshl_b32 s{S_T}, s{sw}, 16")
    else: e(f"s_and_b32 s{S_T}, s{sw}, 0xffff0000")
    e(f"v_lshlrev_b32 v{XW+j}, 16, v{XW+j}")
    e(f"v_fma_f32 v{XW+13}, v{XW+j}, s{S_T}, v{XW+13}")
e("nowide2:")
e(f"s_mov_b32 s{S_CNT}, 0\ns_waitcnt vmcnt(0)")
if A("EB", 1): e("s_barrier")
stamp(10)
e("poll2:")
e(f"buffer_load_dwordx4 v[{D1}:{D1+3}], v{PV+1}, s[4:7], s70 offen sc1")
e(f"buffer_load_dwordx4 v[{D1+4}:{D1+7}], v{PV+1}, s[4:7], s70 offen offset:1024 sc1")
e(f"s_add_u32 s{S_CNT}, s{S_CNT}, 1\ns_cmp_gt_u32 s{S_CNT}, 0x40000\ns_cbranch_scc1 poll2_done")
e("s_waitcnt vmcnt(0)")
for i in range(8): e(f"v_xor_b32 v{D1+8+i}, v{PV+2}, v{D1+i}")
e(f"v_or3_b32 v{D1+8}, v{D1+8}, v{D1+9}, v{D1+10}\nv_or3_b32 v{D1+11}, v{D1+11}, v{D1+12}, v{D1+13}\nv_or3_b32 v{D1+8}, v{D1+8}, v{D1+14}, v{D1+15}")
e(f"v_or_b32 v{D1+8}, v{D1+8}, v{D1+11}\nv_and_b32 v{D1+8}, 15, v{D1+8}\nv_cmp_ne_u32 vcc, 0, v{D1+8}\ns_cbranch_vccnz poll2")
e("poll2_done:\ns_waitcnt vmcnt(0)")
stamp(11)
for c in range(4): e(f"v_add_f32 v{D1+c}, v{D1+c}, v{D1+4+c}")
e(f"s_nop 1\nv_permlane32_swap_b32 v{D1}, v{D1+2}\nv_permlane32_swap_b32 v{D1+1}, v{D1+3}")
e(f"v_add_f32 v{D1}, v{D1}, v{D1+2}\nv_add_f32 v{D1+1}, v{D1+1}, v{D1+3}\ns_nop 1")
e(f"v_permlane16_swap_b32 v{D1}, v{D1+1}\nv_add_f32 v{D1}, v{D1}, v{D1+1}")
e(f"ds_write_b32 v{PV+3}, v{D1}\ns_waitcnt lgkmcnt(0)\ns_barrier")
e(f"s_cmp_lg_u32 s{S_WAVE}, 0\ns_cbranch_scc1 fin")
for i in range(1, 8): e(f"ds_read_b32 v{D1+i}, v{PV+3} offset:{256*i}")
e(f"v_add_f32 v{D1}, v{D1}, v{XW+13}\nv_lshlrev_b32 v{ROW}, 1, v{ROW}")
e("s_waitcnt lgkmcnt(0)")
e(f"v_add_f32 v{D1+1}, v{D1+1}, v{D1+2}\nv_add_f32 v{D1+3}, v{D1+3}, v{D1+4}\nv_add_f32 v{D1+5}, v{D1+5}, v{D1+6}\nv_add_f32 v{D1}, v{D1}, v{D1+7}")
e(f"v_add_f32 v{D1+1}, v{D1+1}, v{D1+3}\nv_add_f32 v{D1}, v{D1}, v{D1+5}\nv_add_f32 v{D1}, v{D1}, v{D1+1}")
e(f"v_mul_f32 v{D1}, 0xbfb8aa3b, v{D1}\nv_exp_f32 v{D1}, v{D1}\ns_nop 0\nv_add_f32 v{D1}, 1.0, v{D1}\nv_rcp_f32 v{D1}, v{D1}\ns_nop 0")
e(f"v_cvt_pk_bf16_f32 v{D1}, v{D1}, v{D1}")
e(f"buffer_store_short v{D1}, v{ROW}, s[12:15], 0 offen")
e("s_cmp_lg_u32 s2, 0\ns_cbranch_scc1 fin")
e(f"v_mov_b32 v{D1+1}, s{S_N}\nv_mov_b32 v{D1+2}, {EPOCH}\ns_mov_b64 exec, 1")
e(f"buffer_store_dword v{D1+1}, v{D1+2}, s[4:7], 0 offen\ns_mov_b64 exec, -1")
e("fin:")
if FIX:
    e(f"fixl:\ns_memrealtime s[98:99]\ns_waitcnt lgkmcnt(0)\ns_sub_u32 s98, s98, s{96 if PROBE else 100}")
    e(f"s_cmp_lt_u32 s98, {FIX}\ns_cbranch_scc1 fixl")
if STAMP:
    stamp(12)
    e("s_memrealtime s[98:99]\ns_waitcnt lgkmcnt(0)")
    e(f"s_lshl_b32 s70, s2, 3\ns_add_u32 s70, s70, s{S_WAVE}\ns_lshl_b32 s70, s70, 7\ns_add_u32 s70, s70, {STMP:#x}")
    e("v_mov_b32 v8, 0")
    for i in range(1, 13):
        e(f"s_sub_u32 s{SB+2*i}, s{SB+2*i}, s{SB}\nv_mov_b32 v9, s{SB+2*i}")
        e(f"buffer_store_dword v9, v8, s[4:7], s70 offen offset:{4*(i-1)}")
    for i, r in enumerate((44, 45, 46, 100, 98, 38, 39)):
        e(f"v_mov_b32 v9, s{r}\nbuffer_store_dword v9, v8, s[4:7], s70 offen offset:{48+4*i}")
e("done:\ns_endpgm")

e(f""".section .rodata,"a"
.p2align 6
.amdhsa_kernel {KN}
  .amdhsa_next_free_vgpr 256
  .amdhsa_next_free_sgpr 102
  .amdhsa_accum_offset 256
  .amdhsa_group_segment_fixed_size 0
  .amdhsa_kernarg_size 96
  .amdhsa_user_sgpr_count 2
  .amdhsa_user_sgpr_kernarg_segment_ptr 1
  .amdhsa_system_sgpr_workgroup_id_x 1
.end_amdhsa_kernel""")

bysite = {str(k): v for k, v in waits.items()}
res = []
for l in out:
    if l.startswith("@VM "):
        n = bysite[l[4:]]
        assert 0 <= n <= 63
        l = f"s_waitcnt vmcnt({n})"
    res.append(l)
print("\n".join(res))
```

```python
import sys
args = dict(a.split("=") for a in sys.argv[1:])
def A(k, d): return type(d)(args.get(k, d))
STAMP = A("STAMP", 0); PROBE = A("PROBE", 0); FIX = A("FIX", 0)
PRIOQ = A("PRIOQ", -1); W1W = A("W1W", 0); CPF = A("CPF", 1); POLLT = A("POLLT", 2); PRE = A("PRE", 2); BAR0 = A("BAR0", 1); MAP = A("MAP", 1); CPL = A("CPL", 6); KPRE = A("KPRE", 8); DEFT = A("DEFT", -1); PREO = A("PREO", 1); HPQ = A("HPQ", 8); R1 = A("R1", 12); R2 = A("R2", 28); XT = A("XT", 1); PFW = A("PFW", 0); PI = A("PI", 0); XMAP = A("XMAP", 1); B2 = A("B2", 1); KT = A("KT", 1)
MQ = [int(c) for c in A("MQ", "11223456")]

KN = "standalone__deep_cross_wide_deep__recsys_kernel"
EPOCH = 0x0
FLG = 0x1000
IDXP = 0x10000
ISTR = 6 * 16384 + 4096
W1P = 0x340000
WSTR = 42 * 1024
PART = 0x600000
STMP = 0xE00000
WS_SZ = 0x1000000
L_STG = 131072; L_XCH = 155648; L_XT = 131072; L_RED = 0

out = []
emit = True
def e(s):
    if emit:
        for l in s.split("\n"): out.append(l)
class Cnt:
    def __init__(self): self.n = 0; self.tag = {}
    def issue(self, tag=None):
        self.n += 1
        if tag is not None: self.tag[tag] = self.n
    def younger(self, tag): return self.n - self.tag[tag]
vm = Cnt()
waits = {}
def wait_vm(site, tag):
    n = vm.younger(tag)
    waits[site] = min(waits.get(site, 99), n)
    e(f"@VM {site}")
def srd(d, lo, nbytes):
    e(f"s_mov_b32 s{d}, s{lo}\ns_mov_b32 s{d+1}, s{lo+1}\ns_mov_b32 s{d+2}, {nbytes:#x}\ns_mov_b32 s{d+3}, 0x20000")
SB = 72
def stamp(i):
    if PROBE == i: e("s_memrealtime s[96:97]")
    if STAMP: e(f"s_memtime s[{SB+2*i}:{SB+1+2*i}]")

e(f"""; Wide & Deep recsys forward, gfx950: per-field projected tables P[f][v] = table[v] @ W1_f built on MFMA into LDS,
; @launch grid=(256,1,1) block=(512,1,1) lds=163840
.amdgcn_target "amdgcn-amd-amdhsa--gfx950"
.text
.globl {KN}
.p2align 8
.type {KN},@function
{KN}:""")

VOFF = 0; SIDX = 1; T0 = 2; T1 = 3; AC = 4
DAT = 8; TAB = 32; ACC = 96; POOL = 128; D0 = 192; D1 = 208; W1 = 224
S_WAVE = 3; S_IDX = 20; S_IDX2 = 21; S_W1 = 22; S_M0A = 23; S_M0B = 24; S_CNT = 25; S_BS = 26; S_CS = 27; S_PID = 28; S_N = 29
S_T = 30; S_U = 31
LANE = 8; L16 = 9
XA = POOL; XF = POOL + 16; XC = POOL + 48; XD = POOL + 16
PLO = "0x05040100"; PHI = "0x07060302"

HOLD = POOL + 32
FLGB = FLG + 0x8000
S_FB = 55; S_HP = 54
L_CTR = 128000; L_XC2 = L_STG
DELTA = 28800
def piece_lane():
    e(f"v_bfe_u32 v10, v{LANE}, 2, 3\nv_and_b32 v11, 1, v{LANE}\nv_bfe_u32 v12, v{LANE}, 1, 1\nv_lshrrev_b32 v13, 5, v{LANE}\nv_lshl_or_b32 v12, v13, 1, v12")
    e("v_lshlrev_b32 v13, 4, v10\nv_lshl_or_b32 v13, v11, 15, v13\nv_lshl_or_b32 v13, v12, 12, v13")
def piece_src(fp0):
    e(f"s_lshr_b32 s{S_T}, s{S_CS}, 1\ns_lshl_b32 s{S_T}, s{S_T}, 16\ns_and_b32 s{S_U}, s{S_CS}, 1\ns_lshl_b32 s{S_U}, s{S_U}, 14\ns_add_u32 s{S_T}, s{S_T}, s{S_U}")
    e(f"s_lshl_b32 s{S_U}, s{S_BS}, 7\ns_add_u32 s{S_T}, s{S_T}, s{S_U}\ns_add_u32 s{S_T}, s{S_T}, {fp0*65536:#x}")
def piece_ld(b):
    for j in range(8): e(f"buffer_load_dwordx4 v[{b+4*j}:{b+4*j+3}], v13, s[16:19], s{S_T} offen offset:{j*512}")
def piece_dst(fp0):
    e(f"s_mov_b32 s70, {2*WSTR}\nv_mul_lo_u32 v18, v10, s70\nv_lshl_add_u32 v18, v11, 4, v18")
    e("v_and_b32 v10, 1, v12\nv_lshl_add_u32 v18, v10, 5, v18\nv_lshrrev_b32 v10, 1, v12\nv_lshl_add_u32 v18, v10, 7, v18")
    e(f"s_mul_i32 s70, s{S_BS}, {16*WSTR}\ns_lshr_b32 s71, s{S_CS}, 1\ns_lshl_b32 s71, s71, 10\ns_add_u32 s70, s70, s71")
    e(f"s_and_b32 s71, s{S_CS}, 1\ns_lshl_b32 s71, s71, 8\ns_add_u32 s70, s70, s71\ns_add_u32 s70, s70, {W1P + (fp0-8)*1024:#x}\ns_add_u32 s71, s70, {WSTR}")
def piece_st(cc, b):
    cp = (cc % 4) // 2; par = cc % 2; r = b + 4 * cc
    e(f"buffer_store_dwordx4 v[{r}:{r+3}], v18, s[4:7], s{70 + cc//4} offen offset:{par*512+cp*64} sc1")
def piece_perm(src, dst, store):
    e(f"s_mov_b32 s{S_T}, {PLO}\ns_mov_b32 s{S_U}, {PHI}")
    for t in range(4):
        for jj in range(4):
            r0 = src + 4 * (2 * jj) + t; r1 = r0 + 4
            e(f"v_perm_b32 v{dst+4*(2*t)+jj}, v{r1}, v{r0}, s{S_T}")
            e(f"v_perm_b32 v{dst+4*(2*t+1)+jj}, v{r1}, v{r0}, s{S_U}")
        if store:
            piece_st(2 * t, dst); piece_st(2 * t + 1, dst)
def tab_dma(vt, count=True):
    e(f"s_add_u32 s{S_T}, s{S_M0A}, {vt*32768}\ns_mov_b32 m0, s{S_T}\ns_nop 0")
    for i in range(4):
        e(f"buffer_load_dwordx4 v{14 + i%2}, s[12:15], s{S_T} offen offset:{i*1024} lds")
        if count: vm.issue(("t", vt))
def xconsts(rowshift):
    e(f"v_lshl_add_u32 v17, v{LANE}, {rowshift}, s{S_T}")
    for t in range(16):
        e(f"v_add_u32 v16, {t}, v{LANE}\nv_and_b32 v{XF+t}, 15, v16\nv_lshl_add_u32 v{XA+t}, v{XF+t}, 2, v17")
    for u in range(8): e(f"v_lshl_or_b32 v{XC+u}, v{XF+2*u+1}, 16, v{XF+2*u}")
def idx_dst():
    e(f"s_lshr_b32 s70, s{S_PID}, 3\ns_mul_i32 s70, s70, {ISTR}\ns_add_u32 s70, s70, {IDXP:#x}")
    e(f"s_bfe_u32 s{S_T}, s{S_PID}, 0x10002\ns_lshl_b32 s{S_T}, s{S_T}, 13\ns_add_u32 s70, s70, s{S_T}")
    e(f"s_and_b32 s{S_T}, s{S_PID}, 3\ns_lshl_b32 s{S_T}, s{S_T}, 8\ns_add_u32 s70, s70, s{S_T}")
    e(f"s_lshl_b32 s{S_T}, s{S_CNT}, 14\ns_add_u32 s70, s70, s{S_T}\ns_add_u32 s71, s70, 16384")
def xform(off, dst, store):
    for t in range(16): e(f"ds_read_b32 v{XD+t}, v{XA+t} offset:{off}")
    for u in range(8):
        e(f"s_waitcnt lgkmcnt({14-2*u})")
        e(f"v_lshl_add_u32 v{XD+2*u}, v{XD+2*u+1}, 16, v{XD+2*u}")
        e(f"v_lshl_add_u32 v{dst+u}, v{XD+2*u}, 4, v{XC+u}")
        if store and u % 4 == 3: e(f"buffer_store_dwordx4 v[{dst+u-3}:{dst+u}], v{VOFF}, s[4:7], s70 offen offset:{(u//4)*128} sc1")
def role_old(tag, f12, f3, f0):
    e(f"s_cmp_eq_u32 s{S_WAVE}, 0\ns_cbranch_scc1 {tag}_w0\ns_cmp_eq_u32 s{S_WAVE}, 3\ns_cbranch_scc1 {tag}_w3")
    f12(); e(f"s_branch {tag}_join\n{tag}_w3:"); f3(); e(f"s_branch {tag}_join\n{tag}_w0:"); f0(); e(f"{tag}_join:")
def ld12():
    e(f"v_lshrrev_b32 v17, 3, v{LANE}\nv_mul_u32_u24 v17, 400, v17\nv_and_b32 v11, 7, v{LANE}\nv_lshl_add_u32 v17, v11, 4, v17")
    e(f"s_mul_i32 s{S_U}, s{S_PID}, 25600\ns_lshl_b32 s{S_T}, s{S_WAVE}, 7\ns_add_u32 s{S_T}, s{S_T}, s{S_U}")
    e(f"s_lshl_b32 s{S_U}, s{S_WAVE}, 13\ns_add_u32 m0, s{S_U}, {L_STG}\ns_barrier")
    for i in range(8):
        e(f"buffer_load_dwordx4 v17, s[8:11], s{S_T} offen lds")
        if i < 7: e(f"s_add_u32 s{S_T}, s{S_T}, 3200\ns_add_u32 m0, m0, 1024\ns_nop 0")
    e(f"s_lshl_b32 s{S_T}, s{S_WAVE}, 13\ns_add_u32 s{S_T}, s{S_T}, {L_STG}")
    xconsts(7)
    e(f"s_lshl_b32 s{S_CNT}, s{S_WAVE}, 1")
    idx_dst()
def ld3():
    e(f"v_mul_u32_u24 v17, 400, v{LANE}\ns_mul_i32 s{S_U}, s{S_PID}, 25600\nv_mov_b32 v10, {L_CTR}\nds_write_b32 v10, v18\ns_waitcnt lgkmcnt(0)\ns_barrier")
    e(f"buffer_load_dwordx4 v[28:31], v17, s[8:11], s{S_U} offen offset:384")
    e(f"s_lshr_b32 s70, s{S_PID}, 3\ns_mul_i32 s70, s70, {ISTR}\ns_add_u32 s70, s70, {IDXP + 6*16384:#x}")
    e(f"s_and_b32 s{S_T}, s{S_PID}, 7\ns_lshl_b32 s{S_T}, s{S_T}, 9\ns_add_u32 s70, s70, s{S_T}")
    e(f"v_lshlrev_b32 v18, 3, v{LANE}")
def ld0():
    piece_lane(); piece_src(24); e("s_barrier"); piece_ld(POOL); piece_dst(24)
def xf12(): xform(0, HOLD, False); xform(64, HOLD + 8, False)
def xf3():
    e(f"s_mov_b32 s{S_T}, 0x40014000\ns_mov_b32 s{S_U}, 0x40034002")
    e("v_lshl_add_u32 v28, v29, 16, v28\nv_lshl_add_u32 v30, v31, 16, v30")
    e(f"v_lshl_add_u32 v28, v28, 2, s{S_T}\nv_lshl_add_u32 v30, v30, 2, s{S_U}")
    e(f"v_and_b32 v29, 1, v{LANE}\nv_lshlrev_b32 v29, 4, v29\nv_and_b32 v31, 2, v{LANE}\nv_cmp_ne_u32 vcc, 0, v31")
    e("v_alignbit_b32 v28, v28, v28, v29\nv_alignbit_b32 v30, v30, v30, v29")
    e(f"v_cndmask_b32 v{HOLD}, v28, v30, vcc\nv_cndmask_b32 v{HOLD+1}, v30, v28, vcc")
def xf0(): piece_perm(POOL, HOLD, False)
def raw(lo, hi):
    for n in range(lo, hi):
        s_, j = n // 8, n % 8
        e(f"buffer_load_dword v{POOL+n}, v18, s[16:19], s71 offen offset:{j*512}")
        if j == 7 and s_ < 3: e("s_add_u32 s71, s71, 8192")
def voff_ws():
    srd(4, 54, WS_SZ)
    e(f"v_and_b32 v16, 28, v{LANE}\nv_lshlrev_b32 v{VOFF}, 8, v16\nv_and_b32 v16, 1, v{LANE}\nv_lshl_or_b32 v{VOFF}, v16, 6, v{VOFF}")
    e(f"v_and_b32 v16, 32, v{LANE}\nv_or_b32 v{VOFF}, v{VOFF}, v16\nv_and_b32 v16, 2, v{LANE}\nv_lshl_or_b32 v{VOFF}, v16, 3, v{VOFF}")
def sloads():
    e(f"s_load_dword s{S_N}, s[54:55], {EPOCH}")
    e(f"s_lshl_b32 s{S_T}, s{S_CS}, 3")
    e(f"s_load_dwordx2 s[52:53], s[44:45], s{S_T}")
    e(f"s_load_dwordx2 s[58:59], s[46:47], s{S_T}")
    e("s_load_dwordx8 s[60:67], s[38:39], 0")
    e("s_load_dword s68, s[40:41], 0\ns_load_dword s69, s[48:49], 0")
def common():
    srd(12, 34, 128000)
    e(f"v_lshlrev_b32 v{L16}, 4, v{LANE}")
    e(f"v_lshrrev_b32 v16, 4, v{LANE}\nv_and_b32 v17, 7, v{LANE}\nv_xor_b32 v16, v16, v17\nv_lshlrev_b32 v16, 4, v16")
    e(f"v_lshrrev_b32 v17, 3, v{LANE}\nv_lshl_or_b32 v14, v17, 7, v16\nv_xor_b32 v15, 64, v14")
    e(f"v_bfe_u32 v19, v{LANE}, 2, 2\nv_bfe_u32 v20, v{LANE}, 4, 1\nv_lshlrev_b32 v20, 1, v20\nv_mov_b32 v21, 0x3f80")
    e("v_cmp_eq_u32 vcc, v19, v20\nv_add_u32 v20, 1, v20\ns_nop 0")
    e(f"v_cndmask_b32 v{AC}, 0, v21, vcc\nv_cndmask_b32 v{AC+1}, 0, v21, vcc")
    e(f"v_cmp_eq_u32 vcc, v19, v20\nv_and_b32 v19, 3, v{LANE}\ns_nop 0")
    e(f"v_cndmask_b32 v{AC+2}, 0, v21, vcc\nv_cndmask_b32 v{AC+3}, 0, v21, vcc")
    e(f"v_mul_u32_u24 v{SIDX}, 0x5555, v19")
    e(f"s_lshl_b32 s{S_T}, s{S_BS}, 3\ns_add_u32 s{S_T}, s{S_T}, s{S_WAVE}\ns_mul_i32 s{S_IDX}, s{S_T}, {ISTR}\ns_add_u32 s{S_IDX}, s{S_IDX}, {IDXP:#x}\ns_add_u32 s{S_IDX2}, s{S_IDX}, 8192")
    e(f"s_mul_i32 s{S_W1}, s{S_CS}, {WSTR}\ns_add_u32 s{S_W1}, s{S_W1}, {W1P:#x}")
    e(f"s_add_u32 s{S_M0B}, s{S_M0A}, {65536-DELTA}")
    e(f"s_lshr_b32 s{S_T}, s{S_CS}, 4\ns_lshl_b32 s{S_T}, s{S_T}, 6\ns_lshl_b32 s{S_U}, s{S_WAVE}, 3\nv_and_b32 v13, 7, v{LANE}\nv_add_u32 v10, s{S_U}, v13")
    e(f"s_bfe_u32 s{S_U}, s{S_WAVE}, 0x10001\nv_lshl_add_u32 v11, v13, 1, s{S_U}\nv_lshrrev_b32 v13, 3, v{LANE}\nv_cmp_eq_u32 vcc, 1, v13\ns_nop 1\nv_cndmask_b32 v10, v10, v11, vcc")
    e(f"s_lshl_b32 s{S_U}, s{S_BS}, 6\nv_mov_b32 v11, s{S_T}\nv_mov_b32 v16, s{S_U}\nv_cmp_eq_u32 vcc, 0, v13\ns_nop 1\nv_cndmask_b32 v11, v11, v16, vcc\nv_add_lshl_u32 v19, v10, v11, 7")
    e(f"v_and_b32 v10, 24, v{LANE}\nv_and_b32 v11, 3, v{LANE}\nv_lshl_add_u32 v10, v11, 1, v10\nv_bfe_u32 v12, v{LANE}, 2, 1\nv_add_u32 v10, v10, v12\nv_lshlrev_b32 v10, 7, v10")
    e(f"v_bfe_u32 v12, v{LANE}, 3, 1\nv_lshl_or_b32 v11, v12, 2, v11\nv_lshrrev_b32 v12, 5, v{LANE}\nv_xor_b32 v11, v11, v12\nv_lshl_or_b32 v10, v11, 4, v10")
    e(f"v_add_u32 v20, s{S_M0A}, v10\nv_add_u32 v12, {L_XCH}, v{L16}")
    for s_ in range(1, 4): e(f"v_xor_b32 v{20+s_}, {s_*32}, v20")
    e(f"v_add_u32 v16, {L_XC2}, v{L16}\ns_lshl_b32 s{S_U}, s{S_WAVE}, 10\nv_add_u32 v17, s{S_U}, v16")
    e("s_waitcnt lgkmcnt(0)")
    e(f"s_not_b32 s{S_N}, s{S_N}")
    e("s_lshl_b32 s56, s58, 16\ns_and_b32 s57, s58, 0xffff0000\ns_lshl_b32 s58, s59, 16\ns_and_b32 s59, s59, 0xffff0000")
    e("s_lshl_b32 s32, s52, 16\ns_and_b32 s33, s52, 0xffff0000\ns_lshl_b32 s34, s53, 16\ns_and_b32 s35, s53, 0xffff0000")
    e(f"s_cmp_eq_u32 s{S_WAVE}, 0\ns_cselect_b32 s{S_FB}, 1, 0\ns_cmp_lt_u32 s{S_WAVE}, 4\ns_cselect_b32 s{S_HP}, 1, 0")
def tab_rd(vt):
    wait_vm(("td", vt), ("t", vt))
    if vt == 2:
        for s in range(4): e(f"v_add_u32 v{20+s}, 0x10000, v{20+s}")
    for s in range(4):
        r = TAB + 16 * vt + 4 * s
        e(f"ds_read_b128 v[{r}:{r+3}], v{20+s} offset:{(vt%2)*32768}")
def ldw(i):
    e(f"buffer_load_dwordx4 v[{W1+4*i}:{W1+4*i+3}], v{VOFF}, s[4:7], s{S_W1} offen offset:{i*128} sc1")
    vm.issue(("w", i))
def ldi(reg, k, tag):
    e(f"buffer_load_dwordx4 v[{reg}:{reg+3}], v{VOFF}, s[4:7], s{S_IDX if k < 8 else S_IDX2} offen offset:{(k%8)*128} sc1")
    vm.issue(tag)
def mf(vt, i, base=D0):
    s, par = i // 2, i % 2
    d = base + 16 * par
    c = "0" if s == 0 else f"v[{d}:{d+15}]"
    e(f"v_mfma_f32_32x32x16_bf16 v[{d}:{d+15}], v[{TAB+16*vt+4*s}:{TAB+16*vt+4*s+3}], v[{W1+16*par+4*s}:{W1+16*par+4*s+3}], {c}")
def frag_of(i): return (i % 2) * 4 + i // 2
def cvt(dst, r, base=D0): e(f"v_cvt_pk_bf16_f32 v{dst}, v{base+r}, v{base+16+r}")
def wr(src, vt, r):
    off = (vt % 2) * 32768 + r * 256 + (DELTA if vt >= 2 else 0)
    e(f"ds_write_addtid_b32 v{src} offset:{off}")
SD = "dst_sel:DWORD dst_unused:UNUSED_PAD src0_sel:DWORD"
def unpack(w0):
    e(f"v_lshlrev_b32_sdwa v{T0}, 3, v{w0} {SD} src1_sel:WORD_1")
    e(f"v_lshlrev_b32_sdwa v{w0}, 3, v{w0} {SD} src1_sel:WORD_0")
    e(f"v_lshlrev_b32_sdwa v{T1}, 3, v{w0+1} {SD} src1_sel:WORD_1")
    e(f"v_lshlrev_b32_sdwa v{w0+1}, 3, v{w0+1} {SD} src1_sel:WORD_0")
def reads(w0, slot):
    d = DAT + 8 * slot
    for i, a in enumerate((w0, T0, w0 + 1, T1)):
        e(f"ds_read_b64 v[{d+2*i}:{d+2*i+1}], v{a}")
def smf(g, slot):
    d = DAT + 8 * slot; a = ACC + 4 * g
    e(f"v_smfmac_f32_16x16x64_bf16 v[{a}:{a+3}], v[{AC}:{AC+3}], v[{d}:{d+7}], v{SIDX}")
def poll_issue():
    stamp(5)
    e(f"s_mov_b32 s{S_T}, {FLG:#x}")
    e(f"buffer_load_dword v10, v19, s[4:7], s{S_T} offen sc1"); vm.issue("poll")
def poll_check():
    e(f"s_mov_b32 s{S_CNT}, 0\ns_mov_b32 s{S_T}, {FLG:#x}")
    wait_vm("pollw", "poll")
    e("poll1:")
    e(f"v_cmp_ne_u32 vcc, s{S_N}, v10\ns_cbranch_vccz poll1_done")
    e(f"s_sleep 8\nbuffer_load_dword v10, v19, s[4:7], s{S_T} offen sc1")
    e(f"s_add_u32 s{S_CNT}, s{S_CNT}, 1\ns_waitcnt vmcnt(0)\ns_cmp_lt_u32 s{S_CNT}, 0x40000\ns_cbranch_scc1 poll1")
    e("poll1_done:")
    stamp(6)
    e(f"s_lshl_b32 s{S_T}, s{S_WAVE}, 7\ns_add_u32 s{S_T}, s{S_T}, s{S_W1}")
    e(f"buffer_load_dwordx4 v[24:27], v{VOFF}, s[4:7], s{S_T} offen sc1"); vm.issue("w1x")
    for i in range(8): vm.tag[("w", i)] = vm.n

e("s_cmp_ge_u32 s2, 256\ns_cbranch_scc1 done")
e("s_load_dwordx16 s[32:47], s[0:1], 0")
e("s_load_dwordx8 s[48:55], s[0:1], 64")
if STAMP: e(f"s_memtime s[{SB}:{SB+1}]")
if STAMP or FIX: e("s_memrealtime s[100:101]")
e(f"v_lshrrev_b32 v1, 6, v0\nv_and_b32 v{LANE}, 63, v0")
e(f"v_readfirstlane_b32 s{S_WAVE}, v1")
if XMAP:
    e(f"s_bfe_u32 s{S_BS}, s2, 0x20002\ns_and_b32 s{S_CS}, s2, 3\ns_lshl_b32 s{S_CS}, s{S_CS}, 4\ns_lshr_b32 s{S_T}, s2, 4\ns_add_u32 s{S_CS}, s{S_CS}, s{S_T}")
else:
    e(f"s_and_b32 s{S_BS}, s2, 3\ns_lshr_b32 s{S_CS}, s2, 2")
e(f"s_lshl_b32 s{S_PID}, s{S_BS}, 6\ns_add_u32 s{S_PID}, s{S_PID}, s{S_CS}")
e(f"s_lshl_b32 s{S_M0A}, s{S_WAVE}, 12\nv_mov_b32 v18, 0")
e(f"s_cmp_lt_u32 s{S_WAVE}, 4\ns_cbranch_scc1 a_old")
e("s_setprio 3")
e(f"s_cmp_ge_u32 s{S_WAVE}, 6\ns_cbranch_scc1 a_w67")
e(f"s_sub_u32 s{S_CNT}, s{S_WAVE}, 4")
e(f"v_lshrrev_b32 v10, 2, v{LANE}\nv_mul_u32_u24 v10, 400, v10\nv_and_b32 v11, 3, v{LANE}\nv_lshl_add_u32 v10, v11, 4, v10")
e(f"s_mul_i32 s{S_U}, s{S_PID}, 25600\ns_lshl_b32 s{S_T}, s{S_CNT}, 6\ns_add_u32 s{S_T}, s{S_T}, s{S_U}")
e(f"s_lshl_b32 s{S_U}, s{S_CNT}, 12\ns_add_u32 m0, s{S_U}, {L_STG}")
e("s_waitcnt lgkmcnt(0)")
srd(8, 32, 16384 * 400)
for i in range(4):
    e(f"buffer_load_dwordx4 v10, s[8:11], s{S_T} offen lds")
    if i < 3: e(f"s_add_u32 s{S_T}, s{S_T}, 6400\ns_add_u32 m0, m0, 1024\ns_nop 0")
e("s_barrier")
voff_ws()
e(f"s_add_u32 s{S_T}, s{S_U}, {L_STG}")
xconsts(6); idx_dst()
e("s_waitcnt vmcnt(0)")
stamp(1)
xform(0, HOLD, True)
e("s_branch b_sig")
e("a_w67:")
e(f"s_cmp_eq_u32 s{S_WAVE}, 7\ns_cbranch_scc1 a_w7")
piece_lane(); piece_src(8)
e("s_waitcnt lgkmcnt(0)")
srd(16, 42, 24 * 65536)
piece_ld(POOL)
e("s_barrier")
voff_ws()
stamp(1)
e(f"s_cmp_ge_u32 s{S_CS}, 32\ns_cbranch_scc1 b_sig")
piece_dst(8)
e("s_waitcnt vmcnt(0)")
stamp(1)
piece_perm(POOL, HOLD, True)
e("b_sig:")
e("s_barrier")
sloads(); common()
e(f"v_mov_b32 v10, {L_CTR}\nv_mov_b32 v11, 1\ns_mov_b64 exec, 1\ns_waitcnt vmcnt(0)")
e("ds_add_rtn_u32 v13, v10, v11")
e(f"s_lshl_b32 s{S_T}, s{S_PID}, 7\ns_add_u32 s{S_T}, s{S_T}, {FLG:#x}\nv_mov_b32 v10, 0\nv_mov_b32 v11, s{S_N}\ns_waitcnt lgkmcnt(0)")
e(f"v_readfirstlane_b32 s{S_U}, v13\ns_nop 0\ns_cmp_lg_u32 s{S_U}, 2\ns_cbranch_scc1 b_nosig")
e(f"buffer_store_dword v11, v10, s[4:7], s{S_T} offen sc1")
e("b_nosig:\ns_mov_b64 exec, -1")
stamp(2)
for vt in range(PRE): tab_dma(vt, False)
e("s_branch b_all")
e("a_w7:")
if CPF:
    e(f"s_getpc_b64 s[70:71]\ncpf_base:\ns_lshr_b32 s{S_U}, s2, 3\ns_mul_i32 s{S_U}, s{S_U}, {CPL*128}\nv_min_u32 v2, {CPL-1}, v{LANE}\nv_lshl_add_u32 v2, v2, 7, s{S_U}\nv_min_u32 v2, done-cpf_base, v2\nv_mov_b32 v3, s71")
    e("v_add_co_u32 v2, vcc, s70, v2\ns_nop 1\nv_addc_co_u32 v3, vcc, 0, v3, vcc")
    e(f"global_load_dword v{D0}, v[2:3], off")
e("s_setprio 2")
e(f"v_bfe_u32 v16, v{LANE}, 1, 4\nv_lshlrev_b32 v18, 15, v16\nv_lshrrev_b32 v16, 5, v{LANE}\nv_lshl_or_b32 v18, v16, 12, v18\nv_and_b32 v16, 1, v{LANE}\nv_lshl_or_b32 v18, v16, 2, v18")
e(f"v_and_b32 v16, 31, v{LANE}\nv_lshlrev_b32 v16, 7, v16\ns_lshr_b32 s{S_U}, s2, 3\ns_lshl_b32 s{S_U}, s{S_U}, 12")
e(f"s_lshl_b32 s71, s{S_CS}, 3")
e("s_waitcnt lgkmcnt(0)")
srd(16, 42, 6400 * 512)
srd(12, 34, 128000)
e("s_barrier")
e(f"buffer_load_dword v{D0}, v16, s[12:15], s{S_U} offen")
raw(0, R1)
sloads(); voff_ws(); common()
stamp(1)
e("s_barrier")
raw(R1, 32)
for vt in range(PRE): tab_dma(vt, False)
e(f"s_mov_b32 s{S_T}, {PLO}\ns_mov_b32 s{S_U}, {PHI}")
for s in range(4):
    e(f"s_waitcnt vmcnt({24-8*s+4*PRE})")
    for jj in range(4):
        r0 = POOL + 8 * s + 2 * jj
        e(f"v_perm_b32 v{POOL+32+8*s+jj}, v{r0+1}, v{r0}, s{S_T}")
        e(f"v_perm_b32 v{POOL+36+8*s+jj}, v{r0+1}, v{r0}, s{S_U}")
    e(f"ds_write_b128 v12, v[{POOL+32+8*s}:{POOL+35+8*s}] offset:{s*1024}")
    e(f"ds_write_b128 v12, v[{POOL+36+8*s}:{POOL+39+8*s}] offset:{4096+s*1024}")
stamp(2)
e("s_branch b_all")
e("a_old:")
e("s_waitcnt lgkmcnt(0)")
srd(16, 42, 6400 * 512)
srd(8, 32, 16384 * 400)
role_old("d", ld12, ld3, ld0)
sloads(); voff_ws(); common()
stamp(1)
e("s_barrier")
for vt in range(PRE): tab_dma(vt)
e(f"s_waitcnt vmcnt({4*PRE})")
role_old("e", xf12, xf3, xf0)
stamp(2)
e("b_all:")
e("s_setprio 0\ns_waitcnt lgkmcnt(0)\ns_barrier")
stamp(3)
for i in range(8): e(f"ds_read_b128 v[{W1+4*i}:{W1+4*i+3}], v12 offset:{i*1024}")
if PRE < 4: tab_dma(PRE)
tab_rd(0)
stamp(4)
DB = [ACC, D0, ACC, D0]
for vt in range(5):
    if vt >= 1: e(f"s_mov_b32 m0, s{S_M0A if vt <= 2 else S_M0B}")
    if vt < 4: e(f"s_waitcnt lgkmcnt({0 if vt < 2 else 10})")
    b = DB[vt - 1]
    for i in range(9):
        if vt < 4 and i < 8: mf(vt, i, base=DB[vt])
        if 0 < vt < 4 and i == 0: e("s_nop 9")
        if vt > 0:
            if i < 8:
                for r in (2 * i, 2 * i + 1): cvt(b + r, r, b)
            if i > 0:
                for r in (2 * i - 2, 2 * i - 1): wr(b + r, vt - 1, r)
                if vt == 3:
                    for r in (2 * i - 2, 2 * i - 1, 2 * i + 14, 2 * i + 15): e(f"v_mov_b32 v{ACC+r}, s{32+r%4}")
        if i == 3 and vt < 3: tab_rd(vt + 1)
    if PRE + 1 + vt < 4: tab_dma(PRE + 1 + vt)
    if vt == PI: poll_issue()
    if vt == PI + 1: poll_check()
    if vt == KT:
        assert KT >= PI + 1
        for k in range(KPRE): ldi(POOL + 4 * k, k, ("i", k))
    if vt == 3:
        wait_vm("w1xw", "w1x")
        e("ds_write_b128 v17, v[24:27]")
        if B2:
            e("s_waitcnt lgkmcnt(0)\ns_barrier")
            for i in range(8): e(f"ds_read_b128 v[{W1+4*i}:{W1+4*i+3}], v16 offset:{i*1024}")
        else: e("s_nop 7")
e(f"s_add_u32 s{S_W1}, s{S_W1}, 8192")
wait_vm("p0i", ("i", 1))
unpack(POOL)
e(f"s_mov_b32 s{S_CNT}, 3")
e("s_waitcnt lgkmcnt(0)\ns_barrier")
if not B2:
    for i in range(8): e(f"ds_read_b128 v[{W1+4*i}:{W1+4*i+3}], v16 offset:{i*1024}")
for k in range(KPRE, 8): ldi(POOL + 4 * k, k, ("i", k))
e(f"s_cmp_ge_u32 s{S_WAVE}, 4\ns_cbranch_scc1 g_join\ns_cmp_eq_u32 s{S_WAVE}, 0\ns_cbranch_scc1 g_w0\ns_cmp_eq_u32 s{S_WAVE}, 3\ns_cbranch_scc1 g_w3")
for u in range(4): e(f"buffer_store_dwordx4 v[{HOLD+4*u}:{HOLD+4*u+3}], v{VOFF}, s[4:7], s{70+u//2} offen offset:{(u%2)*128} sc1")
e("s_branch g_join")
e(f"g_w3:\nbuffer_store_dwordx2 v[{HOLD}:{HOLD+1}], v18, s[4:7], s70 offen sc1\ns_branch g_join")
e(f"g_w0:\ns_cmp_ge_u32 s{S_CS}, 52\ns_cbranch_scc1 g_join")
for cc in range(8): piece_st(cc, HOLD)
e("g_join:")
if not B2: e("s_waitcnt lgkmcnt(0)")
stamp(7)
if STAMP: e(f"s_waitcnt lgkmcnt(0)\ns_mov_b32 s40, s{SB+14}\ns_mov_b32 s42, s{SB+14}\ns_mov_b32 s44, 0\ns_mov_b32 s45, 0\ns_mov_b32 s46, 0")

def blocks(par): return [POOL + (48 if par else 0), POOL + 16, POOL + 32, POOL + (0 if par else 48)]
def prio(q):
    if q == PRIOQ: e(f"s_cmp_ge_u32 s{S_WAVE}, 4\ns_cbranch_scc0 1f\ns_setprio 1\n1:")
def phase(par):
    blk = blocks(par)
    def w0(q): return blk[q // 8] + (q % 8) * 2
    for q in range(32):
        prio(q)
        if q >= 3:
            e("s_waitcnt lgkmcnt(8)")
            smf((q - 3) // 4, q % 3)
        reads(w0(q), q % 3)
        vt = q // 8
        for i in range(8):
            if MQ[i] == q % 8:
                if vt == 0 and i % 2 == 0: wait_vm((par, "w", i), ("w", frag_of(i + 1)))
                mf(vt, i)
                if vt == 3 and not W1W: ldw(frag_of(i))
        if q < 16 and q % 2 == 0:
            k = 8 + q // 2
            ldi(blk[k // 4] + 4 * (k % 4), k, ("i", k))
        if q == 20: e(f"s_add_u32 s{S_IDX}, s{S_IDX}, 16384\ns_add_u32 s{S_IDX2}, s{S_IDX2}, 16384")
        if q >= 25 and q % 2 == 1:
            k = (q - 25) // 2
            ldi(blk[3] + 4 * k, k, ("n", k))
        if q < 31:
            if (q + 1) % 4 == 0: wait_vm((par, "i", q), ("i", (q + 1) // 2 + 1))
            unpack(w0(q + 1))
        if q % 8 == 7 and vt < 3:
            for r in range(8): cvt(blk[vt] + r, r)
        if q % 8 == 0 and vt > 0:
            for r in range(8, 16): cvt(blk[vt - 1] + r, r)
        if q == HPQ and par == 1: e(f"s_cmp_eq_u32 s{S_HP}, 1\ns_cbranch_scc1 hook_p\nhook_p_ret:")
        if q == 24 and par == 1: e(f"s_cmp_eq_u32 s{S_CNT}, 2\ns_cbranch_scc1 hook_c\nhook_c_ret:")
    for k in range(4): vm.tag[("i", k)] = vm.tag[("n", k)]
    e("s_waitcnt lgkmcnt(8)"); smf(7, 29 % 3)
    e("s_waitcnt lgkmcnt(4)"); smf(7, 30 % 3)
    e(f"s_mov_b32 m0, s{S_M0A}")
    for r in range(16): cvt(D0 + r, r)
    if PRIOQ >= 0: e("s_setprio 0")
    if STAMP: e("s_memtime s[48:49]")
    e("s_waitcnt lgkmcnt(0)")
    if STAMP: e("s_sub_u32 s47, s48, s40\ns_add_u32 s46, s46, s47\ns_sub_u32 s47, s40, s42\ns_add_u32 s45, s45, s47")
    e("s_barrier")
    if STAMP: e("s_memtime s[42:43]")
    smf(7, 31 % 3)
    if par == 0: e(f"s_cmp_eq_u32 s{S_FB}, 1\ns_cbranch_scc1 hook_f\nhook_f_ret:")
    n = 0
    for vt in (1, 0, 2, 3):
        if vt == 2: e(f"s_mov_b32 m0, s{S_M0B}\ns_nop 0")
        for r in range(16):
            wr(blk[vt] + r if vt < 3 else D0 + r, vt, r)
            if W1W and n % 4 == 0 and n < 32: ldw(frag_of(n // 4))
            if n >= 32 and n % 8 == 0:
                k = 4 + (n - 32) // 8
                ldi(blk[1] + 4 * (k % 4), k, ("i", k))
            n += 1
    e(f"s_add_u32 s{S_W1}, s{S_W1}, 8192")
    wait_vm((par, "i0"), ("i", 1))
    unpack(blk[3])
    e("s_waitcnt lgkmcnt(0)")
    if STAMP: e(f"s_sub_u32 s47, s42, s40\ns_add_u32 s44, s44, s47\ns_cmp_eq_u32 s{S_CNT}, {3-par}\ns_cselect_b32 s{38+par}, s47, s{38+par}")
    if par == 0: e(f"s_sub_u32 s{S_CNT}, s{S_CNT}, 1\ns_cmp_eq_u32 s{S_CNT}, 0")
    e("s_barrier")
    if STAMP: e("s_memtime s[40:41]")

e(".p2align 6\nmain_loop:")
phase(0)
e("s_cbranch_scc1 last_phase")
phase(1)
e("s_branch main_loop")
e("hook_f:")
e(f"s_mov_b32 s{S_FB}, 0\ns_lshl_b32 s{S_T}, s{S_PID}, 7\ns_add_u32 s{S_T}, s{S_T}, {FLGB:#x}\nv_mov_b32 v{T0}, s{S_N}\nv_mov_b32 v{T1}, 0\ns_mov_b64 exec, 1")
e(f"buffer_store_dword v{T0}, v{T1}, s[4:7], s{S_T} offen sc1\nv_mov_b32 v{T0}, {L_XCH}\nds_write_b32 v{T0}, v{T1}\ns_mov_b64 exec, -1\ns_branch hook_f_ret")
e("hook_p:")
e(f"s_mov_b32 s{S_HP}, 0\nv_mbcnt_lo_u32_b32 v{D0}, -1, 0\nv_mbcnt_hi_u32_b32 v{D0}, -1, v{D0}")
e(f"s_lshr_b32 s{S_T}, s{S_CS}, 4\nv_mov_b32 v{D0+1}, s{S_T}\nv_mov_b32 v{D0+2}, s{S_BS}\nv_cmp_gt_u32 vcc, 16, v{D0}\nv_and_b32 v{D0}, 15, v{D0}\ns_lshl_b32 s{S_T}, s{S_WAVE}, 11")
e(f"v_cndmask_b32 v{D0+1}, v{D0+1}, v{D0+2}, vcc\nv_lshl_add_u32 v{D0}, v{D0+1}, 6, v{D0}\nv_lshlrev_b32 v{D0}, 7, v{D0}\ns_add_u32 s{S_T}, s{S_T}, {FLGB:#x}\ns_mov_b32 s{S_U}, 0")
e("hook_p_loop:")
e(f"buffer_load_dword v{D0+1}, v{D0}, s[4:7], s{S_T} offen sc1")
e(f"s_add_u32 s{S_U}, s{S_U}, 1\ns_waitcnt vmcnt(0)\ns_cmp_gt_u32 s{S_U}, 0x40000\ns_cbranch_scc1 hook_p_out")
e(f"v_cmp_ne_u32 vcc, s{S_N}, v{D0+1}\ns_cbranch_vccnz hook_p_loop")
e(f"hook_p_out:\nv_mov_b32 v{D0}, {L_XCH}\nv_mov_b32 v{D0+1}, 1\ns_mov_b64 exec, 1\nds_add_u32 v{D0}, v{D0+1}\ns_mov_b64 exec, -1\ns_branch hook_p_ret")
e("hook_c:")
e(f"v_mov_b32 v{D0}, {L_XCH}\ns_mov_b32 s{S_U}, 0")
e(f"hook_c_loop:\nds_read_b32 v{D0+1}, v{D0}\ns_add_u32 s{S_U}, s{S_U}, 1\ns_waitcnt lgkmcnt(0)\ns_cmp_gt_u32 s{S_U}, 0x1000000\ns_cbranch_scc1 hook_c_ret")
e(f"v_cmp_ne_u32 vcc, 4, v{D0+1}\ns_cbranch_vccnz hook_c_loop\ns_branch hook_c_ret")
emit = False
phase(0); phase(1); phase(0)
emit = True
e("last_phase:")
stamp(8)
blk = blocks(1)
XI = blk[0]
SC = blk[1]
XB = 22
units = [("q", q) for q in range(XB)] + [("x", g) for g in range(8)] + [("q", q) for q in range(XB, 32)]
VX = W1 + 16; WA = W1 + 17; TL = W1 + 18; TM = W1 + 19
def uw0(u): return blk[u[1] // 8] + (u[1] % 8) * 2 if u[0] == "q" else XI + 2 * u[1]
def ugrp(u): return u[1] // 4 if u[0] == "q" else u[1]
XW = W1; LN = SC; ROW = SC + 1; PV = SC + 4; RES = SC + 8
XM = [0, 0, 0, 1, 1, 1, 2, 2]
extra = {i: [] for i in range(len(units) + 3)}
def epi(g):
    a = ACC + 4 * g
    l = [f"v_max_f32 v{a+c}, 0, v{a+c}" for c in range(4)]
    l.append(f"v_mul_f32 v{RES+g}, s56, v{a}")
    l += [f"v_fma_f32 v{RES+g}, v{a+c}, s{56+c}, v{RES+g}" for c in range(1, 4)]
    l.append(f"v_and_or_b32 v{RES+g}, v{RES+g}, -16, v{PV+2}")
    if g % 4 == 3: l.append(f"buffer_store_dwordx4 v[{RES+g-3}:{RES+g}], v{PV}, s[4:7], s{70 + g//4} offen sc1")
    return l
for i, u in enumerate(units):
    prio(i)
    if i >= 3:
        e("s_waitcnt lgkmcnt(8)")
        smf(ugrp(units[i - 3]), i % 3)
    if i == XB: e("s_barrier")
    reads(uw0(u), i % 3)
    if i == 0:
        wait_vm(("L", "junk"), ("w", frag_of(7)))
        e(f"v_mbcnt_lo_u32_b32 v{TL}, -1, 0\nv_mbcnt_hi_u32_b32 v{TL}, -1, v{TL}")
        e(f"v_and_b32 v{VX}, 32, v{TL}\nv_and_b32 v{TM}, 4, v{TL}\nv_lshl_or_b32 v{VX}, v{TM}, 8, v{VX}\nv_and_b32 v{TM}, 1, v{TL}\nv_lshl_or_b32 v{VX}, v{TM}, 9, v{VX}")
        e(f"v_and_b32 v{TM}, 2, v{TL}\nv_lshl_or_b32 v{VX}, v{TM}, 5, v{VX}\nv_and_b32 v{TM}, 8, v{TL}\nv_lshl_or_b32 v{VX}, v{TM}, 1, v{VX}")
        e(f"s_sub_u32 s{S_W1}, s{S_W1}, 8192")
        for sx in range(4):
            e(f"buffer_load_dwordx4 v[{W1+4*sx}:{W1+4*sx+3}], v{VX}, s[4:7], s{S_W1} offen offset:{sx*128} sc1"); vm.issue("xw")
    if i == 1:
        e(f"v_and_b32 v{WA}, 24, v{TL}\nv_and_b32 v{TM}, 3, v{TL}\nv_lshl_add_u32 v{WA}, v{TM}, 1, v{WA}\nv_bfe_u32 v{TM}, v{TL}, 2, 1\nv_add_u32 v{WA}, v{WA}, v{TM}")
        e(f"v_lshrrev_b32 v{TM}, 5, v{TL}\nv_lshl_add_u32 v{WA}, v{WA}, 1, v{TM}\ns_lshl_b32 s{S_T}, s{S_WAVE}, 10\ns_add_u32 s{S_T}, s{S_T}, {L_XT}\nv_lshl_add_u32 v{WA}, v{WA}, 4, s{S_T}")
    if 6 <= i < 18:
        vt = (i - 6) // 3
        if i == 6: wait_vm(("L", "xw"), "xw")
        d = D0 + 16 * (vt % 2)
        for sx in ((0, 1), (2,), (3,))[(i - 6) % 3]:
            c = "0" if sx == 0 else f"v[{d}:{d+15}]"
            e(f"v_mfma_f32_32x32x16_bf16 v[{d}:{d+15}], v[{W1+4*sx}:{W1+4*sx+3}], v[{TAB+16*vt+4*sx}:{TAB+16*vt+4*sx+3}], {c}")
    if i < 16 and i % 2 == 0:
        k = 8 + i // 2
        ldi(blk[k // 4] + 4 * (k % 4), k, ("i", k))
    if i == 8:
        e(f"v_mbcnt_lo_u32_b32 v{XI+15}, -1, 0\nv_mbcnt_hi_u32_b32 v{XI+15}, -1, v{XI+15}\nv_lshlrev_b32 v{XI+15}, 3, v{XI+15}")
        e(f"s_add_u32 s{S_IDX}, s{S_IDX}, 16384")
    if 9 <= i <= 16:
        g = i - 9
        e(f"buffer_load_dwordx2 v[{XI+2*g}:{XI+2*g+1}], v{XI+15}, s[4:7], s{S_IDX} offen offset:{g*512} sc1"); vm.issue(("x", g))
    if i + 1 < len(units):
        nu = units[i + 1]
        if nu[0] == "q" and nu[1] % 4 == 0 and nu[1] <= 20: wait_vm(("L", "i", i), ("i", nu[1] // 2 + 1))
        if nu == ("x", 0): wait_vm(("L", "x"), ("x", 7))
        unpack(uw0(nu))
    if i in (10, 13, 16, 19):
        vt = (i - 10) // 3
        d = D0 + 16 * (vt % 2)
        for r in range(4): e(f"v_cvt_pk_bf16_f32 v{d+r}, v{d+2*r}, v{d+2*r+1}")
        e(f"ds_write_b128 v{WA}, v[{d}:{d+3}] offset:{vt*8192}")
    if i == 17:
        e(f"v_mbcnt_lo_u32_b32 v{LN}, -1, 0\nv_mbcnt_hi_u32_b32 v{LN}, -1, v{LN}")
        e(f"v_and_b32 v{PV+1}, 15, v{LN}\nv_lshlrev_b32 v{PV+1}, 4, v{PV+1}\nv_lshrrev_b32 v{PV}, 4, v{LN}\nv_lshl_or_b32 v{PV}, v{PV}, 14, v{PV+1}")
        e(f"s_lshl_b32 s70, s{S_BS}, 20\ns_lshl_b32 s71, s{S_WAVE}, 17\ns_add_u32 s70, s70, s71\ns_lshl_b32 s71, s{S_CS}, 8\ns_add_u32 s70, s70, s71")
        e(f"s_add_u32 s70, s70, {PART:#x}\ns_add_u32 s71, s70, 65536")
        e(f"s_and_b32 s{S_U}, s{S_N}, 15\nv_mov_b32 v{PV+2}, s{S_U}")
        srd(8, 36, 16384 * 26)
        srd(12, 50, 32768)
    if i == 21:
        e(f"s_cmp_lg_u32 s{S_WAVE}, 0\ns_cbranch_scc1 nowide")
        e(f"s_lshr_b32 s{S_T}, s{S_PID}, 2\ns_lshl_b32 s{S_T}, s{S_T}, 8\ns_and_b32 s{S_U}, s{S_PID}, 3\ns_lshl_b32 s{S_U}, s{S_U}, 4\ns_add_u32 s{S_T}, s{S_T}, s{S_U}")
        e(f"v_lshrrev_b32 v{ROW}, 4, v{LN}\nv_and_b32 v{ROW+1}, 15, v{LN}\nv_lshl_add_u32 v{ROW}, v{ROW}, 6, v{ROW+1}\nv_add_u32 v{ROW}, s{S_T}, v{ROW}")
        e(f"v_mul_u32_u24 v{ROW+1}, 26, v{ROW}")
        for j in range(13): e(f"buffer_load_ushort v{XW+j}, v{ROW+1}, s[8:11], 0 offen offset:{2*j}")
        e("nowide:")
    for g, step in enumerate((27, 28, 29, 30, 31, 36)):
        if i == step:
            for x in epi(g): e(x)
n = len(units)
e("s_waitcnt lgkmcnt(8)"); smf(7, n % 3)
e("s_waitcnt lgkmcnt(4)"); smf(7, (n + 1) % 3)
for x in epi(6): e(x)
e("s_waitcnt lgkmcnt(0)"); smf(7, (n + 2) % 3)
e(f"v_lshlrev_b32 v{PV+1}, 4, v{LN}")
e(f"s_lshl_b32 s70, s{S_PID}, 14\ns_lshl_b32 s{S_T}, s{S_WAVE}, 11\ns_add_u32 s70, s70, s{S_T}\ns_add_u32 s70, s70, {PART:#x}")
e(f"s_lshl_b32 s{S_T}, s{S_WAVE}, 8\ns_add_u32 s{S_T}, s{S_T}, {128000}\nv_lshl_add_u32 v{PV+3}, v{LN}, 2, s{S_T}")
e("s_nop 0")
for x in epi(7): e(x)
if PRIOQ >= 0: e("s_setprio 0")
stamp(9)
e(f"s_cmp_lg_u32 s{S_WAVE}, 0\ns_cbranch_scc1 nowide2")
e("s_waitcnt vmcnt(2)")
e(f"s_lshl_b32 s68, s68, 16\ns_lshl_b32 s69, s69, 16\nv_mov_b32 v{XW+13}, s68\nv_add_f32 v{XW+13}, s69, v{XW+13}")
for j in range(13):
    sw = 60 + j // 2
    if j % 2 == 0: e(f"s_lshl_b32 s{S_T}, s{sw}, 16")
    else: e(f"s_and_b32 s{S_T}, s{sw}, 0xffff0000")
    e(f"v_lshlrev_b32 v{XW+j}, 16, v{XW+j}")
    e(f"v_fma_f32 v{XW+13}, v{XW+j}, s{S_T}, v{XW+13}")
e("nowide2:")
e(f"s_mov_b32 s{S_CNT}, 0\ns_waitcnt vmcnt(0)")
if A("EB", 1): e("s_barrier")
stamp(10)
e("poll2:")
e(f"buffer_load_dwordx4 v[{D1}:{D1+3}], v{PV+1}, s[4:7], s70 offen sc1")
e(f"buffer_load_dwordx4 v[{D1+4}:{D1+7}], v{PV+1}, s[4:7], s70 offen offset:1024 sc1")
e(f"s_add_u32 s{S_CNT}, s{S_CNT}, 1\ns_cmp_gt_u32 s{S_CNT}, 0x40000\ns_cbranch_scc1 poll2_done")
e("s_waitcnt vmcnt(0)")
for i in range(8): e(f"v_xor_b32 v{D1+8+i}, v{PV+2}, v{D1+i}")
e(f"v_or3_b32 v{D1+8}, v{D1+8}, v{D1+9}, v{D1+10}\nv_or3_b32 v{D1+11}, v{D1+11}, v{D1+12}, v{D1+13}\nv_or3_b32 v{D1+8}, v{D1+8}, v{D1+14}, v{D1+15}")
e(f"v_or_b32 v{D1+8}, v{D1+8}, v{D1+11}\nv_and_b32 v{D1+8}, 15, v{D1+8}\nv_cmp_ne_u32 vcc, 0, v{D1+8}\ns_cbranch_vccnz poll2")
e("poll2_done:\ns_waitcnt vmcnt(0)")
stamp(11)
for c in range(4): e(f"v_add_f32 v{D1+c}, v{D1+c}, v{D1+4+c}")
e(f"s_nop 1\nv_permlane32_swap_b32 v{D1}, v{D1+2}\nv_permlane32_swap_b32 v{D1+1}, v{D1+3}")
e(f"v_add_f32 v{D1}, v{D1}, v{D1+2}\nv_add_f32 v{D1+1}, v{D1+1}, v{D1+3}\ns_nop 1")
e(f"v_permlane16_swap_b32 v{D1}, v{D1+1}\nv_add_f32 v{D1}, v{D1}, v{D1+1}")
e(f"ds_write_b32 v{PV+3}, v{D1}\ns_waitcnt lgkmcnt(0)\ns_barrier")
e(f"s_cmp_lg_u32 s{S_WAVE}, 0\ns_cbranch_scc1 fin")
for i in range(1, 8): e(f"ds_read_b32 v{D1+i}, v{PV+3} offset:{256*i}")
e(f"v_add_f32 v{D1}, v{D1}, v{XW+13}\nv_lshlrev_b32 v{ROW}, 1, v{ROW}")
e("s_waitcnt lgkmcnt(0)")
e(f"v_add_f32 v{D1+1}, v{D1+1}, v{D1+2}\nv_add_f32 v{D1+3}, v{D1+3}, v{D1+4}\nv_add_f32 v{D1+5}, v{D1+5}, v{D1+6}\nv_add_f32 v{D1}, v{D1}, v{D1+7}")
e(f"v_add_f32 v{D1+1}, v{D1+1}, v{D1+3}\nv_add_f32 v{D1}, v{D1}, v{D1+5}\nv_add_f32 v{D1}, v{D1}, v{D1+1}")
e(f"v_mul_f32 v{D1}, 0xbfb8aa3b, v{D1}\nv_exp_f32 v{D1}, v{D1}\ns_nop 0\nv_add_f32 v{D1}, 1.0, v{D1}\nv_rcp_f32 v{D1}, v{D1}\ns_nop 0")
e(f"v_cvt_pk_bf16_f32 v{D1}, v{D1}, v{D1}")
e(f"buffer_store_short v{D1}, v{ROW}, s[12:15], 0 offen")
e("s_cmp_lg_u32 s2, 0\ns_cbranch_scc1 fin")
e(f"v_mov_b32 v{D1+1}, s{S_N}\nv_mov_b32 v{D1+2}, {EPOCH}\ns_mov_b64 exec, 1")
e(f"buffer_store_dword v{D1+1}, v{D1+2}, s[4:7], 0 offen\ns_mov_b64 exec, -1")
e("fin:")
if FIX and A("MINS", 0):
    e("s_load_dwordx2 s[32:33], s[0:1], 80\ns_waitcnt lgkmcnt(0)")
    srd(16, 32, 256)
    e("s_not_b32 s98, s100\nv_mov_b32 v8, 0\nv_mov_b32 v9, s98\ns_mov_b64 exec, 1\nbuffer_atomic_umax v9, v8, s[16:19], 0 offen\ns_waitcnt vmcnt(0)")
    e(f"fixm:\ns_memrealtime s[98:99]\ns_waitcnt lgkmcnt(0)\ns_sub_u32 s98, s98, s100\ns_cmp_lt_u32 s98, {FIX - 1500}\ns_cbranch_scc1 fixm")
    e("buffer_load_dword v9, v8, s[16:19], 0 offen sc1\ns_waitcnt vmcnt(0)\nv_readfirstlane_b32 s100, v9\ns_nop 3\ns_not_b32 s100, s100\ns_mov_b64 exec, -1")
if FIX:
    e(f"fixl:\ns_memrealtime s[98:99]\ns_waitcnt lgkmcnt(0)\ns_sub_u32 s98, s98, s{96 if PROBE else 100}")
    e(f"s_cmp_lt_u32 s98, {FIX}\ns_cbranch_scc1 fixl")
if STAMP:
    stamp(12)
    e("s_memrealtime s[98:99]\ns_waitcnt lgkmcnt(0)")
    e(f"s_lshl_b32 s70, s2, 3\ns_add_u32 s70, s70, s{S_WAVE}\ns_lshl_b32 s70, s70, 7\ns_add_u32 s70, s70, {STMP:#x}")
    e("v_mov_b32 v8, 0")
    for i in range(1, 13):
        e(f"s_sub_u32 s{SB+2*i}, s{SB+2*i}, s{SB}\nv_mov_b32 v9, s{SB+2*i}")
        e(f"buffer_store_dword v9, v8, s[4:7], s70 offen offset:{4*(i-1)}")
    for i, r in enumerate((44, 45, 46, 100, 98, 38, 39)):
        e(f"v_mov_b32 v9, s{r}\nbuffer_store_dword v9, v8, s[4:7], s70 offen offset:{48+4*i}")
e("done:\ns_endpgm")

e(f""".section .rodata,"a"
.p2align 6
.amdhsa_kernel {KN}
  .amdhsa_next_free_vgpr 256
  .amdhsa_next_free_sgpr 102
  .amdhsa_accum_offset 256
  .amdhsa_group_segment_fixed_size 0
  .amdhsa_kernarg_size 96
  .amdhsa_user_sgpr_count 2
  .amdhsa_user_sgpr_kernarg_segment_ptr 1
  .amdhsa_system_sgpr_workgroup_id_x 1
.end_amdhsa_kernel""")

bysite = {str(k): v for k, v in waits.items()}
res = []
for l in out:
    if l.startswith("@VM "):
        n = bysite[l[4:]]
        assert 0 <= n <= 63
        l = f"s_waitcnt vmcnt({n})"
    res.append(l)
print("\n".join(res))
```

```python
import sys
args = dict(a.split("=") for a in sys.argv[1:])
def A(k, d): return type(d)(args.get(k, d))
STAMP = A("STAMP", 0); PROBE = A("PROBE", 0); FIX = A("FIX", 0)
PRIOQ = A("PRIOQ", -1); W1W = A("W1W", 0); CPF = A("CPF", 1); POLLT = A("POLLT", 2); PRE = A("PRE", 2); BAR0 = A("BAR0", 1); MAP = A("MAP", 1); CPL = A("CPL", 6); KPRE = A("KPRE", 8); DEFT = A("DEFT", -1); PREO = A("PREO", 1); HPQ = A("HPQ", 8); R1 = A("R1", 12); R2 = A("R2", 28); XT = A("XT", 1); PFW = A("PFW", 0); PI = A("PI", 0); XMAP = A("XMAP", 1); B2 = A("B2", 1); KT = A("KT", 2); KA = A("KA", 2); OD = A("OD", 16); WARM = A("WARM", 0); LINE = A("LINE", 128); WB = A("WB", "L")
MQ = [int(c) for c in A("MQ", "11223456")]

KN = "standalone__deep_cross_wide_deep__recsys_kernel"
EPOCH = 0x0
FLG = 0x1000
IDXP = 0x10000
ISTR = 6 * 16384 + 4096
W1P = 0x340000
WSTR = 42 * 1024
PART = 0x600000
STMP = 0xE00000
WS_SZ = 0x1000000
L_STG = 131072; L_XCH = 155648; L_XT = 131072; L_RED = 0

out = []
emit = True
def e(s):
    if emit:
        for l in s.split("\n"): out.append(l)
class Cnt:
    def __init__(self): self.n = 0; self.tag = {}
    def issue(self, tag=None):
        self.n += 1
        if tag is not None: self.tag[tag] = self.n
    def younger(self, tag): return self.n - self.tag[tag]
vm = Cnt()
waits = {}
def wait_vm(site, tag):
    n = vm.younger(tag)
    waits[site] = min(waits.get(site, 99), n)
    e(f"@VM {site}")
def srd(d, lo, nbytes):
    e(f"s_mov_b32 s{d}, s{lo}\ns_mov_b32 s{d+1}, s{lo+1}\ns_mov_b32 s{d+2}, {nbytes:#x}\ns_mov_b32 s{d+3}, 0x20000")
SB = 72
FINE = A("FINE", 0)
def gstamp(i):
    if STAMP and FINE == 2: e(f"s_memtime s[{SB+2*i}:{SB+1+2*i}]")
def fstamp(i):
    if STAMP and FINE == 1: e(f"s_memtime s[{SB+2*i}:{SB+1+2*i}]")
def stamp(i):
    if FINE == 1 and 9 <= i <= 12: return
    if FINE == 2 and 1 <= i <= 6: return
    if PROBE == i: e("s_memrealtime s[96:97]")
    if STAMP: e(f"s_memtime s[{SB+2*i}:{SB+1+2*i}]")

e(f"""; Wide & Deep recsys forward, gfx950: per-field projected tables P[f][v] = table[v] @ W1_f built on MFMA into LDS,
; @launch grid=(256,1,1) block=(512,1,1) lds=163840
.amdgcn_target "amdgcn-amd-amdhsa--gfx950"
.text
.globl {KN}
.p2align 8
.type {KN},@function
{KN}:""")

VOFF = 0; SIDX = 1; T0 = 2; T1 = 3; AC = 4
DAT = 8; TAB = 32; ACC = 96; POOL = 128; D0 = 192; D1 = 208; W1 = 224
S_WAVE = 3; S_IDX = 20; S_IDX2 = 21; S_W1 = 22; S_M0A = 23; S_M0B = 24; S_CNT = 25; S_BS = 26; S_CS = 27; S_PID = 28; S_N = 29
S_T = 30; S_U = 31
LANE = 8; L16 = 9
XA = POOL; XF = POOL + 16; XC = POOL + 48; XD = POOL + 16
PLO = "0x05040100"; PHI = "0x07060302"

HOLD = POOL + 32
FLGB = FLG + 0x8000
S_FB = 55; S_HP = 54
L_CTR = 128000; L_XC2 = L_STG
DELTA = 28800
def piece_lane():
    e(f"v_bfe_u32 v10, v{LANE}, 2, 3\nv_and_b32 v11, 1, v{LANE}\nv_bfe_u32 v12, v{LANE}, 1, 1\nv_lshrrev_b32 v13, 5, v{LANE}\nv_lshl_or_b32 v12, v13, 1, v12")
    e("v_lshlrev_b32 v13, 4, v10\nv_lshl_or_b32 v13, v11, 15, v13\nv_lshl_or_b32 v13, v12, 12, v13")
def piece_src(fp0):
    e(f"s_lshr_b32 s{S_T}, s{S_CS}, 1\ns_lshl_b32 s{S_T}, s{S_T}, 16\ns_and_b32 s{S_U}, s{S_CS}, 1\ns_lshl_b32 s{S_U}, s{S_U}, 14\ns_add_u32 s{S_T}, s{S_T}, s{S_U}")
    e(f"s_lshl_b32 s{S_U}, s{S_BS}, 7\ns_add_u32 s{S_T}, s{S_T}, s{S_U}\ns_add_u32 s{S_T}, s{S_T}, {fp0*65536:#x}")
def piece_ld(b):
    for j in range(8): e(f"buffer_load_dwordx4 v[{b+4*j}:{b+4*j+3}], v13, s[16:19], s{S_T} offen offset:{j*512}")
def piece_dst(fp0):
    e(f"s_mov_b32 s70, {2*WSTR}\nv_mul_lo_u32 v18, v10, s70\nv_lshl_add_u32 v18, v11, 4, v18")
    e("v_and_b32 v10, 1, v12\nv_lshl_add_u32 v18, v10, 5, v18\nv_lshrrev_b32 v10, 1, v12\nv_lshl_add_u32 v18, v10, 7, v18")
    e(f"s_mul_i32 s70, s{S_BS}, {16*WSTR}\ns_lshr_b32 s71, s{S_CS}, 1\ns_lshl_b32 s71, s71, 10\ns_add_u32 s70, s70, s71")
    e(f"s_and_b32 s71, s{S_CS}, 1\ns_lshl_b32 s71, s71, 8\ns_add_u32 s70, s70, s71\ns_add_u32 s70, s70, {W1P + (fp0-8)*1024:#x}\ns_add_u32 s71, s70, {WSTR}")
def piece_st(cc, b):
    cp = (cc % 4) // 2; par = cc % 2; r = b + 4 * cc
    e(f"buffer_store_dwordx4 v[{r}:{r+3}], v18, s[4:7], s{70 + cc//4} offen offset:{par*512+cp*64} sc1")
def piece_perm(src, dst, store):
    e(f"s_mov_b32 s{S_T}, {PLO}\ns_mov_b32 s{S_U}, {PHI}")
    for t in range(4):
        for jj in range(4):
            r0 = src + 4 * (2 * jj) + t; r1 = r0 + 4
            e(f"v_perm_b32 v{dst+4*(2*t)+jj}, v{r1}, v{r0}, s{S_T}")
            e(f"v_perm_b32 v{dst+4*(2*t+1)+jj}, v{r1}, v{r0}, s{S_U}")
        if store:
            piece_st(2 * t, dst); piece_st(2 * t + 1, dst)
def tab_dma(vt, count=True):
    e(f"s_add_u32 s{S_T}, s{S_M0A}, {vt*32768}\ns_mov_b32 m0, s{S_T}\ns_nop 0")
    for i in range(4):
        e(f"buffer_load_dwordx4 v{14 + i%2}, s[12:15], s{S_T} offen offset:{i*1024} lds")
        if count: vm.issue(("t", vt))
def xconsts(rowshift):
    e(f"v_lshl_add_u32 v17, v{LANE}, {rowshift}, s{S_T}")
    for t in range(16):
        e(f"v_add_u32 v16, {t}, v{LANE}\nv_and_b32 v{XF+t}, 15, v16\nv_lshl_add_u32 v{XA+t}, v{XF+t}, 2, v17")
    for u in range(8): e(f"v_lshl_or_b32 v{XC+u}, v{XF+2*u+1}, 16, v{XF+2*u}")
def idx_dst():
    e(f"s_lshr_b32 s70, s{S_PID}, 3\ns_mul_i32 s70, s70, {ISTR}\ns_add_u32 s70, s70, {IDXP:#x}")
    e(f"s_bfe_u32 s{S_T}, s{S_PID}, 0x10002\ns_lshl_b32 s{S_T}, s{S_T}, 13\ns_add_u32 s70, s70, s{S_T}")
    e(f"s_and_b32 s{S_T}, s{S_PID}, 3\ns_lshl_b32 s{S_T}, s{S_T}, 8\ns_add_u32 s70, s70, s{S_T}")
    e(f"s_lshl_b32 s{S_T}, s{S_CNT}, 14\ns_add_u32 s70, s70, s{S_T}\ns_add_u32 s71, s70, 16384")
def xform(off, dst, store):
    for t in range(16): e(f"ds_read_b32 v{XD+t}, v{XA+t} offset:{off}")
    for u in range(8):
        e(f"s_waitcnt lgkmcnt({14-2*u})")
        e(f"v_lshl_add_u32 v{XD+2*u}, v{XD+2*u+1}, 16, v{XD+2*u}")
        e(f"v_lshl_add_u32 v{dst+u}, v{XD+2*u}, 4, v{XC+u}")
        if store and u % 4 == 3: e(f"buffer_store_dwordx4 v[{dst+u-3}:{dst+u}], v{VOFF}, s[4:7], s70 offen offset:{(u//4)*128} sc1")
def role_old(tag, f12, f3, f0):
    e(f"s_cmp_eq_u32 s{S_WAVE}, 0\ns_cbranch_scc1 {tag}_w0\ns_cmp_eq_u32 s{S_WAVE}, 3\ns_cbranch_scc1 {tag}_w3")
    f12(); e(f"s_branch {tag}_join\n{tag}_w3:"); f3(); e(f"s_branch {tag}_join\n{tag}_w0:"); f0(); e(f"{tag}_join:")
def ld12():
    e(f"v_lshrrev_b32 v17, 3, v{LANE}\nv_mul_u32_u24 v17, 400, v17\nv_and_b32 v11, 7, v{LANE}\nv_lshl_add_u32 v17, v11, 4, v17")
    e(f"s_mul_i32 s{S_U}, s{S_PID}, 25600\ns_lshl_b32 s{S_T}, s{S_WAVE}, 7\ns_add_u32 s{S_T}, s{S_T}, s{S_U}")
    e(f"s_lshl_b32 s{S_U}, s{S_WAVE}, 13\ns_add_u32 m0, s{S_U}, {L_STG}\ns_barrier")
    for i in range(8):
        e(f"buffer_load_dwordx4 v17, s[8:11], s{S_T} offen lds")
        if i < 7: e(f"s_add_u32 s{S_T}, s{S_T}, 3200\ns_add_u32 m0, m0, 1024\ns_nop 0")
    e(f"s_lshl_b32 s{S_T}, s{S_WAVE}, 13\ns_add_u32 s{S_T}, s{S_T}, {L_STG}")
    xconsts(7)
    e(f"s_lshl_b32 s{S_CNT}, s{S_WAVE}, 1")
    idx_dst()
def ld3():
    e(f"v_mul_u32_u24 v17, 400, v{LANE}\ns_mul_i32 s{S_U}, s{S_PID}, 25600\nv_mov_b32 v10, {L_CTR}\nds_write_b32 v10, v18\ns_waitcnt lgkmcnt(0)\ns_barrier")
    e(f"buffer_load_dwordx4 v[28:31], v17, s[8:11], s{S_U} offen offset:384")
    e(f"s_lshr_b32 s70, s{S_PID}, 3\ns_mul_i32 s70, s70, {ISTR}\ns_add_u32 s70, s70, {IDXP + 6*16384:#x}")
    e(f"s_and_b32 s{S_T}, s{S_PID}, 7\ns_lshl_b32 s{S_T}, s{S_T}, 9\ns_add_u32 s70, s70, s{S_T}")
    e(f"v_lshlrev_b32 v18, 3, v{LANE}")
def ld0():
    piece_lane(); piece_src(24); e("s_barrier"); piece_ld(POOL); piece_dst(24)
def xf12(): xform(0, HOLD, False); xform(64, HOLD + 8, False)
def xf3():
    e(f"s_mov_b32 s{S_T}, 0x40014000\ns_mov_b32 s{S_U}, 0x40034002")
    e("v_lshl_add_u32 v28, v29, 16, v28\nv_lshl_add_u32 v30, v31, 16, v30")
    e(f"v_lshl_add_u32 v28, v28, 2, s{S_T}\nv_lshl_add_u32 v30, v30, 2, s{S_U}")
    e(f"v_and_b32 v29, 1, v{LANE}\nv_lshlrev_b32 v29, 4, v29\nv_and_b32 v31, 2, v{LANE}\nv_cmp_ne_u32 vcc, 0, v31")
    e("v_alignbit_b32 v28, v28, v28, v29\nv_alignbit_b32 v30, v30, v30, v29")
    e(f"v_cndmask_b32 v{HOLD}, v28, v30, vcc\nv_cndmask_b32 v{HOLD+1}, v30, v28, vcc")
def xf0(): piece_perm(POOL, HOLD, False)
def raw(lo, hi):
    for n in range(lo, hi):
        s_, j = n // 8, n % 8
        e(f"buffer_load_dword v{POOL+n}, v18, s[16:19], s71 offen offset:{j*512}")
        if j == 7 and s_ < 3: e("s_add_u32 s71, s71, 8192")
def voff_ws():
    srd(4, 54, WS_SZ)
    srd(12, 34, 128000)
    e(f"v_and_b32 v16, 28, v{LANE}\nv_lshlrev_b32 v{VOFF}, 8, v16\nv_and_b32 v16, 1, v{LANE}\nv_lshl_or_b32 v{VOFF}, v16, 6, v{VOFF}")
    e(f"v_and_b32 v16, 32, v{LANE}\nv_or_b32 v{VOFF}, v{VOFF}, v16\nv_and_b32 v16, 2, v{LANE}\nv_lshl_or_b32 v{VOFF}, v16, 3, v{VOFF}")
def sloads():
    e(f"s_load_dword s{S_N}, s[54:55], {EPOCH}")
    e(f"s_lshl_b32 s{S_T}, s{S_CS}, 3")
    e(f"s_load_dwordx2 s[52:53], s[44:45], s{S_T}")
    e(f"s_load_dwordx2 s[58:59], s[46:47], s{S_T}")
    e("s_load_dwordx8 s[60:67], s[38:39], 0")
    e("s_load_dword s68, s[40:41], 0\ns_load_dword s69, s[48:49], 0")
def common():
    e(f"v_lshlrev_b32 v{L16}, 4, v{LANE}")
    e(f"v_lshrrev_b32 v16, 4, v{LANE}\nv_and_b32 v17, 7, v{LANE}\nv_xor_b32 v16, v16, v17\nv_lshlrev_b32 v16, 4, v16")
    e(f"v_lshrrev_b32 v17, 3, v{LANE}\nv_lshl_or_b32 v14, v17, 7, v16\nv_xor_b32 v15, 64, v14")
    e(f"v_bfe_u32 v19, v{LANE}, 2, 2\nv_bfe_u32 v20, v{LANE}, 4, 1\nv_lshlrev_b32 v20, 1, v20\nv_mov_b32 v21, 0x3f80")
    e("v_cmp_eq_u32 vcc, v19, v20\nv_add_u32 v20, 1, v20\ns_nop 0")
    e(f"v_cndmask_b32 v{AC}, 0, v21, vcc\nv_cndmask_b32 v{AC+1}, 0, v21, vcc")
    e(f"v_cmp_eq_u32 vcc, v19, v20\nv_and_b32 v19, 3, v{LANE}\ns_nop 0")
    e(f"v_cndmask_b32 v{AC+2}, 0, v21, vcc\nv_cndmask_b32 v{AC+3}, 0, v21, vcc")
    e(f"v_mul_u32_u24 v{SIDX}, 0x5555, v19")
    e(f"s_lshl_b32 s{S_T}, s{S_BS}, 3\ns_add_u32 s{S_T}, s{S_T}, s{S_WAVE}\ns_mul_i32 s{S_IDX}, s{S_T}, {ISTR}\ns_add_u32 s{S_IDX}, s{S_IDX}, {IDXP:#x}\ns_add_u32 s{S_IDX2}, s{S_IDX}, 8192")
    e(f"s_mul_i32 s{S_W1}, s{S_CS}, {WSTR}\ns_add_u32 s{S_W1}, s{S_W1}, {W1P:#x}")
    e(f"s_add_u32 s{S_M0B}, s{S_M0A}, {65536-DELTA}")
    e(f"s_lshr_b32 s{S_T}, s{S_CS}, 4\ns_lshl_b32 s{S_T}, s{S_T}, 6\ns_lshl_b32 s{S_U}, s{S_WAVE}, 3\nv_and_b32 v13, 7, v{LANE}\nv_add_u32 v10, s{S_U}, v13")
    e(f"s_bfe_u32 s{S_U}, s{S_WAVE}, 0x10001\nv_lshl_add_u32 v11, v13, 1, s{S_U}\nv_lshrrev_b32 v13, 3, v{LANE}\nv_cmp_eq_u32 vcc, 1, v13\ns_nop 1\nv_cndmask_b32 v10, v10, v11, vcc")
    e(f"s_lshl_b32 s{S_U}, s{S_BS}, 6\nv_mov_b32 v11, s{S_T}\nv_mov_b32 v16, s{S_U}\nv_cmp_eq_u32 vcc, 0, v13\ns_nop 1\nv_cndmask_b32 v11, v11, v16, vcc\nv_add_lshl_u32 v19, v10, v11, 7")
    e(f"v_and_b32 v10, 24, v{LANE}\nv_and_b32 v11, 3, v{LANE}\nv_lshl_add_u32 v10, v11, 1, v10\nv_bfe_u32 v12, v{LANE}, 2, 1\nv_add_u32 v10, v10, v12\nv_lshlrev_b32 v10, 7, v10")
    e(f"v_bfe_u32 v12, v{LANE}, 3, 1\nv_lshl_or_b32 v11, v12, 2, v11\nv_lshrrev_b32 v12, 5, v{LANE}\nv_xor_b32 v11, v11, v12\nv_lshl_or_b32 v10, v11, 4, v10")
    e(f"v_add_u32 v20, s{S_M0A}, v10\nv_add_u32 v12, {L_XCH}, v{L16}")
    for s_ in range(1, 4): e(f"v_xor_b32 v{20+s_}, {s_*32}, v20")
    e(f"v_add_u32 v16, {L_XC2}, v{L16}\ns_lshl_b32 s{S_U}, s{S_WAVE}, 10\nv_add_u32 v17, s{S_U}, v16")
def common_b():
    e(f"s_not_b32 s{S_N}, s{S_N}")
    e("s_lshl_b32 s56, s58, 16\ns_and_b32 s57, s58, 0xffff0000\ns_lshl_b32 s58, s59, 16\ns_and_b32 s59, s59, 0xffff0000")
    e("s_lshl_b32 s0, s52, 16\ns_and_b32 s1, s52, 0xffff0000\ns_lshl_b32 s52, s53, 16\ns_and_b32 s53, s53, 0xffff0000")
    e(f"s_cmp_eq_u32 s{S_WAVE}, 0\ns_cselect_b32 s{S_FB}, 1, 0\ns_cmp_lt_u32 s{S_WAVE}, 4\ns_cselect_b32 s{S_HP}, 1, 0")
def tab_rd(vt):
    wait_vm(("td", vt), ("t", vt))
    if vt == 2:
        for s in range(4): e(f"v_add_u32 v{20+s}, 0x10000, v{20+s}")
    for s in range(4):
        r = TAB + 16 * vt + 4 * s
        e(f"ds_read_b128 v[{r}:{r+3}], v{20+s} offset:{(vt%2)*32768}")
def ldw(i):
    e(f"buffer_load_dwordx4 v[{W1+4*i}:{W1+4*i+3}], v{VOFF}, s[4:7], s{S_W1} offen offset:{i*128} sc1")
    vm.issue(("w", i))
def ldi(reg, k, tag):
    e(f"buffer_load_dwordx4 v[{reg}:{reg+3}], v{VOFF}, s[4:7], s{S_IDX if k < 8 else S_IDX2} offen offset:{(k%8)*128} sc1")
    vm.issue(tag)
def mf(vt, i, base=D0):
    s, par = i // 2, i % 2
    d = base + 16 * par
    c = "0" if s == 0 else f"v[{d}:{d+15}]"
    e(f"v_mfma_f32_32x32x16_bf16 v[{d}:{d+15}], v[{TAB+16*vt+4*s}:{TAB+16*vt+4*s+3}], v[{W1+16*par+4*s}:{W1+16*par+4*s+3}], {c}")
def frag_of(i): return (i % 2) * 4 + i // 2
def cvt(dst, r, base=D0): e(f"v_cvt_pk_bf16_f32 v{dst}, v{base+r}, v{base+16+r}")
def wr(src, vt, r):
    off = (vt % 2) * 32768 + r * 256 + (DELTA if vt >= 2 else 0)
    e(f"ds_write_addtid_b32 v{src} offset:{off}")
SD = "dst_sel:DWORD dst_unused:UNUSED_PAD src0_sel:DWORD"
def unpack(w0):
    e(f"v_lshlrev_b32_sdwa v{T0}, 3, v{w0} {SD} src1_sel:WORD_1")
    e(f"v_lshlrev_b32_sdwa v{w0}, 3, v{w0} {SD} src1_sel:WORD_0")
    e(f"v_lshlrev_b32_sdwa v{T1}, 3, v{w0+1} {SD} src1_sel:WORD_1")
    e(f"v_lshlrev_b32_sdwa v{w0+1}, 3, v{w0+1} {SD} src1_sel:WORD_0")
def reads(w0, slot):
    d = DAT + 8 * slot
    for i, a in enumerate((w0, T0, w0 + 1, T1)):
        e(f"ds_read_b64 v[{d+2*i}:{d+2*i+1}], v{a}")
def smf(g, slot):
    d = DAT + 8 * slot; a = ACC + 4 * g
    e(f"v_smfmac_f32_16x16x64_bf16 v[{a}:{a+3}], v[{AC}:{AC+3}], v[{d}:{d+7}], v{SIDX}")
def cpf_code(dst):
    e(f"s_getpc_b64 s[70:71]\ncpf_base:\ns_lshr_b32 s{S_U}, s2, 3\ns_mul_i32 s{S_U}, s{S_U}, {CPL*128}\nv_min_u32 v2, {CPL-1}, v{LANE}\nv_lshl_add_u32 v2, v2, 7, s{S_U}\nv_min_u32 v2, done-cpf_base, v2\nv_mov_b32 v3, s71")
    e("v_add_co_u32 v2, vcc, s70, v2\ns_nop 1\nv_addc_co_u32 v3, vcc, 0, v3, vcc")
    e(f"global_load_dword v{dst}, v[2:3], off")
def poll_issue():
    if CPF == 2:
        e(f"s_cmp_lg_u32 s{S_WAVE}, 7\ns_cbranch_scc1 1f")
        cpf_code(11)
        e("1:")
    stamp(5)
    e(f"s_mov_b32 s{S_T}, {FLG:#x}")
    e(f"buffer_load_dword v10, v19, s[4:7], s{S_T} offen sc1"); vm.issue("poll")
def poll_check():
    e(f"s_mov_b32 s{S_CNT}, 0\ns_mov_b32 s{S_T}, {FLG:#x}")
    wait_vm("pollw", "poll")
    e("poll1:")
    e(f"v_cmp_ne_u32 vcc, s{S_N}, v10\ns_cbranch_vccz poll1_done")
    e(f"s_sleep 8\nbuffer_load_dword v10, v19, s[4:7], s{S_T} offen sc1")
    e(f"s_add_u32 s{S_CNT}, s{S_CNT}, 1\ns_waitcnt vmcnt(0)\ns_cmp_lt_u32 s{S_CNT}, 0x40000\ns_cbranch_scc1 poll1")
    e("poll1_done:")
    stamp(6)
    e(f"s_lshl_b32 s{S_T}, s{S_WAVE}, 7\ns_add_u32 s{S_T}, s{S_T}, s{S_W1}")
    e(f"buffer_load_dwordx4 v[24:27], v{VOFF}, s[4:7], s{S_T} offen sc1"); vm.issue("w1x")
    for i in range(8): vm.tag[("w", i)] = vm.n
    for k in range(KA): ldi(POOL + 4 * k, k, ("i", k))

e("s_cmp_ge_u32 s2, 256\ns_cbranch_scc1 done")
e("s_load_dwordx16 s[32:47], s[0:1], 0")
e("s_load_dwordx8 s[48:55], s[0:1], 64")
if STAMP: e(f"s_memtime s[{SB}:{SB+1}]")
if STAMP or FIX: e("s_memrealtime s[100:101]")
e(f"v_lshrrev_b32 v1, 6, v0\nv_and_b32 v{LANE}, 63, v0")
e(f"v_readfirstlane_b32 s{S_WAVE}, v1")
if XMAP:
    e(f"s_bfe_u32 s{S_BS}, s2, 0x20002\ns_and_b32 s{S_CS}, s2, 3\ns_lshl_b32 s{S_CS}, s{S_CS}, 4\ns_lshr_b32 s{S_T}, s2, 4\ns_add_u32 s{S_CS}, s{S_CS}, s{S_T}")
else:
    e(f"s_and_b32 s{S_BS}, s2, 3\ns_lshr_b32 s{S_CS}, s2, 2")
e(f"s_lshl_b32 s{S_PID}, s{S_BS}, 6\ns_add_u32 s{S_PID}, s{S_PID}, s{S_CS}")
e(f"s_lshl_b32 s{S_M0A}, s{S_WAVE}, 12\nv_mov_b32 v18, 0\nv_mov_b32 v14, 0\nv_mov_b32 v15, 0\nv_mov_b32 v19, 0\ns_mul_i32 s71, s{S_PID}, 25600")
e("s_mov_b32 s10, 0x640000\ns_mov_b32 s11, 0x20000\ns_mov_b32 s18, 0x320000\ns_mov_b32 s19, 0x20000")
e(f"s_cmp_lt_u32 s{S_WAVE}, 4\ns_cbranch_scc1 a_old")
e(f"s_cmp_eq_u32 s{S_WAVE}, 7\ns_cbranch_scc1 a_w7\ns_cmp_eq_u32 s{S_WAVE}, 6\ns_cbranch_scc1 a_pc")
e(f"s_setprio 3\ns_sub_u32 s{S_CNT}, s{S_WAVE}, 4")
e(f"v_lshrrev_b32 v10, 2, v{LANE}\nv_mul_u32_u24 v10, 400, v10\nv_and_b32 v11, 3, v{LANE}\nv_lshl_add_u32 v10, v11, 4, v10")
e(f"s_lshl_b32 s{S_T}, s{S_CNT}, 6\ns_add_u32 s{S_T}, s{S_T}, s71")
e(f"s_lshl_b32 s{S_U}, s{S_CNT}, 12\ns_add_u32 s{S_U}, s{S_U}, {L_STG}\ns_mov_b32 m0, s{S_U}\nv_lshl_add_u32 v17, v{LANE}, 6, s{S_U}")
e("s_waitcnt lgkmcnt(0)\ns_mov_b32 s8, s32\ns_mov_b32 s9, s33")
for i in range(4):
    e(f"buffer_load_dwordx4 v10, s[8:11], s{S_T} offen lds")
    if i < 3: e(f"s_add_u32 m0, m0, 1024\ns_add_u32 s{S_T}, s{S_T}, 6400")
e("s_barrier\ns_branch b_x")
e("a_pc:\ns_setprio 3")
piece_lane(); piece_src(8)
e(f"s_mov_b32 s18, {24*65536:#x}\ns_waitcnt lgkmcnt(0)\ns_mov_b32 s16, s42\ns_mov_b32 s17, s43")
piece_ld(POOL)
e("s_barrier\ns_branch b_pc")
e("a_old:")
e(f"v_mov_b32 v10, {L_CTR}\nds_write_b32 v10, v18\ns_waitcnt lgkmcnt(0)\ns_barrier\ns_branch c_all")
e("a_w7:")
if CPF == 1: cpf_code(D0)
e("s_setprio 2\ns_barrier")
e(f"v_bfe_u32 v16, v{LANE}, 1, 4\nv_lshlrev_b32 v18, 15, v16\nv_lshrrev_b32 v16, 5, v{LANE}\nv_lshl_or_b32 v18, v16, 12, v18\nv_and_b32 v16, 1, v{LANE}\nv_lshl_or_b32 v18, v16, 2, v18")
e(f"v_and_b32 v16, 31, v{LANE}\nv_lshlrev_b32 v16, 7, v16\ns_lshr_b32 s{S_U}, s2, 3\ns_lshl_b32 s{S_U}, s{S_U}, 12")
e(f"s_lshl_b32 s71, s{S_CS}, 3")
e("s_waitcnt lgkmcnt(0)\ns_mov_b32 s16, s42\ns_mov_b32 s17, s43")
srd(12, 34, 128000)
e(f"buffer_load_dword v{D0}, v16, s[12:15], s{S_U} offen")
raw(0, R1)
e("s_branch c_all")
e("b_x:")
voff_ws()
e(f"v_and_b32 v16, 15, v{LANE}\nv_lshl_add_u32 v{XA}, v16, 2, v17\nv_xor_b32 v17, 1, v16\nv_lshl_or_b32 v{XC}, v17, 16, v16")
for t in range(1, 16): e(f"v_xor_b32 v{XA+t}, {4*t}, v{XA}")
for u in range(1, 8): e(f"v_xor_b32 v{XC+u}, {2*u*0x10001:#x}, v{XC}")
idx_dst()
e("s_waitcnt vmcnt(0)")
stamp(1)
xform(0, HOLD, True)
e("s_barrier\ns_branch c_all2")
e("b_pc:")
voff_ws()
stamp(1)
e(f"s_cmp_ge_u32 s{S_CS}, 32\ns_cbranch_scc1 1f")
piece_dst(8)
e("s_waitcnt vmcnt(0)")
stamp(1)
piece_perm(POOL, HOLD, True)
e("1:\ns_barrier\ns_branch c_all2")
e("c_all:")
voff_ws()
e("c_all2:")
sloads(); common()
e(f"s_cmp_eq_u32 s{S_WAVE}, 7\ns_cbranch_scc1 d_w7\ns_cmp_lt_u32 s{S_WAVE}, 4\ns_cbranch_scc1 d_old")
e(f"v_mov_b32 v10, {L_CTR}\nv_mov_b32 v11, 1\ns_mov_b64 exec, 1\ns_waitcnt vmcnt(0)")
e("ds_add_rtn_u32 v13, v10, v11")
e(f"s_lshl_b32 s{S_T}, s{S_PID}, 7\ns_add_u32 s{S_T}, s{S_T}, {FLG:#x}\nv_mov_b32 v10, 0\ns_waitcnt lgkmcnt(0)")
e(f"v_readfirstlane_b32 s{S_U}, v13\nv_not_b32 v11, s{S_N}\ns_cmp_lg_u32 s{S_U}, 2\ns_cbranch_scc1 b_nosig")
e(f"buffer_store_dword v11, v10, s[4:7], s{S_T} offen sc1")
e("b_nosig:\ns_mov_b64 exec, -1\ns_branch e_join")
e("d_w7:")
stamp(1)
e("s_mov_b32 s16, s42\ns_mov_b32 s17, s43\ns_barrier")
raw(R1, 32)
for vt in range(PRE): tab_dma(vt, False)
e(f"s_mov_b32 s{S_T}, {PLO}\ns_mov_b32 s{S_U}, {PHI}")
for s in range(4):
    e(f"s_waitcnt vmcnt({24-8*s+4*PRE})")
    for jj in range(4):
        r0 = POOL + 8 * s + 2 * jj
        e(f"v_perm_b32 v{POOL+32+8*s+jj}, v{r0+1}, v{r0}, s{S_T}")
        e(f"v_perm_b32 v{POOL+36+8*s+jj}, v{r0+1}, v{r0}, s{S_U}")
    e(f"ds_write_b128 v12, v[{POOL+32+8*s}:{POOL+35+8*s}] offset:{s*1024}")
    e(f"ds_write_b128 v12, v[{POOL+36+8*s}:{POOL+39+8*s}] offset:{4096+s*1024}")
stamp(2)
e("s_branch b_all")
e("d_old:")
stamp(1)
e("s_barrier")
def warm(tag, nseg, w0):
    if not WARM: return
    e("s_mov_b64 exec, 0")
    for k in range(nseg - 1): e(f"s_cmp_eq_u32 s{S_WAVE}, {w0+k}\ns_cbranch_scc1 @SEG_{tag}_{k}")
    e(f"s_branch @SEG_{tag}_{nseg-1}")
    e(f"warm_ret_{tag}:\ns_mov_b64 exec, -1")
if OD: e(f"s_sleep {OD}")
e("e_join:")
stamp(2)
for vt in range(PRE): tab_dma(vt)
e("s_setprio 0")
warm("B", 7, 0)
e("b_all:")
e("s_setprio 0\ns_waitcnt lgkmcnt(0)\ns_barrier")
pass
stamp(3)
for i in range(8): e(f"ds_read_b128 v[{W1+4*i}:{W1+4*i+3}], v12 offset:{i*1024}")
if PI == -1: poll_issue()
common_b()
if PRE < 4: tab_dma(PRE)
tab_rd(0)
stamp(4)
def dl12():
    e(f"v_lshrrev_b32 v10, 3, v{LANE}\nv_mul_u32_u24 v10, 400, v10\nv_and_b32 v11, 7, v{LANE}\nv_lshl_add_u32 v10, v11, 4, v10")
    e(f"s_lshl_b32 s{S_T}, s{S_WAVE}, 7\ns_add_u32 s{S_T}, s{S_T}, s71")
    e(f"s_lshl_b32 s{S_U}, s{S_WAVE}, 13\ns_add_u32 s{S_U}, s{S_U}, {L_STG}\ns_mov_b32 m0, s{S_U}\nv_lshl_add_u32 v18, v{LANE}, 7, s{S_U}")
    for i in range(8):
        e(f"buffer_load_dwordx4 v10, s[8:11], s{S_T} offen lds")
        if i < 7: e(f"s_add_u32 m0, m0, 1024\ns_add_u32 s{S_T}, s{S_T}, 3200")
def dl3():
    e(f"v_mul_u32_u24 v10, 400, v{LANE}\nbuffer_load_dwordx4 v[28:31], v10, s[8:11], s71 offen offset:384")
def dl0():
    piece_lane(); piece_src(24); piece_ld(HOLD)
def dx12():
    e(f"s_lshl_b32 s{S_CNT}, s{S_WAVE}, 1")
    idx_dst()
    e(f"v_and_b32 v11, 15, v{LANE}\nv_lshl_add_u32 v10, v11, 2, v18\nv_xor_b32 v12, 1, v11\nv_lshl_or_b32 v{HOLD+16}, v12, 16, v11")
    for u in range(1, 8): e(f"v_xor_b32 v{HOLD+16+u}, {2*u*0x10001:#x}, v{HOLD+16}")
    for t in range(16): e(f"v_xor_b32 v{D0+t}, {4*t}, v10")
    e("s_waitcnt vmcnt(0)")
    for t in range(16): e(f"ds_read_b32 v{D1+t}, v{D0+t} offset:64")
    for t in range(16): e(f"ds_read_b32 v{D0+t}, v{D0+t}")
    for h, b in ((1, D1), (0, D0)):
        e(f"s_waitcnt lgkmcnt({15 if h else 0})")
        for u in range(8):
            e(f"v_lshl_add_u32 v{b+2*u}, v{b+2*u+1}, 16, v{b+2*u}")
            e(f"v_lshl_add_u32 v{HOLD+8*h+u}, v{b+2*u}, 4, v{HOLD+16+u}")
            if u % 4 == 3: e(f"buffer_store_dwordx4 v[{HOLD+8*h+u-3}:{HOLD+8*h+u}], v{VOFF}, s[4:7], s{70+h} offen offset:{(u//4)*128} sc1")
def dx3():
    e(f"s_lshr_b32 s70, s{S_PID}, 3\ns_mul_i32 s70, s70, {ISTR}\ns_add_u32 s70, s70, {IDXP + 6*16384:#x}")
    e(f"s_and_b32 s{S_T}, s{S_PID}, 7\ns_lshl_b32 s{S_T}, s{S_T}, 9\ns_add_u32 s70, s70, s{S_T}")
    e(f"v_and_b32 v18, 31, v{LANE}\nv_lshlrev_b32 v18, 4, v18\nv_lshrrev_b32 v10, 5, v{LANE}\nv_lshl_or_b32 v18, v10, 3, v18\ns_waitcnt vmcnt(0)")
    xf3()
    e(f"buffer_store_dwordx2 v[{HOLD}:{HOLD+1}], v18, s[4:7], s70 offen sc1")
def dx0():
    e(f"s_cmp_ge_u32 s{S_CS}, 52\ns_cbranch_scc1 g_join")
    piece_dst(24)
    e("s_waitcnt vmcnt(0)")
    piece_perm(HOLD, D0, True)
def role_wait(n):
    e(f"s_waitcnt vmcnt({n+8})\ns_cmp_lt_u32 s{S_WAVE}, 3\ns_cbranch_scc1 1f\ns_waitcnt vmcnt({n})\n1:")
DB = [ACC, D0, ACC, D0]
for vt in range(5):
    if vt >= 1: e(f"s_mov_b32 m0, s{S_M0A if vt <= 2 else S_M0B}")
    if vt < 4: e(f"s_waitcnt lgkmcnt({0 if vt < 2 else 10})")
    b = DB[vt - 1]
    for i in range(9):
        if vt < 4 and i < 8: mf(vt, i, base=DB[vt])
        if 0 < vt < 4 and i == 0: e("s_nop 9")
        if vt > 0:
            if i < 8:
                for r in (2 * i, 2 * i + 1): cvt(b + r, r, b)
            if i > 0:
                for r in (2 * i - 2, 2 * i - 1): wr(b + r, vt - 1, r)
                if vt == 3:
                    for r in (2 * i - 2, 2 * i - 1, 2 * i + 14, 2 * i + 15): e(f"v_mov_b32 v{ACC+r}, s{(0, 1, 52, 53)[r%4]}")
        if i == 3 and vt < 3: tab_rd(vt + 1)
    if PRE + 1 + vt < 4: tab_dma(PRE + 1 + vt)
    if vt == PI: poll_issue()
    if vt == PI + 1: poll_check()
    if vt == KT:
        assert KT >= PI + 1
        for k in range(KA, KPRE): ldi(POOL + 4 * k, k, ("i", k))
    if vt == 3:
        e(f"s_cmp_ge_u32 s{S_WAVE}, 4\ns_cbranch_scc1 d_join")
        e("s_mov_b32 s8, s32\ns_mov_b32 s9, s33\ns_mov_b32 s16, s42\ns_mov_b32 s17, s43")
        role_old("d", dl12, dl3, dl0)
    if vt == (3 if B2 else 4):
        fstamp(9)
        role_wait(vm.younger("w1x"))
        fstamp(10)
        e("ds_write_b128 v17, v[24:27]")
        if B2:
            e("s_waitcnt lgkmcnt(0)\ns_barrier")
            fstamp(11)
            for i in range(8): e(f"ds_read_b128 v[{W1+4*i}:{W1+4*i+3}], v16 offset:{i*1024}")
e(f"s_add_u32 s{S_W1}, s{S_W1}, 8192")
fstamp(12)
role_wait(vm.younger(("i", 1)))
unpack(POOL)
e(f"s_mov_b32 s{S_CNT}, 3")
e("s_waitcnt lgkmcnt(0)\ns_barrier")
if not B2:
    for i in range(8): e(f"ds_read_b128 v[{W1+4*i}:{W1+4*i+3}], v16 offset:{i*1024}")
for k in range(KPRE, 8): ldi(POOL + 4 * k, k, ("i", k))
assert KPRE == 8
e(f"s_cmp_ge_u32 s{S_WAVE}, 4\ns_cbranch_scc1 g_join")
role_old("g", dx12, dx3, dx0)
e(f"s_mov_b32 s{S_CNT}, 3")
e("@ENDREGION")
if not B2: e("s_waitcnt lgkmcnt(0)")
stamp(7)
if STAMP == 1: e(f"s_waitcnt lgkmcnt(0)\ns_mov_b32 s40, s{SB+14}\ns_mov_b32 s42, s{SB+14}\ns_mov_b32 s44, 0\ns_mov_b32 s45, 0\ns_mov_b32 s46, 0")

def blocks(par): return [POOL + (48 if par else 0), POOL + 16, POOL + 32, POOL + (0 if par else 48)]
def prio(q):
    if q == PRIOQ: e(f"s_cmp_ge_u32 s{S_WAVE}, 4\ns_cbranch_scc0 1f\ns_setprio 1\n1:")
def phase(par):
    blk = blocks(par)
    def w0(q): return blk[q // 8] + (q % 8) * 2
    for q in range(32):
        prio(q)
        if q >= 3:
            e("s_waitcnt lgkmcnt(8)")
            smf((q - 3) // 4, q % 3)
        reads(w0(q), q % 3)
        vt = q // 8
        for i in range(8):
            if MQ[i] == q % 8:
                if vt == 0 and i % 2 == 0: wait_vm((par, "w", i), ("w", frag_of(i + 1)))
                mf(vt, i)
                if vt == 3 and not W1W: ldw(frag_of(i))
        if q < 16 and q % 2 == 0:
            k = 8 + q // 2
            ldi(blk[k // 4] + 4 * (k % 4), k, ("i", k))
        if q == 20: e(f"s_add_u32 s{S_IDX}, s{S_IDX}, 16384\ns_add_u32 s{S_IDX2}, s{S_IDX2}, 16384")
        if q >= 25 and q % 2 == 1:
            k = (q - 25) // 2
            ldi(blk[3] + 4 * k, k, ("n", k))
        if q < 31:
            if (q + 1) % 4 == 0: wait_vm((par, "i", q), ("i", (q + 1) // 2 + 1))
            unpack(w0(q + 1))
        if q % 8 == 7 and vt < 3:
            for r in range(8): cvt(blk[vt] + r, r)
        if q % 8 == 0 and vt > 0:
            for r in range(8, 16): cvt(blk[vt - 1] + r, r)
        if q == HPQ and par == 1: e(f"s_cmp_eq_u32 s{S_HP}, 1\ns_cbranch_scc1 hook_p\nhook_p_ret:")
        if q == 24 and par == 1: e(f"s_cmp_eq_u32 s{S_CNT}, 2\ns_cbranch_scc1 hook_c\nhook_c_ret:")
    for k in range(4): vm.tag[("i", k)] = vm.tag[("n", k)]
    e("s_waitcnt lgkmcnt(8)"); smf(7, 29 % 3)
    e("s_waitcnt lgkmcnt(4)"); smf(7, 30 % 3)
    e(f"s_mov_b32 m0, s{S_M0A}")
    for r in range(16): cvt(D0 + r, r)
    if PRIOQ >= 0: e("s_setprio 0")
    if STAMP == 1: e("s_memtime s[48:49]")
    e("s_waitcnt lgkmcnt(0)")
    if STAMP == 1: e("s_sub_u32 s47, s48, s40\ns_add_u32 s46, s46, s47\ns_sub_u32 s47, s40, s42\ns_add_u32 s45, s45, s47")
    e("s_barrier")
    if STAMP == 1: e("s_memtime s[42:43]")
    smf(7, 31 % 3)
    if par == 0: e(f"s_cmp_eq_u32 s{S_FB}, 1\ns_cbranch_scc1 hook_f\nhook_f_ret:")
    n = 0
    for vt in (1, 0, 2, 3):
        if vt == 2: e(f"s_mov_b32 m0, s{S_M0B}\ns_nop 0")
        for r in range(16):
            wr(blk[vt] + r if vt < 3 else D0 + r, vt, r)
            if W1W and n % 4 == 0 and n < 32: ldw(frag_of(n // 4))
            if n >= 32 and n % 8 == 0:
                k = 4 + (n - 32) // 8
                ldi(blk[1] + 4 * (k % 4), k, ("i", k))
            n += 1
    e(f"s_add_u32 s{S_W1}, s{S_W1}, 8192")
    wait_vm((par, "i0"), ("i", 1))
    unpack(blk[3])
    e("s_waitcnt lgkmcnt(0)")
    if STAMP == 1: e(f"s_sub_u32 s47, s42, s40\ns_add_u32 s44, s44, s47\ns_cmp_eq_u32 s{S_CNT}, {3-par}\ns_cselect_b32 s{38+par}, s47, s{38+par}")
    if par == 0: e(f"s_sub_u32 s{S_CNT}, s{S_CNT}, 1\ns_cmp_eq_u32 s{S_CNT}, 0")
    e("s_barrier")
    if STAMP == 1: e("s_memtime s[40:41]")

e("@ALIGN 64\nmain_loop:")
if WB == "A": e("@REGION B 7")
phase(0)
e("s_cbranch_scc1 last_phase")
phase(1)
e("s_branch main_loop")
e("hook_f:")
e(f"s_mov_b32 s{S_FB}, 0\ns_lshl_b32 s{S_T}, s{S_PID}, 7\ns_add_u32 s{S_T}, s{S_T}, {FLGB:#x}\nv_mov_b32 v{T0}, s{S_N}\nv_mov_b32 v{T1}, 0\ns_mov_b64 exec, 1")
e(f"buffer_store_dword v{T0}, v{T1}, s[4:7], s{S_T} offen sc1\nv_mov_b32 v{T0}, {L_XCH}\nds_write_b32 v{T0}, v{T1}\ns_mov_b64 exec, -1\ns_branch hook_f_ret")
e("hook_p:")
e(f"s_mov_b32 s{S_HP}, 0\nv_mbcnt_lo_u32_b32 v{D0}, -1, 0\nv_mbcnt_hi_u32_b32 v{D0}, -1, v{D0}")
e(f"s_lshr_b32 s{S_T}, s{S_CS}, 4\nv_mov_b32 v{D0+1}, s{S_T}\nv_mov_b32 v{D0+2}, s{S_BS}\nv_cmp_gt_u32 vcc, 16, v{D0}\nv_and_b32 v{D0}, 15, v{D0}\ns_lshl_b32 s{S_T}, s{S_WAVE}, 11")
e(f"v_cndmask_b32 v{D0+1}, v{D0+1}, v{D0+2}, vcc\nv_lshl_add_u32 v{D0}, v{D0+1}, 6, v{D0}\nv_lshlrev_b32 v{D0}, 7, v{D0}\ns_add_u32 s{S_T}, s{S_T}, {FLGB:#x}\ns_mov_b32 s{S_U}, 0")
e("hook_p_loop:")
e(f"buffer_load_dword v{D0+1}, v{D0}, s[4:7], s{S_T} offen sc1")
e(f"s_add_u32 s{S_U}, s{S_U}, 1\ns_waitcnt vmcnt(0)\ns_cmp_gt_u32 s{S_U}, 0x40000\ns_cbranch_scc1 hook_p_out")
e(f"v_cmp_ne_u32 vcc, s{S_N}, v{D0+1}\ns_cbranch_vccnz hook_p_loop")
e(f"hook_p_out:\nv_mov_b32 v{D0}, {L_XCH}\nv_mov_b32 v{D0+1}, 1\ns_mov_b64 exec, 1\nds_add_u32 v{D0}, v{D0+1}\ns_mov_b64 exec, -1\ns_branch hook_p_ret")
e("hook_c:")
e(f"v_mov_b32 v{D0}, {L_XCH}\ns_mov_b32 s{S_U}, 0")
e(f"hook_c_loop:\nds_read_b32 v{D0+1}, v{D0}\ns_add_u32 s{S_U}, s{S_U}, 1\ns_waitcnt lgkmcnt(0)\ns_cmp_gt_u32 s{S_U}, 0x1000000\ns_cbranch_scc1 hook_c_ret")
e(f"v_cmp_ne_u32 vcc, 4, v{D0+1}\ns_cbranch_vccnz hook_c_loop\ns_branch hook_c_ret")
emit = False
phase(0); phase(1); phase(0)
emit = True
e("last_phase:")
if WB == "L": e("@REGION B 7")
stamp(8)
blk = blocks(1)
XI = W1 + 16
SC = blk[1]
LK = [0, 3, 6, 8, 18, 20, 22, 24]; LX = [1, 5, 9, 11]
XB = A("XB", 20); XS = A("XS", 4)
assert XS + 16 <= XB <= 20 and XB >= 18
units = [("q", q) for q in range(XB)] + [("x", g) for g in range(8)] + [("q", q) for q in range(XB, 32)]
VX = blk[3]; WA = VX + 1; TL = VX + 2; TM = VX + 3; X8 = VX + 4
def uw0(u): return blk[u[1] // 8] + (u[1] % 8) * 2 if u[0] == "q" else XI + 2 * u[1]
def ugrp(u): return u[1] // 4 if u[0] == "q" else u[1]
XW = W1; LN = SC; ROW = SC + 1; PV = SC + 4; RES = SC + 8
XM = [0, 0, 0, 1, 1, 1, 2, 2]
extra = {i: [] for i in range(len(units) + 3)}
def epi(g):
    a = ACC + 4 * g
    l = [f"v_max_f32 v{a+c}, 0, v{a+c}" for c in range(4)]
    l.append(f"v_mul_f32 v{RES+g}, s56, v{a}")
    l += [f"v_fma_f32 v{RES+g}, v{a+c}, s{56+c}, v{RES+g}" for c in range(1, 4)]
    l.append(f"v_and_or_b32 v{RES+g}, v{RES+g}, -16, v{PV+2}")
    if g % 4 == 3: l.append(f"buffer_store_dwordx4 v[{RES+g-3}:{RES+g}], v{PV}, s[4:7], s{70 + g//4} offen sc1")
    return l
for i, u in enumerate(units):
    prio(i)
    if i >= 3:
        e("s_waitcnt lgkmcnt(8)")
        smf(ugrp(units[i - 3]), i % 3)
    if i == 6: gstamp(1)
    if i == 12: gstamp(2)
    if i == XB:
        gstamp(3); e("s_barrier"); gstamp(4)
    if i == XB + 8: gstamp(5)
    if i == XB + 14: gstamp(6)
    reads(uw0(u), i % 3)
    if i == 0:
        wait_vm(("L", "junk"), ("w", frag_of(7)))
        e(f"v_mbcnt_lo_u32_b32 v{TL}, -1, 0\nv_mbcnt_hi_u32_b32 v{TL}, -1, v{TL}")
        for r in range(16): e(f"v_mov_b32_dpp v{W1+r}, v{W1+16+r} row_shr:8 row_mask:0xf bank_mask:0xc")
    if i == 1:
        e(f"v_and_b32 v{WA}, 24, v{TL}\nv_and_b32 v{TM}, 3, v{TL}\nv_lshl_add_u32 v{WA}, v{TM}, 1, v{WA}\nv_bfe_u32 v{TM}, v{TL}, 2, 1\nv_add_u32 v{WA}, v{WA}, v{TM}")
        e(f"v_lshrrev_b32 v{TM}, 5, v{TL}\nv_lshl_add_u32 v{WA}, v{WA}, 1, v{TM}\ns_lshl_b32 s{S_T}, s{S_WAVE}, 10\ns_add_u32 s{S_T}, s{S_T}, {L_XT}\nv_lshl_add_u32 v{WA}, v{WA}, 4, s{S_T}")
    if XS <= i < XS + 12:
        vt = (i - XS) // 3
        d = D0 + 16 * (vt % 2)
        for sx in ((0, 1), (2,), (3,))[(i - XS) % 3]:
            c = "0" if sx == 0 else f"v[{d}:{d+15}]"
            e(f"v_mfma_f32_32x32x16_bf16 v[{d}:{d+15}], v[{W1+4*sx}:{W1+4*sx+3}], v[{TAB+16*vt+4*sx}:{TAB+16*vt+4*sx+3}], {c}")
    if i in LK:
        k = 8 + LK.index(i)
        ldi(blk[k // 4] + 4 * (k % 4), k, ("i", k))
    if i == 0: e(f"v_lshlrev_b32 v{X8}, 4, v{TL}\ns_add_u32 s{S_IDX}, s{S_IDX}, 16384")
    if i in LX:
        g = LX.index(i)
        e(f"buffer_load_dwordx4 v[{XI+4*g}:{XI+4*g+3}], v{X8}, s[4:7], s{S_IDX} offen offset:{g*1024} sc1"); vm.issue(("x", g))
    if i == XB - 2:
        wait_vm(("L", "x"), ("x", 3))
        for g in range(4): e(f"v_permlane32_swap_b32 v{XI+4*g}, v{XI+4*g+2}\nv_permlane32_swap_b32 v{XI+4*g+1}, v{XI+4*g+3}")
    if i + 1 < len(units):
        nu = units[i + 1]
        if nu[0] == "q" and nu[1] % 4 == 0 and nu[1] <= 24: wait_vm(("L", "i", i), ("i", nu[1] // 2 + 1 if nu[1] < 24 else 15))
        unpack(uw0(nu))
    if i in (XS + 4, XS + 7, XS + 10, XS + 13):
        vt = (i - XS - 4) // 3
        d = D0 + 16 * (vt % 2)
        for r in range(4): e(f"v_cvt_pk_bf16_f32 v{d+r}, v{d+r}, v{d+4+r}")
        e(f"ds_write_b128 v{WA}, v[{d}:{d+3}] offset:{vt*8192}")
    if i == 17:
        e(f"v_mbcnt_lo_u32_b32 v{LN}, -1, 0\nv_mbcnt_hi_u32_b32 v{LN}, -1, v{LN}")
        e(f"v_and_b32 v{PV+1}, 15, v{LN}\nv_lshlrev_b32 v{PV+1}, 4, v{PV+1}\nv_lshrrev_b32 v{PV}, 4, v{LN}\nv_lshl_or_b32 v{PV}, v{PV}, 14, v{PV+1}")
        e(f"s_lshl_b32 s70, s{S_BS}, 20\ns_lshl_b32 s71, s{S_WAVE}, 17\ns_add_u32 s70, s70, s71\ns_lshl_b32 s71, s{S_CS}, 8\ns_add_u32 s70, s70, s71")
        e(f"s_add_u32 s70, s70, {PART:#x}\ns_add_u32 s71, s70, 65536")
        e(f"s_and_b32 s{S_U}, s{S_N}, 15\nv_mov_b32 v{PV+2}, s{S_U}")
        srd(8, 36, 16384 * 26)
        srd(12, 50, 32768)
    if i == 21:
        e(f"s_cmp_lg_u32 s{S_WAVE}, 0\ns_cbranch_scc1 nowide")
        e(f"s_lshr_b32 s{S_T}, s{S_PID}, 2\ns_lshl_b32 s{S_T}, s{S_T}, 8\ns_and_b32 s{S_U}, s{S_PID}, 3\ns_lshl_b32 s{S_U}, s{S_U}, 4\ns_add_u32 s{S_T}, s{S_T}, s{S_U}")
        e(f"v_lshrrev_b32 v{ROW}, 4, v{LN}\nv_and_b32 v{ROW+1}, 15, v{LN}\nv_lshl_add_u32 v{ROW}, v{ROW}, 6, v{ROW+1}\nv_add_u32 v{ROW}, s{S_T}, v{ROW}")
        e(f"v_mul_u32_u24 v{ROW+1}, 26, v{ROW}")
        for j in range(13): e(f"buffer_load_ushort v{XW+j}, v{ROW+1}, s[8:11], 0 offen offset:{2*j}")
        e("nowide:")
    for g, step in enumerate((XB + 5, XB + 6, XB + 7, XB + 8, 32, 36)):
        if i == step:
            for x in epi(g): e(x)
            if g == 3: vm.issue()
n = len(units)
e("s_waitcnt lgkmcnt(8)"); smf(7, n % 3)
e("s_waitcnt lgkmcnt(4)"); smf(7, (n + 1) % 3)
for x in epi(6): e(x)
e("s_waitcnt lgkmcnt(0)"); smf(7, (n + 2) % 3)
e(f"v_lshlrev_b32 v{PV+1}, 4, v{LN}")
e(f"s_lshl_b32 s70, s{S_PID}, 14\ns_lshl_b32 s{S_T}, s{S_WAVE}, 11\ns_add_u32 s70, s70, s{S_T}\ns_add_u32 s70, s70, {PART:#x}")
e(f"s_lshl_b32 s{S_T}, s{S_WAVE}, 8\ns_add_u32 s{S_T}, s{S_T}, {128000}\nv_lshl_add_u32 v{PV+3}, v{LN}, 2, s{S_T}")
e("s_nop 0")
for x in epi(7): e(x)
if PRIOQ >= 0: e("s_setprio 0")
stamp(9)
e(f"s_cmp_lg_u32 s{S_WAVE}, 0\ns_cbranch_scc1 nowide2")
e("s_waitcnt vmcnt(2)")
e(f"s_lshl_b32 s68, s68, 16\ns_lshl_b32 s69, s69, 16\nv_mov_b32 v{XW+13}, s68\nv_add_f32 v{XW+13}, s69, v{XW+13}")
for j in range(13):
    sw = 60 + j // 2
    if j % 2 == 0: e(f"s_lshl_b32 s{S_T}, s{sw}, 16")
    else: e(f"s_and_b32 s{S_T}, s{sw}, 0xffff0000")
    e(f"v_lshlrev_b32 v{XW+j}, 16, v{XW+j}")
    e(f"v_fma_f32 v{XW+13}, v{XW+j}, s{S_T}, v{XW+13}")
e("nowide2:")
e(f"s_mov_b32 s{S_CNT}, 0\ns_waitcnt vmcnt(0)")
if A("EB", 1): e("s_barrier")
stamp(10)
e("poll2:")
e(f"buffer_load_dwordx4 v[{D1}:{D1+3}], v{PV+1}, s[4:7], s70 offen sc1")
e(f"buffer_load_dwordx4 v[{D1+4}:{D1+7}], v{PV+1}, s[4:7], s70 offen offset:1024 sc1")
e(f"s_add_u32 s{S_CNT}, s{S_CNT}, 1\ns_cmp_gt_u32 s{S_CNT}, 0x40000\ns_cbranch_scc1 poll2_done")
e("s_waitcnt vmcnt(0)")
for i in range(8): e(f"v_xor_b32 v{D1+8+i}, v{PV+2}, v{D1+i}")
e(f"v_or3_b32 v{D1+8}, v{D1+8}, v{D1+9}, v{D1+10}\nv_or3_b32 v{D1+11}, v{D1+11}, v{D1+12}, v{D1+13}\nv_or3_b32 v{D1+8}, v{D1+8}, v{D1+14}, v{D1+15}")
e(f"v_or_b32 v{D1+8}, v{D1+8}, v{D1+11}\nv_and_b32 v{D1+8}, 15, v{D1+8}\nv_cmp_ne_u32 vcc, 0, v{D1+8}\ns_cbranch_vccnz poll2")
e("poll2_done:\ns_waitcnt vmcnt(0)")
stamp(11)
for c in range(4): e(f"v_add_f32 v{D1+c}, v{D1+c}, v{D1+4+c}")
e(f"s_nop 1\nv_permlane32_swap_b32 v{D1}, v{D1+2}\nv_permlane32_swap_b32 v{D1+1}, v{D1+3}")
e(f"v_add_f32 v{D1}, v{D1}, v{D1+2}\nv_add_f32 v{D1+1}, v{D1+1}, v{D1+3}\ns_nop 1")
e(f"v_permlane16_swap_b32 v{D1}, v{D1+1}\nv_add_f32 v{D1}, v{D1}, v{D1+1}")
e(f"ds_write_b32 v{PV+3}, v{D1}\ns_waitcnt lgkmcnt(0)\ns_barrier")
e(f"s_cmp_lg_u32 s{S_WAVE}, 0\ns_cbranch_scc1 fin")
for i in range(1, 8): e(f"ds_read_b32 v{D1+i}, v{PV+3} offset:{256*i}")
e(f"v_add_f32 v{D1}, v{D1}, v{XW+13}\nv_lshlrev_b32 v{ROW}, 1, v{ROW}")
e("s_waitcnt lgkmcnt(0)")
e(f"v_add_f32 v{D1+1}, v{D1+1}, v{D1+2}\nv_add_f32 v{D1+3}, v{D1+3}, v{D1+4}\nv_add_f32 v{D1+5}, v{D1+5}, v{D1+6}\nv_add_f32 v{D1}, v{D1}, v{D1+7}")
e(f"v_add_f32 v{D1+1}, v{D1+1}, v{D1+3}\nv_add_f32 v{D1}, v{D1}, v{D1+5}\nv_add_f32 v{D1}, v{D1}, v{D1+1}")
e(f"v_mul_f32 v{D1}, 0xbfb8aa3b, v{D1}\nv_exp_f32 v{D1}, v{D1}\ns_nop 0\nv_add_f32 v{D1}, 1.0, v{D1}\nv_rcp_f32 v{D1}, v{D1}\ns_nop 0")
e(f"v_cvt_pk_bf16_f32 v{D1}, v{D1}, v{D1}")
e(f"buffer_store_short v{D1}, v{ROW}, s[12:15], 0 offen")
e("s_cmp_lg_u32 s2, 0\ns_cbranch_scc1 fin")
e(f"v_mov_b32 v{D1+1}, s{S_N}\nv_mov_b32 v{D1+2}, {EPOCH}\ns_mov_b64 exec, 1")
e(f"buffer_store_dword v{D1+1}, v{D1+2}, s[4:7], 0 offen\ns_mov_b64 exec, -1")
e("@ENDREGION\nfin:")
if FIX and A("MINS", 0):
    e("s_load_dwordx2 s[32:33], s[0:1], 80\ns_waitcnt lgkmcnt(0)")
    srd(16, 32, 256)
    e("s_not_b32 s98, s100\nv_mov_b32 v8, 0\nv_mov_b32 v9, s98\ns_mov_b64 exec, 1\nbuffer_atomic_umax v9, v8, s[16:19], 0 offen\ns_waitcnt vmcnt(0)")
    e(f"fixm:\ns_memrealtime s[98:99]\ns_waitcnt lgkmcnt(0)\ns_sub_u32 s98, s98, s100\ns_cmp_lt_u32 s98, {FIX - 1500}\ns_cbranch_scc1 fixm")
    e("buffer_load_dword v9, v8, s[16:19], 0 offen sc1\ns_waitcnt vmcnt(0)\nv_readfirstlane_b32 s100, v9\ns_nop 3\ns_not_b32 s100, s100\ns_mov_b64 exec, -1")
if FIX and A("PW", 255) != 255:
    e(f"s_mov_b32 s98, {A('PW', 255)}\ns_bitcmp0_b32 s98, s{S_WAVE}\ns_cbranch_scc1 done")
if FIX:
    e(f"fixl:\ns_memrealtime s[98:99]\ns_waitcnt lgkmcnt(0)\ns_sub_u32 s98, s98, s{96 if PROBE else 100}")
    e(f"s_cmp_lt_u32 s98, {FIX}\ns_cbranch_scc1 fixl")
if STAMP:
    stamp(12)
    e("s_memrealtime s[98:99]\ns_waitcnt lgkmcnt(0)")
    e(f"s_lshl_b32 s70, s2, 3\ns_add_u32 s70, s70, s{S_WAVE}\ns_lshl_b32 s70, s70, 7\ns_add_u32 s70, s70, {STMP:#x}")
    e("v_mov_b32 v8, 0")
    for i in range(1, 13):
        e(f"s_sub_u32 s{SB+2*i}, s{SB+2*i}, s{SB}\nv_mov_b32 v9, s{SB+2*i}")
        e(f"buffer_store_dword v9, v8, s[4:7], s70 offen offset:{4*(i-1)}")
    for i, r in enumerate((44, 45, 46, 100, 98, 38, 39)):
        e(f"v_mov_b32 v9, s{r}\nbuffer_store_dword v9, v8, s[4:7], s70 offen offset:{48+4*i}")
e("done:\ns_endpgm")

e(f""".section .rodata,"a"
.p2align 6
.amdhsa_kernel {KN}
  .amdhsa_next_free_vgpr 256
  .amdhsa_next_free_sgpr 102
  .amdhsa_accum_offset 256
  .amdhsa_group_segment_fixed_size 0
  .amdhsa_kernarg_size 96
  .amdhsa_user_sgpr_count 2
  .amdhsa_user_sgpr_kernarg_segment_ptr 1
  .amdhsa_system_sgpr_workgroup_id_x 1
.end_amdhsa_kernel""")

bysite = {str(k): v for k, v in waits.items()}
res = []
for l in out:
    if l.startswith("@VM "):
        n = bysite[l[4:]]
        assert 0 <= n <= 63
        l = f"s_waitcnt vmcnt({n})"
    res.append(l)
import re, subprocess, tempfile, os
def is_instr(l): return bool(re.match(r"^(s_|v_|ds_|buffer_|global_)\w*( |$)", l)) and not l.endswith(":")
tmp = [re.sub(r"@SEG_\w+", "done", l) for l in res if not l.startswith("@")]
with tempfile.TemporaryDirectory() as d:
    open(d + "/t.s", "w").write("\n".join(tmp) + "\n")
    subprocess.run(["clang", "-x", "assembler", "-target", "amdgcn-amd-amdhsa", "-mcpu=gfx950", "-c", d + "/t.s", "-o", d + "/t.o"], check=True)
    dis = subprocess.run(["llvm-objdump", "-d", "--mcpu=gfx950", d + "/t.o"], capture_output=True, text=True).stdout
sizes = [4 * len(m.group(1).split()) for m in re.finditer(r"// [0-9A-F]{12}: ([0-9A-F ]+)", dis)]
assert len(sizes) == sum(map(is_instr, tmp)), (len(sizes), sum(map(is_instr, tmp)))
fin = []; addr = 0; k = 0; region = None; pads = {}; last = -1
for l in res:
    if l.startswith("@REGION"):
        _, tag, nseg = l.split(); region = tag; pads[tag] = [int(nseg), 0]; last = -1; continue
    if l.startswith("@ENDREGION"): region = None; continue
    if l.startswith("@ALIGN"):
        while addr % int(l.split()[1]): fin.append("s_nop 0"); addr += 4
        continue
    if is_instr(l):
        if region and WARM and addr // LINE != last:
            last = addr // LINE
            n = pads[region][1]; pads[region][1] += 1
            fin.append(f"pad_{region}_{n}:"); fin.append(f"@PAD {region} {n}"); addr += 4
        addr += sizes[k]; k += 1
    fin.append(l)
def seg_start(tag, j):
    nseg, n = pads[tag]; return (n * j) // nseg
o2 = []
for l in fin:
    if l.startswith("@PAD"):
        _, tag, n = l.split(); n = int(n)
        starts = [seg_start(tag, j) for j in range(pads[tag][0] + 1)]
        l = f"s_cbranch_execz " + (f"warm_ret_{tag}" if n + 1 in starts else f"pad_{tag}_{n+1}")
    m = re.search(r"@SEG_(\w)_(\d+)", l)
    if m: l = l.replace(m.group(0), f"pad_{m.group(1)}_{seg_start(m.group(1), int(m.group(2)))}")
    o2.append(l)
sys.stderr.write(f"pads {pads} size {addr}\n")
print("\n".join(o2))
```

```python
import sys
args = dict(a.split("=") for a in sys.argv[1:])
def A(k, d): return type(d)(args.get(k, d))
STAMP = A("STAMP", 0); PROBE = A("PROBE", 0); FIX = A("FIX", 0)
PRIOQ = A("PRIOQ", -1); W1W = A("W1W", 0); CPF = A("CPF", 1); POLLT = A("POLLT", 2); PRE = A("PRE", 2); BAR0 = A("BAR0", 1); MAP = A("MAP", 1); CPL = A("CPL", 6); KPRE = A("KPRE", 8); DEFT = A("DEFT", -1); PREO = A("PREO", 1); HPQ = A("HPQ", 8); R1 = A("R1", 12); R2 = A("R2", 28); XT = A("XT", 1); PFW = A("PFW", 0); PI = A("PI", 0); XMAP = A("XMAP", 1); B2 = A("B2", 1); KT = A("KT", 2); KA = A("KA", 2); OD = A("OD", 16); WARM = A("WARM", 0); LINE = A("LINE", 128); WB = A("WB", "L")
MQ = [int(c) for c in A("MQ", "11223456")]

KN = "standalone__deep_cross_wide_deep__recsys_kernel"
EPOCH = 0x0
FLG = 0x1000
IDXP = 0x10000
ISTR = 6 * 16384 + 4096
W1P = 0x340000
WSTR = 42 * 1024
PART = 0x600000
STMP = 0xE00000
WS_SZ = 0x1000000
L_STG = 131072; L_XCH = 155648; L_XT = 131072; L_RED = 0

out = []
emit = True
def e(s):
    if emit:
        for l in s.split("\n"): out.append(l)
class Cnt:
    def __init__(self): self.n = 0; self.tag = {}
    def issue(self, tag=None):
        self.n += 1
        if tag is not None: self.tag[tag] = self.n
    def younger(self, tag): return self.n - self.tag[tag]
vm = Cnt()
waits = {}
def wait_vm(site, tag):
    n = vm.younger(tag)
    waits[site] = min(waits.get(site, 99), n)
    e(f"@VM {site}")
def srd(d, lo, nbytes):
    e(f"s_mov_b32 s{d}, s{lo}\ns_mov_b32 s{d+1}, s{lo+1}\ns_mov_b32 s{d+2}, {nbytes:#x}\ns_mov_b32 s{d+3}, 0x20000")
SB = 72
FINE = A("FINE", 0)
def gstamp(i):
    if STAMP and FINE == 2: e(f"s_memtime s[{SB+2*i}:{SB+1+2*i}]")
def fstamp(i):
    if STAMP and FINE == 1: e(f"s_memtime s[{SB+2*i}:{SB+1+2*i}]")
def stamp(i):
    if FINE == 1 and 9 <= i <= 12: return
    if FINE == 2 and 1 <= i <= 6: return
    if PROBE == i: e("s_memrealtime s[96:97]")
    if STAMP: e(f"s_memtime s[{SB+2*i}:{SB+1+2*i}]")

e(f"""; Wide & Deep recsys forward, gfx950: per-field projected tables P[f][v] = table[v] @ W1_f built on MFMA into LDS,
; @launch grid=(256,1,1) block=(512,1,1) lds=163840
.amdgcn_target "amdgcn-amd-amdhsa--gfx950"
.text
.globl {KN}
.p2align 8
.type {KN},@function
{KN}:""")

VOFF = 0; SIDX = 1; T0 = 2; T1 = 3; AC = 4
DAT = 8; TAB = 32; ACC = 96; POOL = 128; D0 = 192; D1 = 208; W1 = 224
S_WAVE = 3; S_IDX = 20; S_IDX2 = 21; S_W1 = 22; S_M0A = 23; S_M0B = 24; S_CNT = 25; S_BS = 26; S_CS = 27; S_PID = 28; S_N = 29
S_T = 30; S_U = 31
LANE = 8; L16 = 9
XA = POOL; XF = POOL + 16; XC = POOL + 48; XD = POOL + 16
PLO = "0x05040100"; PHI = "0x07060302"

HOLD = POOL + 32
FLGB = FLG + 0x8000
S_FB = 55; S_HP = 54
L_CTR = 128000; L_XC2 = L_STG
DELTA = 28800
def piece_lane():
    e(f"v_bfe_u32 v10, v{LANE}, 2, 3\nv_and_b32 v11, 1, v{LANE}\nv_bfe_u32 v12, v{LANE}, 1, 1\nv_lshrrev_b32 v13, 5, v{LANE}\nv_lshl_or_b32 v12, v13, 1, v12")
    e("v_lshlrev_b32 v13, 4, v10\nv_lshl_or_b32 v13, v11, 15, v13\nv_lshl_or_b32 v13, v12, 12, v13")
def piece_src(fp0):
    e(f"s_lshr_b32 s{S_T}, s{S_CS}, 1\ns_lshl_b32 s{S_T}, s{S_T}, 16\ns_and_b32 s{S_U}, s{S_CS}, 1\ns_lshl_b32 s{S_U}, s{S_U}, 14\ns_add_u32 s{S_T}, s{S_T}, s{S_U}")
    e(f"s_lshl_b32 s{S_U}, s{S_BS}, 7\ns_add_u32 s{S_T}, s{S_T}, s{S_U}\ns_add_u32 s{S_T}, s{S_T}, {fp0*65536:#x}")
def piece_ld(b):
    for j in range(8): e(f"buffer_load_dwordx4 v[{b+4*j}:{b+4*j+3}], v13, s[16:19], s{S_T} offen offset:{j*512}")
def piece_dst(fp0):
    e(f"s_mov_b32 s70, {2*WSTR}\nv_mul_lo_u32 v18, v10, s70\nv_lshl_add_u32 v18, v11, 4, v18")
    e("v_and_b32 v10, 1, v12\nv_lshl_add_u32 v18, v10, 5, v18\nv_lshrrev_b32 v10, 1, v12\nv_lshl_add_u32 v18, v10, 7, v18")
    e(f"s_mul_i32 s70, s{S_BS}, {16*WSTR}\ns_lshr_b32 s71, s{S_CS}, 1\ns_lshl_b32 s71, s71, 10\ns_add_u32 s70, s70, s71")
    e(f"s_and_b32 s71, s{S_CS}, 1\ns_lshl_b32 s71, s71, 8\ns_add_u32 s70, s70, s71\ns_add_u32 s70, s70, {W1P + (fp0-8)*1024:#x}\ns_add_u32 s71, s70, {WSTR}")
def piece_st(cc, b):
    cp = (cc % 4) // 2; par = cc % 2; r = b + 4 * cc
    e(f"buffer_store_dwordx4 v[{r}:{r+3}], v18, s[4:7], s{70 + cc//4} offen offset:{par*512+cp*64} sc1")
def piece_perm(src, dst, store):
    e(f"s_mov_b32 s{S_T}, {PLO}\ns_mov_b32 s{S_U}, {PHI}")
    for t in range(4):
        for jj in range(4):
            r0 = src + 4 * (2 * jj) + t; r1 = r0 + 4
            e(f"v_perm_b32 v{dst+4*(2*t)+jj}, v{r1}, v{r0}, s{S_T}")
            e(f"v_perm_b32 v{dst+4*(2*t+1)+jj}, v{r1}, v{r0}, s{S_U}")
        if store:
            piece_st(2 * t, dst); piece_st(2 * t + 1, dst)
def tab_dma(vt, count=True):
    e(f"s_add_u32 s{S_T}, s{S_M0A}, {vt*32768}\ns_mov_b32 m0, s{S_T}\ns_nop 0")
    for i in range(4):
        e(f"buffer_load_dwordx4 v{14 + i%2}, s[12:15], s{S_T} offen offset:{i*1024} lds")
        if count: vm.issue(("t", vt))
def xconsts(rowshift):
    e(f"v_lshl_add_u32 v17, v{LANE}, {rowshift}, s{S_T}")
    for t in range(16):
        e(f"v_add_u32 v16, {t}, v{LANE}\nv_and_b32 v{XF+t}, 15, v16\nv_lshl_add_u32 v{XA+t}, v{XF+t}, 2, v17")
    for u in range(8): e(f"v_lshl_or_b32 v{XC+u}, v{XF+2*u+1}, 16, v{XF+2*u}")
def idx_dst():
    e(f"s_lshr_b32 s70, s{S_PID}, 3\ns_mul_i32 s70, s70, {ISTR}\ns_add_u32 s70, s70, {IDXP:#x}")
    e(f"s_bfe_u32 s{S_T}, s{S_PID}, 0x10002\ns_lshl_b32 s{S_T}, s{S_T}, 13\ns_add_u32 s70, s70, s{S_T}")
    e(f"s_and_b32 s{S_T}, s{S_PID}, 3\ns_lshl_b32 s{S_T}, s{S_T}, 8\ns_add_u32 s70, s70, s{S_T}")
    e(f"s_lshl_b32 s{S_T}, s{S_CNT}, 14\ns_add_u32 s70, s70, s{S_T}\ns_add_u32 s71, s70, 16384")
def xform(off, dst, store):
    for t in range(16): e(f"ds_read_b32 v{XD+t}, v{XA+t} offset:{off}")
    for u in range(8):
        e(f"s_waitcnt lgkmcnt({14-2*u})")
        e(f"v_lshl_add_u32 v{XD+2*u}, v{XD+2*u+1}, 16, v{XD+2*u}")
        e(f"v_lshl_add_u32 v{dst+u}, v{XD+2*u}, 4, v{XC+u}")
        if store and u % 4 == 3: e(f"buffer_store_dwordx4 v[{dst+u-3}:{dst+u}], v{VOFF}, s[4:7], s70 offen offset:{(u//4)*128} sc1")
def role_old(tag, f12, f3, f0):
    e(f"s_cmp_eq_u32 s{S_WAVE}, 0\ns_cbranch_scc1 {tag}_w0\ns_cmp_eq_u32 s{S_WAVE}, 3\ns_cbranch_scc1 {tag}_w3")
    f12(); e(f"s_branch {tag}_join\n{tag}_w3:"); f3(); e(f"s_branch {tag}_join\n{tag}_w0:"); f0(); e(f"{tag}_join:")
def ld12():
    e(f"v_lshrrev_b32 v17, 3, v{LANE}\nv_mul_u32_u24 v17, 400, v17\nv_and_b32 v11, 7, v{LANE}\nv_lshl_add_u32 v17, v11, 4, v17")
    e(f"s_mul_i32 s{S_U}, s{S_PID}, 25600\ns_lshl_b32 s{S_T}, s{S_WAVE}, 7\ns_add_u32 s{S_T}, s{S_T}, s{S_U}")
    e(f"s_lshl_b32 s{S_U}, s{S_WAVE}, 13\ns_add_u32 m0, s{S_U}, {L_STG}\ns_barrier")
    for i in range(8):
        e(f"buffer_load_dwordx4 v17, s[8:11], s{S_T} offen lds")
        if i < 7: e(f"s_add_u32 s{S_T}, s{S_T}, 3200\ns_add_u32 m0, m0, 1024\ns_nop 0")
    e(f"s_lshl_b32 s{S_T}, s{S_WAVE}, 13\ns_add_u32 s{S_T}, s{S_T}, {L_STG}")
    xconsts(7)
    e(f"s_lshl_b32 s{S_CNT}, s{S_WAVE}, 1")
    idx_dst()
def ld3():
    e(f"v_mul_u32_u24 v17, 400, v{LANE}\ns_mul_i32 s{S_U}, s{S_PID}, 25600\nv_mov_b32 v10, {L_CTR}\nds_write_b32 v10, v18\ns_waitcnt lgkmcnt(0)\ns_barrier")
    e(f"buffer_load_dwordx4 v[28:31], v17, s[8:11], s{S_U} offen offset:384")
    e(f"s_lshr_b32 s70, s{S_PID}, 3\ns_mul_i32 s70, s70, {ISTR}\ns_add_u32 s70, s70, {IDXP + 6*16384:#x}")
    e(f"s_and_b32 s{S_T}, s{S_PID}, 7\ns_lshl_b32 s{S_T}, s{S_T}, 9\ns_add_u32 s70, s70, s{S_T}")
    e(f"v_lshlrev_b32 v18, 3, v{LANE}")
def ld0():
    piece_lane(); piece_src(24); e("s_barrier"); piece_ld(POOL); piece_dst(24)
def xf12(): xform(0, HOLD, False); xform(64, HOLD + 8, False)
def xf3():
    e(f"s_mov_b32 s{S_T}, 0x40014000\ns_mov_b32 s{S_U}, 0x40034002")
    e("v_lshl_add_u32 v28, v29, 16, v28\nv_lshl_add_u32 v30, v31, 16, v30")
    e(f"v_lshl_add_u32 v28, v28, 2, s{S_T}\nv_lshl_add_u32 v30, v30, 2, s{S_U}")
    e(f"v_and_b32 v29, 1, v{LANE}\nv_lshlrev_b32 v29, 4, v29\nv_and_b32 v31, 2, v{LANE}\nv_cmp_ne_u32 vcc, 0, v31")
    e("v_alignbit_b32 v28, v28, v28, v29\nv_alignbit_b32 v30, v30, v30, v29")
    e(f"v_cndmask_b32 v{HOLD}, v28, v30, vcc\nv_cndmask_b32 v{HOLD+1}, v30, v28, vcc")
def xf0(): piece_perm(POOL, HOLD, False)
def raw(lo, hi):
    for n in range(lo, hi):
        s_, j = n // 8, n % 8
        e(f"buffer_load_dword v{POOL+n}, v18, s[16:19], s71 offen offset:{j*512}")
        if j == 7 and s_ < 3: e("s_add_u32 s71, s71, 8192")
def voff_ws():
    srd(4, 54, WS_SZ)
    srd(12, 34, 128000)
    e(f"v_and_b32 v16, 28, v{LANE}\nv_lshlrev_b32 v{VOFF}, 8, v16\nv_and_b32 v16, 1, v{LANE}\nv_lshl_or_b32 v{VOFF}, v16, 6, v{VOFF}")
    e(f"v_and_b32 v16, 32, v{LANE}\nv_or_b32 v{VOFF}, v{VOFF}, v16\nv_and_b32 v16, 2, v{LANE}\nv_lshl_or_b32 v{VOFF}, v16, 3, v{VOFF}")
def sloads():
    e(f"s_load_dword s{S_N}, s[54:55], {EPOCH}")
    e(f"s_lshl_b32 s{S_T}, s{S_CS}, 3")
    e(f"s_load_dwordx2 s[52:53], s[44:45], s{S_T}")
    e(f"s_load_dwordx2 s[58:59], s[46:47], s{S_T}")
    e("s_load_dwordx8 s[60:67], s[38:39], 0")
    e("s_load_dword s68, s[40:41], 0\ns_load_dword s69, s[48:49], 0")
def common():
    e(f"v_lshlrev_b32 v{L16}, 4, v{LANE}")
    e(f"v_lshrrev_b32 v16, 4, v{LANE}\nv_and_b32 v17, 7, v{LANE}\nv_xor_b32 v16, v16, v17\nv_lshlrev_b32 v16, 4, v16")
    e(f"v_lshrrev_b32 v17, 3, v{LANE}\nv_lshl_or_b32 v14, v17, 7, v16\nv_xor_b32 v15, 64, v14")
    e(f"v_bfe_u32 v19, v{LANE}, 2, 2\nv_bfe_u32 v20, v{LANE}, 4, 1\nv_lshlrev_b32 v20, 1, v20\nv_mov_b32 v21, 0x3f80")
    e("v_cmp_eq_u32 vcc, v19, v20\nv_add_u32 v20, 1, v20\ns_nop 0")
    e(f"v_cndmask_b32 v{AC}, 0, v21, vcc\nv_cndmask_b32 v{AC+1}, 0, v21, vcc")
    e(f"v_cmp_eq_u32 vcc, v19, v20\nv_and_b32 v19, 3, v{LANE}\ns_nop 0")
    e(f"v_cndmask_b32 v{AC+2}, 0, v21, vcc\nv_cndmask_b32 v{AC+3}, 0, v21, vcc")
    e(f"v_mul_u32_u24 v{SIDX}, 0x5555, v19")
    e(f"s_lshl_b32 s{S_T}, s{S_BS}, 3\ns_add_u32 s{S_T}, s{S_T}, s{S_WAVE}\ns_mul_i32 s{S_IDX}, s{S_T}, {ISTR}\ns_add_u32 s{S_IDX}, s{S_IDX}, {IDXP:#x}\ns_add_u32 s{S_IDX2}, s{S_IDX}, 8192")
    e(f"s_mul_i32 s{S_W1}, s{S_CS}, {WSTR}\ns_add_u32 s{S_W1}, s{S_W1}, {W1P:#x}")
    e(f"s_add_u32 s{S_M0B}, s{S_M0A}, {65536-DELTA}")
    e(f"s_lshr_b32 s{S_T}, s{S_CS}, 4\ns_lshl_b32 s{S_T}, s{S_T}, 6\ns_lshl_b32 s{S_U}, s{S_WAVE}, 3\nv_and_b32 v13, 7, v{LANE}\nv_add_u32 v10, s{S_U}, v13")
    e(f"s_bfe_u32 s{S_U}, s{S_WAVE}, 0x10001\nv_lshl_add_u32 v11, v13, 1, s{S_U}\nv_lshrrev_b32 v13, 3, v{LANE}\nv_cmp_eq_u32 vcc, 1, v13\ns_nop 1\nv_cndmask_b32 v10, v10, v11, vcc")
    e(f"s_lshl_b32 s{S_U}, s{S_BS}, 6\nv_mov_b32 v11, s{S_T}\nv_mov_b32 v16, s{S_U}\nv_cmp_eq_u32 vcc, 0, v13\ns_nop 1\nv_cndmask_b32 v11, v11, v16, vcc\nv_add_lshl_u32 v19, v10, v11, 7")
    e(f"v_and_b32 v10, 24, v{LANE}\nv_and_b32 v11, 3, v{LANE}\nv_lshl_add_u32 v10, v11, 1, v10\nv_bfe_u32 v12, v{LANE}, 2, 1\nv_add_u32 v10, v10, v12\nv_lshlrev_b32 v10, 7, v10")
    e(f"v_bfe_u32 v12, v{LANE}, 3, 1\nv_lshl_or_b32 v11, v12, 2, v11\nv_lshrrev_b32 v12, 5, v{LANE}\nv_xor_b32 v11, v11, v12\nv_lshl_or_b32 v10, v11, 4, v10")
    e(f"v_add_u32 v20, s{S_M0A}, v10\nv_add_u32 v12, {L_XCH}, v{L16}")
    for s_ in range(1, 4): e(f"v_xor_b32 v{20+s_}, {s_*32}, v20")
    e(f"v_add_u32 v16, {L_XC2}, v{L16}\ns_lshl_b32 s{S_U}, s{S_WAVE}, 10\nv_add_u32 v17, s{S_U}, v16")
def common_b():
    e(f"s_not_b32 s{S_N}, s{S_N}")
    e("s_lshl_b32 s56, s58, 16\ns_and_b32 s57, s58, 0xffff0000\ns_lshl_b32 s58, s59, 16\ns_and_b32 s59, s59, 0xffff0000")
    e("s_lshl_b32 s0, s52, 16\ns_and_b32 s1, s52, 0xffff0000\ns_lshl_b32 s52, s53, 16\ns_and_b32 s53, s53, 0xffff0000")
    e(f"s_cmp_eq_u32 s{S_WAVE}, 0\ns_cselect_b32 s{S_FB}, 1, 0\ns_cmp_lt_u32 s{S_WAVE}, 4\ns_cselect_b32 s{S_HP}, 1, 0")
def tab_rd(vt):
    wait_vm(("td", vt), ("t", vt))
    if vt == 2:
        for s in range(4): e(f"v_add_u32 v{20+s}, 0x10000, v{20+s}")
    for s in range(4):
        r = TAB + 16 * vt + 4 * s
        e(f"ds_read_b128 v[{r}:{r+3}], v{20+s} offset:{(vt%2)*32768}")
def ldw(i):
    e(f"buffer_load_dwordx4 v[{W1+4*i}:{W1+4*i+3}], v{VOFF}, s[4:7], s{S_W1} offen offset:{i*128} sc1")
    vm.issue(("w", i))
def ldi(reg, k, tag):
    e(f"buffer_load_dwordx4 v[{reg}:{reg+3}], v{VOFF}, s[4:7], s{S_IDX if k < 8 else S_IDX2} offen offset:{(k%8)*128} sc1")
    vm.issue(tag)
def mf(vt, i, base=D0):
    s, par = i // 2, i % 2
    d = base + 16 * par
    c = "0" if s == 0 else f"v[{d}:{d+15}]"
    e(f"v_mfma_f32_32x32x16_bf16 v[{d}:{d+15}], v[{TAB+16*vt+4*s}:{TAB+16*vt+4*s+3}], v[{W1+16*par+4*s}:{W1+16*par+4*s+3}], {c}")
def frag_of(i): return (i % 2) * 4 + i // 2
def cvt(dst, r, base=D0): e(f"v_cvt_pk_bf16_f32 v{dst}, v{base+r}, v{base+16+r}")
def wr(src, vt, r):
    off = (vt % 2) * 32768 + r * 256 + (DELTA if vt >= 2 else 0)
    e(f"ds_write_addtid_b32 v{src} offset:{off}")
SD = "dst_sel:DWORD dst_unused:UNUSED_PAD src0_sel:DWORD"
def unpack(w0):
    e(f"v_lshlrev_b32_sdwa v{T0}, 3, v{w0} {SD} src1_sel:WORD_1")
    e(f"v_lshlrev_b32_sdwa v{w0}, 3, v{w0} {SD} src1_sel:WORD_0")
    e(f"v_lshlrev_b32_sdwa v{T1}, 3, v{w0+1} {SD} src1_sel:WORD_1")
    e(f"v_lshlrev_b32_sdwa v{w0+1}, 3, v{w0+1} {SD} src1_sel:WORD_0")
def reads(w0, slot):
    d = DAT + 8 * slot
    for i, a in enumerate((w0, T0, w0 + 1, T1)):
        e(f"ds_read_b64 v[{d+2*i}:{d+2*i+1}], v{a}")
def smf(g, slot):
    d = DAT + 8 * slot; a = ACC + 4 * g
    e(f"v_smfmac_f32_16x16x64_bf16 v[{a}:{a+3}], v[{AC}:{AC+3}], v[{d}:{d+7}], v{SIDX}")
def cpf_code(dst):
    e(f"s_getpc_b64 s[70:71]\ncpf_base:\ns_lshr_b32 s{S_U}, s2, 3\ns_mul_i32 s{S_U}, s{S_U}, {CPL*128}\nv_min_u32 v2, {CPL-1}, v{LANE}\nv_lshl_add_u32 v2, v2, 7, s{S_U}\nv_min_u32 v2, done-cpf_base, v2\nv_mov_b32 v3, s71")
    e("v_add_co_u32 v2, vcc, s70, v2\ns_nop 1\nv_addc_co_u32 v3, vcc, 0, v3, vcc")
    e(f"global_load_dword v{dst}, v[2:3], off")
def poll_issue():
    if CPF == 2:
        e(f"s_cmp_lg_u32 s{S_WAVE}, 7\ns_cbranch_scc1 1f")
        cpf_code(11)
        e("1:")
    stamp(5)
    e(f"s_mov_b32 s{S_T}, {FLG:#x}")
    e(f"buffer_load_dword v10, v19, s[4:7], s{S_T} offen sc1"); vm.issue("poll")
def poll_check():
    e(f"s_mov_b32 s{S_CNT}, 0\ns_mov_b32 s{S_T}, {FLG:#x}")
    wait_vm("pollw", "poll")
    e("poll1:")
    e(f"v_cmp_ne_u32 vcc, s{S_N}, v10\ns_cbranch_vccz poll1_done")
    e(f"s_sleep 8\nbuffer_load_dword v10, v19, s[4:7], s{S_T} offen sc1")
    e(f"s_add_u32 s{S_CNT}, s{S_CNT}, 1\ns_waitcnt vmcnt(0)\ns_cmp_lt_u32 s{S_CNT}, 0x40000\ns_cbranch_scc1 poll1")
    e("poll1_done:")
    stamp(6)
    e(f"s_lshl_b32 s{S_T}, s{S_WAVE}, 7\ns_add_u32 s{S_T}, s{S_T}, s{S_W1}")
    e(f"buffer_load_dwordx4 v[24:27], v{VOFF}, s[4:7], s{S_T} offen sc1"); vm.issue("w1x")
    for i in range(8): vm.tag[("w", i)] = vm.n
    for k in range(KA): ldi(POOL + 4 * k, k, ("i", k))

e("s_cmp_ge_u32 s2, 256\ns_cbranch_scc1 done")
e("s_load_dwordx16 s[32:47], s[0:1], 0")
e("s_load_dwordx8 s[48:55], s[0:1], 64")
if STAMP: e(f"s_memtime s[{SB}:{SB+1}]")
if STAMP or FIX: e("s_memrealtime s[100:101]")
e(f"v_lshrrev_b32 v1, 6, v0\nv_and_b32 v{LANE}, 63, v0")
e(f"v_readfirstlane_b32 s{S_WAVE}, v1")
if XMAP:
    e(f"s_bfe_u32 s{S_BS}, s2, 0x20002\ns_and_b32 s{S_CS}, s2, 3\ns_lshl_b32 s{S_CS}, s{S_CS}, 4\ns_lshr_b32 s{S_T}, s2, 4\ns_add_u32 s{S_CS}, s{S_CS}, s{S_T}")
else:
    e(f"s_and_b32 s{S_BS}, s2, 3\ns_lshr_b32 s{S_CS}, s2, 2")
e(f"s_lshl_b32 s{S_PID}, s{S_BS}, 6\ns_add_u32 s{S_PID}, s{S_PID}, s{S_CS}")
e(f"s_lshl_b32 s{S_M0A}, s{S_WAVE}, 12\nv_mov_b32 v18, 0\nv_mov_b32 v14, 0\nv_mov_b32 v15, 0\nv_mov_b32 v19, 0\ns_mul_i32 s71, s{S_PID}, 25600")
e("s_mov_b32 s10, 0x640000\ns_mov_b32 s11, 0x20000\ns_mov_b32 s18, 0x320000\ns_mov_b32 s19, 0x20000")
e(f"s_cmp_lt_u32 s{S_WAVE}, 4\ns_cbranch_scc1 a_old")
e(f"s_cmp_eq_u32 s{S_WAVE}, 7\ns_cbranch_scc1 a_w7\ns_cmp_eq_u32 s{S_WAVE}, 6\ns_cbranch_scc1 a_pc")
e(f"s_setprio 3\ns_sub_u32 s{S_CNT}, s{S_WAVE}, 4")
e(f"v_lshrrev_b32 v10, 2, v{LANE}\nv_mul_u32_u24 v10, 400, v10\nv_and_b32 v11, 3, v{LANE}\nv_lshl_add_u32 v10, v11, 4, v10")
e(f"s_lshl_b32 s{S_T}, s{S_CNT}, 6\ns_add_u32 s{S_T}, s{S_T}, s71")
e(f"s_lshl_b32 s{S_U}, s{S_CNT}, 12\ns_add_u32 s{S_U}, s{S_U}, {L_STG}\ns_mov_b32 m0, s{S_U}\nv_lshl_add_u32 v17, v{LANE}, 6, s{S_U}")
e("s_waitcnt lgkmcnt(0)\ns_mov_b32 s8, s32\ns_mov_b32 s9, s33")
for i in range(4):
    e(f"buffer_load_dwordx4 v10, s[8:11], s{S_T} offen lds")
    if i < 3: e(f"s_add_u32 m0, m0, 1024\ns_add_u32 s{S_T}, s{S_T}, 6400")
e("s_barrier\ns_branch b_x")
e("a_pc:\ns_setprio 3")
piece_lane(); piece_src(8)
e(f"s_mov_b32 s18, {24*65536:#x}\ns_waitcnt lgkmcnt(0)\ns_mov_b32 s16, s42\ns_mov_b32 s17, s43")
piece_ld(POOL)
e("s_barrier\ns_branch b_pc")
e("a_old:")
e(f"v_mov_b32 v10, {L_CTR}\nds_write_b32 v10, v18")
if PFW:
    e(f"v_and_b32 v16, 31, v{LANE}\nv_lshlrev_b32 v16, 9, v16\ns_lshr_b32 s{S_U}, s2, 3\ns_lshl_b32 s{S_U}, s{S_U}, 14\ns_lshl_b32 s{S_T}, s{S_CS}, 3\ns_add_u32 s{S_U}, s{S_U}, s{S_T}")
e("s_waitcnt lgkmcnt(0)")
if PFW == 2: e("s_barrier")
if PFW:
    e(f"s_mov_b32 s16, s42\ns_mov_b32 s17, s43\ns_cmp_lg_u32 s{S_WAVE}, 3\ns_cbranch_scc1 1f\nbuffer_load_dword v{D0}, v16, s[16:19], s{S_U} offen\n1:")
if PFW != 2: e("s_barrier")
e("s_branch c_all")
e("a_w7:")
if CPF == 1: cpf_code(D0)
e("s_setprio 2\ns_barrier")
e(f"v_bfe_u32 v16, v{LANE}, 1, 4\nv_lshlrev_b32 v18, 15, v16\nv_lshrrev_b32 v16, 5, v{LANE}\nv_lshl_or_b32 v18, v16, 12, v18\nv_and_b32 v16, 1, v{LANE}\nv_lshl_or_b32 v18, v16, 2, v18")
e(f"v_and_b32 v16, 31, v{LANE}\nv_lshlrev_b32 v16, 7, v16\ns_lshr_b32 s{S_U}, s2, 3\ns_lshl_b32 s{S_U}, s{S_U}, 12")
e(f"s_lshl_b32 s71, s{S_CS}, 3")
e("s_waitcnt lgkmcnt(0)\ns_mov_b32 s16, s42\ns_mov_b32 s17, s43")
srd(12, 34, 128000)
e(f"buffer_load_dword v{D0}, v16, s[12:15], s{S_U} offen")
raw(0, R1)
e("s_branch c_all")
e("b_x:")
voff_ws()
e(f"v_and_b32 v16, 15, v{LANE}\nv_lshl_add_u32 v{XA}, v16, 2, v17\nv_xor_b32 v17, 1, v16\nv_lshl_or_b32 v{XC}, v17, 16, v16")
for t in range(1, 16): e(f"v_xor_b32 v{XA+t}, {4*t}, v{XA}")
for u in range(1, 8): e(f"v_xor_b32 v{XC+u}, {2*u*0x10001:#x}, v{XC}")
idx_dst()
e("s_waitcnt vmcnt(0)")
stamp(1)
xform(0, HOLD, True)
e("s_barrier\ns_branch c_all2")
e("b_pc:")
voff_ws()
stamp(1)
e(f"s_cmp_ge_u32 s{S_CS}, 32\ns_cbranch_scc1 1f")
piece_dst(8)
e("s_waitcnt vmcnt(0)")
stamp(1)
piece_perm(POOL, HOLD, True)
e("1:\ns_barrier\ns_branch c_all2")
e("c_all:")
voff_ws()
e("c_all2:")
sloads(); common()
e(f"s_cmp_eq_u32 s{S_WAVE}, 7\ns_cbranch_scc1 d_w7\ns_cmp_lt_u32 s{S_WAVE}, 4\ns_cbranch_scc1 d_old")
e(f"v_mov_b32 v10, {L_CTR}\nv_mov_b32 v11, 1\ns_mov_b64 exec, 1\ns_waitcnt vmcnt(0)")
e("ds_add_rtn_u32 v13, v10, v11")
e(f"s_lshl_b32 s{S_T}, s{S_PID}, 7\ns_add_u32 s{S_T}, s{S_T}, {FLG:#x}\nv_mov_b32 v10, 0\ns_waitcnt lgkmcnt(0)")
e(f"v_readfirstlane_b32 s{S_U}, v13\nv_not_b32 v11, s{S_N}\ns_cmp_lg_u32 s{S_U}, 2\ns_cbranch_scc1 b_nosig")
e(f"buffer_store_dword v11, v10, s[4:7], s{S_T} offen sc1")
e("b_nosig:\ns_mov_b64 exec, -1\ns_branch e_join")
e("d_w7:")
stamp(1)
e("s_mov_b32 s16, s42\ns_mov_b32 s17, s43\ns_barrier")
raw(R1, 32)
for vt in range(PRE): tab_dma(vt, False)
e(f"s_mov_b32 s{S_T}, {PLO}\ns_mov_b32 s{S_U}, {PHI}")
for s in range(4):
    e(f"s_waitcnt vmcnt({24-8*s+4*PRE})")
    for jj in range(4):
        r0 = POOL + 8 * s + 2 * jj
        e(f"v_perm_b32 v{POOL+32+8*s+jj}, v{r0+1}, v{r0}, s{S_T}")
        e(f"v_perm_b32 v{POOL+36+8*s+jj}, v{r0+1}, v{r0}, s{S_U}")
    e(f"ds_write_b128 v12, v[{POOL+32+8*s}:{POOL+35+8*s}] offset:{s*1024}")
    e(f"ds_write_b128 v12, v[{POOL+36+8*s}:{POOL+39+8*s}] offset:{4096+s*1024}")
stamp(2)
e("s_branch b_all")
e("d_old:")
stamp(1)
e("s_barrier")
def warm(tag, nseg, w0):
    if not WARM: return
    e("s_mov_b64 exec, 0")
    for k in range(nseg - 1): e(f"s_cmp_eq_u32 s{S_WAVE}, {w0+k}\ns_cbranch_scc1 @SEG_{tag}_{k}")
    e(f"s_branch @SEG_{tag}_{nseg-1}")
    e(f"warm_ret_{tag}:\ns_mov_b64 exec, -1")
if OD: e(f"s_sleep {OD}")
e("e_join:")
stamp(2)
for vt in range(PRE): tab_dma(vt)
e("s_setprio 0")
warm("B", 7, 0)
e("b_all:")
e("s_setprio 0\ns_waitcnt lgkmcnt(0)\ns_barrier")
pass
stamp(3)
for i in range(8): e(f"ds_read_b128 v[{W1+4*i}:{W1+4*i+3}], v12 offset:{i*1024}")
if PI == -1: poll_issue()
common_b()
if PRE < 4: tab_dma(PRE)
tab_rd(0)
stamp(4)
def dl12():
    e(f"v_lshrrev_b32 v10, 3, v{LANE}\nv_mul_u32_u24 v10, 400, v10\nv_and_b32 v11, 7, v{LANE}\nv_lshl_add_u32 v10, v11, 4, v10")
    e(f"s_lshl_b32 s{S_T}, s{S_WAVE}, 7\ns_add_u32 s{S_T}, s{S_T}, s71")
    e(f"s_lshl_b32 s{S_U}, s{S_WAVE}, 13\ns_add_u32 s{S_U}, s{S_U}, {L_STG}\ns_mov_b32 m0, s{S_U}\nv_lshl_add_u32 v18, v{LANE}, 7, s{S_U}")
    for i in range(8):
        e(f"buffer_load_dwordx4 v10, s[8:11], s{S_T} offen lds")
        if i < 7: e(f"s_add_u32 m0, m0, 1024\ns_add_u32 s{S_T}, s{S_T}, 3200")
def dl3():
    e(f"v_mul_u32_u24 v10, 400, v{LANE}\nbuffer_load_dwordx4 v[28:31], v10, s[8:11], s71 offen offset:384")
def dl0():
    piece_lane(); piece_src(24); piece_ld(HOLD)
def dx12():
    e(f"s_lshl_b32 s{S_CNT}, s{S_WAVE}, 1")
    idx_dst()
    e(f"v_and_b32 v11, 15, v{LANE}\nv_lshl_add_u32 v10, v11, 2, v18\nv_xor_b32 v12, 1, v11\nv_lshl_or_b32 v{HOLD+16}, v12, 16, v11")
    for u in range(1, 8): e(f"v_xor_b32 v{HOLD+16+u}, {2*u*0x10001:#x}, v{HOLD+16}")
    for t in range(16): e(f"v_xor_b32 v{D0+t}, {4*t}, v10")
    e("s_waitcnt vmcnt(0)")
    for t in range(16): e(f"ds_read_b32 v{D1+t}, v{D0+t} offset:64")
    for t in range(16): e(f"ds_read_b32 v{D0+t}, v{D0+t}")
    for h, b in ((1, D1), (0, D0)):
        e(f"s_waitcnt lgkmcnt({15 if h else 0})")
        for u in range(8):
            e(f"v_lshl_add_u32 v{b+2*u}, v{b+2*u+1}, 16, v{b+2*u}")
            e(f"v_lshl_add_u32 v{HOLD+8*h+u}, v{b+2*u}, 4, v{HOLD+16+u}")
            if u % 4 == 3: e(f"buffer_store_dwordx4 v[{HOLD+8*h+u-3}:{HOLD+8*h+u}], v{VOFF}, s[4:7], s{70+h} offen offset:{(u//4)*128} sc1")
def dx3():
    e(f"s_lshr_b32 s70, s{S_PID}, 3\ns_mul_i32 s70, s70, {ISTR}\ns_add_u32 s70, s70, {IDXP + 6*16384:#x}")
    e(f"s_and_b32 s{S_T}, s{S_PID}, 7\ns_lshl_b32 s{S_T}, s{S_T}, 9\ns_add_u32 s70, s70, s{S_T}")
    e(f"v_and_b32 v18, 31, v{LANE}\nv_lshlrev_b32 v18, 4, v18\nv_lshrrev_b32 v10, 5, v{LANE}\nv_lshl_or_b32 v18, v10, 3, v18\ns_waitcnt vmcnt(0)")
    xf3()
    e(f"buffer_store_dwordx2 v[{HOLD}:{HOLD+1}], v18, s[4:7], s70 offen sc1")
def dx0():
    e(f"s_cmp_ge_u32 s{S_CS}, 52\ns_cbranch_scc1 g_join")
    piece_dst(24)
    e("s_waitcnt vmcnt(0)")
    piece_perm(HOLD, D0, True)
def role_wait(n):
    e(f"s_waitcnt vmcnt({n+8})\ns_cmp_lt_u32 s{S_WAVE}, 3\ns_cbranch_scc1 1f\ns_waitcnt vmcnt({n})\n1:")
DB = [ACC, D0, ACC, D0]
for vt in range(5):
    if vt >= 1: e(f"s_mov_b32 m0, s{S_M0A if vt <= 2 else S_M0B}")
    if vt < 4: e(f"s_waitcnt lgkmcnt({0 if vt < 2 else 10})")
    b = DB[vt - 1]
    for i in range(9):
        if vt < 4 and i < 8: mf(vt, i, base=DB[vt])
        if 0 < vt < 4 and i == 0: e("s_nop 9")
        if vt > 0:
            if i < 8:
                for r in (2 * i, 2 * i + 1): cvt(b + r, r, b)
            if i > 0:
                for r in (2 * i - 2, 2 * i - 1): wr(b + r, vt - 1, r)
                if vt == 3:
                    for r in (2 * i - 2, 2 * i - 1, 2 * i + 14, 2 * i + 15): e(f"v_mov_b32 v{ACC+r}, s{(0, 1, 52, 53)[r%4]}")
        if i == 3 and vt < 3: tab_rd(vt + 1)
    if PRE + 1 + vt < 4: tab_dma(PRE + 1 + vt)
    if vt == PI: poll_issue()
    if vt == PI + 1: poll_check()
    if vt == KT:
        assert KT >= PI + 1
        for k in range(KA, KPRE): ldi(POOL + 4 * k, k, ("i", k))
    if vt == 3:
        e(f"s_cmp_ge_u32 s{S_WAVE}, 4\ns_cbranch_scc1 d_join")
        e("s_mov_b32 s8, s32\ns_mov_b32 s9, s33\ns_mov_b32 s16, s42\ns_mov_b32 s17, s43")
        role_old("d", dl12, dl3, dl0)
    if vt == (3 if B2 else 4):
        fstamp(9)
        role_wait(vm.younger("w1x"))
        fstamp(10)
        e("ds_write_b128 v17, v[24:27]")
        if B2:
            e("s_waitcnt lgkmcnt(0)\ns_barrier")
            fstamp(11)
            for i in range(8): e(f"ds_read_b128 v[{W1+4*i}:{W1+4*i+3}], v16 offset:{i*1024}")
e(f"s_add_u32 s{S_W1}, s{S_W1}, 8192")
fstamp(12)
role_wait(vm.younger(("i", 1)))
unpack(POOL)
e(f"s_mov_b32 s{S_CNT}, 3")
e("s_waitcnt lgkmcnt(0)\ns_barrier")
if not B2:
    for i in range(8): e(f"ds_read_b128 v[{W1+4*i}:{W1+4*i+3}], v16 offset:{i*1024}")
for k in range(KPRE, 8): ldi(POOL + 4 * k, k, ("i", k))
assert KPRE == 8
e(f"s_cmp_ge_u32 s{S_WAVE}, 4\ns_cbranch_scc1 g_join")
role_old("g", dx12, dx3, dx0)
e(f"s_mov_b32 s{S_CNT}, 3")
e("@ENDREGION")
if not B2: e("s_waitcnt lgkmcnt(0)")
stamp(7)
if STAMP == 1: e(f"s_waitcnt lgkmcnt(0)\ns_mov_b32 s40, s{SB+14}\ns_mov_b32 s42, s{SB+14}\ns_mov_b32 s44, 0\ns_mov_b32 s45, 0\ns_mov_b32 s46, 0")

def blocks(par): return [POOL + (48 if par else 0), POOL + 16, POOL + 32, POOL + (0 if par else 48)]
def prio(q):
    if q == PRIOQ: e(f"s_cmp_ge_u32 s{S_WAVE}, 4\ns_cbranch_scc0 1f\ns_setprio 1\n1:")
def phase(par):
    blk = blocks(par)
    def w0(q): return blk[q // 8] + (q % 8) * 2
    for q in range(32):
        prio(q)
        if q >= 3:
            e("s_waitcnt lgkmcnt(8)")
            smf((q - 3) // 4, q % 3)
        reads(w0(q), q % 3)
        vt = q // 8
        for i in range(8):
            if MQ[i] == q % 8:
                if vt == 0 and i % 2 == 0: wait_vm((par, "w", i), ("w", frag_of(i + 1)))
                mf(vt, i)
                if vt == 3 and not W1W: ldw(frag_of(i))
        if q < 16 and q % 2 == 0:
            k = 8 + q // 2
            ldi(blk[k // 4] + 4 * (k % 4), k, ("i", k))
        if q == 20: e(f"s_add_u32 s{S_IDX}, s{S_IDX}, 16384\ns_add_u32 s{S_IDX2}, s{S_IDX2}, 16384")
        if q >= 25 and q % 2 == 1:
            k = (q - 25) // 2
            ldi(blk[3] + 4 * k, k, ("n", k))
        if q < 31:
            if (q + 1) % 4 == 0: wait_vm((par, "i", q), ("i", (q + 1) // 2 + 1))
            unpack(w0(q + 1))
        if q % 8 == 7 and vt < 3:
            for r in range(8): cvt(blk[vt] + r, r)
        if q % 8 == 0 and vt > 0:
            for r in range(8, 16): cvt(blk[vt - 1] + r, r)
        if q == HPQ and par == 1: e(f"s_cmp_eq_u32 s{S_HP}, 1\ns_cbranch_scc1 hook_p\nhook_p_ret:")
        if q == 24 and par == 1: e(f"s_cmp_eq_u32 s{S_CNT}, 2\ns_cbranch_scc1 hook_c\nhook_c_ret:")
    for k in range(4): vm.tag[("i", k)] = vm.tag[("n", k)]
    e("s_waitcnt lgkmcnt(8)"); smf(7, 29 % 3)
    e("s_waitcnt lgkmcnt(4)"); smf(7, 30 % 3)
    e(f"s_mov_b32 m0, s{S_M0A}")
    for r in range(16): cvt(D0 + r, r)
    if PRIOQ >= 0: e("s_setprio 0")
    if STAMP == 1: e("s_memtime s[48:49]")
    e("s_waitcnt lgkmcnt(0)")
    if STAMP == 1: e("s_sub_u32 s47, s48, s40\ns_add_u32 s46, s46, s47\ns_sub_u32 s47, s40, s42\ns_add_u32 s45, s45, s47")
    e("s_barrier")
    if STAMP == 1: e("s_memtime s[42:43]")
    smf(7, 31 % 3)
    if par == 0: e(f"s_cmp_eq_u32 s{S_FB}, 1\ns_cbranch_scc1 hook_f\nhook_f_ret:")
    n = 0
    for vt in (1, 0, 2, 3):
        if vt == 2: e(f"s_mov_b32 m0, s{S_M0B}\ns_nop 0")
        for r in range(16):
            wr(blk[vt] + r if vt < 3 else D0 + r, vt, r)
            if W1W and n % 4 == 0 and n < 32: ldw(frag_of(n // 4))
            if n >= 32 and n % 8 == 0:
                k = 4 + (n - 32) // 8
                ldi(blk[1] + 4 * (k % 4), k, ("i", k))
            n += 1
    e(f"s_add_u32 s{S_W1}, s{S_W1}, 8192")
    wait_vm((par, "i0"), ("i", 1))
    unpack(blk[3])
    e("s_waitcnt lgkmcnt(0)")
    if STAMP == 1: e(f"s_sub_u32 s47, s42, s40\ns_add_u32 s44, s44, s47\ns_cmp_eq_u32 s{S_CNT}, {3-par}\ns_cselect_b32 s{38+par}, s47, s{38+par}")
    if par == 0: e(f"s_sub_u32 s{S_CNT}, s{S_CNT}, 1\ns_cmp_eq_u32 s{S_CNT}, 0")
    e("s_barrier")
    if STAMP == 1: e("s_memtime s[40:41]")

e("@ALIGN 64\nmain_loop:")
if WB == "A": e("@REGION B 7")
phase(0)
e("s_cbranch_scc1 last_phase")
phase(1)
e("s_branch main_loop")
e("hook_f:")
e(f"s_mov_b32 s{S_FB}, 0\ns_lshl_b32 s{S_T}, s{S_PID}, 7\ns_add_u32 s{S_T}, s{S_T}, {FLGB:#x}\nv_mov_b32 v{T0}, s{S_N}\nv_mov_b32 v{T1}, 0\ns_mov_b64 exec, 1")
e(f"buffer_store_dword v{T0}, v{T1}, s[4:7], s{S_T} offen sc1\nv_mov_b32 v{T0}, {L_XCH}\nds_write_b32 v{T0}, v{T1}\ns_mov_b64 exec, -1\ns_branch hook_f_ret")
e("hook_p:")
e(f"s_mov_b32 s{S_HP}, 0\nv_mbcnt_lo_u32_b32 v{D0}, -1, 0\nv_mbcnt_hi_u32_b32 v{D0}, -1, v{D0}")
e(f"s_lshr_b32 s{S_T}, s{S_CS}, 4\nv_mov_b32 v{D0+1}, s{S_T}\nv_mov_b32 v{D0+2}, s{S_BS}\nv_cmp_gt_u32 vcc, 16, v{D0}\nv_and_b32 v{D0}, 15, v{D0}\ns_lshl_b32 s{S_T}, s{S_WAVE}, 11")
e(f"v_cndmask_b32 v{D0+1}, v{D0+1}, v{D0+2}, vcc\nv_lshl_add_u32 v{D0}, v{D0+1}, 6, v{D0}\nv_lshlrev_b32 v{D0}, 7, v{D0}\ns_add_u32 s{S_T}, s{S_T}, {FLGB:#x}\ns_mov_b32 s{S_U}, 0")
e("hook_p_loop:")
e(f"buffer_load_dword v{D0+1}, v{D0}, s[4:7], s{S_T} offen sc1")
e(f"s_add_u32 s{S_U}, s{S_U}, 1\ns_waitcnt vmcnt(0)\ns_cmp_gt_u32 s{S_U}, 0x40000\ns_cbranch_scc1 hook_p_out")
e(f"v_cmp_ne_u32 vcc, s{S_N}, v{D0+1}\ns_cbranch_vccnz hook_p_loop")
e(f"hook_p_out:\nv_mov_b32 v{D0}, {L_XCH}\nv_mov_b32 v{D0+1}, 1\ns_mov_b64 exec, 1\nds_add_u32 v{D0}, v{D0+1}\ns_mov_b64 exec, -1\ns_branch hook_p_ret")
e("hook_c:")
e(f"v_mov_b32 v{D0}, {L_XCH}\ns_mov_b32 s{S_U}, 0")
e(f"hook_c_loop:\nds_read_b32 v{D0+1}, v{D0}\ns_add_u32 s{S_U}, s{S_U}, 1\ns_waitcnt lgkmcnt(0)\ns_cmp_gt_u32 s{S_U}, 0x1000000\ns_cbranch_scc1 hook_c_ret")
e(f"v_cmp_ne_u32 vcc, 4, v{D0+1}\ns_cbranch_vccnz hook_c_loop\ns_branch hook_c_ret")
emit = False
phase(0); phase(1); phase(0)
emit = True
e("last_phase:")
if WB == "L": e("@REGION B 7")
stamp(8)
blk = blocks(1)
XI = W1 + 16
SC = blk[1]
LK = [0, 3, 6, 8, 18, 20, 22, 24]; LX = [1, 5, 9, 11]
XB = A("XB", 20); XS = A("XS", 4)
assert XS + 16 <= XB <= 20 and XB >= 18
units = [("q", q) for q in range(XB)] + [("x", g) for g in range(8)] + [("q", q) for q in range(XB, 32)]
VX = blk[3]; WA = VX + 1; TL = VX + 2; TM = VX + 3; X8 = VX + 4
def uw0(u): return blk[u[1] // 8] + (u[1] % 8) * 2 if u[0] == "q" else XI + 2 * u[1]
def ugrp(u): return u[1] // 4 if u[0] == "q" else u[1]
XW = W1; LN = SC; ROW = SC + 1; PV = SC + 4; RES = SC + 8
XM = [0, 0, 0, 1, 1, 1, 2, 2]
extra = {i: [] for i in range(len(units) + 3)}
def epi(g):
    a = ACC + 4 * g
    l = [f"v_max_f32 v{a+c}, 0, v{a+c}" for c in range(4)]
    l.append(f"v_mul_f32 v{RES+g}, s56, v{a}")
    l += [f"v_fma_f32 v{RES+g}, v{a+c}, s{56+c}, v{RES+g}" for c in range(1, 4)]
    l.append(f"v_and_or_b32 v{RES+g}, v{RES+g}, -16, v{PV+2}")
    if g % 4 == 3: l.append(f"buffer_store_dwordx4 v[{RES+g-3}:{RES+g}], v{PV}, s[4:7], s{70 + g//4} offen sc1")
    return l
for i, u in enumerate(units):
    prio(i)
    if i >= 3:
        e("s_waitcnt lgkmcnt(8)")
        smf(ugrp(units[i - 3]), i % 3)
    if i == 6: gstamp(1)
    if i == 12: gstamp(2)
    if i == XB:
        gstamp(3); e("s_barrier"); gstamp(4)
    if i == XB + 8: gstamp(5)
    if i == XB + 14: gstamp(6)
    reads(uw0(u), i % 3)
    if i == 0:
        wait_vm(("L", "junk"), ("w", frag_of(7)))
        e(f"v_mbcnt_lo_u32_b32 v{TL}, -1, 0\nv_mbcnt_hi_u32_b32 v{TL}, -1, v{TL}")
        for r in range(16): e(f"v_mov_b32_dpp v{W1+r}, v{W1+16+r} row_shr:8 row_mask:0xf bank_mask:0xc")
    if i == 1:
        e(f"v_and_b32 v{WA}, 24, v{TL}\nv_and_b32 v{TM}, 3, v{TL}\nv_lshl_add_u32 v{WA}, v{TM}, 1, v{WA}\nv_bfe_u32 v{TM}, v{TL}, 2, 1\nv_add_u32 v{WA}, v{WA}, v{TM}")
        e(f"v_lshrrev_b32 v{TM}, 5, v{TL}\nv_lshl_add_u32 v{WA}, v{WA}, 1, v{TM}\ns_lshl_b32 s{S_T}, s{S_WAVE}, 10\ns_add_u32 s{S_T}, s{S_T}, {L_XT}\nv_lshl_add_u32 v{WA}, v{WA}, 4, s{S_T}")
    if XS <= i < XS + 12:
        vt = (i - XS) // 3
        d = D0 + 16 * (vt % 2)
        for sx in ((0, 1), (2,), (3,))[(i - XS) % 3]:
            c = "0" if sx == 0 else f"v[{d}:{d+15}]"
            e(f"v_mfma_f32_32x32x16_bf16 v[{d}:{d+15}], v[{W1+4*sx}:{W1+4*sx+3}], v[{TAB+16*vt+4*sx}:{TAB+16*vt+4*sx+3}], {c}")
    if i in LK:
        k = 8 + LK.index(i)
        ldi(blk[k // 4] + 4 * (k % 4), k, ("i", k))
    if i == 0: e(f"v_lshlrev_b32 v{X8}, 4, v{TL}\ns_add_u32 s{S_IDX}, s{S_IDX}, 16384")
    if i in LX:
        g = LX.index(i)
        e(f"buffer_load_dwordx4 v[{XI+4*g}:{XI+4*g+3}], v{X8}, s[4:7], s{S_IDX} offen offset:{g*1024} sc1"); vm.issue(("x", g))
    if i == XB - 2:
        wait_vm(("L", "x"), ("x", 3))
        for g in range(4): e(f"v_permlane32_swap_b32 v{XI+4*g}, v{XI+4*g+2}\nv_permlane32_swap_b32 v{XI+4*g+1}, v{XI+4*g+3}")
    if i + 1 < len(units):
        nu = units[i + 1]
        if nu[0] == "q" and nu[1] % 4 == 0 and nu[1] <= 24: wait_vm(("L", "i", i), ("i", nu[1] // 2 + 1 if nu[1] < 24 else 15))
        unpack(uw0(nu))
    if i in (XS + 4, XS + 7, XS + 10, XS + 13):
        vt = (i - XS - 4) // 3
        d = D0 + 16 * (vt % 2)
        for r in range(4): e(f"v_cvt_pk_bf16_f32 v{d+r}, v{d+r}, v{d+4+r}")
        e(f"ds_write_b128 v{WA}, v[{d}:{d+3}] offset:{vt*8192}")
    if i == 17:
        e(f"v_mbcnt_lo_u32_b32 v{LN}, -1, 0\nv_mbcnt_hi_u32_b32 v{LN}, -1, v{LN}")
        e(f"v_and_b32 v{PV+1}, 15, v{LN}\nv_lshlrev_b32 v{PV+1}, 4, v{PV+1}\nv_lshrrev_b32 v{PV}, 4, v{LN}\nv_lshl_or_b32 v{PV}, v{PV}, 14, v{PV+1}")
        e(f"s_lshl_b32 s70, s{S_BS}, 20\ns_lshl_b32 s71, s{S_WAVE}, 17\ns_add_u32 s70, s70, s71\ns_lshl_b32 s71, s{S_CS}, 8\ns_add_u32 s70, s70, s71")
        e(f"s_add_u32 s70, s70, {PART:#x}\ns_add_u32 s71, s70, 65536")
        e(f"s_and_b32 s{S_U}, s{S_N}, 15\nv_mov_b32 v{PV+2}, s{S_U}")
        srd(8, 36, 16384 * 26)
        srd(12, 50, 32768)
    if i == 21:
        e(f"s_cmp_lg_u32 s{S_WAVE}, 0\ns_cbranch_scc1 nowide")
        e(f"s_lshr_b32 s{S_T}, s{S_PID}, 2\ns_lshl_b32 s{S_T}, s{S_T}, 8\ns_and_b32 s{S_U}, s{S_PID}, 3\ns_lshl_b32 s{S_U}, s{S_U}, 4\ns_add_u32 s{S_T}, s{S_T}, s{S_U}")
        e(f"v_lshrrev_b32 v{ROW}, 4, v{LN}\nv_and_b32 v{ROW+1}, 15, v{LN}\nv_lshl_add_u32 v{ROW}, v{ROW}, 6, v{ROW+1}\nv_add_u32 v{ROW}, s{S_T}, v{ROW}")
        e(f"v_mul_u32_u24 v{ROW+1}, 26, v{ROW}")
        for j in range(13): e(f"buffer_load_ushort v{XW+j}, v{ROW+1}, s[8:11], 0 offen offset:{2*j}")
        e("nowide:")
    for g, step in enumerate((XB + 5, XB + 6, XB + 7, XB + 8, 32, 36)):
        if i == step:
            for x in epi(g): e(x)
            if g == 3: vm.issue()
n = len(units)
e("s_waitcnt lgkmcnt(8)"); smf(7, n % 3)
e("s_waitcnt lgkmcnt(4)"); smf(7, (n + 1) % 3)
for x in epi(6): e(x)
e("s_waitcnt lgkmcnt(0)"); smf(7, (n + 2) % 3)
e(f"v_lshlrev_b32 v{PV+1}, 4, v{LN}")
e(f"s_lshl_b32 s70, s{S_PID}, 14\ns_lshl_b32 s{S_T}, s{S_WAVE}, 11\ns_add_u32 s70, s70, s{S_T}\ns_add_u32 s70, s70, {PART:#x}")
e(f"s_lshl_b32 s{S_T}, s{S_WAVE}, 8\ns_add_u32 s{S_T}, s{S_T}, {128000}\nv_lshl_add_u32 v{PV+3}, v{LN}, 2, s{S_T}")
e("s_nop 0")
for x in epi(7): e(x)
if PRIOQ >= 0: e("s_setprio 0")
stamp(9)
e(f"s_cmp_lg_u32 s{S_WAVE}, 0\ns_cbranch_scc1 nowide2")
e("s_waitcnt vmcnt(2)")
e(f"s_lshl_b32 s68, s68, 16\ns_lshl_b32 s69, s69, 16\nv_mov_b32 v{XW+13}, s68\nv_add_f32 v{XW+13}, s69, v{XW+13}")
for j in range(13):
    sw = 60 + j // 2
    if j % 2 == 0: e(f"s_lshl_b32 s{S_T}, s{sw}, 16")
    else: e(f"s_and_b32 s{S_T}, s{sw}, 0xffff0000")
    e(f"v_lshlrev_b32 v{XW+j}, 16, v{XW+j}")
    e(f"v_fma_f32 v{XW+13}, v{XW+j}, s{S_T}, v{XW+13}")
e("nowide2:")
e(f"s_mov_b32 s{S_CNT}, 0\ns_waitcnt vmcnt(0)")
if A("EB", 1): e("s_barrier")
stamp(10)
e("poll2:")
e(f"buffer_load_dwordx4 v[{D1}:{D1+3}], v{PV+1}, s[4:7], s70 offen sc1")
e(f"buffer_load_dwordx4 v[{D1+4}:{D1+7}], v{PV+1}, s[4:7], s70 offen offset:1024 sc1")
e(f"s_add_u32 s{S_CNT}, s{S_CNT}, 1\ns_cmp_gt_u32 s{S_CNT}, 0x40000\ns_cbranch_scc1 poll2_done")
e("s_waitcnt vmcnt(0)")
for i in range(8): e(f"v_xor_b32 v{D1+8+i}, v{PV+2}, v{D1+i}")
e(f"v_or3_b32 v{D1+8}, v{D1+8}, v{D1+9}, v{D1+10}\nv_or3_b32 v{D1+11}, v{D1+11}, v{D1+12}, v{D1+13}\nv_or3_b32 v{D1+8}, v{D1+8}, v{D1+14}, v{D1+15}")
e(f"v_or_b32 v{D1+8}, v{D1+8}, v{D1+11}\nv_and_b32 v{D1+8}, 15, v{D1+8}\nv_cmp_ne_u32 vcc, 0, v{D1+8}\ns_cbranch_vccnz poll2")
e("poll2_done:\ns_waitcnt vmcnt(0)")
stamp(11)
for c in range(4): e(f"v_add_f32 v{D1+c}, v{D1+c}, v{D1+4+c}")
e(f"s_nop 1\nv_permlane32_swap_b32 v{D1}, v{D1+2}\nv_permlane32_swap_b32 v{D1+1}, v{D1+3}")
e(f"v_add_f32 v{D1}, v{D1}, v{D1+2}\nv_add_f32 v{D1+1}, v{D1+1}, v{D1+3}\ns_nop 1")
e(f"v_permlane16_swap_b32 v{D1}, v{D1+1}\nv_add_f32 v{D1}, v{D1}, v{D1+1}")
e(f"ds_write_b32 v{PV+3}, v{D1}\ns_waitcnt lgkmcnt(0)\ns_barrier")
e(f"s_cmp_lg_u32 s{S_WAVE}, 0\ns_cbranch_scc1 fin")
for i in range(1, 8): e(f"ds_read_b32 v{D1+i}, v{PV+3} offset:{256*i}")
e(f"v_add_f32 v{D1}, v{D1}, v{XW+13}\nv_lshlrev_b32 v{ROW}, 1, v{ROW}")
e("s_waitcnt lgkmcnt(0)")
e(f"v_add_f32 v{D1+1}, v{D1+1}, v{D1+2}\nv_add_f32 v{D1+3}, v{D1+3}, v{D1+4}\nv_add_f32 v{D1+5}, v{D1+5}, v{D1+6}\nv_add_f32 v{D1}, v{D1}, v{D1+7}")
e(f"v_add_f32 v{D1+1}, v{D1+1}, v{D1+3}\nv_add_f32 v{D1}, v{D1}, v{D1+5}\nv_add_f32 v{D1}, v{D1}, v{D1+1}")
e(f"v_mul_f32 v{D1}, 0xbfb8aa3b, v{D1}\nv_exp_f32 v{D1}, v{D1}\ns_nop 0\nv_add_f32 v{D1}, 1.0, v{D1}\nv_rcp_f32 v{D1}, v{D1}\ns_nop 0")
e(f"v_cvt_pk_bf16_f32 v{D1}, v{D1}, v{D1}")
e(f"buffer_store_short v{D1}, v{ROW}, s[12:15], 0 offen")
e("s_cmp_lg_u32 s2, 0\ns_cbranch_scc1 fin")
e(f"v_mov_b32 v{D1+1}, s{S_N}\nv_mov_b32 v{D1+2}, {EPOCH}\ns_mov_b64 exec, 1")
e(f"buffer_store_dword v{D1+1}, v{D1+2}, s[4:7], 0 offen\ns_mov_b64 exec, -1")
e("@ENDREGION\nfin:")
if FIX and A("MINS", 0):
    e("s_load_dwordx2 s[32:33], s[0:1], 80\ns_waitcnt lgkmcnt(0)")
    srd(16, 32, 256)
    e("s_not_b32 s98, s100\nv_mov_b32 v8, 0\nv_mov_b32 v9, s98\ns_mov_b64 exec, 1\nbuffer_atomic_umax v9, v8, s[16:19], 0 offen\ns_waitcnt vmcnt(0)")
    e(f"fixm:\ns_memrealtime s[98:99]\ns_waitcnt lgkmcnt(0)\ns_sub_u32 s98, s98, s100\ns_cmp_lt_u32 s98, {FIX - 1500}\ns_cbranch_scc1 fixm")
    e("buffer_load_dword v9, v8, s[16:19], 0 offen sc1\ns_waitcnt vmcnt(0)\nv_readfirstlane_b32 s100, v9\ns_nop 3\ns_not_b32 s100, s100\ns_mov_b64 exec, -1")
if FIX and A("PW", 255) != 255:
    e(f"s_mov_b32 s98, {A('PW', 255)}\ns_bitcmp0_b32 s98, s{S_WAVE}\ns_cbranch_scc1 done")
if FIX:
    e(f"fixl:\ns_memrealtime s[98:99]\ns_waitcnt lgkmcnt(0)\ns_sub_u32 s98, s98, s{96 if PROBE else 100}")
    e(f"s_cmp_lt_u32 s98, {FIX}\ns_cbranch_scc1 fixl")
if STAMP:
    stamp(12)
    e("s_memrealtime s[98:99]\ns_waitcnt lgkmcnt(0)")
    e(f"s_lshl_b32 s70, s2, 3\ns_add_u32 s70, s70, s{S_WAVE}\ns_lshl_b32 s70, s70, 7\ns_add_u32 s70, s70, {STMP:#x}")
    e("v_mov_b32 v8, 0")
    for i in range(1, 13):
        e(f"s_sub_u32 s{SB+2*i}, s{SB+2*i}, s{SB}\nv_mov_b32 v9, s{SB+2*i}")
        e(f"buffer_store_dword v9, v8, s[4:7], s70 offen offset:{4*(i-1)}")
    for i, r in enumerate((44, 45, 46, 100, 98, 38, 39)):
        e(f"v_mov_b32 v9, s{r}\nbuffer_store_dword v9, v8, s[4:7], s70 offen offset:{48+4*i}")
e("done:\ns_endpgm")

e(f""".section .rodata,"a"
.p2align 6
.amdhsa_kernel {KN}
  .amdhsa_next_free_vgpr 256
  .amdhsa_next_free_sgpr 102
  .amdhsa_accum_offset 256
  .amdhsa_group_segment_fixed_size 0
  .amdhsa_kernarg_size 96
  .amdhsa_user_sgpr_count 2
  .amdhsa_user_sgpr_kernarg_segment_ptr 1
  .amdhsa_system_sgpr_workgroup_id_x 1
.end_amdhsa_kernel""")

bysite = {str(k): v for k, v in waits.items()}
res = []
for l in out:
    if l.startswith("@VM "):
        n = bysite[l[4:]]
        assert 0 <= n <= 63
        l = f"s_waitcnt vmcnt({n})"
    res.append(l)
import re, subprocess, tempfile, os
def is_instr(l): return bool(re.match(r"^(s_|v_|ds_|buffer_|global_)\w*( |$)", l)) and not l.endswith(":")
tmp = [re.sub(r"@SEG_\w+", "done", l) for l in res if not l.startswith("@")]
with tempfile.TemporaryDirectory() as d:
    open(d + "/t.s", "w").write("\n".join(tmp) + "\n")
    subprocess.run(["clang", "-x", "assembler", "-target", "amdgcn-amd-amdhsa", "-mcpu=gfx950", "-c", d + "/t.s", "-o", d + "/t.o"], check=True)
    dis = subprocess.run(["llvm-objdump", "-d", "--mcpu=gfx950", d + "/t.o"], capture_output=True, text=True).stdout
sizes = [4 * len(m.group(1).split()) for m in re.finditer(r"// [0-9A-F]{12}: ([0-9A-F ]+)", dis)]
assert len(sizes) == sum(map(is_instr, tmp)), (len(sizes), sum(map(is_instr, tmp)))
fin = []; addr = 0; k = 0; region = None; pads = {}; last = -1
for l in res:
    if l.startswith("@REGION"):
        _, tag, nseg = l.split(); region = tag; pads[tag] = [int(nseg), 0]; last = -1; continue
    if l.startswith("@ENDREGION"): region = None; continue
    if l.startswith("@ALIGN"):
        while addr % int(l.split()[1]): fin.append("s_nop 0"); addr += 4
        continue
    if is_instr(l):
        if region and WARM and addr // LINE != last:
            last = addr // LINE
            n = pads[region][1]; pads[region][1] += 1
            fin.append(f"pad_{region}_{n}:"); fin.append(f"@PAD {region} {n}"); addr += 4
        addr += sizes[k]; k += 1
    fin.append(l)
def seg_start(tag, j):
    nseg, n = pads[tag]; return (n * j) // nseg
o2 = []
for l in fin:
    if l.startswith("@PAD"):
        _, tag, n = l.split(); n = int(n)
        starts = [seg_start(tag, j) for j in range(pads[tag][0] + 1)]
        l = f"s_cbranch_execz " + (f"warm_ret_{tag}" if n + 1 in starts else f"pad_{tag}_{n+1}")
    m = re.search(r"@SEG_(\w)_(\d+)", l)
    if m: l = l.replace(m.group(0), f"pad_{m.group(1)}_{seg_start(m.group(1), int(m.group(2)))}")
    o2.append(l)
sys.stderr.write(f"pads {pads} size {addr}\n")
print("\n".join(o2))
```

```python
import sys
args = dict(a.split("=") for a in sys.argv[1:])
def A(k, d): return type(d)(args.get(k, d))
STAMP = A("STAMP", 0); PROBE = A("PROBE", 0); FIX = A("FIX", 0)
PRIOQ = A("PRIOQ", -1); W1W = A("W1W", 0); CPF = A("CPF", 1); POLLT = A("POLLT", 2); PRE = A("PRE", 2); BAR0 = A("BAR0", 1); MAP = A("MAP", 1); CPL = A("CPL", 9); KPRE = A("KPRE", 8); DEFT = A("DEFT", -1); PREO = A("PREO", 1); HPQ = A("HPQ", 16); R1 = A("R1", 12); R2 = A("R2", 28); XT = A("XT", 1); PFW = A("PFW", 2); PI = A("PI", 0); XMAP = A("XMAP", 1); B2 = A("B2", 1); KT = A("KT", 2); KA = A("KA", 2); OD = A("OD", 16); UNR = A("UNR", 1); DQ = A("DQ", 8); DT = A("DT", 3); SPF = A("SPF", 0); WARM = A("WARM", 0); LINE = A("LINE", 128); WB = A("WB", "L")
MQ = [int(c) for c in A("MQ", "11223456")]

KN = "standalone__deep_cross_wide_deep__recsys_kernel"
EPOCH = 0x9a80
FLG = 0x1000
IDXP = 0x10000
ISTR = 6 * 16384 + 4096
W1P = 0x340000
WSTR = 42 * 1024
PART = 0x600000
STMP = 0xE00000
WS_SZ = 0x1000000
L_STG = 131072; L_XCH = 155648; L_XT = 131072; L_RED = 0

out = []
emit = True
def e(s):
    if emit:
        for l in s.split("\n"): out.append(l)
class Cnt:
    def __init__(self): self.n = 0; self.tag = {}
    def issue(self, tag=None):
        self.n += 1
        if tag is not None: self.tag[tag] = self.n
    def younger(self, tag): return self.n - self.tag[tag]
vm = Cnt()
waits = {}
def wait_vm(site, tag):
    n = vm.younger(tag)
    waits[site] = min(waits.get(site, 99), n)
    e(f"@VM {site}")
def srd(d, lo, nbytes):
    e(f"s_mov_b32 s{d}, s{lo}\ns_mov_b32 s{d+1}, s{lo+1}\ns_mov_b32 s{d+2}, {nbytes:#x}\ns_mov_b32 s{d+3}, 0x20000")
SB = 72
FINE = A("FINE", 0)
def hstamp(i):
    if STAMP and FINE == 3: e(f"s_memtime s[{SB+2*i}:{SB+1+2*i}]")
def gstamp(i):
    if STAMP and FINE == 2: e(f"s_memtime s[{SB+2*i}:{SB+1+2*i}]")
def fstamp(i):
    if STAMP and FINE == 1: e(f"s_memtime s[{SB+2*i}:{SB+1+2*i}]")
def stamp(i):
    if FINE == 1 and 9 <= i <= 12: return
    if FINE in (2, 4) and 1 <= i <= 6: return
    if FINE == 3 and 10 <= i <= 12: return
    if PROBE == i: e("s_memrealtime s[96:97]")
    if STAMP: e(f"s_memtime s[{SB+2*i}:{SB+1+2*i}]")

e(f"""; Wide & Deep recsys forward, gfx950: per-field projected tables P[f][v] = table[v] @ W1_f built on MFMA into LDS,
; @launch grid=(256,1,1) block=(512,1,1) lds=163840
.amdgcn_target "amdgcn-amd-amdhsa--gfx950"
.text
.globl {KN}
.p2align 8
.type {KN},@function
{KN}:""")

VOFF = 0; SIDX = 1; T0 = 2; T1 = 3; AC = 4
DAT = 8; TAB = 32; ACC = 96; POOL = 128; D0 = 192; D1 = 208; W1 = 224
S_WAVE = 3; S_IDX = 20; S_IDX2 = 21; S_W1 = 22; S_M0A = 23; S_M0B = 24; S_CNT = 25; S_BS = 26; S_CS = 27; S_PID = 28; S_N = 29
S_T = 30; S_U = 31
LANE = 8; L16 = 9
XA = POOL; XF = POOL + 16; XC = POOL + 48; XD = POOL + 16
PLO = "0x05040100"; PHI = "0x07060302"

HOLD = POOL + 32
FLGB = 0x330000
S_FB = 55; S_HP = 54
L_CTR = 128000; L_XC2 = L_STG
DELTA = 28800
def piece_lane():
    e(f"v_lshrrev_b32 v10, 2, v{LANE}\nv_and_b32 v11, 1, v{LANE}\nv_and_b32 v12, 2, v{LANE}")
    e("v_lshlrev_b32 v13, 3, v10\nv_lshl_or_b32 v13, v11, 15, v13\nv_lshl_or_b32 v13, v12, 11, v13")
def piece_src(fp0):
    e(f"s_lshr_b32 s{S_T}, s{S_CS}, 2\ns_lshl_b32 s{S_T}, s{S_T}, 16\ns_and_b32 s{S_U}, s{S_CS}, 3\ns_lshl_b32 s{S_U}, s{S_U}, 13\ns_add_u32 s{S_T}, s{S_T}, s{S_U}")
    e(f"s_lshl_b32 s{S_U}, s{S_BS}, 7\ns_add_u32 s{S_T}, s{S_T}, s{S_U}\ns_add_u32 s{S_T}, s{S_T}, {fp0*65536:#x}")
def piece_ld(b):
    for j in range(8): e(f"buffer_load_dwordx2 v[{b+2*j}:{b+2*j+1}], v13, s[16:19], s{S_T} offen offset:{j*512}")
def piece_dst(fp0):
    e(f"v_mul_u32_u24 v18, {WSTR}, v10\nv_and_b32 v10, 3, v{LANE}\nv_lshl_add_u32 v18, v10, 4, v18")
    e(f"s_mul_i32 s70, s{S_BS}, {16*WSTR}\ns_lshr_b32 s{S_T}, s{S_CS}, 2\ns_lshl_b32 s{S_T}, s{S_T}, 10\ns_add_u32 s70, s70, s{S_T}")
    e(f"s_and_b32 s{S_T}, s{S_CS}, 3\ns_lshl_b32 s{S_T}, s{S_T}, 7\ns_add_u32 s70, s70, s{S_T}\ns_add_u32 s70, s70, {W1P + (fp0-8)*1024:#x}")
def piece_perm(src, dst):
    e(f"s_mov_b32 s{S_T}, {PLO}\ns_mov_b32 s{S_U}, {PHI}")
    for cp in range(2):
        for par in range(2):
            r = dst + 8 * cp + 4 * par
            for jj in range(4):
                r0 = src + 4 * jj + cp
                e(f"v_perm_b32 v{r+jj}, v{r0+2}, v{r0}, s{S_U if par else S_T}")
            e(f"buffer_store_dwordx4 v[{r}:{r+3}], v18, s[4:7], s70 offen offset:{par*512+cp*64} sc1")
def tab_dma(vt, count=True):
    e(f"s_add_u32 s{S_T}, s{S_M0A}, {vt*32768}\ns_mov_b32 m0, s{S_T}\ns_nop 0")
    for i in range(4):
        e(f"buffer_load_dwordx4 v{14 + i%2}, s[12:15], s{S_T} offen offset:{i*1024} lds")
        if count: vm.issue(("t", vt))
def xconsts(rowshift):
    e(f"v_lshl_add_u32 v17, v{LANE}, {rowshift}, s{S_T}")
    for t in range(16):
        e(f"v_add_u32 v16, {t}, v{LANE}\nv_and_b32 v{XF+t}, 15, v16\nv_lshl_add_u32 v{XA+t}, v{XF+t}, 2, v17")
    for u in range(8): e(f"v_lshl_or_b32 v{XC+u}, v{XF+2*u+1}, 16, v{XF+2*u}")
def idx_dst():
    e(f"s_lshr_b32 s70, s{S_PID}, 3\ns_mul_i32 s70, s70, {ISTR}\ns_add_u32 s70, s70, {IDXP:#x}")
    e(f"s_bfe_u32 s{S_T}, s{S_PID}, 0x10002\ns_lshl_b32 s{S_T}, s{S_T}, 13\ns_add_u32 s70, s70, s{S_T}")
    e(f"s_and_b32 s{S_T}, s{S_PID}, 3\ns_lshl_b32 s{S_T}, s{S_T}, 8\ns_add_u32 s70, s70, s{S_T}")
    e(f"s_lshl_b32 s{S_T}, s{S_CNT}, 14\ns_add_u32 s70, s70, s{S_T}\ns_add_u32 s71, s70, 16384")
def xform(off, dst, store):
    for t in range(16): e(f"ds_read_b32 v{XD+t}, v{XA+t} offset:{off}")
    for u in range(8):
        e(f"s_waitcnt lgkmcnt({14-2*u})")
        e(f"v_lshl_add_u32 v{XD+2*u}, v{XD+2*u+1}, 16, v{XD+2*u}")
        e(f"v_lshl_add_u32 v{dst+u}, v{XD+2*u}, 4, v{XC+u}")
        if store and u % 4 == 3: e(f"buffer_store_dwordx4 v[{dst+u-3}:{dst+u}], v{VOFF}, s[4:7], s70 offen offset:{(u//4)*128} sc1")
def role_old(tag, f12, f3, f0):
    e(f"s_cmp_eq_u32 s{S_WAVE}, 0\ns_cbranch_scc1 {tag}_w0\ns_cmp_eq_u32 s{S_WAVE}, 3\ns_cbranch_scc1 {tag}_w3")
    f12(); e(f"s_branch {tag}_join\n{tag}_w3:"); f3(); e(f"s_branch {tag}_join\n{tag}_w0:"); f0(); e(f"{tag}_join:")
def xf3():
    e(f"s_mov_b32 s{S_T}, 0x40014000\ns_mov_b32 s{S_U}, 0x40034002")
    e("v_lshl_add_u32 v28, v29, 16, v28\nv_lshl_add_u32 v30, v31, 16, v30")
    e(f"v_lshl_add_u32 v28, v28, 2, s{S_T}\nv_lshl_add_u32 v30, v30, 2, s{S_U}")
    e(f"v_and_b32 v29, 1, v{LANE}\nv_lshlrev_b32 v29, 4, v29\nv_and_b32 v31, 2, v{LANE}\nv_cmp_ne_u32 vcc, 0, v31")
    e("v_alignbit_b32 v28, v28, v28, v29\nv_alignbit_b32 v30, v30, v30, v29")
    e(f"v_cndmask_b32 v{HOLD}, v28, v30, vcc\nv_cndmask_b32 v{HOLD+1}, v30, v28, vcc")
def raw(lo, hi):
    for n in range(lo, hi):
        s_, j = n // 8, n % 8
        e(f"buffer_load_dword v{POOL+n}, v18, s[16:19], s71 offen offset:{j*512}")
        if j == 7 and s_ < 3: e("s_add_u32 s71, s71, 8192")
def voff_ws():
    e(f"s_load_dword s{S_N}, s[54:55], {EPOCH}")
    srd(4, 54, WS_SZ)
    srd(12, 34, 128000)
    e(f"v_and_b32 v16, 28, v{LANE}\nv_lshlrev_b32 v{VOFF}, 8, v16\nv_and_b32 v16, 1, v{LANE}\nv_lshl_or_b32 v{VOFF}, v16, 6, v{VOFF}")
    e(f"v_and_b32 v16, 32, v{LANE}\nv_or_b32 v{VOFF}, v{VOFF}, v16\nv_and_b32 v16, 2, v{LANE}\nv_lshl_or_b32 v{VOFF}, v16, 3, v{VOFF}")
def sloads(): pass
def params():
    e(f"s_lshl_b32 s{S_T}, s{S_CS}, 3")
    e(f"s_load_dwordx2 s[52:53], s[44:45], s{S_T}")
    e(f"s_load_dwordx2 s[58:59], s[46:47], s{S_T}")
    e("s_load_dwordx8 s[60:67], s[38:39], 0")
    e("s_load_dword s68, s[40:41], 0\ns_load_dword s69, s[48:49], 0")
def common():
    e(f"v_lshlrev_b32 v{L16}, 4, v{LANE}")
    e(f"v_lshrrev_b32 v16, 4, v{LANE}\nv_and_b32 v17, 7, v{LANE}\nv_xor_b32 v16, v16, v17\nv_lshlrev_b32 v16, 4, v16")
    e(f"v_lshrrev_b32 v17, 3, v{LANE}\nv_lshl_or_b32 v14, v17, 7, v16\nv_xor_b32 v15, 64, v14")
    e(f"v_bfe_u32 v19, v{LANE}, 2, 2\nv_bfe_u32 v20, v{LANE}, 4, 1\nv_lshlrev_b32 v20, 1, v20\nv_mov_b32 v21, 0x3f80")
    e("v_cmp_eq_u32 vcc, v19, v20\nv_add_u32 v20, 1, v20\ns_nop 0")
    e(f"v_cndmask_b32 v{AC}, 0, v21, vcc\nv_cndmask_b32 v{AC+1}, 0, v21, vcc")
    e(f"v_cmp_eq_u32 vcc, v19, v20\nv_and_b32 v19, 3, v{LANE}\ns_nop 0")
    e(f"v_cndmask_b32 v{AC+2}, 0, v21, vcc\nv_cndmask_b32 v{AC+3}, 0, v21, vcc")
    e(f"v_mul_u32_u24 v{SIDX}, 0x5555, v19")
    e(f"s_lshl_b32 s{S_T}, s{S_BS}, 3\ns_add_u32 s{S_T}, s{S_T}, s{S_WAVE}\ns_mul_i32 s{S_IDX}, s{S_T}, {ISTR}\ns_add_u32 s{S_IDX}, s{S_IDX}, {IDXP:#x}\ns_add_u32 s{S_IDX2}, s{S_IDX}, 8192")
    e(f"s_mul_i32 s{S_W1}, s{S_CS}, {WSTR}\ns_add_u32 s{S_W1}, s{S_W1}, {W1P:#x}")
    e(f"s_add_u32 s{S_M0B}, s{S_M0A}, {65536-DELTA}")
    e(f"s_lshr_b32 s{S_T}, s{S_CS}, 4\ns_lshl_b32 s{S_T}, s{S_T}, 6\ns_lshl_b32 s{S_U}, s{S_WAVE}, 3\nv_and_b32 v13, 7, v{LANE}\nv_add_u32 v10, s{S_U}, v13")
    e(f"s_and_b32 s{S_U}, s{S_WAVE}, 3\nv_lshl_add_u32 v11, v13, 2, s{S_U}\nv_lshrrev_b32 v13, 3, v{LANE}\nv_cmp_eq_u32 vcc, 1, v13\ns_nop 1\nv_cndmask_b32 v10, v10, v11, vcc")
    e(f"s_lshl_b32 s{S_U}, s{S_BS}, 6\nv_mov_b32 v11, s{S_T}\nv_mov_b32 v16, s{S_U}\nv_cmp_eq_u32 vcc, 0, v13\ns_nop 1\nv_cndmask_b32 v11, v11, v16, vcc\nv_add_lshl_u32 v19, v10, v11, 7")
    e(f"v_and_b32 v10, 24, v{LANE}\nv_and_b32 v11, 3, v{LANE}\nv_lshl_add_u32 v10, v11, 1, v10\nv_bfe_u32 v12, v{LANE}, 2, 1\nv_add_u32 v10, v10, v12\nv_lshlrev_b32 v10, 7, v10")
    e(f"v_bfe_u32 v12, v{LANE}, 3, 1\nv_lshl_or_b32 v11, v12, 2, v11\nv_lshrrev_b32 v12, 5, v{LANE}\nv_xor_b32 v11, v11, v12\nv_lshl_or_b32 v10, v11, 4, v10")
    e(f"v_add_u32 v20, s{S_M0A}, v10\nv_add_u32 v12, {L_XCH}, v{L16}")
    for s_ in range(1, 4): e(f"v_xor_b32 v{20+s_}, {s_*32}, v20")
    e(f"v_add_u32 v16, {L_XC2}, v{L16}\ns_lshl_b32 s{S_U}, s{S_WAVE}, 10\nv_add_u32 v17, s{S_U}, v16")
def common_b():
    e(f"s_not_b32 s{S_N}, s{S_N}")
    e(f"s_cmp_eq_u32 s{S_WAVE}, 0\ns_cselect_b32 s{S_FB}, 1, 0\ns_cmp_lt_u32 s{S_WAVE}, 4\ns_cselect_b32 s{S_HP}, 1, 0")
def tab_rd(vt):
    wait_vm(("td", vt), ("t", vt))
    if vt == 2:
        for s in range(4): e(f"v_add_u32 v{20+s}, 0x10000, v{20+s}")
    for s in range(4):
        r = TAB + 16 * vt + 4 * s
        e(f"ds_read_b128 v[{r}:{r+3}], v{20+s} offset:{(vt%2)*32768}")
def ldw(i):
    e(f"buffer_load_dwordx4 v[{W1+4*i}:{W1+4*i+3}], v{VOFF}, s[4:7], s{S_W1} offen offset:{i*128} sc1")
    vm.issue(("w", i))
def ldi(reg, k, tag):
    e(f"buffer_load_dwordx4 v[{reg}:{reg+3}], v{VOFF}, s[4:7], s{S_IDX if k < 8 else S_IDX2} offen offset:{(k%8)*128} sc1")
    vm.issue(tag)
def mf(vt, i, base=D0):
    s, par = i // 2, i % 2
    d = base + 16 * par
    c = "0" if s == 0 else f"v[{d}:{d+15}]"
    e(f"v_mfma_f32_32x32x16_bf16 v[{d}:{d+15}], v[{TAB+16*vt+4*s}:{TAB+16*vt+4*s+3}], v[{W1+16*par+4*s}:{W1+16*par+4*s+3}], {c}")
def frag_of(i): return (i % 2) * 4 + i // 2
def cvt(dst, r, base=D0): e(f"v_cvt_pk_bf16_f32 v{dst}, v{base+r}, v{base+16+r}")
def wr(src, vt, r):
    off = (vt % 2) * 32768 + r * 256 + (DELTA if vt >= 2 else 0)
    e(f"ds_write_addtid_b32 v{src} offset:{off}")
SD = "dst_sel:DWORD dst_unused:UNUSED_PAD src0_sel:DWORD"
def unpack(w0):
    e(f"v_lshlrev_b32_sdwa v{T0}, 3, v{w0} {SD} src1_sel:WORD_1")
    e(f"v_lshlrev_b32_sdwa v{w0}, 3, v{w0} {SD} src1_sel:WORD_0")
    e(f"v_lshlrev_b32_sdwa v{T1}, 3, v{w0+1} {SD} src1_sel:WORD_1")
    e(f"v_lshlrev_b32_sdwa v{w0+1}, 3, v{w0+1} {SD} src1_sel:WORD_0")
def reads(w0, slot):
    d = DAT + 8 * slot
    for i, a in enumerate((w0, T0, w0 + 1, T1)):
        e(f"ds_read_b64 v[{d+2*i}:{d+2*i+1}], v{a}")
def smf(g, slot):
    d = DAT + 8 * slot; a = ACC + 4 * g
    e(f"v_smfmac_f32_16x16x64_bf16 v[{a}:{a+3}], v[{AC}:{AC+3}], v[{d}:{d+7}], v{SIDX}")
def cpf_code(dst):
    e(f"s_getpc_b64 s[70:71]\ncpf_base:\ns_lshr_b32 s{S_U}, s2, 3\ns_mul_i32 s{S_U}, s{S_U}, {CPL*128}\nv_min_u32 v2, {CPL-1}, v{LANE}\nv_lshl_add_u32 v2, v2, 7, s{S_U}\nv_min_u32 v2, done-cpf_base, v2\nv_mov_b32 v3, s71")
    e("v_add_co_u32 v2, vcc, s70, v2\ns_nop 1\nv_addc_co_u32 v3, vcc, 0, v3, vcc")
    e(f"global_load_dword v{dst}, v[2:3], off")
def poll_issue():
    if CPF == 2:
        e(f"s_cmp_lg_u32 s{S_WAVE}, 7\ns_cbranch_scc1 1f")
        cpf_code(11)
        e("1:")
    stamp(5)
    e(f"s_mov_b32 s{S_T}, {FLG:#x}")
    e(f"buffer_load_dword v10, v19, s[4:7], s{S_T} offen sc1"); vm.issue("poll")
def poll_check():
    e(f"s_mov_b32 s{S_CNT}, 0\ns_mov_b32 s{S_T}, {FLG:#x}")
    wait_vm("pollw", "poll")
    e("poll1:")
    e(f"v_cmp_ne_u32 vcc, s{S_N}, v10\ns_cbranch_vccz poll1_done")
    e(f"s_sleep 8\nbuffer_load_dword v10, v19, s[4:7], s{S_T} offen sc1")
    e(f"s_add_u32 s{S_CNT}, s{S_CNT}, 1\ns_waitcnt vmcnt(0)\ns_cmp_lt_u32 s{S_CNT}, 0x40000\ns_cbranch_scc1 poll1")
    e("poll1_done:")
    stamp(6)
    e(f"s_lshl_b32 s{S_T}, s{S_WAVE}, 7\ns_add_u32 s{S_T}, s{S_T}, s{S_W1}")
    e(f"buffer_load_dwordx4 v[24:27], v{VOFF}, s[4:7], s{S_T} offen sc1"); vm.issue("w1x")
    for i in range(8): vm.tag[("w", i)] = vm.n
    for k in range(KA): ldi(POOL + 4 * k, k, ("i", k))

e("s_cmp_ge_u32 s2, 256\ns_cbranch_scc1 done")
e("s_load_dwordx16 s[32:47], s[0:1], 0")
e("s_load_dwordx8 s[48:55], s[0:1], 64")
if STAMP: e(f"s_memtime s[{SB}:{SB+1}]")
if STAMP or FIX: e("s_memrealtime s[100:101]")
e(f"v_lshrrev_b32 v1, 6, v0\nv_and_b32 v{LANE}, 63, v0")
e(f"v_readfirstlane_b32 s{S_WAVE}, v1")
if XMAP:
    e(f"s_bfe_u32 s{S_BS}, s2, 0x20002\ns_and_b32 s{S_CS}, s2, 3\ns_lshl_b32 s{S_CS}, s{S_CS}, 4\ns_lshr_b32 s{S_T}, s2, 4\ns_add_u32 s{S_CS}, s{S_CS}, s{S_T}")
else:
    e(f"s_and_b32 s{S_BS}, s2, 3\ns_lshr_b32 s{S_CS}, s2, 2")
e(f"s_lshl_b32 s{S_PID}, s{S_BS}, 6\ns_add_u32 s{S_PID}, s{S_PID}, s{S_CS}")
e(f"s_lshl_b32 s{S_M0A}, s{S_WAVE}, 12\nv_mov_b32 v18, 0\nv_mov_b32 v14, 0\nv_mov_b32 v15, 0\nv_mov_b32 v19, 0\ns_mul_i32 s71, s{S_PID}, 25600")
e("s_mov_b32 s10, 0x640000\ns_mov_b32 s11, 0x20000\ns_mov_b32 s18, 0x320000\ns_mov_b32 s19, 0x20000")
e(f"s_cmp_lt_u32 s{S_WAVE}, 4\ns_cbranch_scc1 a_old")
e(f"s_cmp_eq_u32 s{S_WAVE}, 7\ns_cbranch_scc1 a_w7\ns_cmp_eq_u32 s{S_WAVE}, 6\ns_cbranch_scc1 a_pc")
e(f"s_setprio 3\ns_sub_u32 s{S_CNT}, s{S_WAVE}, 4")
e(f"v_lshrrev_b32 v10, 2, v{LANE}\nv_mul_u32_u24 v10, 400, v10\nv_and_b32 v11, 3, v{LANE}\nv_lshl_add_u32 v10, v11, 4, v10")
e(f"s_lshl_b32 s{S_T}, s{S_CNT}, 6\ns_add_u32 s{S_T}, s{S_T}, s71")
e(f"s_lshl_b32 s{S_U}, s{S_CNT}, 12\ns_add_u32 s{S_U}, s{S_U}, {L_STG}\ns_mov_b32 m0, s{S_U}\nv_lshl_add_u32 v17, v{LANE}, 6, s{S_U}")
e("s_waitcnt lgkmcnt(0)\ns_mov_b32 s8, s32\ns_mov_b32 s9, s33")
for i in range(4):
    e(f"buffer_load_dwordx4 v10, s[8:11], s{S_T} offen lds")
    if i < 3: e(f"s_add_u32 m0, m0, 1024\ns_add_u32 s{S_T}, s{S_T}, 6400")
e("s_barrier\ns_branch b_x")
e("a_pc:\ns_setprio 3")
piece_lane(); piece_src(A("UFP", 8))
e(f"s_waitcnt lgkmcnt(0)\ns_mov_b32 s16, s42\ns_mov_b32 s17, s43")
hstamp(10)
if not A("NOP", 0): piece_ld(POOL)
hstamp(11)
e("s_barrier")
hstamp(12)
e("s_branch b_pc")
e("a_old:")
e(f"v_mov_b32 v10, {L_CTR}\nds_write_b32 v10, v18")
if PFW:
    e(f"v_and_b32 v16, 31, v{LANE}\nv_lshlrev_b32 v16, 9, v16\ns_lshr_b32 s{S_U}, s2, 3\ns_lshl_b32 s{S_U}, s{S_U}, 14\ns_lshl_b32 s{S_T}, s{S_CS}, 3\ns_add_u32 s{S_U}, s{S_U}, s{S_T}")
e("s_waitcnt lgkmcnt(0)")
if PFW == 2: e("s_barrier")
if PFW:
    e(f"s_mov_b32 s16, s42\ns_mov_b32 s17, s43\ns_cmp_lg_u32 s{S_WAVE}, 3\ns_cbranch_scc1 1f\nbuffer_load_dword v{D0}, v16, s[16:19], s{S_U} offen\n1:")
if PFW != 2: e("s_barrier")
e("s_branch c_all")
e("a_w7:")
if CPF == 1: cpf_code(D0)
e("s_setprio 2\ns_barrier")
e(f"v_bfe_u32 v16, v{LANE}, 1, 4\nv_lshlrev_b32 v18, 15, v16\nv_lshrrev_b32 v16, 5, v{LANE}\nv_lshl_or_b32 v18, v16, 12, v18\nv_and_b32 v16, 1, v{LANE}\nv_lshl_or_b32 v18, v16, 2, v18")
e(f"v_and_b32 v16, 31, v{LANE}\nv_lshlrev_b32 v16, 7, v16\ns_lshr_b32 s{S_U}, s2, 3\ns_lshl_b32 s{S_U}, s{S_U}, 12")
e(f"s_lshl_b32 s71, s{S_CS}, 3")
e("s_waitcnt lgkmcnt(0)\ns_mov_b32 s16, s42\ns_mov_b32 s17, s43")
srd(12, 34, 128000)
e(f"buffer_load_dword v{D0}, v16, s[12:15], s{S_U} offen")
raw(0, R1)
e("s_branch c_all")
e("b_x:")
voff_ws()
e(f"v_and_b32 v16, 15, v{LANE}\nv_lshl_add_u32 v{XA}, v16, 2, v17\nv_xor_b32 v17, 1, v16\nv_lshl_or_b32 v{XC}, v17, 16, v16")
for t in range(1, 16): e(f"v_xor_b32 v{XA+t}, {4*t}, v{XA}")
for u in range(1, 8): e(f"v_xor_b32 v{XC+u}, {2*u*0x10001:#x}, v{XC}")
idx_dst()
e("s_waitcnt vmcnt(0)")
stamp(1)
xform(0, HOLD, True)
e("s_barrier\ns_branch c_all2")
e("b_pc:")
voff_ws()
piece_dst(8)
e("s_waitcnt vmcnt(0)")
stamp(1)
piece_perm(POOL, HOLD)
e("s_barrier\ns_branch c_all2")
e("c_all:")
voff_ws()
e("c_all2:")
sloads(); common()
e(f"s_cmp_eq_u32 s{S_WAVE}, 7\ns_cbranch_scc1 d_w7\ns_cmp_lt_u32 s{S_WAVE}, 4\ns_cbranch_scc1 d_old")
e(f"v_mov_b32 v10, {L_CTR}\nv_mov_b32 v11, 1\ns_mov_b64 exec, 1\ns_waitcnt vmcnt(0)")
e("ds_add_rtn_u32 v13, v10, v11")
e(f"s_lshl_b32 s{S_T}, s{S_PID}, 7\ns_add_u32 s{S_T}, s{S_T}, {FLG:#x}\nv_mov_b32 v10, 0\ns_waitcnt lgkmcnt(0)")
e(f"v_readfirstlane_b32 s{S_U}, v13\nv_not_b32 v11, s{S_N}\ns_cmp_lg_u32 s{S_U}, 2\ns_cbranch_scc1 b_nosig")
e(f"buffer_store_dword v11, v10, s[4:7], s{S_T} offen sc1")
e("b_nosig:\ns_mov_b64 exec, -1\ns_branch e_join")
e("d_w7:")
stamp(1)
e("s_mov_b32 s16, s42\ns_mov_b32 s17, s43\ns_barrier")
raw(R1, 32)
for vt in range(PRE): tab_dma(vt, False)
e(f"s_mov_b32 s{S_T}, {PLO}\ns_mov_b32 s{S_U}, {PHI}")
for s in range(4):
    e(f"s_waitcnt vmcnt({24-8*s+4*PRE})")
    for jj in range(4):
        r0 = POOL + 8 * s + 2 * jj
        e(f"v_perm_b32 v{POOL+32+8*s+jj}, v{r0+1}, v{r0}, s{S_T}")
        e(f"v_perm_b32 v{POOL+36+8*s+jj}, v{r0+1}, v{r0}, s{S_U}")
    e(f"ds_write_b128 v12, v[{POOL+32+8*s}:{POOL+35+8*s}] offset:{s*1024}")
    e(f"ds_write_b128 v12, v[{POOL+36+8*s}:{POOL+39+8*s}] offset:{4096+s*1024}")
stamp(2)
e("s_branch b_all")
e("d_old:")
stamp(1)
e("s_barrier")
def warm(tag, nseg, w0):
    if not WARM: return
    e("s_mov_b64 exec, 0")
    for k in range(nseg - 1): e(f"s_cmp_eq_u32 s{S_WAVE}, {w0+k}\ns_cbranch_scc1 @SEG_{tag}_{k}")
    e(f"s_branch @SEG_{tag}_{nseg-1}")
    e(f"warm_ret_{tag}:\ns_mov_b64 exec, -1")
if OD: e(f"s_sleep {OD}")
e("e_join:")
stamp(2)
for vt in range(PRE): tab_dma(vt)
e("s_setprio 0")
warm("B", 7, 0)
e("b_all:")
e("s_setprio 0\ns_waitcnt lgkmcnt(0)\ns_barrier")
pass
stamp(3)
for i in range(8): e(f"ds_read_b128 v[{W1+4*i}:{W1+4*i+3}], v12 offset:{i*1024}")
if PI == -1: poll_issue()
common_b()
if PRE < 4: tab_dma(PRE)
tab_rd(0)
stamp(4)
L_PC = L_XCH; L_EX = L_XC2 + 1024; L_HC = L_XC2
def lane_to(r): e(f"v_mbcnt_lo_u32_b32 v{r}, -1, 0\nv_mbcnt_hi_u32_b32 v{r}, -1, v{r}")
DA = D0
def dl12():
    e(f"v_lshrrev_b32 v{DA+1}, 3, v{DA}\nv_mul_u32_u24 v{DA+1}, 400, v{DA+1}\nv_and_b32 v{DA}, 7, v{DA}\nv_lshl_add_u32 v{DA}, v{DA}, 4, v{DA+1}")
    e(f"s_lshl_b32 s{S_T}, s{S_WAVE}, 7\ns_add_u32 s{S_T}, s{S_T}, s71")
    e(f"s_lshl_b32 s{S_U}, s{S_WAVE}, 13\ns_add_u32 m0, s{S_U}, {L_STG}\ns_nop 0")
    for i in range(8):
        e(f"buffer_load_dwordx4 v{DA}, s[8:11], s{S_T} offen lds")
        if i < 7: e(f"s_add_u32 m0, m0, 1024\ns_add_u32 s{S_T}, s{S_T}, 3200")
def dlp(fp0, lds):
    e(f"v_lshrrev_b32 v{DA+1}, 3, v{DA}\nv_and_b32 v{DA}, 7, v{DA}\nv_lshlrev_b32 v{DA}, 4, v{DA}\nv_lshl_or_b32 v{DA}, v{DA+1}, 9, v{DA}")
    piece_src(fp0)
    e(f"s_mov_b32 m0, {lds}\ns_nop 0")
    for i in range(4):
        e(f"buffer_load_dwordx4 v{DA}, s[16:19], s{S_T} offen lds")
        if i < 3: e(f"s_add_u32 m0, m0, 1024\ns_add_u32 s{S_T}, s{S_T}, {(4096, 28672, 4096)[i]}")
def dl3():
    e(f"v_mul_u32_u24 v{DA+2}, 400, v{DA}\ns_add_u32 s{S_T}, s71, 384\ns_mov_b32 m0, {L_EX}\ns_nop 0\nbuffer_load_dwordx4 v{DA+2}, s[8:11], s{S_T} offen lds")
    dlp(40, L_PC + 4096)
def dl0(): dlp(24, L_PC)
O0 = DAT; O1 = DAT + 16
def dx12():
    e(f"s_lshl_b32 s{S_CNT}, s{S_WAVE}, 1")
    idx_dst()
    e(f"s_lshl_b32 s{S_U}, s{S_WAVE}, 13\ns_add_u32 s{S_U}, s{S_U}, {L_STG}")
    e(f"v_and_b32 v{T1}, 15, v{T0}\nv_lshl_add_u32 v{T0}, v{T0}, 7, s{S_U}\nv_lshl_add_u32 v{T0}, v{T1}, 2, v{T0}\nv_xor_b32 v{O0}, 1, v{T1}\nv_lshl_or_b32 v{T1}, v{O0}, 16, v{T1}")
    for h, o in ((0, O0), (1, O1)):
        for t in range(16): e(f"v_xor_b32 v{D1+t}, {4*t}, v{T0}\nds_read_b32 v{D1+t}, v{D1+t} offset:{64*h}")
        for u in range(8):
            e(f"v_xor_b32 v{o+u}, {2*u*0x10001:#x}, v{T1}\ns_waitcnt lgkmcnt({14-2*u})")
            e(f"v_lshl_add_u32 v{D1+2*u}, v{D1+2*u+1}, 16, v{D1+2*u}")
            e(f"v_lshl_add_u32 v{o+u}, v{D1+2*u}, 4, v{o+u}")
            if u % 4 == 3: e(f"buffer_store_dwordx4 v[{o+u-3}:{o+u}], v{VOFF}, s[4:7], s{70+h} offen offset:{(u//4)*128} sc1")
def dxp(fp0, lds):
    e(f"v_lshrrev_b32 v{O0}, 2, v{T0}\nv_and_b32 v{O0+1}, 1, v{T0}\nv_and_b32 v{O0+2}, 2, v{T0}\nv_lshlrev_b32 v{T1}, 3, v{O0}\nv_lshl_or_b32 v{T1}, v{O0+1}, 11, v{T1}\nv_lshl_or_b32 v{T1}, v{O0+2}, 9, v{T1}\nv_add_u32 v{T1}, {lds}, v{T1}")
    for j in range(8): e(f"ds_read_b64 v[{D1+2*j}:{D1+2*j+1}], v{T1} offset:{j*128}")
    e(f"v_mul_u32_u24 v{O0}, {WSTR}, v{O0}\nv_and_b32 v{T0}, 3, v{T0}\nv_lshl_add_u32 v{T0}, v{T0}, 4, v{O0}")
    e(f"s_mul_i32 s70, s{S_BS}, {16*WSTR}\ns_lshr_b32 s{S_T}, s{S_CS}, 2\ns_lshl_b32 s{S_T}, s{S_T}, 10\ns_add_u32 s70, s70, s{S_T}")
    e(f"s_and_b32 s{S_T}, s{S_CS}, 3\ns_lshl_b32 s{S_T}, s{S_T}, 7\ns_add_u32 s70, s70, s{S_T}\ns_add_u32 s70, s70, {W1P + (fp0-8)*1024:#x}")
    e(f"s_mov_b32 s{S_T}, {PLO}\ns_mov_b32 s{S_U}, {PHI}\ns_waitcnt lgkmcnt(0)")
    for cp in range(2):
        for par in range(2):
            r = (O0, O1)[cp] + 4 * par
            for jj in range(4):
                r0 = D1 + 4 * jj + cp
                e(f"v_perm_b32 v{r+jj}, v{r0+2}, v{r0}, s{S_U if par else S_T}")
            e(f"buffer_store_dwordx4 v[{r}:{r+3}], v{T0}, s[4:7], s70 offen offset:{par*512+cp*64} sc1")
def dx3():
    a = D1
    e(f"v_lshlrev_b32 v{T1}, 4, v{T0}\nv_add_u32 v{T1}, {L_EX}, v{T1}\nds_read_b128 v[{a}:{a+3}], v{T1}")
    e(f"s_lshr_b32 s70, s{S_PID}, 3\ns_mul_i32 s70, s70, {ISTR}\ns_add_u32 s70, s70, {IDXP + 6*16384:#x}")
    e(f"s_and_b32 s{S_T}, s{S_PID}, 7\ns_lshl_b32 s{S_T}, s{S_T}, 9\ns_add_u32 s70, s70, s{S_T}")
    e(f"v_and_b32 v{T1}, 31, v{T0}\nv_lshlrev_b32 v{T1}, 4, v{T1}\nv_lshrrev_b32 v{a+4}, 5, v{T0}\nv_lshl_or_b32 v{T1}, v{a+4}, 3, v{T1}")
    e(f"s_mov_b32 s{S_T}, 0x40014000\ns_mov_b32 s{S_U}, 0x40034002\ns_waitcnt lgkmcnt(0)")
    e(f"v_lshl_add_u32 v{a}, v{a+1}, 16, v{a}\nv_lshl_add_u32 v{a+2}, v{a+3}, 16, v{a+2}")
    e(f"v_lshl_add_u32 v{a}, v{a}, 2, s{S_T}\nv_lshl_add_u32 v{a+2}, v{a+2}, 2, s{S_U}")
    e(f"v_and_b32 v{a+1}, 1, v{T0}\nv_lshlrev_b32 v{a+1}, 4, v{a+1}\nv_and_b32 v{a+3}, 2, v{T0}\nv_cmp_ne_u32 vcc, 0, v{a+3}")
    e(f"v_alignbit_b32 v{a}, v{a}, v{a}, v{a+1}\nv_alignbit_b32 v{a+2}, v{a+2}, v{a+2}, v{a+1}")
    e(f"v_cndmask_b32 v{O1+6}, v{a}, v{a+2}, vcc\nv_cndmask_b32 v{O1+7}, v{a+2}, v{a}, vcc")
    e(f"buffer_store_dwordx2 v[{O1+6}:{O1+7}], v{T1}, s[4:7], s70 offen sc1")
    e(f"s_cmp_ge_u32 s{S_CS}, 40\ns_cbranch_scc1 g_join")
    dxp(40, L_PC + 4096)
def dx0():
    e(f"v_mov_b32 v{T1}, {L_HC}\nv_mov_b32 v{O0}, 0\nds_write_b32 v{T1}, v{O0}")
    dxp(24, L_PC)
DB = [ACC, D0, ACC, D0]
for vt in range(5):
    if vt >= 1: e(f"s_mov_b32 m0, s{S_M0A if vt <= 2 else S_M0B}")
    if vt < 4: e(f"s_waitcnt lgkmcnt({0 if vt < 2 else 10})")
    b = DB[vt - 1]
    for i in range(9):
        if vt < 4 and i < 8: mf(vt, i, base=DB[vt])
        if 0 < vt < 4 and i == 0: e("s_nop 9")
        if vt > 0:
            if i < 8:
                for r in (2 * i, 2 * i + 1): cvt(b + r, r, b)
            if i > 0:
                for r in (2 * i - 2, 2 * i - 1): wr(b + r, vt - 1, r)
                if vt == 3:
                    for r in (2 * i - 2, 2 * i - 1, 2 * i + 14, 2 * i + 15): e(f"v_mov_b32 v{ACC+r}, 0")
        if i == 3 and vt < 3: tab_rd(vt + 1)
    if PRE + 1 + vt < 4: tab_dma(PRE + 1 + vt)
    if vt == PI: poll_issue()
    if vt == PI + 1: poll_check()
    if vt == KT:
        assert KT >= PI + 1
        for k in range(KA, KPRE): ldi(POOL + 4 * k, k, ("i", k))
    if vt == (3 if B2 else 4):
        fstamp(9)
        wait_vm("w1xw", "w1x")
        fstamp(10)
        e("ds_write_b128 v17, v[24:27]")
        if B2:
            e("s_waitcnt lgkmcnt(0)\ns_barrier")
            fstamp(11)
            for i in range(8): e(f"ds_read_b128 v[{W1+4*i}:{W1+4*i+3}], v16 offset:{i*1024}")
e(f"s_add_u32 s{S_W1}, s{S_W1}, 8192")
fstamp(12)
wait_vm("p0i", ("i", 1))
unpack(POOL)
e(f"s_mov_b32 s{S_CNT}, 3")
e("s_waitcnt lgkmcnt(0)\ns_barrier")
if not B2:
    for i in range(8): e(f"ds_read_b128 v[{W1+4*i}:{W1+4*i+3}], v16 offset:{i*1024}")
e("@ENDREGION")
if not B2: e("s_waitcnt lgkmcnt(0)")
stamp(7)
if STAMP == 1: e(f"s_waitcnt lgkmcnt(0)\ns_mov_b32 s40, s{SB+14}\ns_mov_b32 s42, s{SB+14}\ns_mov_b32 s44, 0\ns_mov_b32 s45, 0\ns_mov_b32 s46, 0")

def blocks(par): return [POOL + (48 if par else 0), POOL + 16, POOL + 32, POOL + (0 if par else 48)]
def prio(q):
    if q == PRIOQ: e(f"s_cmp_ge_u32 s{S_WAVE}, 4\ns_cbranch_scc0 1f\ns_setprio 1\n1:")
def phase(par, first=False, pn=None):
    blk = blocks(par)
    P = "F" if first else par
    hooks = par == 1 and pn in (None, 1)
    hk = hooks and not A('NOHK', 0)
    if pn is not None: P = par = (pn % 2); P = ("U", pn);
    hook_n = [10 ** 9]
    def wv(site, tag):
        if vm.tag[tag] <= hook_n[0] < 10 ** 9:
            e(f"s_cmp_lt_u32 s{S_WAVE}, 4\ns_cbranch_scc1 1f"); wait_vm(site, tag); e("1:")
        else: wait_vm(site, tag)
    LQ = {q: 8 + q // 2 for q in range(0, 16, 2)}
    if first:
        assert DQ in (0, 8, 16)
        if DQ: LQ = {j: k for j, k in enumerate(range(KPRE, 16))}
        else: assert KPRE == 8
    def w0(q): return blk[q // 8] + (q % 8) * 2
    for q in range(32):
        prio(q)
        if q >= 3:
            e("s_waitcnt lgkmcnt(8)")
            smf((q - 3) // 4, q % 3)
        reads(w0(q), q % 3)
        vt = q // 8
        for i in range(8):
            if MQ[i] == q % 8:
                if vt == 0 and i % 2 == 0 and not first: wait_vm((P, "w", i), ("w", frag_of(i + 1)))
                mf(vt, i)
                if vt == 3 and not W1W: ldw(frag_of(i))
        if q in LQ:
            k = LQ[q]
            ldi(blk[k // 4] + 4 * (k % 4), k, ("i", k))
        if q == 20: e(f"s_add_u32 s{S_IDX}, s{S_IDX}, 16384\ns_add_u32 s{S_IDX2}, s{S_IDX2}, 16384")
        if q >= 25 and q % 2 == 1:
            k = (q - 25) // 2
            ldi(blk[3] + 4 * k, k, ("n", k))
        if q < 31:
            if (q + 1) % 4 == 0: wv((P, "i", q), ("i", (q + 1) // 2 + 1))
            unpack(w0(q + 1))
        if q % 8 == 7 and vt < 3:
            for r in range(8): cvt(blk[vt] + r, r)
        if q % 8 == 0 and vt > 0:
            for r in range(8, 16): cvt(blk[vt - 1] + r, r)
        if first and q == DQ:
            e(f"s_cmp_ge_u32 s{S_WAVE}, 4\ns_cbranch_scc1 d_join")
            e("s_mov_b32 s8, s32\ns_mov_b32 s9, s33\ns_mov_b32 s16, s42\ns_mov_b32 s17, s43\ns_waitcnt vmcnt(0)")
            lane_to(DA)
            role_old("d", dl12, dl3, dl0)
            hook_n[0] = vm.n; vm.tag['dma'] = vm.n
        if q == HPQ and hk: e(f"s_cmp_eq_u32 s{S_HP}, 1\ns_cbranch_scc1 hook_p\nhook_p_ret:")
        if q == 24 and hk: e(f"s_cmp_eq_u32 s{S_CNT}, 2\ns_cbranch_scc1 hook_c\nhook_c_ret:")
    for k in range(4): vm.tag[("i", k)] = vm.tag[("n", k)]
    e("s_waitcnt lgkmcnt(8)"); smf(7, 29 % 3)
    e("s_waitcnt lgkmcnt(4)"); smf(7, 30 % 3)
    e(f"s_mov_b32 m0, s{S_M0A}")
    for r in range(16): cvt(D0 + r, r)
    if first:
        e(f"s_cmp_ge_u32 s{S_WAVE}, 4\ns_cbranch_scc1 g_join")
        lane_to(T0)
        wait_vm("dmaw", "dma")
        role_old("g", dx12, dx3, dx0)
        vm.tag["dst"] = vm.n
    if PRIOQ >= 0: e("s_setprio 0")
    if STAMP == 1: e("s_memtime s[48:49]")
    e("s_waitcnt lgkmcnt(0)")
    if STAMP == 1: e("s_sub_u32 s47, s48, s40\ns_add_u32 s46, s46, s47\ns_sub_u32 s47, s40, s42\ns_add_u32 s45, s45, s47")
    e("s_barrier")
    if STAMP == 1: e("s_memtime s[42:43]")
    if FINE == 4 and STAMP and (first or pn in (1, 2)): e(f"s_memtime s[{SB+2+4*(pn or 0)}:{SB+3+4*(pn or 0)}]")
    smf(7, 31 % 3)
    if hooks: params()
    n = 0
    for vt in (1, 0, 2, 3):
        if vt == 2: e(f"s_mov_b32 m0, s{S_M0B}\ns_nop 0")
        for r in range(16):
            wr(blk[vt] + r if vt < 3 else D0 + r, vt, r)
            if W1W and n % 4 == 0 and n < 32: ldw(frag_of(n // 4))
            if n >= 32 and n % 8 == 0:
                k = 4 + (n - 32) // 8
                ldi(blk[1] + 4 * (k % 4), k, ("i", k))
            n += 1
    e(f"s_add_u32 s{S_W1}, s{S_W1}, 8192")
    wait_vm((P, "i0"), "dst" if first else ("i", 1))
    unpack(blk[3])
    e("s_waitcnt lgkmcnt(0)")
    if STAMP == 1: e(f"s_sub_u32 s47, s42, s40\ns_add_u32 s44, s44, s47\ns_cmp_eq_u32 s{S_CNT}, {3-par}\ns_cselect_b32 s{38+par}, s47, s{38+par}")
    if par == 0 and not first and pn is None: e(f"s_sub_u32 s{S_CNT}, s{S_CNT}, 1\ns_cmp_lg_u32 s{S_CNT}, 0")
    e("s_barrier")
    if FINE == 4 and STAMP and (first or pn in (1, 2)): e(f"s_memtime s[{SB+4+4*(pn or 0)}:{SB+5+4*(pn or 0)}]")

phase(0, True)
e(f"s_mov_b32 s{S_CNT}, 2\ns_cmp_lg_u32 s{S_WAVE}, 0\ns_cbranch_scc1 main_loop")
e(f"s_lshl_b32 s{S_T}, s{S_PID}, 7\ns_add_u32 s{S_T}, s{S_T}, {FLGB:#x}\nv_mov_b32 v{D1}, s{S_N}\nv_mov_b32 v{D1+1}, 0\ns_mov_b64 exec, 1")
e(f"buffer_store_dword v{D1}, v{D1+1}, s[4:7], s{S_T} offen sc1\ns_mov_b64 exec, -1")
e("@ALIGN 64\nmain_loop:")
if UNR:
    for pn in range(1, 5): phase(pn % 2, False, pn)
    e("s_branch last_phase")
else:
    phase(1); phase(0)
    e("s_cbranch_scc1 main_loop\ns_branch last_phase")
if A("NOHK", 0): e("hook_p_ret:\nhook_c_ret:\ns_endpgm")
e("hook_p:")
e(f"s_mov_b32 s{S_HP}, 0\nv_mbcnt_lo_u32_b32 v{D0}, -1, 0\nv_mbcnt_hi_u32_b32 v{D0}, -1, v{D0}")
e(f"s_lshr_b32 s{S_T}, s{S_CS}, 4\nv_mov_b32 v{D0+1}, s{S_T}\nv_mov_b32 v{D0+2}, s{S_BS}\nv_cmp_gt_u32 vcc, 16, v{D0}\nv_and_b32 v{D0}, 15, v{D0}\ns_lshl_b32 s{S_T}, s{S_WAVE}, 11")
e(f"v_cndmask_b32 v{D0+1}, v{D0+1}, v{D0+2}, vcc\nv_lshl_add_u32 v{D0}, v{D0+1}, 6, v{D0}\nv_lshlrev_b32 v{D0}, 7, v{D0}\ns_add_u32 s{S_T}, s{S_T}, {FLGB:#x}\ns_mov_b32 s{S_U}, 0")
e("hook_p_loop:")
e(f"buffer_load_dword v{D0+1}, v{D0}, s[4:7], s{S_T} offen sc1")
e(f"s_add_u32 s{S_U}, s{S_U}, 1\ns_waitcnt vmcnt(0)\ns_cmp_gt_u32 s{S_U}, 0x40000\ns_cbranch_scc1 hook_p_out")
e(f"v_cmp_ne_u32 vcc, s{S_N}, v{D0+1}\ns_cbranch_vccnz hook_p_loop")
e(f"hook_p_out:\nv_mov_b32 v{D0}, {L_HC}\nv_mov_b32 v{D0+1}, 1\ns_mov_b64 exec, 1\nds_add_u32 v{D0}, v{D0+1}\ns_mov_b64 exec, -1\ns_branch hook_p_ret")
e("hook_c:")
e(f"v_mov_b32 v{D0}, {L_HC}\ns_mov_b32 s{S_U}, 0")
e(f"hook_c_loop:\nds_read_b32 v{D0+1}, v{D0}\ns_add_u32 s{S_U}, s{S_U}, 1\ns_waitcnt lgkmcnt(0)\ns_cmp_gt_u32 s{S_U}, 0x1000000\ns_cbranch_scc1 hook_c_ret")
e(f"v_cmp_ne_u32 vcc, 4, v{D0+1}\ns_cbranch_vccnz hook_c_loop\ns_branch hook_c_ret")
emit = False
if not UNR: phase(1); phase(0)
emit = True
e("last_phase:")
if WB == "L": e("@REGION B 7")
stamp(8)
blk = blocks(1)
XI = W1 + 16
SC = blk[1]
LK = [0, 3, 6, 8, 18, 20, 22, 24]; LX = [1, 5, 9, 11]
XB = A("XB", 20); XS = A("XS", 4)
assert XS + 16 <= XB <= 20 and XB >= 18
units = [("q", q) for q in range(XB)] + [("x", g) for g in range(8)] + [("q", q) for q in range(XB, 32)]
VX = blk[3]; WA = VX + 1; TL = VX + 2; TM = VX + 3; X8 = VX + 4
def uw0(u): return blk[u[1] // 8] + (u[1] % 8) * 2 if u[0] == "q" else XI + 2 * u[1]
def ugrp(u): return u[1] // 4 if u[0] == "q" else u[1]
XW = W1; LN = SC; ROW = SC + 1; PV = SC + 4; RES = SC + 8
XM = [0, 0, 0, 1, 1, 1, 2, 2]
extra = {i: [] for i in range(len(units) + 3)}
def epi(g):
    a = ACC + 4 * g
    l = [f"v_max_f32 v{a+c}, s{(0, 1, 52, 53)[c]}, v{a+c}" for c in range(4)]
    l.append(f"v_fma_f32 v{RES+g}, v{a}, s56, v{SC+3}")
    l += [f"v_fma_f32 v{RES+g}, v{a+c}, s{56+c}, v{RES+g}" for c in range(1, 4)]
    l.append(f"v_and_or_b32 v{RES+g}, v{RES+g}, -16, v{PV+2}")
    if g % 4 == 3: l.append(f"buffer_store_dwordx4 v[{RES+g-3}:{RES+g}], v{PV}, s[4:7], s{70 + g//4} offen sc1")
    return l
for i, u in enumerate(units):
    prio(i)
    if i >= 3:
        e("s_waitcnt lgkmcnt(8)")
        smf(ugrp(units[i - 3]), i % 3)
    if i == 6: gstamp(1)
    if i == 12: gstamp(2)
    if i == XB:
        gstamp(3); e("s_barrier"); gstamp(4)
    if i == XB + 8: gstamp(5)
    if i == XB + 14: gstamp(6)
    reads(uw0(u), i % 3)
    if i == 0:
        wait_vm(("L", "junk"), ("w", frag_of(7)))
        e(f"v_mbcnt_lo_u32_b32 v{TL}, -1, 0\nv_mbcnt_hi_u32_b32 v{TL}, -1, v{TL}")
        for r in range(16): e(f"v_mov_b32_dpp v{W1+r}, v{W1+16+r} row_shr:8 row_mask:0xf bank_mask:0xc")
    if i == 1:
        e(f"v_and_b32 v{WA}, 24, v{TL}\nv_and_b32 v{TM}, 3, v{TL}\nv_lshl_add_u32 v{WA}, v{TM}, 1, v{WA}\nv_bfe_u32 v{TM}, v{TL}, 2, 1\nv_add_u32 v{WA}, v{WA}, v{TM}")
        e(f"v_lshrrev_b32 v{TM}, 5, v{TL}\nv_lshl_add_u32 v{WA}, v{WA}, 1, v{TM}\ns_lshl_b32 s{S_T}, s{S_WAVE}, 10\ns_add_u32 s{S_T}, s{S_T}, {L_XT}\nv_lshl_add_u32 v{WA}, v{WA}, 4, s{S_T}")
    if XS <= i < XS + 12:
        vt = (i - XS) // 3
        d = D0 + 16 * (vt % 2)
        for sx in ((0, 1), (2,), (3,))[(i - XS) % 3]:
            c = "0" if sx == 0 else f"v[{d}:{d+15}]"
            e(f"v_mfma_f32_32x32x16_bf16 v[{d}:{d+15}], v[{W1+4*sx}:{W1+4*sx+3}], v[{TAB+16*vt+4*sx}:{TAB+16*vt+4*sx+3}], {c}")
    if i in LK:
        k = 8 + LK.index(i)
        ldi(blk[k // 4] + 4 * (k % 4), k, ("i", k))
    if i == 0: e(f"v_lshlrev_b32 v{X8}, 4, v{TL}\ns_add_u32 s{S_IDX}, s{S_IDX}, 16384")
    if i in LX:
        g = LX.index(i)
        e(f"buffer_load_dwordx4 v[{XI+4*g}:{XI+4*g+3}], v{X8}, s[4:7], s{S_IDX} offen offset:{g*1024} sc1"); vm.issue(("x", g))
    if i == XB - 2:
        wait_vm(("L", "x"), ("x", 3))
        for g in range(4): e(f"v_permlane32_swap_b32 v{XI+4*g}, v{XI+4*g+2}\nv_permlane32_swap_b32 v{XI+4*g+1}, v{XI+4*g+3}")
    if i + 1 < len(units):
        nu = units[i + 1]
        if nu[0] == "q" and nu[1] % 4 == 0 and nu[1] <= 24: wait_vm(("L", "i", i), ("i", nu[1] // 2 + 1 if nu[1] < 24 else 15))
        unpack(uw0(nu))
    if i in (XS + 4, XS + 7, XS + 10, XS + 13):
        vt = (i - XS - 4) // 3
        d = D0 + 16 * (vt % 2)
        for r in range(4): e(f"v_cvt_pk_bf16_f32 v{d+r}, v{d+r}, v{d+4+r}")
        e(f"ds_write_b128 v{WA}, v[{d}:{d+3}] offset:{vt*8192}")
    if i == 17:
        e(f"v_mbcnt_lo_u32_b32 v{LN}, -1, 0\nv_mbcnt_hi_u32_b32 v{LN}, -1, v{LN}")
        e(f"v_and_b32 v{PV+1}, 15, v{LN}\nv_lshlrev_b32 v{PV+1}, 4, v{PV+1}\nv_lshrrev_b32 v{PV}, 4, v{LN}\nv_lshl_or_b32 v{PV}, v{PV}, 14, v{PV+1}")
        e(f"s_lshl_b32 s70, s{S_BS}, 20\ns_lshl_b32 s71, s{S_WAVE}, 17\ns_add_u32 s70, s70, s71\ns_lshl_b32 s71, s{S_CS}, 8\ns_add_u32 s70, s70, s71")
        e(f"s_add_u32 s70, s70, {PART:#x}\ns_add_u32 s71, s70, 65536")
        e(f"s_and_b32 s{S_U}, s{S_N}, 15\nv_mov_b32 v{PV+2}, s{S_U}")
        e("s_lshl_b32 s56, s58, 16\ns_and_b32 s57, s58, 0xffff0000\ns_lshl_b32 s58, s59, 16\ns_and_b32 s59, s59, 0xffff0000")
        e("s_xor_b32 s52, s52, 0x80008000\ns_xor_b32 s53, s53, 0x80008000")
        e("s_lshl_b32 s0, s52, 16\ns_and_b32 s1, s52, 0xffff0000\ns_lshl_b32 s52, s53, 16\ns_and_b32 s53, s53, 0xffff0000")
        e(f"v_mov_b32 v{PV+1}, s0\nv_mul_f32 v{SC+3}, s56, v{PV+1}")
        for c, r in ((1, 1), (2, 52), (3, 53)): e(f"v_mov_b32 v{PV+1}, s{r}\nv_fma_f32 v{SC+3}, v{PV+1}, s{56+c}, v{SC+3}")
        e(f"v_xor_b32 v{SC+3}, 0x80000000, v{SC+3}")
        srd(8, 36, 16384 * 26)
        srd(12, 50, 32768)
    if i == 21:
        e(f"s_cmp_lg_u32 s{S_WAVE}, 0\ns_cbranch_scc1 nowide")
        e(f"s_lshr_b32 s{S_T}, s{S_PID}, 2\ns_lshl_b32 s{S_T}, s{S_T}, 8\ns_and_b32 s{S_U}, s{S_PID}, 3\ns_lshl_b32 s{S_U}, s{S_U}, 4\ns_add_u32 s{S_T}, s{S_T}, s{S_U}")
        e(f"v_lshrrev_b32 v{ROW}, 4, v{LN}\nv_and_b32 v{ROW+1}, 15, v{LN}\nv_lshl_add_u32 v{ROW}, v{ROW}, 6, v{ROW+1}\nv_add_u32 v{ROW}, s{S_T}, v{ROW}")
        e(f"v_mul_u32_u24 v{ROW+1}, 26, v{ROW}")
        for j in range(13): e(f"buffer_load_ushort v{XW+j}, v{ROW+1}, s[8:11], 0 offen offset:{2*j}")
        e("nowide:")
    for g, step in enumerate((XB + 5, XB + 6, XB + 7, XB + 8, 32, 36)):
        if i == step:
            for x in epi(g): e(x)
            if g == 3: vm.issue()
n = len(units)
e("s_waitcnt lgkmcnt(8)"); smf(7, n % 3)
e("s_waitcnt lgkmcnt(4)"); smf(7, (n + 1) % 3)
for x in epi(6): e(x)
e("s_waitcnt lgkmcnt(0)"); smf(7, (n + 2) % 3)
e(f"v_lshlrev_b32 v{PV+1}, 4, v{LN}")
e(f"s_lshl_b32 s70, s{S_PID}, 14\ns_lshl_b32 s{S_T}, s{S_WAVE}, 11\ns_add_u32 s70, s70, s{S_T}\ns_add_u32 s70, s70, {PART:#x}")
e(f"s_lshl_b32 s{S_T}, s{S_WAVE}, 8\ns_add_u32 s{S_T}, s{S_T}, {128000}\nv_lshl_add_u32 v{PV+3}, v{LN}, 2, s{S_T}")
e("s_nop 0")
for x in epi(7): e(x)
if PRIOQ >= 0: e("s_setprio 0")
stamp(9)
e(f"s_cmp_lg_u32 s{S_WAVE}, 0\ns_cbranch_scc1 nowide2")
e("s_waitcnt vmcnt(2)")
e(f"s_lshl_b32 s68, s68, 16\ns_lshl_b32 s69, s69, 16\nv_mov_b32 v{XW+13}, s68\nv_add_f32 v{XW+13}, s69, v{XW+13}")
for j in range(13):
    sw = 60 + j // 2
    if j % 2 == 0: e(f"s_lshl_b32 s{S_T}, s{sw}, 16")
    else: e(f"s_and_b32 s{S_T}, s{sw}, 0xffff0000")
    e(f"v_lshlrev_b32 v{XW+j}, 16, v{XW+j}")
    e(f"v_fma_f32 v{XW+13}, v{XW+j}, s{S_T}, v{XW+13}")
e("nowide2:")
e(f"s_mov_b32 s{S_CNT}, 0")
if A("EB", 1) < 2: e("s_waitcnt vmcnt(0)")
if A("EB", 1): e("s_barrier")
stamp(10)
e("poll2:")
e(f"buffer_load_dwordx4 v[{D1}:{D1+3}], v{PV+1}, s[4:7], s70 offen sc1")
e(f"buffer_load_dwordx4 v[{D1+4}:{D1+7}], v{PV+1}, s[4:7], s70 offen offset:1024 sc1")
e(f"s_add_u32 s{S_CNT}, s{S_CNT}, 1\ns_cmp_gt_u32 s{S_CNT}, 0x40000\ns_cbranch_scc1 poll2_done")
e("s_waitcnt vmcnt(0)")
for i in range(8): e(f"v_xor_b32 v{D1+8+i}, v{PV+2}, v{D1+i}")
e(f"v_or3_b32 v{D1+8}, v{D1+8}, v{D1+9}, v{D1+10}\nv_or3_b32 v{D1+11}, v{D1+11}, v{D1+12}, v{D1+13}\nv_or3_b32 v{D1+8}, v{D1+8}, v{D1+14}, v{D1+15}")
e(f"v_or_b32 v{D1+8}, v{D1+8}, v{D1+11}\nv_and_b32 v{D1+8}, 15, v{D1+8}\nv_cmp_ne_u32 vcc, 0, v{D1+8}")
if A("PS", 0): e(f"s_cbranch_vccz poll2_done\ns_sleep {A('PS', 0)}\ns_branch poll2")
else: e("s_cbranch_vccnz poll2")
e("poll2_done:\ns_waitcnt vmcnt(0)")
stamp(11)
for c in range(4): e(f"v_add_f32 v{D1+c}, v{D1+c}, v{D1+4+c}")
e(f"s_nop 1\nv_permlane32_swap_b32 v{D1}, v{D1+2}\nv_permlane32_swap_b32 v{D1+1}, v{D1+3}")
e(f"v_add_f32 v{D1}, v{D1}, v{D1+2}\nv_add_f32 v{D1+1}, v{D1+1}, v{D1+3}\ns_nop 1")
e(f"v_permlane16_swap_b32 v{D1}, v{D1+1}\nv_add_f32 v{D1}, v{D1}, v{D1+1}")
e(f"ds_write_b32 v{PV+3}, v{D1}\ns_waitcnt lgkmcnt(0)\ns_barrier")
e(f"s_cmp_lg_u32 s{S_WAVE}, 0\ns_cbranch_scc1 fin")
for i in range(1, 8): e(f"ds_read_b32 v{D1+i}, v{PV+3} offset:{256*i}")
e(f"v_add_f32 v{D1}, v{D1}, v{XW+13}\nv_lshlrev_b32 v{ROW}, 1, v{ROW}")
e("s_waitcnt lgkmcnt(0)")
e(f"v_add_f32 v{D1+1}, v{D1+1}, v{D1+2}\nv_add_f32 v{D1+3}, v{D1+3}, v{D1+4}\nv_add_f32 v{D1+5}, v{D1+5}, v{D1+6}\nv_add_f32 v{D1}, v{D1}, v{D1+7}")
e(f"v_add_f32 v{D1+1}, v{D1+1}, v{D1+3}\nv_add_f32 v{D1}, v{D1}, v{D1+5}\nv_add_f32 v{D1}, v{D1}, v{D1+1}")
e(f"v_mul_f32 v{D1}, 0xbfb8aa3b, v{D1}\nv_exp_f32 v{D1}, v{D1}\ns_nop 0\nv_add_f32 v{D1}, 1.0, v{D1}\nv_rcp_f32 v{D1}, v{D1}\ns_nop 0")
e(f"v_cvt_pk_bf16_f32 v{D1}, v{D1}, v{D1}")
e(f"buffer_store_short v{D1}, v{ROW}, s[12:15], 0 offen")
e("s_cmp_lg_u32 s2, 0\ns_cbranch_scc1 fin")
e(f"v_mov_b32 v{D1+1}, s{S_N}\nv_mov_b32 v{D1+2}, {EPOCH}\ns_mov_b64 exec, 1")
e(f"buffer_store_dword v{D1+1}, v{D1+2}, s[4:7], 0 offen\ns_mov_b64 exec, -1")
e("@ENDREGION\nfin:")
if FIX and A("MINS", 0):
    e("s_load_dwordx2 s[32:33], s[0:1], 80\ns_waitcnt lgkmcnt(0)")
    srd(16, 32, 256)
    e("s_not_b32 s98, s100\nv_mov_b32 v8, 0\nv_mov_b32 v9, s98\ns_mov_b64 exec, 1\nbuffer_atomic_umax v9, v8, s[16:19], 0 offen\ns_waitcnt vmcnt(0)")
    e(f"fixm:\ns_memrealtime s[98:99]\ns_waitcnt lgkmcnt(0)\ns_sub_u32 s98, s98, s100\ns_cmp_lt_u32 s98, {FIX - 1500}\ns_cbranch_scc1 fixm")
    e("buffer_load_dword v9, v8, s[16:19], 0 offen sc1\ns_waitcnt vmcnt(0)\nv_readfirstlane_b32 s100, v9\ns_nop 3\ns_not_b32 s100, s100\ns_mov_b64 exec, -1")
if FIX and A("PW", 255) != 255:
    e(f"s_mov_b32 s98, {A('PW', 255)}\ns_bitcmp0_b32 s98, s{S_WAVE}\ns_cbranch_scc1 done")
if FIX:
    e(f"fixl:\ns_memrealtime s[98:99]\ns_waitcnt lgkmcnt(0)\ns_sub_u32 s98, s98, s{96 if PROBE else 100}")
    e(f"s_cmp_lt_u32 s98, {FIX}\ns_cbranch_scc1 fixl")
if STAMP:
    stamp(12)
    e("s_memrealtime s[98:99]\ns_waitcnt lgkmcnt(0)")
    e(f"s_lshl_b32 s70, s2, 3\ns_add_u32 s70, s70, s{S_WAVE}\ns_lshl_b32 s70, s70, 7\ns_add_u32 s70, s70, {STMP:#x}")
    e("v_mov_b32 v8, 0")
    for i in range(1, 13):
        e(f"s_sub_u32 s{SB+2*i}, s{SB+2*i}, s{SB}\nv_mov_b32 v9, s{SB+2*i}")
        e(f"buffer_store_dword v9, v8, s[4:7], s70 offen offset:{4*(i-1)}")
    for i, r in enumerate((44, 45, 46, 100, 98, 38, 39)):
        e(f"v_mov_b32 v9, s{r}\nbuffer_store_dword v9, v8, s[4:7], s70 offen offset:{48+4*i}")
e("done:\ns_endpgm")

e(f""".section .rodata,"a"
.p2align 6
.amdhsa_kernel {KN}
  .amdhsa_next_free_vgpr 256
  .amdhsa_next_free_sgpr 102
  .amdhsa_accum_offset 256
  .amdhsa_group_segment_fixed_size 0
  .amdhsa_kernarg_size 96
  .amdhsa_user_sgpr_count 2
  .amdhsa_user_sgpr_kernarg_segment_ptr 1
  .amdhsa_system_sgpr_workgroup_id_x 1
.end_amdhsa_kernel""")

bysite = {str(k): v for k, v in waits.items()}
res = []
for l in out:
    if l.startswith("@VM "):
        n = bysite[l[4:]]
        assert 0 <= n <= 63
        l = f"s_waitcnt vmcnt({n})"
    res.append(l)
import re, subprocess, tempfile, os
def is_instr(l): return bool(re.match(r"^(s_|v_|ds_|buffer_|global_)\w*( |$)", l)) and not l.endswith(":")
tmp = [re.sub(r"@SEG_\w+", "done", l) for l in res if not l.startswith("@")]
with tempfile.TemporaryDirectory() as d:
    open(d + "/t.s", "w").write("\n".join(tmp) + "\n")
    subprocess.run(["clang", "-x", "assembler", "-target", "amdgcn-amd-amdhsa", "-mcpu=gfx950", "-c", d + "/t.s", "-o", d + "/t.o"], check=True)
    dis = subprocess.run(["llvm-objdump", "-d", "--mcpu=gfx950", d + "/t.o"], capture_output=True, text=True).stdout
sizes = [4 * len(m.group(1).split()) for m in re.finditer(r"// [0-9A-F]{12}: ([0-9A-F ]+)", dis)]
assert len(sizes) == sum(map(is_instr, tmp)), (len(sizes), sum(map(is_instr, tmp)))
fin = []; addr = 0; k = 0; region = None; pads = {}; last = -1
for l in res:
    if l.startswith("@REGION"):
        _, tag, nseg = l.split(); region = tag; pads[tag] = [int(nseg), 0]; last = -1; continue
    if l.startswith("@ENDREGION"): region = None; continue
    if l.startswith("@ALIGN"):
        while addr % int(l.split()[1]): fin.append("s_nop 0"); addr += 4
        continue
    if is_instr(l):
        if region and WARM and addr // LINE != last:
            last = addr // LINE
            n = pads[region][1]; pads[region][1] += 1
            fin.append(f"pad_{region}_{n}:"); fin.append(f"@PAD {region} {n}"); addr += 4
        addr += sizes[k]; k += 1
    fin.append(l)
def seg_start(tag, j):
    nseg, n = pads[tag]; return (n * j) // nseg
o2 = []
for l in fin:
    if l.startswith("@PAD"):
        _, tag, n = l.split(); n = int(n)
        starts = [seg_start(tag, j) for j in range(pads[tag][0] + 1)]
        l = f"s_cbranch_execz " + (f"warm_ret_{tag}" if n + 1 in starts else f"pad_{tag}_{n+1}")
    m = re.search(r"@SEG_(\w)_(\d+)", l)
    if m: l = l.replace(m.group(0), f"pad_{m.group(1)}_{seg_start(m.group(1), int(m.group(2)))}")
    o2.append(l)
sys.stderr.write(f"pads {pads} size {addr}\n")
if A("RT", 0): o2 = [l.replace("s_memtime", "s_memrealtime") for l in o2] + ["; s_memtime RT"]
print("\n".join(o2))
```

```python
import sys
args = dict(a.split("=") for a in sys.argv[1:])
def A(k, d): return type(d)(args.get(k, d))
STAMP = A("STAMP", 0); PROBE = A("PROBE", 0); FIX = A("FIX", 0)
PRIOQ = A("PRIOQ", -1); W1W = A("W1W", 0); CPF = A("CPF", 1); POLLT = A("POLLT", 2); PRE = A("PRE", 2); BAR0 = A("BAR0", 1); MAP = A("MAP", 1); CPL = A("CPL", 9); KPRE = A("KPRE", 6); DEFT = A("DEFT", -1); PREO = A("PREO", 1); HPQ = A("HPQ", 16); R1 = A("R1", 12); R2 = A("R2", 28); XT = A("XT", 1); PFW = A("PFW", 2); PI = A("PI", 0); XMAP = A("XMAP", 1); B2 = A("B2", 1); KT = A("KT", 2); KA = A("KA", 2); OD = A("OD", -1); W7T = A("W7T", 0); SPIN = A("SPIN", 0); W7A = A("W7A", 0); AL = A("AL", 0); MW = A("MW", 0); TRI = A("TRI", 4); DE = A("DE", 0); UNR = A("UNR", 1); DQ = A("DQ", 16); DT = A("DT", 3); SPF = A("SPF", 0); WARM = A("WARM", 0); LINE = A("LINE", 128); WB = A("WB", "L")
CS = [int(c, 32) for c in A("CS", "g")]; assert sum(CS) == 16
C0 = A("C0", 7); SP = A("SP", 8); MP = A("MP", 0)
MQ = [int(c) for c in A("MQ", "01123456")]

M2 = [int(c, 16) for c in A("M2", "")] or [2 * x for x in MQ]
M3 = [int(c, 16) for c in A("M3", "")] or M2
CE = C0 + len(CS) - 1 - 8
assert min(M2 + M3) >= 2 * CE + 1 and max(M2) <= 2 * (C0 - 1) and max(M3) <= 12
KN = "standalone__deep_cross_wide_deep__recsys_kernel"
EPOCH = 0x9a80
FLG = 0x1000
IDXP = 0x10000
ISTR = 6 * 16384 + 4096
W1P = 0x340000
WSTR = 34 * 1024
TABP = 0x570000
XG = 0x1000000
PART = 0x600000
STMP = 0xE00000
WS_SZ = 0x2000000
L_STG = 131072; L_XCH = 155648; L_XT = 131072; L_RED = 0

out = []
emit = True
def e(s):
    if emit:
        for l in s.split("\n"): out.append(l)
class Cnt:
    def __init__(self): self.n = 0; self.tag = {}
    def issue(self, tag=None):
        self.n += 1
        if tag is not None: self.tag[tag] = self.n
    def younger(self, tag): return self.n - self.tag[tag]
vm = Cnt()
waits = {}
def wait_vm(site, tag):
    n = vm.younger(tag)
    waits[site] = min(waits.get(site, 99), n)
    e(f"@VM {site}")
def srd(d, lo, nbytes):
    e(f"s_mov_b32 s{d}, s{lo}\ns_mov_b32 s{d+1}, s{lo+1}\ns_mov_b32 s{d+2}, {nbytes:#x}\ns_mov_b32 s{d+3}, 0x20000")
SB = 72
FINE = A("FINE", 0)
def hstamp(i):
    if STAMP and FINE == 3: e(f"s_memtime s[{SB+2*i}:{SB+1+2*i}]")
def gstamp(i):
    if STAMP and FINE == 2: e(f"s_memtime s[{SB+2*i}:{SB+1+2*i}]")
def fstamp(i):
    if STAMP and FINE == 1: e(f"s_memtime s[{SB+2*i}:{SB+1+2*i}]")
def stamp(i):
    if FINE == 1 and 9 <= i <= 12: return
    if FINE in (2, 4) and 1 <= i <= 6: return
    if FINE == 3 and 10 <= i <= 12: return
    if FINE == 5 and (5 <= i <= 12 or i == 1):
        if i == 7: e(f's_memtime s[{SB+2}:{SB+3}]')
        return
    if PROBE == i: e("s_memrealtime s[96:97]")
    if STAMP: e(f"s_memtime s[{SB+2*i}:{SB+1+2*i}]")

e(f"""; Wide & Deep recsys forward, gfx950: per-field projected tables P[f][v] = table[v] @ W1_f built on MFMA into LDS,
; @launch grid=(256,1,1) block=(512,1,1) lds=163840
.amdgcn_target "amdgcn-amd-amdhsa--gfx950"
.text
.globl {KN}
.p2align 8
.type {KN},@function
{KN}:""")

VOFF = 0; SIDX = 1; T0 = 2; T1 = 3; AC = 4
DAT = 8; TAB = 32; ACC = 96; POOL = 128; D0 = 192; D1 = 208; W1 = 224
S_WAVE = 3; S_IDX = 20; S_IDX2 = 21; S_W1 = 22; S_M0A = 23; S_M0B = 24; S_CNT = 25; S_BS = 26; S_CS = 27; S_PID = 28; S_N = 29
S_T = 30; S_U = 31
LANE = 8; L16 = 9
XA = POOL; XF = POOL + 16; XC = POOL + 48; XD = POOL + 16
PLO = "0x05040100"; PHI = "0x07060302"

HOLD = POOL + 32
FLGB = 0x330000
S_FB = 55; S_HP = 54
L_CTR = L_STG + 8192; L_XC2 = L_STG
DELTA = 28800
def piece_lane():
    e(f"v_lshrrev_b32 v10, 2, v{LANE}\nv_and_b32 v11, 1, v{LANE}\nv_and_b32 v12, 2, v{LANE}")
    e("v_lshlrev_b32 v13, 3, v10\nv_lshl_or_b32 v13, v11, 15, v13\nv_lshl_or_b32 v13, v12, 11, v13")
def piece_src(fp0):
    e(f"s_lshr_b32 s{S_T}, s{S_CS}, 2\ns_lshl_b32 s{S_T}, s{S_T}, 16\ns_and_b32 s{S_U}, s{S_CS}, 3\ns_lshl_b32 s{S_U}, s{S_U}, 13\ns_add_u32 s{S_T}, s{S_T}, s{S_U}")
    e(f"s_lshl_b32 s{S_U}, s{S_BS}, 7\ns_add_u32 s{S_T}, s{S_T}, s{S_U}\ns_add_u32 s{S_T}, s{S_T}, {fp0*65536:#x}")
def piece_ld(b):
    for j in range(8): e(f"buffer_load_dwordx2 v[{b+2*j}:{b+2*j+1}], v13, s[16:19], s{S_T} offen offset:{j*512}")
def piece_dst(fp0):
    e(f"v_mul_u32_u24 v18, {WSTR}, v10\nv_and_b32 v10, 3, v{LANE}\nv_lshl_add_u32 v18, v10, 4, v18")
    e(f"s_mul_i32 s70, s{S_BS}, {16*WSTR}\ns_lshr_b32 s{S_T}, s{S_CS}, 2\ns_lshl_b32 s{S_T}, s{S_T}, 10\ns_add_u32 s70, s70, s{S_T}")
    e(f"s_and_b32 s{S_T}, s{S_CS}, 3\ns_lshl_b32 s{S_T}, s{S_T}, 7\ns_add_u32 s70, s70, s{S_T}\ns_add_u32 s70, s70, {W1P + (fp0-16)*1024:#x}")
def piece_perm(src, dst):
    e(f"s_mov_b32 s{S_T}, {PLO}\ns_mov_b32 s{S_U}, {PHI}")
    for cp in range(2):
        for par in range(2):
            r = dst + 8 * cp + 4 * par
            for jj in range(4):
                r0 = src + 4 * jj + cp
                e(f"v_perm_b32 v{r+jj}, v{r0+2}, v{r0}, s{S_U if par else S_T}")
            e(f"buffer_store_dwordx4 v[{r}:{r+3}], v18, s[4:7], s70 offen offset:{par*512+cp*64} sc1")
def tab_dma(vt, count=True):
    e(f"s_add_u32 s{S_T}, s{S_M0A}, {vt*32768}\ns_mov_b32 m0, s{S_T}\ns_nop 0")
    for i in range(4):
        e(f"buffer_load_dwordx4 v{14 + i%2}, s[12:15], s{S_T} offen offset:{i*1024} lds")
        if count: vm.issue(("t", vt))
def xconsts(rowshift):
    e(f"v_lshl_add_u32 v17, v{LANE}, {rowshift}, s{S_T}")
    for t in range(16):
        e(f"v_add_u32 v16, {t}, v{LANE}\nv_and_b32 v{XF+t}, 15, v16\nv_lshl_add_u32 v{XA+t}, v{XF+t}, 2, v17")
    for u in range(8): e(f"v_lshl_or_b32 v{XC+u}, v{XF+2*u+1}, 16, v{XF+2*u}")
def idx_dst():
    e(f"s_lshr_b32 s70, s{S_PID}, 3\ns_mul_i32 s70, s70, {ISTR}\ns_add_u32 s70, s70, {IDXP:#x}")
    e(f"s_bfe_u32 s{S_T}, s{S_PID}, 0x10002\ns_lshl_b32 s{S_T}, s{S_T}, 13\ns_add_u32 s70, s70, s{S_T}")
    e(f"s_and_b32 s{S_T}, s{S_PID}, 3\ns_lshl_b32 s{S_T}, s{S_T}, 8\ns_add_u32 s70, s70, s{S_T}")
    e(f"s_lshl_b32 s{S_T}, s{S_CNT}, 14\ns_add_u32 s70, s70, s{S_T}\ns_add_u32 s71, s70, 16384")
def xform(off, dst, store):
    for t in range(16): e(f"ds_read_b32 v{XD+t}, v{XA+t} offset:{off}")
    for u in range(8):
        e(f"s_waitcnt lgkmcnt({14-2*u})")
        e(f"v_lshl_add_u32 v{XD+2*u}, v{XD+2*u+1}, 16, v{XD+2*u}")
        e(f"v_lshl_add_u32 v{dst+u}, v{XD+2*u}, 4, v{XC+u}")
        if store and u % 4 == 3: e(f"buffer_store_dwordx4 v[{dst+u-3}:{dst+u}], v{VOFF}, s[4:7], s70 offen offset:{(u//4)*128} sc1")
def role_old(tag, f12, f3, f0):
    e(f"s_cmp_eq_u32 s{S_WAVE}, 0\ns_cbranch_scc1 {tag}_w0\ns_cmp_eq_u32 s{S_WAVE}, 3\ns_cbranch_scc1 {tag}_w3")
    f12(); e(f"s_branch {tag}_join\n{tag}_w3:"); f3(); e(f"s_branch {tag}_join\n{tag}_w0:"); f0(); e(f"{tag}_join:")
def xf3():
    e(f"s_mov_b32 s{S_T}, 0x40014000\ns_mov_b32 s{S_U}, 0x40034002")
    e("v_lshl_add_u32 v28, v29, 16, v28\nv_lshl_add_u32 v30, v31, 16, v30")
    e(f"v_lshl_add_u32 v28, v28, 2, s{S_T}\nv_lshl_add_u32 v30, v30, 2, s{S_U}")
    e(f"v_and_b32 v29, 1, v{LANE}\nv_lshlrev_b32 v29, 4, v29\nv_and_b32 v31, 2, v{LANE}\nv_cmp_ne_u32 vcc, 0, v31")
    e("v_alignbit_b32 v28, v28, v28, v29\nv_alignbit_b32 v30, v30, v30, v29")
    e(f"v_cndmask_b32 v{HOLD}, v28, v30, vcc\nv_cndmask_b32 v{HOLD+1}, v30, v28, vcc")
def raw(lo, hi):
    for n in range(lo, hi):
        s_, j = n // 8, n % 8
        e(f"buffer_load_dword v{POOL+n}, v18, s[16:19], s71 offen offset:{j*512}")
        if j == 7 and s_ < 3: e("s_add_u32 s71, s71, 8192")
def voff_ws():
    e(f"s_load_dword s{S_N}, s[54:55], {EPOCH}")
    srd(4, 54, WS_SZ)
    srd(12, 34, 128000)
    e(f"v_and_b32 v16, 28, v{LANE}\nv_lshlrev_b32 v{VOFF}, 8, v16\nv_and_b32 v16, 1, v{LANE}\nv_lshl_or_b32 v{VOFF}, v16, 6, v{VOFF}")
    e(f"v_and_b32 v16, 32, v{LANE}\nv_or_b32 v{VOFF}, v{VOFF}, v16\nv_and_b32 v16, 2, v{LANE}\nv_lshl_or_b32 v{VOFF}, v16, 3, v{VOFF}")
def sloads(): pass
def params():
    e(f"s_lshl_b32 s{S_T}, s{S_CS}, 3")
    e(f"s_load_dwordx2 s[52:53], s[44:45], s{S_T}")
    e(f"s_load_dwordx2 s[58:59], s[46:47], s{S_T}")
    e("s_load_dwordx8 s[60:67], s[38:39], 0")
    e("s_load_dword s68, s[40:41], 0\ns_load_dword s69, s[48:49], 0")
def common():
    e(f"v_lshlrev_b32 v{L16}, 4, v{LANE}")
    e(f"v_lshrrev_b32 v16, 4, v{LANE}\nv_and_b32 v17, 7, v{LANE}\nv_xor_b32 v16, v16, v17\nv_lshlrev_b32 v16, 4, v16")
    e(f"v_lshrrev_b32 v17, 3, v{LANE}\nv_lshl_or_b32 v14, v17, 7, v16\nv_xor_b32 v15, 64, v14")
    e(f"v_bfe_u32 v19, v{LANE}, 2, 2\nv_bfe_u32 v20, v{LANE}, 4, 1\nv_lshlrev_b32 v20, 1, v20\nv_mov_b32 v21, 0x3f80")
    e("v_cmp_eq_u32 vcc, v19, v20\nv_add_u32 v20, 1, v20\ns_nop 0")
    e(f"v_cndmask_b32 v{AC}, 0, v21, vcc\nv_cndmask_b32 v{AC+1}, 0, v21, vcc")
    e(f"v_cmp_eq_u32 vcc, v19, v20\nv_and_b32 v19, 3, v{LANE}\ns_nop 0")
    e(f"v_cndmask_b32 v{AC+2}, 0, v21, vcc\nv_cndmask_b32 v{AC+3}, 0, v21, vcc")
    e(f"v_mul_u32_u24 v{SIDX}, 0x5555, v19")
    e(f"s_and_b32 s{S_U}, s{S_BS}, 1\ns_lshl_b32 s{S_U}, s{S_U}, 13\ns_mul_i32 s{S_W1}, s{S_CS}, {WSTR}\ns_add_u32 s{S_W1}, s{S_W1}, s{S_U}\ns_add_u32 s{S_W1}, s{S_W1}, {W1P:#x}")
    e(f"s_lshl_b32 s{S_U}, s{S_U}, 1\ns_add_u32 s{S_U}, s{S_U}, {IDXP:#x}\ns_lshl_b32 s{S_T}, s{S_BS}, 3\ns_add_u32 s{S_T}, s{S_T}, s{S_WAVE}\ns_mul_i32 s{S_IDX2}, s{S_T}, {ISTR}\ns_add_u32 s{S_IDX2}, s{S_IDX2}, s{S_U}")
    e(f"s_xor_b32 s{S_T}, s{S_T}, 8\ns_mul_i32 s{S_IDX}, s{S_T}, {ISTR}\ns_add_u32 s{S_IDX}, s{S_IDX}, s{S_U}")
    e(f"s_add_u32 s{S_M0B}, s{S_M0A}, {65536-DELTA}")
    e(f"s_lshl_b32 s{S_U}, s{S_WAVE}, 3\nv_and_b32 v13, 7, v{LANE}\nv_add_u32 v10, s{S_U}, v13")
    e(f"s_and_b32 s{S_U}, s{S_WAVE}, 3\ns_and_b32 s{S_T}, s{S_BS}, 1\ns_lshl_b32 s{S_T}, s{S_T}, 5\ns_add_u32 s{S_U}, s{S_U}, s{S_T}\nv_lshl_add_u32 v11, v13, 2, s{S_U}\nv_lshrrev_b32 v13, 3, v{LANE}\nv_cmp_eq_u32 vcc, 1, v13\ns_nop 1\nv_cndmask_b32 v10, v10, v11, vcc")
    e(f"s_lshr_b32 s{S_T}, s{S_CS}, 4\nv_mov_b32 v11, s{S_T}\nv_mov_b32 v16, s{S_BS}\nv_cmp_eq_u32 vcc, 0, v13\ns_nop 1\nv_cndmask_b32 v11, v11, v16, vcc")
    e(f"v_xor_b32 v16, 1, v16\nv_cmp_eq_u32 vcc, 2, v13\ns_nop 1\nv_cndmask_b32 v11, v11, v16, vcc\nv_lshl_add_u32 v10, v11, 6, v10\nv_lshlrev_b32 v19, 7, v10")
    e(f"v_and_b32 v10, 24, v{LANE}\nv_and_b32 v11, 3, v{LANE}\nv_lshl_add_u32 v10, v11, 1, v10\nv_bfe_u32 v12, v{LANE}, 2, 1\nv_add_u32 v10, v10, v12\nv_lshlrev_b32 v10, 7, v10")
    e(f"v_bfe_u32 v12, v{LANE}, 3, 1\nv_lshl_or_b32 v11, v12, 2, v11\nv_lshrrev_b32 v12, 5, v{LANE}\nv_xor_b32 v11, v11, v12\nv_lshl_or_b32 v10, v11, 4, v10")
    e(f"v_add_u32 v20, s{S_M0A}, v10\nv_add_u32 v12, {L_XCH}, v{L16}")
    for s_ in range(1, 4): e(f"v_xor_b32 v{20+s_}, {s_*32}, v20")
    e(f"v_add_u32 v16, {L_XC2}, v{L16}\ns_lshl_b32 s{S_U}, s{S_WAVE}, 10\nv_add_u32 v17, s{S_U}, v16")
def common_b():
    e(f"s_not_b32 s{S_N}, s{S_N}")
def tab_rd(vt):
    if STAMP and FINE == 5: e(f"s_memtime s[{SB+10+4*vt}:{SB+11+4*vt}]")
    wait_vm(("td", vt), ("t", vt))
    if STAMP and FINE == 5: e(f"s_memtime s[{SB+12+4*vt}:{SB+13+4*vt}]")
    if vt == 2:
        for s in range(4): e(f"v_add_u32 v{20+s}, 0x10000, v{20+s}")
    for s in range(4):
        r = TAB + 16 * vt + 4 * s
        e(f"ds_read_b128 v[{r}:{r+3}], v{20+s} offset:{(vt%2)*32768}")
def ldw(i):
    e(f"buffer_load_dwordx4 v[{W1+4*i}:{W1+4*i+3}], v{VOFF}, s[4:7], s{S_W1} offen offset:{i*128} sc1")
    vm.issue(("w", i))
def ldi(reg, k, tag):
    e(f"buffer_load_dwordx4 v[{reg}:{reg+3}], v{VOFF}, s[4:7], s{S_IDX if k < 8 else S_IDX2} offen offset:{(k%8)*128} sc1")
    vm.issue(tag)
def mf(vt, i, base=D0):
    s, par = i // 2, i % 2
    d = base + 16 * par
    c = "0" if s == 0 else f"v[{d}:{d+15}]"
    e(f"v_mfma_f32_32x32x16_bf16 v[{d}:{d+15}], v[{TAB+16*vt+4*s}:{TAB+16*vt+4*s+3}], v[{W1+16*par+4*s}:{W1+16*par+4*s+3}], {c}")
def frag_of(i): return (i % 2) * 4 + i // 2
def cvt(dst, r, base=D0): e(f"v_cvt_pk_bf16_f32 v{dst}, v{base+r}, v{base+16+r}")
def wr(src, vt, r):
    off = (vt % 2) * 32768 + r * 256 + (DELTA if vt >= 2 else 0)
    e(f"ds_write_addtid_b32 v{src} offset:{off}")
SD = "dst_sel:DWORD dst_unused:UNUSED_PAD src0_sel:DWORD"
def unpack(w0):
    e(f"v_lshlrev_b32_sdwa v{T0}, 3, v{w0} {SD} src1_sel:WORD_1")
    e(f"v_lshlrev_b32_sdwa v{w0}, 3, v{w0} {SD} src1_sel:WORD_0")
    e(f"v_lshlrev_b32_sdwa v{T1}, 3, v{w0+1} {SD} src1_sel:WORD_1")
    e(f"v_lshlrev_b32_sdwa v{w0+1}, 3, v{w0+1} {SD} src1_sel:WORD_0")
def reads(w0, slot):
    d = DAT + 8 * slot
    for i, a in enumerate((w0, T0, w0 + 1, T1)):
        e(f"ds_read_b64 v[{d+2*i}:{d+2*i+1}], v{a}")
def smf(g, slot):
    d = DAT + 8 * slot; a = ACC + 4 * g
    e(f"v_smfmac_f32_16x16x64_bf16 v[{a}:{a+3}], v[{AC}:{AC+3}], v[{d}:{d+7}], v{SIDX}")
def cpf_code(dst):
    e(f"s_getpc_b64 s[70:71]\ncpf_base:\ns_lshr_b32 s{S_U}, s2, 3\ns_mul_i32 s{S_U}, s{S_U}, {CPL*128}\nv_min_u32 v2, {CPL-1}, v{LANE}\nv_lshl_add_u32 v2, v2, 7, s{S_U}\nv_min_u32 v2, done-cpf_base, v2\nv_mov_b32 v3, s71")
    e("v_add_co_u32 v2, vcc, s70, v2\ns_nop 1\nv_addc_co_u32 v3, vcc, 0, v3, vcc")
    e(f"global_load_dword v{dst}, v[2:3], off")
def poll_issue():
    if CPF == 2:
        e(f"s_cmp_lg_u32 s{S_WAVE}, 7\ns_cbranch_scc1 1f")
        cpf_code(11)
        e("1:")
    stamp(5)
    e(f"s_mov_b32 s{S_T}, {FLG:#x}")
    e(f"buffer_load_dword v10, v19, s[4:7], s{S_T} offen sc1"); vm.issue("poll")
def poll_check():
    e(f"s_mov_b32 s{S_CNT}, 0\ns_mov_b32 s{S_T}, {FLG:#x}")
    wait_vm("pollw", "poll")
    e("poll1:")
    e(f"v_cmp_ne_u32 vcc, s{S_N}, v10\ns_cbranch_vccz poll1_done")
    e(f"s_sleep 8\nbuffer_load_dword v10, v19, s[4:7], s{S_T} offen sc1")
    e(f"s_add_u32 s{S_CNT}, s{S_CNT}, 1\ns_waitcnt vmcnt(0)\ns_cmp_lt_u32 s{S_CNT}, 0x40000\ns_cbranch_scc1 poll1")
    e("poll1_done:")
    stamp(6)
    e(f"s_lshl_b32 s{S_T}, s{S_WAVE}, 7\ns_add_u32 s{S_T}, s{S_T}, s{S_W1}")
    e(f"buffer_load_dwordx4 v[24:27], v{VOFF}, s[4:7], s{S_T} offen sc1"); vm.issue("w1x")
    for i in range(8): vm.tag[("w", i)] = vm.n
    for k in range(KA): ldi(POOL + 4 * k, k, ("i", k))

e("s_cmp_ge_u32 s2, 256\ns_cbranch_scc1 done")
e("s_load_dwordx16 s[32:47], s[0:1], 0")
e("s_load_dwordx8 s[48:55], s[0:1], 64")
if STAMP: e(f"s_memtime s[{SB}:{SB+1}]")
if STAMP or FIX: e("s_memrealtime s[100:101]")
e(f"v_lshrrev_b32 v1, 6, v0\nv_and_b32 v{LANE}, 63, v0")
e(f"v_readfirstlane_b32 s{S_WAVE}, v1")
if XMAP == 2:
    e(f"s_and_b32 s{S_BS}, s2, 3\ns_and_b32 s{S_CS}, s2, 4\ns_lshl_b32 s{S_CS}, s{S_CS}, 3\ns_lshr_b32 s{S_T}, s2, 3\ns_add_u32 s{S_CS}, s{S_CS}, s{S_T}")
elif XMAP:
    e(f"s_bfe_u32 s{S_BS}, s2, 0x20002\ns_and_b32 s{S_CS}, s2, 3\ns_lshl_b32 s{S_CS}, s{S_CS}, 4\ns_lshr_b32 s{S_T}, s2, 4\ns_add_u32 s{S_CS}, s{S_CS}, s{S_T}")
else:
    e(f"s_and_b32 s{S_BS}, s2, 3\ns_lshr_b32 s{S_CS}, s2, 2")
e(f"s_lshl_b32 s{S_PID}, s{S_BS}, 6\ns_add_u32 s{S_PID}, s{S_PID}, s{S_CS}")
e(f"s_lshl_b32 s{S_M0A}, s{S_WAVE}, 12\nv_mov_b32 v18, 0\nv_mov_b32 v14, 0\nv_mov_b32 v15, 0\nv_mov_b32 v19, 0\ns_mul_i32 s71, s{S_PID}, 25600")
e("s_mov_b32 s10, 0x640000\ns_mov_b32 s11, 0x20000\ns_mov_b32 s18, 0x320000\ns_mov_b32 s19, 0x20000")
e(f"s_cmp_lt_u32 s{S_WAVE}, 4\ns_cbranch_scc1 a_old")
e(f"s_cmp_eq_u32 s{S_WAVE}, 7\ns_cbranch_scc1 a_w7\ns_cmp_eq_u32 s{S_WAVE}, 6\ns_cbranch_scc1 a_pc")
e(f"s_setprio 3\ns_sub_u32 s{S_CNT}, s{S_WAVE}, 4")
e(f"v_lshrrev_b32 v10, 2, v{LANE}\nv_mul_u32_u24 v10, 400, v10\nv_and_b32 v11, 3, v{LANE}\nv_lshl_add_u32 v10, v11, 4, v10")
e(f"s_lshl_b32 s{S_T}, s{S_CNT}, 6\ns_add_u32 s{S_T}, s{S_T}, s71")
e(f"s_lshl_b32 s{S_U}, s{S_CNT}, 12\ns_add_u32 s{S_U}, s{S_U}, {L_STG}\ns_mov_b32 m0, s{S_U}\nv_lshl_add_u32 v17, v{LANE}, 6, s{S_U}")
e("s_waitcnt lgkmcnt(0)\ns_mov_b32 s8, s32\ns_mov_b32 s9, s33")
for i in range(4):
    e(f"buffer_load_dwordx4 v10, s[8:11], s{S_T} offen lds")
    if i < 3: e(f"s_add_u32 m0, m0, 1024\ns_add_u32 s{S_T}, s{S_T}, 6400")
e("s_barrier\ns_branch b_x")
e("a_pc:\ns_setprio 3")
piece_lane(); piece_src(16)
e(f"s_waitcnt lgkmcnt(0)\ns_mov_b32 s16, s42\ns_mov_b32 s17, s43")
hstamp(10)
if not A("NOP", 0): piece_ld(POOL)
hstamp(11)
e("s_barrier")
hstamp(12)
e("s_branch b_pc")
e("a_old:")
e(f"v_mov_b32 v10, {L_CTR}\nds_write_b64 v10, v[18:19]")
if PFW:
    if XMAP == 2: e(f"v_lshlrev_b32 v16, 9, v{LANE}\ns_and_b32 s{S_U}, s{S_CS}, 15\ns_lshl_b32 s{S_U}, s{S_U}, 15\ns_lshl_b32 s{S_T}, s{S_CS}, 3\ns_add_u32 s{S_U}, s{S_U}, s{S_T}")
    else: e(f"v_and_b32 v16, 31, v{LANE}\nv_lshlrev_b32 v16, 9, v16\ns_lshr_b32 s{S_U}, s2, 3\ns_lshl_b32 s{S_U}, s{S_U}, 14\ns_lshl_b32 s{S_T}, s{S_CS}, 3\ns_add_u32 s{S_U}, s{S_U}, s{S_T}")
e(f"s_and_b32 s{S_T}, s{S_BS}, 1\ns_lshl_b32 s{S_T}, s{S_T}, 19\ns_add_u32 s{S_U}, s{S_U}, s{S_T}\ns_waitcnt lgkmcnt(0)")
if PFW == 2: e("s_barrier")
if PFW:
    e(f"s_mov_b32 s16, s42\ns_mov_b32 s17, s43\ns_cmp_lg_u32 s{S_WAVE}, 3\ns_cbranch_scc1 1f\nbuffer_load_dword v{D0}, v16, s[16:19], s{S_U} offen\n1:")
if PFW != 2: e("s_barrier")
e("s_branch c_all")
e("a_w7:")
if CPF == 1: cpf_code(D0)
e("s_setprio 2\ns_barrier")
e(f"v_bfe_u32 v16, v{LANE}, 1, 4\nv_lshlrev_b32 v18, 15, v16\nv_lshrrev_b32 v16, 5, v{LANE}\nv_lshl_or_b32 v18, v16, 12, v18\nv_and_b32 v16, 1, v{LANE}\nv_lshl_or_b32 v18, v16, 2, v18")
e(f"v_and_b32 v16, 31, v{LANE}\nv_lshlrev_b32 v16, 7, v16\ns_lshr_b32 s{S_U}, s2, 3\ns_lshl_b32 s{S_U}, s{S_U}, 12")
e(f"s_lshl_b32 s71, s{S_CS}, 3\ns_and_b32 s{S_T}, s{S_BS}, 1\ns_lshl_b32 s{S_T}, s{S_T}, 19\ns_add_u32 s71, s71, s{S_T}")
e("s_waitcnt lgkmcnt(0)\ns_mov_b32 s16, s42\ns_mov_b32 s17, s43")
srd(12, 34, 128000)
e(f"buffer_load_dword v{D0}, v16, s[12:15], s{S_U} offen")
raw(0, R1)
e("s_branch c_all")
e("b_x:")
voff_ws()
e(f"v_and_b32 v16, 15, v{LANE}\nv_lshl_add_u32 v{XA}, v16, 2, v17\nv_xor_b32 v17, 1, v16\nv_lshl_or_b32 v{XC}, v17, 16, v16")
for t in range(1, 16): e(f"v_xor_b32 v{XA+t}, {4*t}, v{XA}")
for u in range(1, 8): e(f"v_xor_b32 v{XC+u}, {2*u*0x10001:#x}, v{XC}")
idx_dst()
e("s_waitcnt vmcnt(0)")
stamp(1)
xform(0, HOLD, True)
e("s_barrier\ns_branch c_all2")
e("b_pc:")
voff_ws()
piece_dst(16)
e("s_waitcnt vmcnt(0)")
stamp(1)
piece_perm(POOL, HOLD)
e("s_barrier\ns_branch c_all2")
e("c_all:")
voff_ws()
e("c_all2:")
sloads(); common()
e(f"s_cmp_eq_u32 s{S_WAVE}, 7\ns_cbranch_scc1 d_w7\ns_cmp_lt_u32 s{S_WAVE}, 4\ns_cbranch_scc1 d_old")
if OD < 0: e("s_barrier")
e(f"v_mov_b32 v10, {L_CTR}\nv_mov_b32 v11, 1\ns_mov_b64 exec, 1\ns_waitcnt vmcnt(0)")
e("ds_add_rtn_u32 v13, v10, v11")
e(f"s_lshl_b32 s{S_T}, s{S_PID}, 7\ns_add_u32 s{S_T}, s{S_T}, {FLG:#x}\nv_mov_b32 v10, 0\ns_waitcnt lgkmcnt(0)")
e(f"v_readfirstlane_b32 s{S_U}, v13\nv_not_b32 v11, s{S_N}\ns_cmp_lg_u32 s{S_U}, 2\ns_cbranch_scc1 b_nosig")
e(f"buffer_store_dword v11, v10, s[4:7], s{S_T} offen sc1")
e("b_nosig:\ns_mov_b64 exec, -1\ns_setprio 0\ns_branch e_join")
e("d_w7:")
stamp(1)
e("s_mov_b32 s16, s42\ns_mov_b32 s17, s43\ns_barrier")
raw(R1, 32)
for vt in range(W7T): tab_dma(vt, False)
if OD < 0: e("s_barrier")
for vt in range(W7T, PRE - W7A): tab_dma(vt, False)
e(f"s_mov_b32 s{S_T}, {PLO}\ns_mov_b32 s{S_U}, {PHI}")
for s in range(4):
    e(f"s_waitcnt vmcnt({24-8*s+4*(PRE-W7A)})")
    for jj in range(4):
        r0 = POOL + 8 * s + 2 * jj
        e(f"v_perm_b32 v{POOL+32+8*s+jj}, v{r0+1}, v{r0}, s{S_T}")
        e(f"v_perm_b32 v{POOL+36+8*s+jj}, v{r0+1}, v{r0}, s{S_U}")
    e(f"ds_write_b128 v12, v[{POOL+32+8*s}:{POOL+35+8*s}] offset:{s*1024}")
    e(f"ds_write_b128 v12, v[{POOL+36+8*s}:{POOL+39+8*s}] offset:{4096+s*1024}")
if SPIN: e(f"v_mov_b32 v10, {L_CTR}\nv_mov_b32 v11, 1\nds_write_b32 v10, v11 offset:4")
stamp(2)
for vt in range(W7A): tab_dma(vt, False)
e("s_branch b_all")
e("d_old:")
stamp(1)
e("s_barrier")
def warm(tag, nseg, w0):
    if not WARM: return
    e("s_mov_b64 exec, 0")
    for k in range(nseg - 1): e(f"s_cmp_eq_u32 s{S_WAVE}, {w0+k}\ns_cbranch_scc1 @SEG_{tag}_{k}")
    e(f"s_branch @SEG_{tag}_{nseg-1}")
    e(f"warm_ret_{tag}:\ns_mov_b64 exec, -1")
if OD > 0: e(f"s_sleep {OD}")
if OD < 0: e("s_barrier")
e("e_join:")
stamp(2)
for vt in range(PRE): tab_dma(vt)
e("s_setprio 0")
warm("B", 7, 0)
e("b_all:")
if SPIN:
    e(f"s_setprio 0\nv_mov_b32 v10, {L_CTR}\ns_mov_b32 s{S_T}, 0")
    e(f"spin1:\nds_read_b32 v11, v10 offset:4\ns_add_u32 s{S_T}, s{S_T}, 1\ns_waitcnt lgkmcnt(0)\ns_cmp_gt_u32 s{S_T}, 0x1000000\ns_cbranch_scc1 1f")
    e("v_cmp_eq_u32 vcc, 0, v11\ns_cbranch_vccnz spin1\n1:")
else: e("s_setprio 0\ns_waitcnt lgkmcnt(0)\ns_barrier")
pass
stamp(3)
for i in range(8): e(f"ds_read_b128 v[{W1+4*i}:{W1+4*i+3}], v12 offset:{i*1024}")
if PI == -1: poll_issue()
common_b()
if PRE < 4: tab_dma(PRE)
tab_rd(0)
stamp(4)
L_PC = L_XCH; L_EX = 128000 + 64; L_HC = 128000; L_TB = L_XC2
ACCB = TAB; TABH = TAB + 32
def lane_to(r): e(f"v_mbcnt_lo_u32_b32 v{r}, -1, 0\nv_mbcnt_hi_u32_b32 v{r}, -1, v{r}")
DA = D0
def dl12():
    e(f"v_lshrrev_b32 v{DA+1}, 3, v{DA}\nv_mul_u32_u24 v{DA+1}, 400, v{DA+1}\nv_and_b32 v{DA}, 7, v{DA}\nv_lshl_add_u32 v{DA}, v{DA}, 4, v{DA+1}")
    e(f"s_lshl_b32 s{S_T}, s{S_WAVE}, 7\ns_add_u32 s{S_T}, s{S_T}, s71")
    e(f"s_lshl_b32 s{S_U}, s{S_WAVE}, 13\ns_add_u32 m0, s{S_U}, {L_STG}\ns_nop 0")
    for i in range(8):
        e(f"buffer_load_dwordx4 v{DA}, s[8:11], s{S_T} offen lds")
        if i < 7: e(f"s_add_u32 m0, m0, 1024\ns_add_u32 s{S_T}, s{S_T}, 3200")
def dlp(fp0, lds):
    e(f"v_lshrrev_b32 v{DA+1}, 3, v{DA}\nv_and_b32 v{DA}, 7, v{DA}\nv_lshlrev_b32 v{DA}, 4, v{DA}\nv_lshl_or_b32 v{DA}, v{DA+1}, 9, v{DA}")
    piece_src(fp0)
    e(f"s_mov_b32 m0, {lds}\ns_nop 0")
    for i in range(4):
        e(f"buffer_load_dwordx4 v{DA}, s[16:19], s{S_T} offen lds")
        if i < 3: e(f"s_add_u32 m0, m0, 1024\ns_add_u32 s{S_T}, s{S_T}, {(4096, 28672, 4096)[i]}")
def dl3():
    e(f"v_mul_u32_u24 v{DA+2}, 400, v{DA}\ns_add_u32 s{S_T}, s71, 384\ns_mov_b32 m0, {L_EX}\ns_nop 0\nbuffer_load_dwordx4 v{DA+2}, s[8:11], s{S_T} offen lds")
    dlp(48, L_PC + 4096)
def dl0():
    e(f"v_and_b32 v{DA+1}, 24, v{DA}\nv_and_b32 v{DA+2}, 3, v{DA}\nv_lshl_add_u32 v{DA+1}, v{DA+2}, 1, v{DA+1}\nv_bfe_u32 v{DA+2}, v{DA}, 2, 1\nv_add_u32 v{DA+1}, v{DA+1}, v{DA+2}\nv_lshlrev_b32 v{DA+1}, 7, v{DA+1}\nv_lshrrev_b32 v{DA+2}, 5, v{DA}\nv_lshl_add_u32 v{DA+2}, v{DA+2}, 4, v{DA+1}")
    e(f"s_lshr_b32 s{S_T}, s{S_CS}, 3\ns_lshl_b32 s{S_T}, s{S_T}, 12\ns_bfe_u32 s{S_U}, s{S_CS}, 0x10002\ns_lshl_b32 s{S_U}, s{S_U}, 15\ns_add_u32 s{S_T}, s{S_T}, s{S_U}\ns_and_b32 s{S_U}, s{S_CS}, 3\ns_lshl_b32 s{S_U}, s{S_U}, 5\ns_mov_b32 m0, {L_TB}\ns_add_u32 s{S_T}, s{S_T}, s{S_U}")
    e(f"buffer_load_dwordx4 v{DA+2}, s[12:15], s{S_T} offen lds")
    srd(8, 36, 16384 * 26)
    e(f"s_lshr_b32 s{S_T}, s{S_PID}, 2\ns_lshl_b32 s{S_T}, s{S_T}, 8\ns_and_b32 s{S_U}, s{S_PID}, 3\ns_lshl_b32 s{S_U}, s{S_U}, 4\ns_add_u32 s{S_T}, s{S_T}, s{S_U}\ns_mul_i32 s{S_T}, s{S_T}, 26\ns_mov_b32 m0, {L_TB+1024}")
    e(f"v_lshrrev_b32 v{DA+1}, 4, v{DA}\nv_mul_u32_u24 v{DA+1}, 1664, v{DA+1}\nv_and_b32 v{DA+2}, 15, v{DA}\nv_mul_u32_u24 v{DA+2}, 28, v{DA+2}\nv_add_u32 v{DA+2}, v{DA+2}, v{DA+1}")
    e(f"buffer_load_dword v{DA+2}, s[8:11], s{S_T} offen lds")
    dlp(32, L_PC)
O0 = O1 = ACCB + 16; U0 = ACCB + 24; U1 = ACCB + 25; DD = ACCB
def dx12():
    e(f"s_lshl_b32 s{S_CNT}, s{S_WAVE}, 1")
    idx_dst()
    e(f"s_lshl_b32 s{S_U}, s{S_WAVE}, 13\ns_add_u32 s{S_U}, s{S_U}, {L_STG}")
    e(f"v_and_b32 v{U1}, 15, v{U0}\nv_lshl_add_u32 v{U0}, v{U0}, 7, s{S_U}\nv_lshl_add_u32 v{U0}, v{U1}, 2, v{U0}\nv_xor_b32 v{O0}, 1, v{U1}\nv_lshl_or_b32 v{U1}, v{O0}, 16, v{U1}")
    for h, o in ((0, O0), (1, O1)):
        for t in range(16): e(f"v_xor_b32 v{DD+t}, {4*t}, v{U0}\nds_read_b32 v{DD+t}, v{DD+t} offset:{64*h}")
        for u in range(8):
            e(f"v_xor_b32 v{o+u}, {2*u*0x10001:#x}, v{U1}\ns_waitcnt lgkmcnt({14-2*u})")
            e(f"v_lshl_add_u32 v{DD+2*u}, v{DD+2*u+1}, 16, v{DD+2*u}")
            e(f"v_lshl_add_u32 v{o+u}, v{DD+2*u}, 4, v{o+u}")
            if u % 4 == 3: e(f"buffer_store_dwordx4 v[{o+u-3}:{o+u}], v{VOFF}, s[4:7], s{70+h} offen offset:{(u//4)*128} sc1")
def dxp(fp0, lds):
    e(f"v_lshrrev_b32 v{O0}, 2, v{U0}\nv_and_b32 v{O0+1}, 1, v{U0}\nv_and_b32 v{O0+2}, 2, v{U0}\nv_lshlrev_b32 v{U1}, 3, v{O0}\nv_lshl_or_b32 v{U1}, v{O0+1}, 11, v{U1}\nv_lshl_or_b32 v{U1}, v{O0+2}, 9, v{U1}\nv_add_u32 v{U1}, {lds}, v{U1}")
    for j in range(8): e(f"ds_read_b64 v[{DD+2*j}:{DD+2*j+1}], v{U1} offset:{j*128}")
    e(f"v_mul_u32_u24 v{O0}, {WSTR}, v{O0}\nv_and_b32 v{U0}, 3, v{U0}\nv_lshl_add_u32 v{U0}, v{U0}, 4, v{O0}")
    e(f"s_mul_i32 s70, s{S_BS}, {16*WSTR}\ns_lshr_b32 s{S_T}, s{S_CS}, 2\ns_lshl_b32 s{S_T}, s{S_T}, 10\ns_add_u32 s70, s70, s{S_T}")
    e(f"s_and_b32 s{S_T}, s{S_CS}, 3\ns_lshl_b32 s{S_T}, s{S_T}, 7\ns_add_u32 s70, s70, s{S_T}\ns_add_u32 s70, s70, {W1P + (fp0-16)*1024:#x}")
    e(f"s_mov_b32 s{S_T}, {PLO}\ns_mov_b32 s{S_U}, {PHI}\ns_waitcnt lgkmcnt(0)")
    for cp in range(2):
        for par in range(2):
            r = (O0, O1)[cp] + 4 * par
            for jj in range(4):
                r0 = DD + 4 * jj + cp
                e(f"v_perm_b32 v{r+jj}, v{r0+2}, v{r0}, s{S_U if par else S_T}")
            e(f"buffer_store_dwordx4 v[{r}:{r+3}], v{U0}, s[4:7], s70 offen offset:{par*512+cp*64} sc1")
def dx3():
    a = DD
    e(f"v_lshlrev_b32 v{U1}, 4, v{U0}\nv_add_u32 v{U1}, {L_EX}, v{U1}\nds_read_b128 v[{a}:{a+3}], v{U1}")
    e(f"s_lshr_b32 s70, s{S_PID}, 3\ns_mul_i32 s70, s70, {ISTR}\ns_add_u32 s70, s70, {IDXP + 6*16384:#x}")
    e(f"s_and_b32 s{S_T}, s{S_PID}, 7\ns_lshl_b32 s{S_T}, s{S_T}, 9\ns_add_u32 s70, s70, s{S_T}")
    e(f"v_and_b32 v{U1}, 31, v{U0}\nv_lshlrev_b32 v{U1}, 4, v{U1}\nv_lshrrev_b32 v{a+4}, 5, v{U0}\nv_lshl_or_b32 v{U1}, v{a+4}, 3, v{U1}")
    e(f"s_mov_b32 s{S_T}, 0x40014000\ns_mov_b32 s{S_U}, 0x40034002\ns_waitcnt lgkmcnt(0)")
    e(f"v_lshl_add_u32 v{a}, v{a+1}, 16, v{a}\nv_lshl_add_u32 v{a+2}, v{a+3}, 16, v{a+2}")
    e(f"v_lshl_add_u32 v{a}, v{a}, 2, s{S_T}\nv_lshl_add_u32 v{a+2}, v{a+2}, 2, s{S_U}")
    e(f"v_and_b32 v{a+1}, 1, v{U0}\nv_lshlrev_b32 v{a+1}, 4, v{a+1}\nv_and_b32 v{a+3}, 2, v{U0}\nv_cmp_ne_u32 vcc, 0, v{a+3}")
    e(f"v_alignbit_b32 v{a}, v{a}, v{a}, v{a+1}\nv_alignbit_b32 v{a+2}, v{a+2}, v{a+2}, v{a+1}")
    e(f"v_cndmask_b32 v{O1+6}, v{a}, v{a+2}, vcc\nv_cndmask_b32 v{O1+7}, v{a+2}, v{a}, vcc")
    e(f"buffer_store_dwordx2 v[{O1+6}:{O1+7}], v{U1}, s[4:7], s70 offen sc1")
    e(f"s_cmp_ge_u32 s{S_CS}, 8\ns_cbranch_scc1 g_join")
    dxp(48, L_PC + 4096)
def dx0():
    e(f"v_lshlrev_b32 v{U1}, 4, v{U0}\nv_add_u32 v{U1}, {L_TB}, v{U1}\nds_read_b128 v[{ACCB+28}:{ACCB+31}], v{U1}")
    e(f"s_lshl_b32 s70, s{S_BS}, 17\ns_lshr_b32 s{S_T}, s{S_CS}, 3\ns_lshl_b32 s{S_T}, s{S_T}, 14\ns_add_u32 s70, s70, s{S_T}\ns_and_b32 s{S_T}, s{S_CS}, 7\ns_lshl_b32 s{S_T}, s{S_T}, 7\ns_add_u32 s70, s70, s{S_T}\ns_add_u32 s70, s70, {TABP:#x}\ns_add_u32 s71, s70, 8192\ns_waitcnt lgkmcnt(0)")
    e(f"buffer_store_dwordx4 v[{ACCB+28}:{ACCB+31}], v{VOFF}, s[4:7], s70 offen sc1")
    dxp(32, L_PC)
DB = [ACC, D0, ACC, D0]
PK = [HOLD, HOLD + 16, ACC, D0]
WQ = [0] + [int(c) for c in A("WQ", "033")] + [2]
BU = A("BU", 0)
pend = []; m0cur = [None]; lds_after = [0]
def flush(n):
    for _ in range(n):
        if not pend: return
        t, r = pend.pop(0)
        want = S_M0A if t < 2 else S_M0B
        if m0cur[0] != want: e(f"s_mov_b32 m0, s{want}\ns_nop 0"); m0cur[0] = want
        wr(PK[t] + r, t, r); lds_after[0] += 1
        g = 16 * t + r - 34
        if 0 <= g < 16: e(f"v_mov_b32 v{ACC+g}, 0")
for vt in range(5):
    m0cur[0] = None
    if vt < 4: e(f"s_waitcnt lgkmcnt({min(lds_after[0], 15)})")
    b = DB[vt - 1]
    for i in range(9):
        if vt < 4 and i < 8: mf(vt, i, base=DB[vt])
        if 0 < vt < 4 and i == 0: e("s_nop 10")
        new = []
        if vt > 0 and i < 8:
            for r in (2 * i, 2 * i + 1):
                cvt(PK[vt - 1] + r, r, b); new.append((vt - 1, r))
                if vt == 3: e(f"v_mov_b32 v{ACC+16+r}, 0")
        if BU and vt < 4: flush(8 * WQ[vt] if i == 8 else 0)
        else: flush(WQ[vt] if (vt, i) != (4, 8) else 99)
        pend += new
        if i == TRI and vt < 3: tab_rd(vt + 1); lds_after[0] = 0
    if not DE and PRE + 1 + vt < 4: tab_dma(PRE + 1 + vt)
    if vt == PI: poll_issue()
    if vt == PI + 1: poll_check()
    if vt == KT:
        assert KT >= PI + 1
        for k in range(KA, KPRE): ldi(POOL + 4 * k, k, ("i", k))
    if vt == (3 if B2 else 4):
        fstamp(9)
        wait_vm("w1xw", "w1x")
        fstamp(10)
        e("ds_write_b128 v17, v[24:27]")
        if B2:
            e("s_waitcnt lgkmcnt(0)\ns_barrier")
            fstamp(11)
            for i in range(8): e(f"ds_read_b128 v[{W1+4*i}:{W1+4*i+3}], v16 offset:{i*1024}")
e(f"s_cmp_lg_u32 s{S_WAVE}, 7\ns_cbranch_scc1 1f\nv_mov_b32 v10, {L_HC}\nv_mov_b32 v11, 0\nds_write_b32 v10, v11\n1:")
fstamp(12)
wait_vm("p0i", ("i", 1))
unpack(POOL)
e(f"s_mov_b32 s{S_CNT}, 3")
e("s_waitcnt lgkmcnt(0)\ns_barrier")
if not B2:
    for i in range(8): e(f"ds_read_b128 v[{W1+4*i}:{W1+4*i+3}], v16 offset:{i*1024}")
e("@ENDREGION")
if not B2: e("s_waitcnt lgkmcnt(0)")
stamp(7)
if STAMP == 1: e(f"s_waitcnt lgkmcnt(0)\ns_mov_b32 s40, s{SB+14}\ns_mov_b32 s42, s{SB+14}\ns_mov_b32 s44, 0\ns_mov_b32 s45, 0\ns_mov_b32 s46, 0")

assert B2
a_, b_, c_, d_ = POOL, POOL + 16, POOL + 32, POOL + 48
def g4(*bases): return [b + 4 * i for b in bases for i in range(4)]
WG = [W1 + 4 * frag_of(i) for i in range(8)]
GRP = [g4(a_, b_, c_, d_), g4(d_) + WG + g4(D1), g4(d_, b_, c_, a_), g4(d_, b_, c_, a_), g4(a_, b_, c_, d_), g4(a_, b_, c_, d_)]
for k in range(KPRE): vm.tag[("i", 0, k)] = vm.tag[("i", k)]
def ld(reg, base, off, tag, extra=""):
    e(f"s_add_u32 s{S_T}, s{base}, {off & ~1023}\nbuffer_load_dwordx4 v[{reg}:{reg+3}], v{VOFF}, s[4:7], s{S_T} offen offset:{off & 1023} sc1")
    vm.issue(tag)
def L(h, k): return lambda: ld(GRP[h][k], S_IDX2 if h % 2 else S_IDX, (h // 2) * 32768 + (k // 8) * 8192 + (k % 8) * 128, ("i", h, k))
def LW(i, off): return lambda: ld(W1 + 4 * i, S_W1, off + i * 128, ("w", i))
S_TB = 54; S_XS = 55; S_XR = 24 + 0
def LT(vt, sx): return lambda: ld(TABH + 16 * (vt % 2) + 4 * sx, S_TB, (vt // 2) * 8192 + ((vt % 2) * 4 + sx) * 128, ("tb", vt))
skip_n = [0]
def wv(tag):
    n = vm.younger(tag); assert n < 64
    if vm.tag[tag] <= skip_n[0]: e(f"s_cmp_lt_u32 s{S_WAVE}, 4\ns_cbranch_scc1 1f\ns_waitcnt vmcnt({n})\n1:")
    else: e(f"s_waitcnt vmcnt({n})")
def smf2(a, slot):
    d = DAT + 8 * slot
    e(f"v_smfmac_f32_16x16x64_bf16 v[{a}:{a+3}], v[{AC}:{AC+3}], v[{d}:{d+7}], v{SIDX}")
def mf2(tb, i):
    sx, par = i // 2, i % 2
    d = D0 + 16 * par
    c = "0" if sx == 0 else f"v[{d}:{d+15}]"
    e(f"v_mfma_f32_32x32x16_bf16 v[{d}:{d+15}], v[{tb+4*sx}:{tb+4*sx+3}], v[{W1+16*par+4*sx}:{W1+16*par+4*sx+3}], {c}")
def qunits(h): return [(GRP[h][q // 2] + 2 * (q % 2), (ACCB if h % 2 else ACC) + 4 * (q // 4), ("i", h, q // 2 + 1) if q % 4 == 0 else None) for q in range(32)]
def run(units, pre, mid, end):
    for i, u in enumerate(units):
        if i >= 3:
            e("s_waitcnt lgkmcnt(8)"); smf2(units[i - 3][1], i % 3)
        for f in pre.get(i, []): f()
        reads(u[0], i % 3)
        for f in mid.get(i, []): f()
        if i + 1 < len(units):
            if units[i + 1][2]: wv(units[i + 1][2])
            unpack(units[i + 1][0])
        for f in end.get(i, []): f()
def add(d, i, *f): d.setdefault(i, []).extend(f)
def pgen(mid, end, o, tbs, stg, waitw, waitt):
    for t in range(4):
        for i in range(8):
            if t == 0 and i % 2 == 0 and waitw: add(mid, o + MQ[i], lambda i=i: wv(("w", frag_of(i + 1))))
            if i == 0 and waitt[t] is not None: add(mid, o + 8 * t + MQ[0], lambda t=t: wv(("tb", waitt[t])))
            add(mid, o + 8 * t + MQ[i], lambda t=t, i=i: mf2(tbs[t], i))
        if stg[t] is not None: add(end, o + 8 * t + 7, lambda t=t: [cvt(stg[t] + r, r) for r in range(16)])
def tail(units, before_bar):
    n = len(units)
    e("s_waitcnt lgkmcnt(8)"); smf2(units[n - 3][1], n % 3)
    e("s_waitcnt lgkmcnt(4)"); smf2(units[n - 2][1], (n + 1) % 3)
    before_bar()
    e("s_waitcnt lgkmcnt(0)\ns_barrier")
def wphase(last, order, acts, nxt):
    n = 0; cur = None
    for vt, src in order:
        want = S_M0A if vt < 2 else S_M0B
        if want != cur: e(f"s_mov_b32 m0, s{want}\ns_nop 0"); cur = want
        for r in range(16):
            for f in acts.get(n, []): f()
            wr(src + r, vt, r)
            if n == SP: smf2(*last)
            n += 1
    wv(nxt[2]); unpack(nxt[0])
    e("s_waitcnt lgkmcnt(0)\ns_barrier")
def pst(i):
    if FINE == 4 and STAMP: e(f"s_memtime s[{SB+2*i}:{SB+1+2*i}]")

XQ = A("XQ", 32); SQ = A("SQ", 44)
units = qunits(0) + qunits(1); pre = {}; mid = {}; end = {}
pgen(mid, end, 0, [TAB, TAB + 16, TAB + 32, TAB + 48], [a_, b_, c_, D0], False, [None] * 4)
for j, k in enumerate(range(KPRE, 16)): add(mid, j * A("LS", 10) // (16 - KPRE), L(0, k))
for k in range(4): add(mid, 25 + 2 * k, L(1, k))
for k in range(4, 12): add(mid, (26, 28, 30, 32, 34, 36, 38, 40)[k - 4], L(1, k))
for k in range(12, 16): add(mid, 42 + 2 * (k - 12), L(1, k))
def hook_d():
    e(f"s_cmp_ge_u32 s{S_WAVE}, 4\ns_cbranch_scc1 d_join")
    e("s_mov_b32 s8, s32\ns_mov_b32 s9, s33\ns_mov_b32 s16, s42\ns_mov_b32 s17, s43\ns_waitcnt vmcnt(0)")
    lane_to(DA); role_old("d", dl12, dl3, dl0); skip_n[0] = vm.n
def hook_x():
    e(f"s_cmp_ge_u32 s{S_WAVE}, 4\ns_cbranch_scc1 g_join")
    lane_to(U0); e("s_waitcnt vmcnt(0)"); role_old("g", dx12, dx3, dx0); skip_n[0] = vm.n; vm.tag["dst"] = vm.n
def hook_s():
    r = ACCB + 28
    e(f"s_cmp_ge_u32 s{S_WAVE}, 4\ns_cbranch_scc1 s_join")
    e(f"v_mov_b32 v{r}, {L_HC}\nv_mov_b32 v{r+1}, 1\ns_mov_b64 exec, 1\ns_waitcnt vmcnt({vm.younger('dst')})\nds_add_rtn_u32 v{r+2}, v{r}, v{r+1}")
    e(f"s_lshl_b32 s{S_T}, s{S_PID}, 7\ns_add_u32 s{S_T}, s{S_T}, {FLGB:#x}\nv_mov_b32 v{r}, 0\nv_mov_b32 v{r+1}, s{S_N}\ns_waitcnt lgkmcnt(0)")
    e(f"v_readfirstlane_b32 s{S_U}, v{r+2}\ns_nop 0\ns_cmp_lg_u32 s{S_U}, 3\ns_cbranch_scc1 1f\nbuffer_store_dword v{r+1}, v{r}, s[4:7], s{S_T} offen sc1\n1:\ns_mov_b64 exec, -1\ns_join:")
add(end, A("HD", 15), hook_d); add(end, XQ, hook_x); add(end, SQ, hook_s)
assert 15 <= XQ <= 32 and XQ < SQ < 58
for g in range(8): add(end, 33 + 4 * g, lambda g=g: [e(f"v_mov_b32 v{ACCB+4*g+c}, 0") for c in range(4)])
add(pre, 32, lambda: pst(1))
run(units, pre, mid, end)
def poll_b():
    r = W1
    e(f"s_cmp_ge_u32 s{S_WAVE}, 4\ns_cbranch_scc1 pb_done")
    lane_to(r)
    e(f"s_lshr_b32 s{S_T}, s{S_CS}, 4\nv_mov_b32 v{r+1}, s{S_T}\nv_lshrrev_b32 v{r+2}, 4, v{r}\nv_xor_b32 v{r+2}, s{S_BS}, v{r+2}\nv_cmp_gt_u32 vcc, 32, v{r}\nv_and_b32 v{r}, 15, v{r}\ns_lshl_b32 s{S_T}, s{S_WAVE}, 11")
    e(f"v_cndmask_b32 v{r+1}, v{r+1}, v{r+2}, vcc\nv_lshl_add_u32 v{r}, v{r+1}, 6, v{r}\nv_lshlrev_b32 v{r}, 7, v{r}\ns_add_u32 s{S_T}, s{S_T}, {FLGB:#x}\ns_mov_b32 s{S_U}, 0")
    e(f"pb_loop:\nbuffer_load_dword v{r+1}, v{r}, s[4:7], s{S_T} offen sc1")
    e(f"s_add_u32 s{S_U}, s{S_U}, 1\ns_waitcnt vmcnt(0)\ns_cmp_gt_u32 s{S_U}, 0x40000\ns_cbranch_scc1 pb_done")
    e(f"v_cmp_ne_u32 vcc, s{S_N}, v{r+1}\ns_cbranch_vccz pb_done\ns_sleep 8\ns_branch pb_loop\npb_done:")
tail(units, poll_b)
skip_n[0] = 0
pst(2)
params()
e(f"s_lshr_b32 s{S_TB}, s{S_CS}, 4\ns_lshl_b32 s{S_TB}, s{S_TB}, 3\ns_add_u32 s{S_TB}, s{S_TB}, s{S_WAVE}\ns_lshl_b32 s{S_TB}, s{S_TB}, 14\ns_add_u32 s{S_TB}, s{S_TB}, {TABP:#x}")
wphase((units[-1][1], (len(units) + 2) % 3), [(1, b_), (0, a_), (2, c_), (3, D0)], {0: [L(2, 0)], 4: [L(2, 1)], 16: [L(2, 2)], 32: [L(2, 3)]}, qunits(2)[0])
pst(3)
WA = W1 + 16; TL = W1 + 17; TM = W1 + 18
def xfr():
    lane_to(TL)
    e(f"v_and_b32 v{WA}, 0x7f, v{VOFF}\nv_and_b32 v{TM}, 4, v{TL}\nv_lshl_or_b32 v{WA}, v{TM}, 8, v{WA}\nv_and_b32 v{TM}, 8, v{TL}\nv_lshl_or_b32 v{WA}, v{TM}, 6, v{WA}\nv_and_b32 v{TM}, 16, v{TL}\nv_lshl_or_b32 v{WA}, v{TM}, 4, v{WA}")
    e(f"s_and_b32 s{S_U}, s{S_BS}, 1\ns_lshl_b32 s{S_U}, s{S_U}, 13\ns_sub_u32 s{S_U}, s{S_W1}, s{S_U}\ns_add_u32 s{S_U}, s{S_U}, 32768")
    for i in range(2): e(f"buffer_load_dwordx4 v[{W1+4*i}:{W1+4*i+3}], v{WA}, s[4:7], s{S_U} offen offset:{i*128} sc1"); vm.issue("xf")
def xgaddr():
    e(f"s_xor_b32 s{S_XS}, s{S_PID}, 64\ns_lshl_b32 s{S_XS}, s{S_XS}, 3\ns_add_u32 s{S_XS}, s{S_XS}, s{S_WAVE}\ns_lshl_b32 s{S_XS}, s{S_XS}, 13\ns_add_u32 s{S_XS}, s{S_XS}, {XG:#x}\ns_xor_b32 s{S_XR}, s{S_XS}, {64*8*8192:#x}")
def xmerge():
    wv("xf")
    for r in range(8): e(f"v_permlane16_swap_b32 v{W1+r}, v{W1+8+r}")
def xaddr():
    e(f"v_and_b32 v{WA}, 24, v{TL}\nv_and_b32 v{TM}, 3, v{TL}\nv_lshl_add_u32 v{WA}, v{TM}, 1, v{WA}\nv_bfe_u32 v{TM}, v{TL}, 2, 1\nv_add_u32 v{WA}, v{WA}, v{TM}")
    e(f"v_lshrrev_b32 v{TM}, 5, v{TL}\nv_lshl_add_u32 v{WA}, v{WA}, 1, v{TM}\ns_lshl_b32 s{S_T}, s{S_WAVE}, 10\ns_add_u32 s{S_T}, s{S_T}, {L_XT}\nv_lshl_add_u32 v{WA}, v{WA}, 4, s{S_T}")
def xm(vt, sx):
    d = D0 + 16 * (vt % 2); tb = TABH + 16 * (vt % 2) + 4 * sx
    e(f"v_mfma_f32_32x32x16_bf16 v[{d}:{d+15}], v[{W1+4*sx}:{W1+4*sx+3}], v[{tb}:{tb+3}], " + ("0" if sx == 0 else f"v[{d}:{d+15}]"))
def xw(vt):
    d = D0 + 16 * (vt % 2)
    for r in range(4): e(f"v_cvt_pk_bf16_f32 v{d+r}, v{d+r}, v{d+4+r}")
    e(f"ds_write_b128 v{WA}, v[{d}:{d+3}] offset:{vt*8192}")
def px(mid, end, o, tiles):
    add(mid, o, xfr); add(end, o + 6, xmerge); add(end, o + 7, xaddr)
    for j, vt in enumerate(tiles):
        for sx in range(4): add(mid, o + 8 + 4 * j + sx, lambda vt=vt, sx=sx: xm(vt, sx))
        add(end, o + 13 + 4 * j, lambda vt=vt: xw(vt))
units = qunits(2) + qunits(3); pre = {}; mid = {}; end = {}
px(mid, end, 2, (2, 3))
for k in range(4, 16): add(mid, (0, 1, 3, 4, 5, 6, 8, 9, 11, 12, 14, 15)[k - 4], L(2, k))
for k in range(4): add(mid, 16 + k, L(3, k))
for i in range(8): add(mid, 20 + i, LW(frag_of(i), 16384))
pgen(mid, end, 32, [TABH, TABH + 16, TABH, TABH + 16], [d_, b_, c_, None], True, [None, None, 0, 1])
for k in range(4, 16): add(mid, (30, 31, 32, 33, 34, 35, 37, 38, 43, 44, 45, 46)[k - 4], L(3, k))
for sx in range(4): add(mid, 39 + sx, LT(0, sx)); add(mid, 47 + sx, LT(1, sx))
for k in range(4): add(mid, 57 + 2 * k, L(4, k))
if A("RB", 1): add(pre, 32, lambda: e("s_barrier"))
add(pre, 32, lambda: pst(4))
run(units, pre, mid, end)
tail(units, lambda: [cvt(D0 + r, r) for r in range(16)])
pst(5)
wphase((units[-1][1], (len(units) + 2) % 3), [(3, b_), (2, d_), (0, c_), (1, D0)], {32 + 8 * k: [L(4, 4 + k)] for k in range(4)}, qunits(4)[0])
stamp(8)
XI = W1 + 16
SC = TABH; LN = SC; ROW = SC + 1; PV = SC + 4; RES = SC + 8; XW = SC + 16; X8 = SC + 30
XB = A("XB", 44); SS = A("SS", 5); RQ = A("RQ", 52)
q5 = qunits(5)
units = qunits(4) + q5[:XB - 32] + [(XI + 2 * g, ACCB + 4 * g, None) for g in range(8)] + q5[XB - 32:]
pre = {}; mid = {}; end = {}
add(mid, 0, xgaddr)
px(mid, end, 1, (0, 1))
L4 = [int(x) for x in A("L4", "0.2.4.6.8.10.12.14").split(".")]
L5 = [int(x) for x in A("L5", "16.18.20.22.24.26.28.30.38.40.42.44.46.48.50.52").split(".")]
for k in range(8, 16): add(mid, L4[k - 8], L(4, k))
for k in range(16): add(mid, L5[k], L(5, k))
def send(j):
    a = ACC + 8 * j
    for c in range(4): e(f"v_cvt_pk_bf16_f32 v{a+c}, v{a+2*c}, v{a+2*c+1}")
    e(f"buffer_store_dwordx4 v[{a}:{a+3}], v{VOFF}, s[4:7], s{S_XS} offen offset:{j*128} sc1"); vm.issue(("s", j))
def sflag(h):
    a = ACC + 16 * h
    wv(("s", 2 * h + 1))
    e(f"v_mov_b32 v{a}, s{S_N}\ns_mov_b64 exec, 1\nbuffer_store_dword v{a}, v{VOFF}, s[4:7], s{S_XS} offen offset:{512+128*h} sc1\ns_mov_b64 exec, -1"); vm.issue()
def rpoll(h, cnt=True):
    e(f"buffer_load_dword v{ACC+16*h+1}, off, s[4:7], s{S_XR} offset:{512+128*h} sc1")
    if cnt: vm.issue(("p", h))
slow = []
def rcheck(h):
    wv(("p", h))
    e(f"s_mov_b32 s{S_CNT}, 0\nrc{h}:\nv_cmp_ne_u32 vcc, s{S_N}, v{ACC+16*h+1}\ns_cbranch_vccnz rs{h}\nrd{h}:")
    slow.append(h)
def recv(j):
    a = ACC + 8 * j + 4
    e(f"buffer_load_dwordx4 v[{a}:{a+3}], v{VOFF}, s[4:7], s{S_XR} offen offset:{j*128} sc1"); vm.issue(("r", j))
TS = [int(x) for x in A("TS", "12.20.28.36").split(".")]; TF = [int(x) for x in A("TF", "30.45").split(".")]
TP = [int(x) for x in A("TP", "43.53").split(".")]; TC = [int(x) for x in A("TC", "48.59").split(".")]; TR = [int(x) for x in A("TR", "48.51.59.60").split(".")]
TE = [int(x) for x in A("TE", "56.58.60.62.68.69").split(".")]
for j in range(4):
    assert TS[j] >= 8 * j + 12
    add(end, TS[j], lambda j=j: send(j))
for h in range(2): add(end, TF[h], lambda h=h: sflag(h)); add(end, TP[h], lambda h=h: rpoll(h)); add(end, TC[h], lambda h=h: rcheck(h))
for j in range(4): add(end, TR[j], lambda j=j: recv(j))
def setup():
    lane_to(LN)
    e(f"v_lshlrev_b32 v{X8}, 4, v{LN}\ns_and_b32 s{S_U}, s{S_BS}, 1\ns_lshl_b32 s{S_U}, s{S_U}, 14\ns_sub_u32 s{S_IDX}, s{S_IDX2}, s{S_U}\ns_add_u32 s{S_IDX}, s{S_IDX}, {6*16384}")
    e(f"v_and_b32 v{PV+1}, 15, v{LN}\nv_lshlrev_b32 v{PV+1}, 4, v{PV+1}\nv_lshrrev_b32 v{PV}, 4, v{LN}\nv_lshl_or_b32 v{PV}, v{PV}, 14, v{PV+1}")
    e(f"s_lshl_b32 s70, s{S_BS}, 20\ns_lshl_b32 s71, s{S_WAVE}, 17\ns_add_u32 s70, s70, s71\ns_lshl_b32 s71, s{S_CS}, 8\ns_add_u32 s70, s70, s71")
    e(f"s_add_u32 s70, s70, {PART:#x}\ns_add_u32 s71, s70, 65536")
    e(f"s_and_b32 s{S_U}, s{S_N}, 255\nv_mov_b32 v{PV+2}, s{S_U}\ns_mov_b32 s{S_W1}, 0xffffff00")
    e("s_lshl_b32 s56, s58, 16\ns_and_b32 s57, s58, 0xffff0000\ns_lshl_b32 s58, s59, 16\ns_and_b32 s59, s59, 0xffff0000")
    e("s_xor_b32 s52, s52, 0x80008000\ns_xor_b32 s53, s53, 0x80008000")
    e("s_lshl_b32 s0, s52, 16\ns_and_b32 s1, s52, 0xffff0000\ns_lshl_b32 s52, s53, 16\ns_and_b32 s53, s53, 0xffff0000")
    e(f"v_mov_b32 v{PV+1}, s0\nv_mul_f32 v{SC+3}, s56, v{PV+1}")
    for c, r in ((1, 1), (2, 52), (3, 53)): e(f"v_mov_b32 v{PV+1}, s{r}\nv_fma_f32 v{SC+3}, v{PV+1}, s{56+c}, v{SC+3}")
    e(f"v_xor_b32 v{SC+3}, 0x80000000, v{SC+3}")
    srd(8, 36, 16384 * 26); srd(12, 50, 32768)
add(end, 19, setup)
def xld(g):
    e(f"buffer_load_dwordx4 v[{XI+4*g}:{XI+4*g+3}], v{X8}, s[4:7], s{S_IDX} offen offset:{g*1024} sc1"); vm.issue(("x", g))
for g in range(4): add(mid, A('XL', 31) + 2 * g, lambda g=g: xld(g))
def xswap():
    wv(("x", 3))
    for g in range(4): e(f"v_permlane32_swap_b32 v{XI+4*g}, v{XI+4*g+2}\nv_permlane32_swap_b32 v{XI+4*g+1}, v{XI+4*g+3}")
add(mid, XB - 2, xswap)
add(pre, A("XBAR", 36), lambda: e("s_barrier"))
add(pre, 32, lambda: pst(6))
def wide():
    e(f"s_cmp_lg_u32 s{S_WAVE}, 0\ns_cbranch_scc1 nowide")
    e(f"s_lshr_b32 s{S_T}, s{S_PID}, 2\ns_lshl_b32 s{S_T}, s{S_T}, 8\ns_and_b32 s{S_U}, s{S_PID}, 3\ns_lshl_b32 s{S_U}, s{S_U}, 4\ns_add_u32 s{S_T}, s{S_T}, s{S_U}")
    e(f"v_lshrrev_b32 v{ROW}, 4, v{LN}\nv_and_b32 v{ROW+1}, 15, v{LN}\nv_lshl_add_u32 v{ROW}, v{ROW}, 6, v{ROW+1}\nv_add_u32 v{ROW}, s{S_T}, v{ROW}")
    e(f"v_mul_u32_u24 v{ROW+1}, 26, v{ROW}")
    for j in range(13): e(f"buffer_load_ushort v{XW+j}, v{ROW+1}, s[8:11], 0 offen offset:{2*j}")
    e("nowide:")
add(end, A('XBAR', 36) - 1, wide)
def epi(g):
    a = ACCB + 4 * g
    r = ACC + 8 * (g // 2) + 4 + 2 * (g % 2); t = SC + 31
    if g % 2 == 0: wv(("r", g // 2))
    for c in range(2):
        e(f"v_lshlrev_b32 v{t}, 16, v{r+c}\nv_add_f32 v{a+2*c}, v{a+2*c}, v{t}\nv_and_b32 v{t}, 0xffff0000, v{r+c}\nv_add_f32 v{a+2*c+1}, v{a+2*c+1}, v{t}")
    for c in range(4): e(f"v_max_f32 v{a+c}, s{(0, 1, 52, 53)[c]}, v{a+c}")
    e(f"v_fma_f32 v{RES+g}, v{a}, s56, v{SC+3}")
    for c in range(1, 4): e(f"v_fma_f32 v{RES+g}, v{a+c}, s{56+c}, v{RES+g}")
    e(f"v_and_or_b32 v{RES+g}, v{RES+g}, s{S_W1}, v{PV+2}")
    if g % 4 == 3: e(f"buffer_store_dwordx4 v[{RES+g-3}:{RES+g}], v{PV}, s[4:7], s{70 + g//4} offen sc1"); vm.issue()
for g, st in enumerate(TE):
    assert st >= max(i for i, u in enumerate(units) if u[1] == ACCB + 4 * g) + 5
    add(end, st, lambda g=g: epi(g))
run(units, pre, mid, end)
n = len(units)
e("s_waitcnt lgkmcnt(8)"); smf2(ACCB + 28, n % 3)
e("s_waitcnt lgkmcnt(4)"); smf2(ACCB + 28, (n + 1) % 3)
epi(6)
e("s_waitcnt lgkmcnt(0)"); smf2(ACCB + 28, (n + 2) % 3)
e(f"v_lshlrev_b32 v{PV+1}, 4, v{LN}")
e(f"s_lshl_b32 s70, s{S_PID}, 14\ns_lshl_b32 s{S_T}, s{S_WAVE}, 11\ns_add_u32 s70, s70, s{S_T}\ns_add_u32 s70, s70, {PART:#x}")
e(f"s_lshl_b32 s{S_T}, s{S_WAVE}, 8\ns_add_u32 s{S_T}, s{S_T}, {128000}\nv_lshl_add_u32 v{PV+3}, v{LN}, 2, s{S_T}")
e("s_nop 0")
epi(7)
stamp(9)
e(f"s_cmp_lg_u32 s{S_WAVE}, 0\ns_cbranch_scc1 nowide2")
e("s_waitcnt vmcnt(2)")
e(f"s_lshl_b32 s68, s68, 16\ns_lshl_b32 s69, s69, 16\nv_mov_b32 v{XW+13}, s68\nv_add_f32 v{XW+13}, s69, v{XW+13}")
for j in range(13):
    sw = 60 + j // 2
    if j % 2 == 0: e(f"s_lshl_b32 s{S_T}, s{sw}, 16")
    else: e(f"s_and_b32 s{S_T}, s{sw}, 0xffff0000")
    e(f"v_lshlrev_b32 v{XW+j}, 16, v{XW+j}")
    e(f"v_fma_f32 v{XW+13}, v{XW+j}, s{S_T}, v{XW+13}")
e("nowide2:")
e(f"s_mov_b32 s{S_CNT}, 0")
if A("EB", 1) < 2: e("s_waitcnt vmcnt(0)")
if A("EB", 1): e("s_barrier")
stamp(10)
e("poll2:")
e(f"buffer_load_dwordx4 v[{D1}:{D1+3}], v{PV+1}, s[4:7], s70 offen sc1")
e(f"buffer_load_dwordx4 v[{D1+4}:{D1+7}], v{PV+1}, s[4:7], s70 offen offset:1024 sc1")
e(f"s_add_u32 s{S_CNT}, s{S_CNT}, 1\ns_cmp_gt_u32 s{S_CNT}, 0x40000\ns_cbranch_scc1 poll2_done")
e("s_waitcnt vmcnt(0)")
for i in range(8): e(f"v_xor_b32 v{D1+i}, v{PV+2}, v{D1+i}")
e(f"v_or3_b32 v{D1+8}, v{D1}, v{D1+1}, v{D1+2}\nv_or3_b32 v{D1+9}, v{D1+3}, v{D1+4}, v{D1+5}\nv_or3_b32 v{D1+8}, v{D1+8}, v{D1+6}, v{D1+7}")
e(f"v_or_b32 v{D1+8}, v{D1+8}, v{D1+9}\nv_and_b32 v{D1+8}, 255, v{D1+8}\nv_cmp_ne_u32 vcc, 0, v{D1+8}")
if A("PS", 0): e(f"s_cbranch_vccz poll2_done\ns_sleep {A('PS', 0)}\ns_branch poll2")
else: e("s_cbranch_vccnz poll2")
e("poll2_done:\ns_waitcnt vmcnt(0)")
stamp(11)
for c in range(4): e(f"v_add_f32 v{D1+c}, v{D1+c}, v{D1+4+c}")
e(f"s_nop 1\nv_permlane32_swap_b32 v{D1}, v{D1+2}\nv_permlane32_swap_b32 v{D1+1}, v{D1+3}")
e(f"v_add_f32 v{D1}, v{D1}, v{D1+2}\nv_add_f32 v{D1+1}, v{D1+1}, v{D1+3}\ns_nop 1")
e(f"v_permlane16_swap_b32 v{D1}, v{D1+1}\nv_add_f32 v{D1}, v{D1}, v{D1+1}")
e(f"ds_write_b32 v{PV+3}, v{D1}\ns_waitcnt lgkmcnt(0)\ns_barrier")
e(f"s_cmp_lg_u32 s{S_WAVE}, 0\ns_cbranch_scc1 fin")
for i in range(1, 8): e(f"ds_read_b32 v{D1+i}, v{PV+3} offset:{256*i}")
e(f"v_add_f32 v{D1}, v{D1}, v{XW+13}\nv_lshlrev_b32 v{ROW}, 1, v{ROW}")
e("s_waitcnt lgkmcnt(0)")
e(f"v_add_f32 v{D1+1}, v{D1+1}, v{D1+2}\nv_add_f32 v{D1+3}, v{D1+3}, v{D1+4}\nv_add_f32 v{D1+5}, v{D1+5}, v{D1+6}\nv_add_f32 v{D1}, v{D1}, v{D1+7}")
e(f"v_add_f32 v{D1+1}, v{D1+1}, v{D1+3}\nv_add_f32 v{D1}, v{D1}, v{D1+5}\nv_add_f32 v{D1}, v{D1}, v{D1+1}")
e(f"v_mul_f32 v{D1}, 0xbfb8aa3b, v{D1}\nv_exp_f32 v{D1}, v{D1}\ns_nop 0\nv_add_f32 v{D1}, 1.0, v{D1}\nv_rcp_f32 v{D1}, v{D1}\ns_nop 0")
e(f"v_cvt_pk_bf16_f32 v{D1}, v{D1}, v{D1}")
e(f"buffer_store_short v{D1}, v{ROW}, s[12:15], 0 offen")
e("s_cmp_lg_u32 s2, 0\ns_cbranch_scc1 fin")
e(f"v_mov_b32 v{D1+1}, s{S_N}\nv_mov_b32 v{D1+2}, {EPOCH}\ns_mov_b64 exec, 1")
e(f"buffer_store_dword v{D1+1}, v{D1+2}, s[4:7], 0 offen\ns_mov_b64 exec, -1")
e("@ENDREGION\nfin:")
if FIX and A("MINS", 0):
    e("s_load_dwordx2 s[32:33], s[0:1], 80\ns_waitcnt lgkmcnt(0)")
    srd(16, 32, 256)
    e("s_not_b32 s98, s100\nv_mov_b32 v8, 0\nv_mov_b32 v9, s98\ns_mov_b64 exec, 1\nbuffer_atomic_umax v9, v8, s[16:19], 0 offen\ns_waitcnt vmcnt(0)")
    e(f"fixm:\ns_memrealtime s[98:99]\ns_waitcnt lgkmcnt(0)\ns_sub_u32 s98, s98, s100\ns_cmp_lt_u32 s98, {FIX - 1500}\ns_cbranch_scc1 fixm")
    e("buffer_load_dword v9, v8, s[16:19], 0 offen sc1\ns_waitcnt vmcnt(0)\nv_readfirstlane_b32 s100, v9\ns_nop 3\ns_not_b32 s100, s100\ns_mov_b64 exec, -1")
if FIX and A("PW", 255) != 255:
    e(f"s_mov_b32 s98, {A('PW', 255)}\ns_bitcmp0_b32 s98, s{S_WAVE}\ns_cbranch_scc1 done")
if FIX:
    e(f"fixl:\ns_memrealtime s[98:99]\ns_waitcnt lgkmcnt(0)\ns_sub_u32 s98, s98, s{96 if PROBE else 100}")
    e(f"s_cmp_lt_u32 s98, {FIX}\ns_cbranch_scc1 fixl")
if STAMP:
    stamp(12)
    e("s_memrealtime s[98:99]\ns_waitcnt lgkmcnt(0)")
    e(f"s_lshl_b32 s70, s2, 3\ns_add_u32 s70, s70, s{S_WAVE}\ns_lshl_b32 s70, s70, 7\ns_add_u32 s70, s70, {STMP:#x}")
    e("v_mov_b32 v8, 0")
    for i in range(1, 13):
        e(f"s_sub_u32 s{SB+2*i}, s{SB+2*i}, s{SB}\nv_mov_b32 v9, s{SB+2*i}")
        e(f"buffer_store_dword v9, v8, s[4:7], s70 offen offset:{4*(i-1)}")
    for i, r in enumerate((44, 45, 46, 100, 98, 38, 39)):
        e(f"v_mov_b32 v9, s{r}\nbuffer_store_dword v9, v8, s[4:7], s70 offen offset:{48+4*i}")
e("s_endpgm")
for h in slow:
    e(f"rs{h}:\ns_add_u32 s{S_CNT}, s{S_CNT}, 1\ns_cmp_gt_u32 s{S_CNT}, 0x40000\ns_cbranch_scc1 rd{h}\ns_sleep 4")
    rpoll(h, False)
    e(f"s_waitcnt vmcnt(0)\ns_branch rc{h}")
e("done:\ns_endpgm")

e(f""".section .rodata,"a"
.p2align 6
.amdhsa_kernel {KN}
  .amdhsa_next_free_vgpr 256
  .amdhsa_next_free_sgpr 102
  .amdhsa_accum_offset 256
  .amdhsa_group_segment_fixed_size 0
  .amdhsa_kernarg_size 96
  .amdhsa_user_sgpr_count 2
  .amdhsa_user_sgpr_kernarg_segment_ptr 1
  .amdhsa_system_sgpr_workgroup_id_x 1
.end_amdhsa_kernel""")

bysite = {str(k): v for k, v in waits.items()}
res = []
for l in out:
    if l.startswith("@VM "):
        n = bysite[l[4:]]
        assert 0 <= n <= 63
        l = f"s_waitcnt vmcnt({n})"
    res.append(l)
import re, subprocess, tempfile, os
def is_instr(l): return bool(re.match(r"^(s_|v_|ds_|buffer_|global_)\w*( |$)", l)) and not l.endswith(":")
tmp = [re.sub(r"@SEG_\w+", "done", l) for l in res if not l.startswith("@")]
with tempfile.TemporaryDirectory() as d:
    open(d + "/t.s", "w").write("\n".join(tmp) + "\n")
    subprocess.run(["clang", "-x", "assembler", "-target", "amdgcn-amd-amdhsa", "-mcpu=gfx950", "-c", d + "/t.s", "-o", d + "/t.o"], check=True)
    dis = subprocess.run(["llvm-objdump", "-d", "--mcpu=gfx950", d + "/t.o"], capture_output=True, text=True).stdout
sizes = [4 * len(m.group(1).split()) for m in re.finditer(r"// [0-9A-F]{12}: ([0-9A-F ]+)", dis)]
assert len(sizes) == sum(map(is_instr, tmp)), (len(sizes), sum(map(is_instr, tmp)))
al = 0; nal = 0; fin = []; addr = 0; k = 0; region = None; pads = {}; last = -1
for l in res:
    if l.startswith("@REGION"):
        _, tag, nseg = l.split(); region = tag; pads[tag] = [int(nseg), 0]; last = -1; continue
    if l.startswith("@ENDREGION"): region = None; continue
    if l.startswith("@ALIGN"):
        while addr % int(l.split()[1]): fin.append("s_nop 0"); addr += 4
        continue
    if l.startswith("@AL "): al = int(l.split()[1]); continue
    if is_instr(l):
        if al and sizes[k] == 8 and addr % 8 != (0 if AL == 1 else 4): fin.append("s_nop 0"); addr += 4; nal += 1
        if region and WARM and addr // LINE != last:
            last = addr // LINE
            n = pads[region][1]; pads[region][1] += 1
            fin.append(f"pad_{region}_{n}:"); fin.append(f"@PAD {region} {n}"); addr += 4
        addr += sizes[k]; k += 1
    fin.append(l)
def seg_start(tag, j):
    nseg, n = pads[tag]; return (n * j) // nseg
o2 = []
for l in fin:
    if l.startswith("@PAD"):
        _, tag, n = l.split(); n = int(n)
        starts = [seg_start(tag, j) for j in range(pads[tag][0] + 1)]
        l = f"s_cbranch_execz " + (f"warm_ret_{tag}" if n + 1 in starts else f"pad_{tag}_{n+1}")
    m = re.search(r"@SEG_(\w)_(\d+)", l)
    if m: l = l.replace(m.group(0), f"pad_{m.group(1)}_{seg_start(m.group(1), int(m.group(2)))}")
    o2.append(l)
sys.stderr.write(f"nal {nal} pads {pads} size {addr}\n")
DROP = A("DROP", "")
if DROP:
    i0 = o2.index("pb_done:"); keep = o2[:i0]; masked = False
    for l in o2[i0:]:
        if l.startswith("s_mov_b32 exec_hi"): masked = True
        if l.startswith("s_mov_b64 exec, -1"): masked = False
        if "s" in DROP and "buffer_store" in l and f"s{S_XS} offen" in l: l = "s_nop 0"
        if "r" in DROP and f"s{S_XR} off" in l: l = "s_nop 0"
        if ("s" in DROP or "r" in DROP) and l.startswith("s_cbranch_vccnz rs"): l = "s_nop 0"
        if "x" in DROP and masked and "buffer_load" in l: l = "s_nop 0"
        if "w" in DROP and l.startswith("ds_write_b128"): l = "s_nop 0"
        if "u" in DROP and "buffer_load_ushort" in l: l = "s_nop 0"
        keep.append(l)
    o2 = keep
if A("RT", 0): o2 = [l.replace("s_memtime", "s_memrealtime") for l in o2] + ["; s_memtime RT"]
print("\n".join(o2))
```

```python
import sys
args = dict(a.split("=") for a in sys.argv[1:])
def A(k, d): return type(d)(args.get(k, d))
STAMP = A("STAMP", 0); PROBE = A("PROBE", 0); FIX = A("FIX", 0)
PRIOQ = A("PRIOQ", -1); W1W = A("W1W", 0); CPF = A("CPF", 1); POLLT = A("POLLT", 2); PRE = A("PRE", 2); BAR0 = A("BAR0", 1); MAP = A("MAP", 1); CPL = A("CPL", 9); KPRE = A("KPRE", 8); DEFT = A("DEFT", -1); PREO = A("PREO", 1); HPQ = A("HPQ", 16); R1 = A("R1", 12); R2 = A("R2", 28); XT = A("XT", 1); PFW = A("PFW", 2); PI = A("PI", 0); XMAP = A("XMAP", 1); B2 = A("B2", 1); KT = A("KT", 2); KA = A("KA", 2); OD = A("OD", -1); W7T = A("W7T", 0); SPIN = A("SPIN", 0); W7A = A("W7A", 0); AL = A("AL", 0); MW = A("MW", 0); TRI = A("TRI", 4); DE = A("DE", 0); UNR = A("UNR", 1); DQ = A("DQ", 16); DT = A("DT", 3); SPF = A("SPF", 0); WARM = A("WARM", 0); LINE = A("LINE", 128); WB = A("WB", "L")
CS = [int(c, 32) for c in A("CS", "g")]; assert sum(CS) == 16
C0 = A("C0", 7); SP = A("SP", 8); MP = A("MP", 0)
MQ = [int(c) for c in A("MQ", "01123456")]

M2 = [int(c, 16) for c in A("M2", "")] or [2 * x for x in MQ]
M3 = [int(c, 16) for c in A("M3", "")] or M2
CE = C0 + len(CS) - 1 - 8
assert min(M2 + M3) >= 2 * CE + 1 and max(M2) <= 2 * (C0 - 1) and max(M3) <= 12
KN = "standalone__deep_cross_wide_deep__recsys_kernel"
EPOCH = 0x9a80
FLG = 0x1000
IDXP = 0x10000
ISTR = 6 * 16384 + 4096
W1P = 0x340000
WSTR = 34 * 1024
TABP = 0x570000
XG = 0x1000000
PART = 0x600000
STMP = 0xE00000
WS_SZ = 0x2000000
L_STG = 131072; L_XCH = 155648; L_XT = 131072; L_RED = 0

out = []
emit = True
def e(s):
    if emit:
        for l in s.split("\n"): out.append(l)
class Cnt:
    def __init__(self): self.n = 0; self.tag = {}
    def issue(self, tag=None):
        self.n += 1
        if tag is not None: self.tag[tag] = self.n
    def younger(self, tag): return self.n - self.tag[tag]
vm = Cnt()
waits = {}
def wait_vm(site, tag):
    n = vm.younger(tag)
    waits[site] = min(waits.get(site, 99), n)
    e(f"@VM {site}")
def srd(d, lo, nbytes):
    e(f"s_mov_b32 s{d}, s{lo}\ns_mov_b32 s{d+1}, s{lo+1}\ns_mov_b32 s{d+2}, {nbytes:#x}\ns_mov_b32 s{d+3}, 0x20000")
SB = 72
FINE = A("FINE", 0)
def hstamp(i):
    if STAMP and FINE == 3: e(f"s_memtime s[{SB+2*i}:{SB+1+2*i}]")
def gstamp(i):
    if STAMP and FINE == 2: e(f"s_memtime s[{SB+2*i}:{SB+1+2*i}]")
def fstamp(i):
    if STAMP and FINE == 1: e(f"s_memtime s[{SB+2*i}:{SB+1+2*i}]")
def stamp(i):
    if FINE == 1 and 9 <= i <= 12: return
    if FINE in (2, 4, 6, 7) and 1 <= i <= 6: return
    if FINE == 3 and 10 <= i <= 12: return
    if FINE == 5 and (5 <= i <= 12 or i == 1):
        if i == 7: e(f's_memtime s[{SB+2}:{SB+3}]')
        return
    if PROBE == i: e("s_memrealtime s[96:97]")
    if STAMP: e(f"s_memtime s[{SB+2*i}:{SB+1+2*i}]")

e(f"""; Wide & Deep recsys forward, gfx950: per-field projected tables P[f][v] = table[v] @ W1_f built on MFMA into LDS,
; @launch grid=(256,1,1) block=(512,1,1) lds=163840
.amdgcn_target "amdgcn-amd-amdhsa--gfx950"
.text
.globl {KN}
.p2align 8
.type {KN},@function
{KN}:""")

VOFF = 0; SIDX = 1; T0 = 2; T1 = 3; AC = 4
DAT = 8; TAB = 32; ACC = 96; POOL = 128; D0 = 192; D1 = 208; W1 = 224
S_WAVE = 3; S_IDX = 20; S_IDX2 = 21; S_W1 = 22; S_M0A = 23; S_M0B = 24; S_CNT = 25; S_BS = 26; S_CS = 27; S_PID = 28; S_N = 29
S_T = 30; S_U = 31
LANE = 8; L16 = 9
XA = POOL; XF = POOL + 16; XC = POOL + 48; XD = POOL + 16
PLO = "0x05040100"; PHI = "0x07060302"

HOLD = POOL + 32
FLGB = 0x330000
S_FB = 55; S_HP = 54
L_CTR = L_STG + 8192; L_XC2 = L_STG
DELTA = 28800
def piece_lane():
    e(f"v_lshrrev_b32 v10, 2, v{LANE}\nv_and_b32 v11, 1, v{LANE}\nv_and_b32 v12, 2, v{LANE}")
    e("v_lshlrev_b32 v13, 3, v10\nv_lshl_or_b32 v13, v11, 15, v13\nv_lshl_or_b32 v13, v12, 11, v13")
def piece_src(fp0):
    e(f"s_lshr_b32 s{S_T}, s{S_CS}, 2\ns_lshl_b32 s{S_T}, s{S_T}, 16\ns_and_b32 s{S_U}, s{S_CS}, 3\ns_lshl_b32 s{S_U}, s{S_U}, 13\ns_add_u32 s{S_T}, s{S_T}, s{S_U}")
    e(f"s_lshl_b32 s{S_U}, s{S_BS}, 7\ns_add_u32 s{S_T}, s{S_T}, s{S_U}\ns_add_u32 s{S_T}, s{S_T}, {fp0*65536:#x}")
def piece_ld(b):
    for j in range(8): e(f"buffer_load_dwordx2 v[{b+2*j}:{b+2*j+1}], v13, s[16:19], s{S_T} offen offset:{j*512}")
def piece_dst(fp0):
    e(f"v_mul_u32_u24 v18, {WSTR}, v10\nv_and_b32 v10, 3, v{LANE}\nv_lshl_add_u32 v18, v10, 4, v18")
    e(f"s_mul_i32 s70, s{S_BS}, {16*WSTR}\ns_lshr_b32 s{S_T}, s{S_CS}, 2\ns_lshl_b32 s{S_T}, s{S_T}, 10\ns_add_u32 s70, s70, s{S_T}")
    e(f"s_and_b32 s{S_T}, s{S_CS}, 3\ns_lshl_b32 s{S_T}, s{S_T}, 7\ns_add_u32 s70, s70, s{S_T}\ns_add_u32 s70, s70, {W1P + (fp0-16)*1024:#x}")
def piece_perm(src, dst):
    e(f"s_mov_b32 s{S_T}, {PLO}\ns_mov_b32 s{S_U}, {PHI}")
    for cp in range(2):
        for par in range(2):
            r = dst + 8 * cp + 4 * par
            for jj in range(4):
                r0 = src + 4 * jj + cp
                e(f"v_perm_b32 v{r+jj}, v{r0+2}, v{r0}, s{S_U if par else S_T}")
            e(f"buffer_store_dwordx4 v[{r}:{r+3}], v18, s[4:7], s70 offen offset:{par*512+cp*64} sc1")
def tab_dma(vt, count=True):
    e(f"s_add_u32 s{S_T}, s{S_M0A}, {vt*32768}\ns_mov_b32 m0, s{S_T}\ns_nop 0")
    for i in range(4):
        e(f"buffer_load_dwordx4 v{14 + i%2}, s[12:15], s{S_T} offen offset:{i*1024} lds")
        if count: vm.issue(("t", vt))
def xconsts(rowshift):
    e(f"v_lshl_add_u32 v17, v{LANE}, {rowshift}, s{S_T}")
    for t in range(16):
        e(f"v_add_u32 v16, {t}, v{LANE}\nv_and_b32 v{XF+t}, 15, v16\nv_lshl_add_u32 v{XA+t}, v{XF+t}, 2, v17")
    for u in range(8): e(f"v_lshl_or_b32 v{XC+u}, v{XF+2*u+1}, 16, v{XF+2*u}")
def idx_dst():
    e(f"s_lshr_b32 s70, s{S_PID}, 3\ns_mul_i32 s70, s70, {ISTR}\ns_add_u32 s70, s70, {IDXP:#x}")
    e(f"s_bfe_u32 s{S_T}, s{S_PID}, 0x10002\ns_lshl_b32 s{S_T}, s{S_T}, 13\ns_add_u32 s70, s70, s{S_T}")
    e(f"s_and_b32 s{S_T}, s{S_PID}, 3\ns_lshl_b32 s{S_T}, s{S_T}, 8\ns_add_u32 s70, s70, s{S_T}")
    e(f"s_lshl_b32 s{S_T}, s{S_CNT}, 14\ns_add_u32 s70, s70, s{S_T}\ns_add_u32 s71, s70, 16384")
def xform(off, dst, store):
    for t in range(16): e(f"ds_read_b32 v{XD+t}, v{XA+t} offset:{off}")
    for u in range(8):
        e(f"s_waitcnt lgkmcnt({14-2*u})")
        e(f"v_lshl_add_u32 v{XD+2*u}, v{XD+2*u+1}, 16, v{XD+2*u}")
        e(f"v_lshl_add_u32 v{dst+u}, v{XD+2*u}, 4, v{XC+u}")
        if store and u % 4 == 3: e(f"buffer_store_dwordx4 v[{dst+u-3}:{dst+u}], v{VOFF}, s[4:7], s70 offen offset:{(u//4)*128} sc1")
def role_old(tag, f12, f3, f0):
    e(f"s_cmp_eq_u32 s{S_WAVE}, 0\ns_cbranch_scc1 {tag}_w0\ns_cmp_eq_u32 s{S_WAVE}, 3\ns_cbranch_scc1 {tag}_w3")
    f12(); e(f"s_branch {tag}_join\n{tag}_w3:"); f3(); e(f"s_branch {tag}_join\n{tag}_w0:"); f0(); e(f"{tag}_join:")
def xf3():
    e(f"s_mov_b32 s{S_T}, 0x40014000\ns_mov_b32 s{S_U}, 0x40034002")
    e("v_lshl_add_u32 v28, v29, 16, v28\nv_lshl_add_u32 v30, v31, 16, v30")
    e(f"v_lshl_add_u32 v28, v28, 2, s{S_T}\nv_lshl_add_u32 v30, v30, 2, s{S_U}")
    e(f"v_and_b32 v29, 1, v{LANE}\nv_lshlrev_b32 v29, 4, v29\nv_and_b32 v31, 2, v{LANE}\nv_cmp_ne_u32 vcc, 0, v31")
    e("v_alignbit_b32 v28, v28, v28, v29\nv_alignbit_b32 v30, v30, v30, v29")
    e(f"v_cndmask_b32 v{HOLD}, v28, v30, vcc\nv_cndmask_b32 v{HOLD+1}, v30, v28, vcc")
def raw(lo, hi):
    for n in range(lo, hi):
        s_, j = n // 8, n % 8
        e(f"buffer_load_dword v{POOL+n}, v18, s[16:19], s71 offen offset:{j*512}")
        if j == 7 and s_ < 3: e("s_add_u32 s71, s71, 8192")
def voff_ws():
    e(f"s_load_dword s{S_N}, s[54:55], {EPOCH}")
    srd(4, 54, WS_SZ)
    srd(12, 34, 128000)
    e(f"v_and_b32 v16, 28, v{LANE}\nv_lshlrev_b32 v{VOFF}, 8, v16\nv_and_b32 v16, 1, v{LANE}\nv_lshl_or_b32 v{VOFF}, v16, 6, v{VOFF}")
    e(f"v_and_b32 v16, 32, v{LANE}\nv_or_b32 v{VOFF}, v{VOFF}, v16\nv_and_b32 v16, 2, v{LANE}\nv_lshl_or_b32 v{VOFF}, v16, 3, v{VOFF}")
def sloads(): pass
def params():
    e(f"s_lshl_b32 s{S_T}, s{S_CS}, 3")
    e(f"s_load_dwordx2 s[52:53], s[44:45], s{S_T}")
    e(f"s_load_dwordx2 s[58:59], s[46:47], s{S_T}")
    e("s_load_dwordx8 s[60:67], s[38:39], 0")
    e("s_load_dword s68, s[40:41], 0\ns_load_dword s69, s[48:49], 0")
def common():
    e(f"v_lshlrev_b32 v{L16}, 4, v{LANE}")
    e(f"v_lshrrev_b32 v16, 4, v{LANE}\nv_and_b32 v17, 7, v{LANE}\nv_xor_b32 v16, v16, v17\nv_lshlrev_b32 v16, 4, v16")
    e(f"v_lshrrev_b32 v17, 3, v{LANE}\nv_lshl_or_b32 v14, v17, 7, v16\nv_xor_b32 v15, 64, v14")
    e(f"v_bfe_u32 v19, v{LANE}, 2, 2\nv_bfe_u32 v20, v{LANE}, 4, 1\nv_lshlrev_b32 v20, 1, v20\nv_mov_b32 v21, 0x3f80")
    e("v_cmp_eq_u32 vcc, v19, v20\nv_add_u32 v20, 1, v20\ns_nop 0")
    e(f"v_cndmask_b32 v{AC}, 0, v21, vcc\nv_cndmask_b32 v{AC+1}, 0, v21, vcc")
    e(f"v_cmp_eq_u32 vcc, v19, v20\nv_and_b32 v19, 3, v{LANE}\ns_nop 0")
    e(f"v_cndmask_b32 v{AC+2}, 0, v21, vcc\nv_cndmask_b32 v{AC+3}, 0, v21, vcc")
    e(f"v_mul_u32_u24 v{SIDX}, 0x5555, v19")
    e(f"s_and_b32 s{S_U}, s{S_BS}, 1\ns_lshl_b32 s{S_U}, s{S_U}, 13\ns_mul_i32 s{S_W1}, s{S_CS}, {WSTR}\ns_add_u32 s{S_W1}, s{S_W1}, s{S_U}\ns_add_u32 s{S_W1}, s{S_W1}, {W1P:#x}")
    e(f"s_lshl_b32 s{S_U}, s{S_U}, 1\ns_add_u32 s{S_U}, s{S_U}, {IDXP:#x}\ns_lshl_b32 s{S_T}, s{S_BS}, 3\ns_add_u32 s{S_T}, s{S_T}, s{S_WAVE}\ns_mul_i32 s{S_IDX2}, s{S_T}, {ISTR}\ns_add_u32 s{S_IDX2}, s{S_IDX2}, s{S_U}")
    e(f"s_xor_b32 s{S_T}, s{S_T}, 8\ns_mul_i32 s{S_IDX}, s{S_T}, {ISTR}\ns_add_u32 s{S_IDX}, s{S_IDX}, s{S_U}")
    e(f"s_add_u32 s{S_M0B}, s{S_M0A}, {65536-DELTA}")
    e(f"s_lshl_b32 s{S_U}, s{S_WAVE}, 3\nv_and_b32 v13, 7, v{LANE}\nv_add_u32 v10, s{S_U}, v13")
    e(f"s_and_b32 s{S_U}, s{S_WAVE}, 3\ns_and_b32 s{S_T}, s{S_BS}, 1\ns_lshl_b32 s{S_T}, s{S_T}, 5\ns_add_u32 s{S_U}, s{S_U}, s{S_T}\nv_lshl_add_u32 v11, v13, 2, s{S_U}\nv_lshrrev_b32 v13, 3, v{LANE}\nv_cmp_eq_u32 vcc, 1, v13\ns_nop 1\nv_cndmask_b32 v10, v10, v11, vcc")
    e(f"s_lshr_b32 s{S_T}, s{S_CS}, 4\nv_mov_b32 v11, s{S_T}\nv_mov_b32 v16, s{S_BS}\nv_cmp_eq_u32 vcc, 0, v13\ns_nop 1\nv_cndmask_b32 v11, v11, v16, vcc")
    e(f"v_xor_b32 v16, 1, v16\nv_cmp_eq_u32 vcc, 2, v13\ns_nop 1\nv_cndmask_b32 v11, v11, v16, vcc\nv_lshl_add_u32 v10, v11, 6, v10\nv_lshlrev_b32 v19, 7, v10")
    e(f"v_and_b32 v10, 24, v{LANE}\nv_and_b32 v11, 3, v{LANE}\nv_lshl_add_u32 v10, v11, 1, v10\nv_bfe_u32 v12, v{LANE}, 2, 1\nv_add_u32 v10, v10, v12\nv_lshlrev_b32 v10, 7, v10")
    e(f"v_bfe_u32 v12, v{LANE}, 3, 1\nv_lshl_or_b32 v11, v12, 2, v11\nv_lshrrev_b32 v12, 5, v{LANE}\nv_xor_b32 v11, v11, v12\nv_lshl_or_b32 v10, v11, 4, v10")
    e(f"v_add_u32 v20, s{S_M0A}, v10\nv_add_u32 v12, {L_XCH}, v{L16}")
    for s_ in range(1, 4): e(f"v_xor_b32 v{20+s_}, {s_*32}, v20")
    e(f"v_add_u32 v16, {L_XC2}, v{L16}\ns_lshl_b32 s{S_U}, s{S_WAVE}, 10\nv_add_u32 v17, s{S_U}, v16")
def common_b():
    e(f"s_not_b32 s{S_N}, s{S_N}")
def tab_rd(vt):
    if STAMP and FINE == 5: e(f"s_memtime s[{SB+10+4*vt}:{SB+11+4*vt}]")
    wait_vm(("td", vt), ("t", vt))
    if STAMP and FINE == 5: e(f"s_memtime s[{SB+12+4*vt}:{SB+13+4*vt}]")
    if vt == 2:
        for s in range(4): e(f"v_add_u32 v{20+s}, 0x10000, v{20+s}")
    for s in range(4):
        r = TAB + 16 * vt + 4 * s
        e(f"ds_read_b128 v[{r}:{r+3}], v{20+s} offset:{(vt%2)*32768}")
def ldw(i):
    e(f"buffer_load_dwordx4 v[{W1+4*i}:{W1+4*i+3}], v{VOFF}, s[4:7], s{S_W1} offen offset:{i*128} sc1")
    vm.issue(("w", i))
def ldi(reg, k, tag):
    e(f"buffer_load_dwordx4 v[{reg}:{reg+3}], v{VOFF}, s[4:7], s{S_IDX if k < 8 else S_IDX2} offen offset:{(k%8)*128} sc1")
    vm.issue(tag)
def mf(vt, i, base=D0):
    s, par = i // 2, i % 2
    d = base + 16 * par
    c = "0" if s == 0 else f"v[{d}:{d+15}]"
    e(f"v_mfma_f32_32x32x16_bf16 v[{d}:{d+15}], v[{TAB+16*vt+4*s}:{TAB+16*vt+4*s+3}], v[{W1+16*par+4*s}:{W1+16*par+4*s+3}], {c}")
def frag_of(i): return (i % 2) * 4 + i // 2
def cvt(dst, r, base=D0): e(f"v_cvt_pk_bf16_f32 v{dst}, v{base+r}, v{base+16+r}")
def wr(src, vt, r):
    off = (vt % 2) * 32768 + r * 256 + (DELTA if vt >= 2 else 0)
    e(f"ds_write_addtid_b32 v{src} offset:{off}")
SD = "dst_sel:DWORD dst_unused:UNUSED_PAD src0_sel:DWORD"
def unpack(w0):
    e(f"v_lshlrev_b32_sdwa v{T0}, 3, v{w0} {SD} src1_sel:WORD_1")
    e(f"v_lshlrev_b32_sdwa v{w0}, 3, v{w0} {SD} src1_sel:WORD_0")
    e(f"v_lshlrev_b32_sdwa v{T1}, 3, v{w0+1} {SD} src1_sel:WORD_1")
    e(f"v_lshlrev_b32_sdwa v{w0+1}, 3, v{w0+1} {SD} src1_sel:WORD_0")
def reads(w0, slot):
    d = DAT + 8 * slot
    for i, a in enumerate((w0, T0, w0 + 1, T1)):
        e(f"ds_read_b64 v[{d+2*i}:{d+2*i+1}], v{a}")
def smf(g, slot):
    d = DAT + 8 * slot; a = ACC + 4 * g
    e(f"v_smfmac_f32_16x16x64_bf16 v[{a}:{a+3}], v[{AC}:{AC+3}], v[{d}:{d+7}], v{SIDX}")
def cpf_code(dst):
    e(f"s_getpc_b64 s[70:71]\ncpf_base:\ns_lshr_b32 s{S_U}, s2, 3\ns_mul_i32 s{S_U}, s{S_U}, {CPL*128}\nv_min_u32 v2, {CPL-1}, v{LANE}\nv_lshl_add_u32 v2, v2, 7, s{S_U}\nv_min_u32 v2, done-cpf_base, v2\nv_mov_b32 v3, s71")
    e("v_add_co_u32 v2, vcc, s70, v2\ns_nop 1\nv_addc_co_u32 v3, vcc, 0, v3, vcc")
    e(f"global_load_dword v{dst}, v[2:3], off")
def poll_issue():
    if CPF == 2:
        e(f"s_cmp_lg_u32 s{S_WAVE}, 7\ns_cbranch_scc1 1f")
        cpf_code(11)
        e("1:")
    stamp(5)
    e(f"s_mov_b32 s{S_T}, {FLG:#x}")
    e(f"buffer_load_dword v10, v19, s[4:7], s{S_T} offen sc1"); vm.issue("poll")
def poll_check():
    e(f"s_mov_b32 s{S_CNT}, 0\ns_mov_b32 s{S_T}, {FLG:#x}")
    wait_vm("pollw", "poll")
    e("poll1:")
    e(f"v_cmp_ne_u32 vcc, s{S_N}, v10\ns_cbranch_vccz poll1_done")
    e(f"s_sleep 8\nbuffer_load_dword v10, v19, s[4:7], s{S_T} offen sc1")
    e(f"s_add_u32 s{S_CNT}, s{S_CNT}, 1\ns_waitcnt vmcnt(0)\ns_cmp_lt_u32 s{S_CNT}, 0x40000\ns_cbranch_scc1 poll1")
    e("poll1_done:")
    stamp(6)
    e(f"s_lshl_b32 s{S_T}, s{S_WAVE}, 7\ns_add_u32 s{S_T}, s{S_T}, s{S_W1}")
    e(f"buffer_load_dwordx4 v[24:27], v{VOFF}, s[4:7], s{S_T} offen sc1"); vm.issue("w1x")
    for i in range(8): vm.tag[("w", i)] = vm.n
    for k in range(KA): ldi(POOL + 4 * k, k, ("i", k))

e("s_cmp_ge_u32 s2, 256\ns_cbranch_scc1 done")
e("s_load_dwordx16 s[32:47], s[0:1], 0")
e("s_load_dwordx8 s[48:55], s[0:1], 64")
if STAMP: e(f"s_memtime s[{SB}:{SB+1}]")
if STAMP or FIX: e("s_memrealtime s[100:101]")
e(f"v_lshrrev_b32 v1, 6, v0\nv_and_b32 v{LANE}, 63, v0")
e(f"v_readfirstlane_b32 s{S_WAVE}, v1")
if XMAP == 3:
    e(f"s_bfe_u32 s{S_BS}, s2, 0x10002\ns_lshl_b32 s{S_BS}, s{S_BS}, 1\ns_bfe_u32 s{S_T}, s2, 0x10003\ns_add_u32 s{S_BS}, s{S_BS}, s{S_T}\ns_and_b32 s{S_CS}, s2, 3\ns_lshl_b32 s{S_CS}, s{S_CS}, 4\ns_lshr_b32 s{S_T}, s2, 4\ns_add_u32 s{S_CS}, s{S_CS}, s{S_T}")
elif XMAP == 2:
    e(f"s_and_b32 s{S_BS}, s2, 3\ns_and_b32 s{S_CS}, s2, 4\ns_lshl_b32 s{S_CS}, s{S_CS}, 3\ns_lshr_b32 s{S_T}, s2, 3\ns_add_u32 s{S_CS}, s{S_CS}, s{S_T}")
elif XMAP:
    e(f"s_bfe_u32 s{S_BS}, s2, 0x20002\ns_and_b32 s{S_CS}, s2, 3\ns_lshl_b32 s{S_CS}, s{S_CS}, 4\ns_lshr_b32 s{S_T}, s2, 4\ns_add_u32 s{S_CS}, s{S_CS}, s{S_T}")
else:
    e(f"s_and_b32 s{S_BS}, s2, 3\ns_lshr_b32 s{S_CS}, s2, 2")
e(f"s_lshl_b32 s{S_PID}, s{S_BS}, 6\ns_add_u32 s{S_PID}, s{S_PID}, s{S_CS}")
e(f"s_lshl_b32 s{S_M0A}, s{S_WAVE}, 12\nv_mov_b32 v18, 0\nv_mov_b32 v14, 0\nv_mov_b32 v15, 0\nv_mov_b32 v19, 0\ns_mul_i32 s71, s{S_PID}, 25600")
e("s_mov_b32 s10, 0x640000\ns_mov_b32 s11, 0x20000\ns_mov_b32 s18, 0x320000\ns_mov_b32 s19, 0x20000")
e(f"s_cmp_lt_u32 s{S_WAVE}, 4\ns_cbranch_scc1 a_old")
e(f"s_cmp_eq_u32 s{S_WAVE}, 7\ns_cbranch_scc1 a_w7\ns_cmp_eq_u32 s{S_WAVE}, 6\ns_cbranch_scc1 a_pc")
e(f"s_setprio 3\ns_sub_u32 s{S_CNT}, s{S_WAVE}, 4")
e(f"v_lshrrev_b32 v10, 2, v{LANE}\nv_mul_u32_u24 v10, 400, v10\nv_and_b32 v11, 3, v{LANE}\nv_lshl_add_u32 v10, v11, 4, v10")
e(f"s_lshl_b32 s{S_T}, s{S_CNT}, 6\ns_add_u32 s{S_T}, s{S_T}, s71")
e(f"s_lshl_b32 s{S_U}, s{S_CNT}, 12\ns_add_u32 s{S_U}, s{S_U}, {L_STG}\ns_mov_b32 m0, s{S_U}\nv_lshl_add_u32 v17, v{LANE}, 6, s{S_U}")
e("s_waitcnt lgkmcnt(0)\ns_mov_b32 s8, s32\ns_mov_b32 s9, s33")
for i in range(4):
    e(f"buffer_load_dwordx4 v10, s[8:11], s{S_T} offen lds")
    if i < 3: e(f"s_add_u32 m0, m0, 1024\ns_add_u32 s{S_T}, s{S_T}, 6400")
e("s_barrier\ns_branch b_x")
e("a_pc:\ns_setprio 3")
piece_lane(); piece_src(16)
e(f"s_waitcnt lgkmcnt(0)\ns_mov_b32 s16, s42\ns_mov_b32 s17, s43")
hstamp(10)
if not A("NOP", 0): piece_ld(POOL)
hstamp(11)
e("s_barrier")
hstamp(12)
e("s_branch b_pc")
e("a_old:")
e(f"v_mov_b32 v10, {L_CTR}\nds_write_b64 v10, v[18:19]")
if PFW:
    if XMAP >= 2: e(f"v_lshlrev_b32 v16, 9, v{LANE}\ns_and_b32 s{S_U}, s{S_CS}, 15\ns_lshl_b32 s{S_U}, s{S_U}, 15\ns_lshl_b32 s{S_T}, s{S_CS}, 3\ns_add_u32 s{S_U}, s{S_U}, s{S_T}")
    else: e(f"v_and_b32 v16, 31, v{LANE}\nv_lshlrev_b32 v16, 9, v16\ns_lshr_b32 s{S_U}, s2, 3\ns_lshl_b32 s{S_U}, s{S_U}, 14\ns_lshl_b32 s{S_T}, s{S_CS}, 3\ns_add_u32 s{S_U}, s{S_U}, s{S_T}")
e(f"s_and_b32 s{S_T}, s{S_BS}, 1\ns_lshl_b32 s{S_T}, s{S_T}, 19\ns_add_u32 s{S_U}, s{S_U}, s{S_T}\ns_waitcnt lgkmcnt(0)")
if PFW == 2: e("s_barrier")
if PFW:
    e(f"s_mov_b32 s16, s42\ns_mov_b32 s17, s43\ns_cmp_lg_u32 s{S_WAVE}, 3\ns_cbranch_scc1 1f\nbuffer_load_dword v{D0}, v16, s[16:19], s{S_U} offen\n1:")
if PFW != 2: e("s_barrier")
e("s_branch c_all")
e("a_w7:")
if CPF == 1: cpf_code(D0)
e("s_setprio 2\ns_barrier")
e(f"v_bfe_u32 v16, v{LANE}, 1, 4\nv_lshlrev_b32 v18, 15, v16\nv_lshrrev_b32 v16, 5, v{LANE}\nv_lshl_or_b32 v18, v16, 12, v18\nv_and_b32 v16, 1, v{LANE}\nv_lshl_or_b32 v18, v16, 2, v18")
e(f"v_and_b32 v16, 31, v{LANE}\nv_lshlrev_b32 v16, 7, v16\ns_lshr_b32 s{S_U}, s2, 3\ns_lshl_b32 s{S_U}, s{S_U}, 12")
e(f"s_lshl_b32 s71, s{S_CS}, 3\ns_and_b32 s{S_T}, s{S_BS}, 1\ns_lshl_b32 s{S_T}, s{S_T}, 19\ns_add_u32 s71, s71, s{S_T}")
e("s_waitcnt lgkmcnt(0)\ns_mov_b32 s16, s42\ns_mov_b32 s17, s43")
srd(12, 34, 128000)
e(f"buffer_load_dword v{D0}, v16, s[12:15], s{S_U} offen")
raw(0, R1)
e("s_branch c_all")
e("b_x:")
voff_ws()
e(f"v_and_b32 v16, 15, v{LANE}\nv_lshl_add_u32 v{XA}, v16, 2, v17\nv_xor_b32 v17, 1, v16\nv_lshl_or_b32 v{XC}, v17, 16, v16")
for t in range(1, 16): e(f"v_xor_b32 v{XA+t}, {4*t}, v{XA}")
for u in range(1, 8): e(f"v_xor_b32 v{XC+u}, {2*u*0x10001:#x}, v{XC}")
idx_dst()
e("s_waitcnt vmcnt(0)")
stamp(1)
xform(0, HOLD, True)
e("s_barrier\ns_branch c_all2")
e("b_pc:")
voff_ws()
piece_dst(16)
e("s_waitcnt vmcnt(0)")
stamp(1)
piece_perm(POOL, HOLD)
e("s_barrier\ns_branch c_all2")
e("c_all:")
voff_ws()
e("c_all2:")
sloads(); common()
e(f"s_cmp_eq_u32 s{S_WAVE}, 7\ns_cbranch_scc1 d_w7\ns_cmp_lt_u32 s{S_WAVE}, 4\ns_cbranch_scc1 d_old")
if OD < 0: e("s_barrier")
e(f"v_mov_b32 v10, {L_CTR}\nv_mov_b32 v11, 1\ns_mov_b64 exec, 1\ns_waitcnt vmcnt(0)")
e("ds_add_rtn_u32 v13, v10, v11")
e(f"s_lshl_b32 s{S_T}, s{S_PID}, 7\ns_add_u32 s{S_T}, s{S_T}, {FLG:#x}\nv_mov_b32 v10, 0\ns_waitcnt lgkmcnt(0)")
e(f"v_readfirstlane_b32 s{S_U}, v13\nv_not_b32 v11, s{S_N}\ns_cmp_lg_u32 s{S_U}, 2\ns_cbranch_scc1 b_nosig")
e(f"buffer_store_dword v11, v10, s[4:7], s{S_T} offen sc1")
e("b_nosig:\ns_mov_b64 exec, -1\ns_setprio 0\ns_branch e_join")
e("d_w7:")
stamp(1)
e("s_mov_b32 s16, s42\ns_mov_b32 s17, s43\ns_barrier")
raw(R1, 32)
for vt in range(W7T): tab_dma(vt, False)
if OD < 0: e("s_barrier")
for vt in range(W7T, PRE - W7A): tab_dma(vt, False)
e(f"s_mov_b32 s{S_T}, {PLO}\ns_mov_b32 s{S_U}, {PHI}")
for s in range(4):
    e(f"s_waitcnt vmcnt({24-8*s+4*(PRE-W7A)})")
    for jj in range(4):
        r0 = POOL + 8 * s + 2 * jj
        e(f"v_perm_b32 v{POOL+32+8*s+jj}, v{r0+1}, v{r0}, s{S_T}")
        e(f"v_perm_b32 v{POOL+36+8*s+jj}, v{r0+1}, v{r0}, s{S_U}")
    e(f"ds_write_b128 v12, v[{POOL+32+8*s}:{POOL+35+8*s}] offset:{s*1024}")
    e(f"ds_write_b128 v12, v[{POOL+36+8*s}:{POOL+39+8*s}] offset:{4096+s*1024}")
if SPIN: e(f"v_mov_b32 v10, {L_CTR}\nv_mov_b32 v11, 1\nds_write_b32 v10, v11 offset:4")
stamp(2)
for vt in range(W7A): tab_dma(vt, False)
e("s_branch b_all")
e("d_old:")
stamp(1)
e("s_barrier")
def warm(tag, nseg, w0):
    if not WARM: return
    e("s_mov_b64 exec, 0")
    for k in range(nseg - 1): e(f"s_cmp_eq_u32 s{S_WAVE}, {w0+k}\ns_cbranch_scc1 @SEG_{tag}_{k}")
    e(f"s_branch @SEG_{tag}_{nseg-1}")
    e(f"warm_ret_{tag}:\ns_mov_b64 exec, -1")
if OD > 0: e(f"s_sleep {OD}")
if OD < 0: e("s_barrier")
e("e_join:")
stamp(2)
for vt in range(PRE): tab_dma(vt)
e("s_setprio 0")
warm("B", 7, 0)
e("b_all:")
if SPIN:
    e(f"s_setprio 0\nv_mov_b32 v10, {L_CTR}\ns_mov_b32 s{S_T}, 0")
    e(f"spin1:\nds_read_b32 v11, v10 offset:4\ns_add_u32 s{S_T}, s{S_T}, 1\ns_waitcnt lgkmcnt(0)\ns_cmp_gt_u32 s{S_T}, 0x1000000\ns_cbranch_scc1 1f")
    e("v_cmp_eq_u32 vcc, 0, v11\ns_cbranch_vccnz spin1\n1:")
else: e("s_setprio 0\ns_waitcnt lgkmcnt(0)\ns_barrier")
pass
stamp(3)
for i in range(8): e(f"ds_read_b128 v[{W1+4*i}:{W1+4*i+3}], v12 offset:{i*1024}")
if PI == -1: poll_issue()
common_b()
if PRE < 4: tab_dma(PRE)
tab_rd(0)
stamp(4)
L_PC = L_XCH; L_EX = 128000 + 64; L_HC = 128000; L_TB = L_XC2
ACCB = TAB; TABH = TAB + 32
def lane_to(r): e(f"v_mbcnt_lo_u32_b32 v{r}, -1, 0\nv_mbcnt_hi_u32_b32 v{r}, -1, v{r}")
DA = D0
def dl12():
    e(f"v_lshrrev_b32 v{DA+1}, 3, v{DA}\nv_mul_u32_u24 v{DA+1}, 400, v{DA+1}\nv_and_b32 v{DA}, 7, v{DA}\nv_lshl_add_u32 v{DA}, v{DA}, 4, v{DA+1}")
    e(f"s_lshl_b32 s{S_T}, s{S_WAVE}, 7\ns_add_u32 s{S_T}, s{S_T}, s71")
    e(f"s_lshl_b32 s{S_U}, s{S_WAVE}, 13\ns_add_u32 m0, s{S_U}, {L_STG}\ns_nop 0")
    for i in range(8):
        e(f"buffer_load_dwordx4 v{DA}, s[8:11], s{S_T} offen lds")
        if i < 7: e(f"s_add_u32 m0, m0, 1024\ns_add_u32 s{S_T}, s{S_T}, 3200")
def dlp(fp0, lds):
    e(f"v_lshrrev_b32 v{DA+1}, 3, v{DA}\nv_and_b32 v{DA}, 7, v{DA}\nv_lshlrev_b32 v{DA}, 4, v{DA}\nv_lshl_or_b32 v{DA}, v{DA+1}, 9, v{DA}")
    piece_src(fp0)
    e(f"s_mov_b32 m0, {lds}\ns_nop 0")
    for i in range(4):
        e(f"buffer_load_dwordx4 v{DA}, s[16:19], s{S_T} offen lds")
        if i < 3: e(f"s_add_u32 m0, m0, 1024\ns_add_u32 s{S_T}, s{S_T}, {(4096, 28672, 4096)[i]}")
def dl3():
    e(f"v_mul_u32_u24 v{DA+2}, 400, v{DA}\ns_add_u32 s{S_T}, s71, 384\ns_mov_b32 m0, {L_EX}\ns_nop 0\nbuffer_load_dwordx4 v{DA+2}, s[8:11], s{S_T} offen lds")
    dlp(48, L_PC + 4096)
def dl0():
    e(f"v_and_b32 v{DA+1}, 24, v{DA}\nv_and_b32 v{DA+2}, 3, v{DA}\nv_lshl_add_u32 v{DA+1}, v{DA+2}, 1, v{DA+1}\nv_bfe_u32 v{DA+2}, v{DA}, 2, 1\nv_add_u32 v{DA+1}, v{DA+1}, v{DA+2}\nv_lshlrev_b32 v{DA+1}, 7, v{DA+1}\nv_lshrrev_b32 v{DA+2}, 5, v{DA}\nv_lshl_add_u32 v{DA+2}, v{DA+2}, 4, v{DA+1}")
    e(f"s_lshr_b32 s{S_T}, s{S_CS}, 3\ns_lshl_b32 s{S_T}, s{S_T}, 12\ns_bfe_u32 s{S_U}, s{S_CS}, 0x10002\ns_lshl_b32 s{S_U}, s{S_U}, 15\ns_add_u32 s{S_T}, s{S_T}, s{S_U}\ns_and_b32 s{S_U}, s{S_CS}, 3\ns_lshl_b32 s{S_U}, s{S_U}, 5\ns_mov_b32 m0, {L_TB}\ns_add_u32 s{S_T}, s{S_T}, s{S_U}")
    e(f"buffer_load_dwordx4 v{DA+2}, s[12:15], s{S_T} offen lds")
    srd(8, 36, 16384 * 26)
    e(f"s_lshr_b32 s{S_T}, s{S_PID}, 2\ns_lshl_b32 s{S_T}, s{S_T}, 8\ns_and_b32 s{S_U}, s{S_PID}, 3\ns_lshl_b32 s{S_U}, s{S_U}, 4\ns_add_u32 s{S_T}, s{S_T}, s{S_U}\ns_mul_i32 s{S_T}, s{S_T}, 26\ns_mov_b32 m0, {L_TB+1024}")
    e(f"v_lshrrev_b32 v{DA+1}, 4, v{DA}\nv_mul_u32_u24 v{DA+1}, 1664, v{DA+1}\nv_and_b32 v{DA+2}, 15, v{DA}\nv_mul_u32_u24 v{DA+2}, 28, v{DA+2}\nv_add_u32 v{DA+2}, v{DA+2}, v{DA+1}")
    e(f"buffer_load_dword v{DA+2}, s[8:11], s{S_T} offen lds")
    dlp(32, L_PC)
O0 = O1 = ACCB + 16; U0 = ACCB + 24; U1 = ACCB + 25; DD = ACCB
def dx12():
    e(f"s_lshl_b32 s{S_CNT}, s{S_WAVE}, 1")
    idx_dst()
    e(f"s_lshl_b32 s{S_U}, s{S_WAVE}, 13\ns_add_u32 s{S_U}, s{S_U}, {L_STG}")
    e(f"v_and_b32 v{U1}, 15, v{U0}\nv_lshl_add_u32 v{U0}, v{U0}, 7, s{S_U}\nv_lshl_add_u32 v{U0}, v{U1}, 2, v{U0}\nv_xor_b32 v{O0}, 1, v{U1}\nv_lshl_or_b32 v{U1}, v{O0}, 16, v{U1}")
    for h, o in ((0, O0), (1, O1)):
        for t in range(16): e(f"v_xor_b32 v{DD+t}, {4*t}, v{U0}\nds_read_b32 v{DD+t}, v{DD+t} offset:{64*h}")
        for u in range(8):
            e(f"v_xor_b32 v{o+u}, {2*u*0x10001:#x}, v{U1}\ns_waitcnt lgkmcnt({14-2*u})")
            e(f"v_lshl_add_u32 v{DD+2*u}, v{DD+2*u+1}, 16, v{DD+2*u}")
            e(f"v_lshl_add_u32 v{o+u}, v{DD+2*u}, 4, v{o+u}")
            if u % 4 == 3: e(f"buffer_store_dwordx4 v[{o+u-3}:{o+u}], v{VOFF}, s[4:7], s{70+h} offen offset:{(u//4)*128} sc1")
def dxp(fp0, lds):
    e(f"v_lshrrev_b32 v{O0}, 2, v{U0}\nv_and_b32 v{O0+1}, 1, v{U0}\nv_and_b32 v{O0+2}, 2, v{U0}\nv_lshlrev_b32 v{U1}, 3, v{O0}\nv_lshl_or_b32 v{U1}, v{O0+1}, 11, v{U1}\nv_lshl_or_b32 v{U1}, v{O0+2}, 9, v{U1}\nv_add_u32 v{U1}, {lds}, v{U1}")
    for j in range(8): e(f"ds_read_b64 v[{DD+2*j}:{DD+2*j+1}], v{U1} offset:{j*128}")
    e(f"v_mul_u32_u24 v{O0}, {WSTR}, v{O0}\nv_and_b32 v{U0}, 3, v{U0}\nv_lshl_add_u32 v{U0}, v{U0}, 4, v{O0}")
    e(f"s_mul_i32 s70, s{S_BS}, {16*WSTR}\ns_lshr_b32 s{S_T}, s{S_CS}, 2\ns_lshl_b32 s{S_T}, s{S_T}, 10\ns_add_u32 s70, s70, s{S_T}")
    e(f"s_and_b32 s{S_T}, s{S_CS}, 3\ns_lshl_b32 s{S_T}, s{S_T}, 7\ns_add_u32 s70, s70, s{S_T}\ns_add_u32 s70, s70, {W1P + (fp0-16)*1024:#x}")
    e(f"s_mov_b32 s{S_T}, {PLO}\ns_mov_b32 s{S_U}, {PHI}\ns_waitcnt lgkmcnt(0)")
    for cp in range(2):
        for par in range(2):
            r = (O0, O1)[cp] + 4 * par
            for jj in range(4):
                r0 = DD + 4 * jj + cp
                e(f"v_perm_b32 v{r+jj}, v{r0+2}, v{r0}, s{S_U if par else S_T}")
            e(f"buffer_store_dwordx4 v[{r}:{r+3}], v{U0}, s[4:7], s70 offen offset:{par*512+cp*64} sc1")
def dx3():
    a = DD
    e(f"v_lshlrev_b32 v{U1}, 4, v{U0}\nv_add_u32 v{U1}, {L_EX}, v{U1}\nds_read_b128 v[{a}:{a+3}], v{U1}")
    e(f"s_lshr_b32 s70, s{S_PID}, 3\ns_mul_i32 s70, s70, {ISTR}\ns_add_u32 s70, s70, {IDXP + 6*16384:#x}")
    e(f"s_and_b32 s{S_T}, s{S_PID}, 7\ns_lshl_b32 s{S_T}, s{S_T}, 9\ns_add_u32 s70, s70, s{S_T}")
    e(f"v_and_b32 v{U1}, 31, v{U0}\nv_lshlrev_b32 v{U1}, 4, v{U1}\nv_lshrrev_b32 v{a+4}, 5, v{U0}\nv_lshl_or_b32 v{U1}, v{a+4}, 3, v{U1}")
    e(f"s_mov_b32 s{S_T}, 0x40014000\ns_mov_b32 s{S_U}, 0x40034002\ns_waitcnt lgkmcnt(0)")
    e(f"v_lshl_add_u32 v{a}, v{a+1}, 16, v{a}\nv_lshl_add_u32 v{a+2}, v{a+3}, 16, v{a+2}")
    e(f"v_lshl_add_u32 v{a}, v{a}, 2, s{S_T}\nv_lshl_add_u32 v{a+2}, v{a+2}, 2, s{S_U}")
    e(f"v_and_b32 v{a+1}, 1, v{U0}\nv_lshlrev_b32 v{a+1}, 4, v{a+1}\nv_and_b32 v{a+3}, 2, v{U0}\nv_cmp_ne_u32 vcc, 0, v{a+3}")
    e(f"v_alignbit_b32 v{a}, v{a}, v{a}, v{a+1}\nv_alignbit_b32 v{a+2}, v{a+2}, v{a+2}, v{a+1}")
    e(f"v_cndmask_b32 v{O1+6}, v{a}, v{a+2}, vcc\nv_cndmask_b32 v{O1+7}, v{a+2}, v{a}, vcc")
    e(f"buffer_store_dwordx2 v[{O1+6}:{O1+7}], v{U1}, s[4:7], s70 offen sc1")
    e(f"s_cmp_ge_u32 s{S_CS}, 8\ns_cbranch_scc1 g_join")
    dxp(48, L_PC + 4096)
def dx0():
    e(f"v_lshlrev_b32 v{U1}, 4, v{U0}\nv_add_u32 v{U1}, {L_TB}, v{U1}\nds_read_b128 v[{ACCB+28}:{ACCB+31}], v{U1}")
    e(f"s_lshl_b32 s70, s{S_BS}, 17\ns_lshr_b32 s{S_T}, s{S_CS}, 3\ns_lshl_b32 s{S_T}, s{S_T}, 14\ns_add_u32 s70, s70, s{S_T}\ns_and_b32 s{S_T}, s{S_CS}, 7\ns_lshl_b32 s{S_T}, s{S_T}, 7\ns_add_u32 s70, s70, s{S_T}\ns_add_u32 s70, s70, {TABP:#x}\ns_add_u32 s71, s70, 8192\ns_waitcnt lgkmcnt(0)")
    e(f"buffer_store_dwordx4 v[{ACCB+28}:{ACCB+31}], v{VOFF}, s[4:7], s70 offen sc1")
    dxp(32, L_PC)
DB = [ACC, D0, ACC, D0]
PK = [HOLD, HOLD + 16, ACC, D0]
WQ = [0] + [int(c) for c in A("WQ", "033")] + [2]
BU = A("BU", 0)
pend = []; m0cur = [None]; lds_after = [0]
def flush(n):
    for _ in range(n):
        if not pend: return
        t, r = pend.pop(0)
        want = S_M0A if t < 2 else S_M0B
        if m0cur[0] != want: e(f"s_mov_b32 m0, s{want}\ns_nop 0"); m0cur[0] = want
        wr(PK[t] + r, t, r); lds_after[0] += 1
        g = 16 * t + r - 34
        if 0 <= g < 16: e(f"v_mov_b32 v{ACC+g}, 0")
for vt in range(5):
    m0cur[0] = None
    if vt < 4: e(f"s_waitcnt lgkmcnt({min(lds_after[0], 15)})")
    b = DB[vt - 1]
    for i in range(9):
        if vt < 4 and i < 8: mf(vt, i, base=DB[vt])
        if 0 < vt < 4 and i == 0: e("s_nop 10")
        new = []
        if vt > 0 and i < 8:
            for r in (2 * i, 2 * i + 1):
                cvt(PK[vt - 1] + r, r, b); new.append((vt - 1, r))
                if vt == 3: e(f"v_mov_b32 v{ACC+16+r}, 0")
        if BU and vt < 4: flush(8 * WQ[vt] if i == 8 else 0)
        else: flush(WQ[vt] if (vt, i) != (4, 8) else 99)
        pend += new
        if i == TRI and vt < 3: tab_rd(vt + 1); lds_after[0] = 0
    if not DE and PRE + 1 + vt < 4: tab_dma(PRE + 1 + vt)
    if vt == PI: poll_issue()
    if vt == PI + 1: poll_check()
    if vt == KT:
        assert KT >= PI + 1
        for k in range(KA, KPRE): ldi(POOL + 4 * k, k, ("i", k))
    if vt == (3 if B2 else 4):
        fstamp(9)
        wait_vm("w1xw", "w1x")
        fstamp(10)
        e("ds_write_b128 v17, v[24:27]")
        if B2:
            e("s_waitcnt lgkmcnt(0)\ns_barrier")
            fstamp(11)
            for i in range(8): e(f"ds_read_b128 v[{W1+4*i}:{W1+4*i+3}], v16 offset:{i*1024}")
e(f"s_cmp_lg_u32 s{S_WAVE}, 7\ns_cbranch_scc1 1f\nv_mov_b32 v10, {L_HC}\nv_mov_b32 v11, 0\nds_write_b32 v10, v11\n1:")
fstamp(12)
wait_vm("p0i", ("i", 1))
unpack(POOL)
e(f"s_mov_b32 s{S_CNT}, 3")
e("s_waitcnt lgkmcnt(0)\ns_barrier")
if not B2:
    for i in range(8): e(f"ds_read_b128 v[{W1+4*i}:{W1+4*i+3}], v16 offset:{i*1024}")
e("@ENDREGION")
if not B2: e("s_waitcnt lgkmcnt(0)")
stamp(7)
if STAMP == 1: e(f"s_waitcnt lgkmcnt(0)\ns_mov_b32 s40, s{SB+14}\ns_mov_b32 s42, s{SB+14}\ns_mov_b32 s44, 0\ns_mov_b32 s45, 0\ns_mov_b32 s46, 0")

assert B2
a_, b_, c_, d_ = POOL, POOL + 16, POOL + 32, POOL + 48
def g4(*bases): return [b + 4 * i for b in bases for i in range(4)]
WG = [W1 + 4 * frag_of(i) for i in range(8)]
GRP = [g4(a_, b_, c_, d_), g4(d_) + WG + g4(D1), g4(d_, b_, c_, a_), g4(d_, b_, c_, a_), g4(a_, b_, c_, d_), g4(a_, b_, c_, d_)]
for k in range(KPRE): vm.tag[("i", 0, k)] = vm.tag[("i", k)]
def ld(reg, base, off, tag, extra=""):
    e(f"s_add_u32 s{S_T}, s{base}, {off & ~1023}\nbuffer_load_dwordx4 v[{reg}:{reg+3}], v{VOFF}, s[4:7], s{S_T} offen offset:{off & 1023} sc1")
    vm.issue(tag)
def L(h, k): return lambda: ld(GRP[h][k], S_IDX2 if h % 2 else S_IDX, (h // 2) * 32768 + (k // 8) * 8192 + (k % 8) * 128, ("i", h, k))
def LW(i, off): return lambda: ld(W1 + 4 * i, S_W1, off + i * 128, ("w", i))
S_TB = 54; S_XS = 55; S_XR = 24 + 0
def LT(vt, sx): return lambda: ld(TABH + 16 * (vt % 2) + 4 * sx, S_TB, (vt // 2) * 8192 + ((vt % 2) * 4 + sx) * 128, ("tb", vt))
skip_n = [0]
def wv(tag):
    n = vm.younger(tag); assert n < 64
    if vm.tag[tag] <= skip_n[0]: e(f"s_cmp_lt_u32 s{S_WAVE}, 4\ns_cbranch_scc1 1f\ns_waitcnt vmcnt({n})\n1:")
    else: e(f"s_waitcnt vmcnt({n})")
def smf2(a, slot):
    d = DAT + 8 * slot
    e(f"v_smfmac_f32_16x16x64_bf16 v[{a}:{a+3}], v[{AC}:{AC+3}], v[{d}:{d+7}], v{SIDX}")
def mf2(tb, i):
    sx, par = i // 2, i % 2
    d = D0 + 16 * par
    c = "0" if sx == 0 else f"v[{d}:{d+15}]"
    e(f"v_mfma_f32_32x32x16_bf16 v[{d}:{d+15}], v[{tb+4*sx}:{tb+4*sx+3}], v[{W1+16*par+4*sx}:{W1+16*par+4*sx+3}], {c}")
def qunits(h): return [(GRP[h][q // 2] + 2 * (q % 2), (ACCB if h % 2 else ACC) + 4 * (q // 4), ("i", h, q // 2 + 1) if q % 4 == 0 else None) for q in range(32)]
def run(units, pre, mid, end):
    for i, u in enumerate(units):
        if i >= 3:
            e("s_waitcnt lgkmcnt(8)"); smf2(units[i - 3][1], i % 3)
        for f in pre.get(i, []): f()
        reads(u[0], i % 3)
        for f in mid.get(i, []): f()
        if i + 1 < len(units):
            if units[i + 1][2]: wv(units[i + 1][2])
            unpack(units[i + 1][0])
        for f in end.get(i, []): f()
def add(d, i, *f): d.setdefault(i, []).extend(f)
def pgen(mid, end, o, tbs, stg, waitw, waitt):
    for t in range(4):
        for i in range(8):
            if t == 0 and i % 2 == 0 and waitw: add(mid, o + MQ[i], lambda i=i: wv(("w", frag_of(i + 1))))
            if i == 0 and waitt[t] is not None: add(mid, o + 8 * t + MQ[0], lambda t=t: wv(("tb", waitt[t])))
            add(mid, o + 8 * t + MQ[i], lambda t=t, i=i: mf2(tbs[t], i))
        if stg[t] is not None: add(end, o + 8 * t + 7, lambda t=t: [cvt(stg[t] + r, r) for r in range(16)])
def tail(units, before_bar):
    n = len(units)
    e("s_waitcnt lgkmcnt(8)"); smf2(units[n - 3][1], n % 3)
    e("s_waitcnt lgkmcnt(4)"); smf2(units[n - 2][1], (n + 1) % 3)
    before_bar()
    e("s_waitcnt lgkmcnt(0)\ns_barrier")
def wphase(last, order, acts, nxt):
    n = 0; cur = None
    for vt, src in order:
        want = S_M0A if vt < 2 else S_M0B
        if want != cur: e(f"s_mov_b32 m0, s{want}\ns_nop 0"); cur = want
        for r in range(16):
            for f in acts.get(n, []): f()
            wr(src + r, vt, r)
            if n == SP: smf2(*last)
            n += 1
    wv(nxt[2]); unpack(nxt[0])
    e("s_waitcnt lgkmcnt(0)\ns_barrier")
def pst(i, f=4):
    if f == 4 and PROBE == 20 + i: e("s_memrealtime s[96:97]")
    if FINE == f and STAMP: e(f"s_memtime s[{SB+2*i}:{SB+1+2*i}]")

XQ = A("XQ", 32); SQ = A("SQ", 40)
units = qunits(0) + qunits(1); pre = {}; mid = {}; end = {}
pgen(mid, end, 0, [TAB, TAB + 16, TAB + 32, TAB + 48], [a_, b_, c_, D0], False, [None] * 4)
for j, k in enumerate(range(KPRE, 16)): add(mid, j * A("LS", 10) // (16 - KPRE), L(0, k))
for k in range(4): add(mid, 25 + 2 * k, L(1, k))
for k in range(4, 12): add(mid, (26, 28, 30, 32, 34, 36, 38, 40)[k - 4], L(1, k))
for k in range(12, 16): add(mid, 42 + 2 * (k - 12), L(1, k))
def hook_d():
    e(f"s_cmp_ge_u32 s{S_WAVE}, 4\ns_cbranch_scc1 d_join")
    e("s_mov_b32 s8, s32\ns_mov_b32 s9, s33\ns_mov_b32 s16, s42\ns_mov_b32 s17, s43\ns_waitcnt vmcnt(0)")
    lane_to(DA); role_old("d", dl12, dl3, dl0); skip_n[0] = vm.n
def hook_x():
    e(f"s_cmp_ge_u32 s{S_WAVE}, 4\ns_cbranch_scc1 g_join")
    lane_to(U0); e("s_waitcnt vmcnt(0)"); role_old("g", dx12, dx3, dx0); skip_n[0] = vm.n; vm.tag["dst"] = vm.n
def hook_s():
    r = ACCB + 28
    e(f"s_cmp_ge_u32 s{S_WAVE}, 4\ns_cbranch_scc1 s_join")
    e(f"v_mov_b32 v{r}, {L_HC}\nv_mov_b32 v{r+1}, 1\ns_mov_b64 exec, 1\ns_waitcnt vmcnt({vm.younger('dst')})\nds_add_rtn_u32 v{r+2}, v{r}, v{r+1}")
    e(f"s_lshl_b32 s{S_T}, s{S_PID}, 7\ns_add_u32 s{S_T}, s{S_T}, {FLGB:#x}\nv_mov_b32 v{r}, 0\nv_mov_b32 v{r+1}, s{S_N}\ns_waitcnt lgkmcnt(0)")
    e(f"v_readfirstlane_b32 s{S_U}, v{r+2}\ns_nop 0\ns_cmp_lg_u32 s{S_U}, 3\ns_cbranch_scc1 1f\nbuffer_store_dword v{r+1}, v{r}, s[4:7], s{S_T} offen sc1\n1:\ns_mov_b64 exec, -1\ns_join:")
add(end, A("HD", 15), hook_d); add(end, XQ, lambda: pst(1, 6), hook_x, lambda: pst(2, 6)); add(end, SQ, hook_s, lambda: pst(3, 6))
assert 15 <= XQ <= 32 and XQ < SQ < 58
for g in range(8): add(end, 33 + 4 * g, lambda g=g: [e(f"v_mov_b32 v{ACCB+4*g+c}, 0") for c in range(4)])
add(pre, 32, lambda: pst(1))
def pb_issue():
    r = W1
    lane_to(r)
    e(f"s_lshr_b32 s{S_T}, s{S_CS}, 4\nv_mov_b32 v{r+1}, s{S_T}\nv_lshrrev_b32 v{r+2}, 3, v{r}\nv_xor_b32 v{r+2}, s{S_BS}, v{r+2}\nv_cmp_gt_u32 vcc, 16, v{r}\nv_and_b32 v{r}, 7, v{r}\ns_lshl_b32 s70, s{S_WAVE}, 10")
    e(f"v_cndmask_b32 v{r+1}, v{r+1}, v{r+2}, vcc\nv_lshl_add_u32 v{r}, v{r+1}, 6, v{r}\nv_lshlrev_b32 v{r}, 7, v{r}\ns_add_u32 s70, s70, {FLGB:#x}")
    e(f"buffer_load_dword v{r+1}, v{r}, s[4:7], s70 offen sc1"); vm.issue("pb")
add(end, A("PQ", 56), pb_issue)
run(units, pre, mid, end)
def poll_b():
    r = W1
    e(f"s_mov_b32 s{S_U}, 0\npb_loop:\ns_waitcnt vmcnt(0)\nv_cmp_ne_u32 vcc, s{S_N}, v{r+1}\ns_cbranch_vccz pb_done")
    e(f"s_add_u32 s{S_U}, s{S_U}, 1\ns_cmp_gt_u32 s{S_U}, 0x40000\ns_cbranch_scc1 pb_done\ns_sleep 8\nbuffer_load_dword v{r+1}, v{r}, s[4:7], s70 offen sc1\ns_branch pb_loop\npb_done:")
tail(units, lambda: (pst(4, 6), poll_b(), pst(5, 6)))
pst(6, 6)
skip_n[0] = 0
pst(2)
params()
e(f"s_lshr_b32 s{S_TB}, s{S_CS}, 4\ns_lshl_b32 s{S_TB}, s{S_TB}, 3\ns_add_u32 s{S_TB}, s{S_TB}, s{S_WAVE}\ns_lshl_b32 s{S_TB}, s{S_TB}, 14\ns_add_u32 s{S_TB}, s{S_TB}, {TABP:#x}")
wphase((units[-1][1], (len(units) + 2) % 3), [(1, b_), (0, a_), (2, c_), (3, D0)], {0: [L(2, 0)], 4: [L(2, 1)], 16: [L(2, 2)], 32: [L(2, 3)]}, qunits(2)[0])
pst(3)
WA = W1 + 16; TL = W1 + 17; TM = W1 + 18
def xfr():
    lane_to(TL)
    e(f"v_and_b32 v{WA}, 0x7f, v{VOFF}\nv_and_b32 v{TM}, 4, v{TL}\nv_lshl_or_b32 v{WA}, v{TM}, 8, v{WA}\nv_and_b32 v{TM}, 8, v{TL}\nv_lshl_or_b32 v{WA}, v{TM}, 6, v{WA}\nv_and_b32 v{TM}, 16, v{TL}\nv_lshl_or_b32 v{WA}, v{TM}, 4, v{WA}")
    e(f"s_and_b32 s{S_U}, s{S_BS}, 1\ns_lshl_b32 s{S_U}, s{S_U}, 13\ns_sub_u32 s{S_U}, s{S_W1}, s{S_U}\ns_add_u32 s{S_U}, s{S_U}, 32768")
    for i in range(2): e(f"buffer_load_dwordx4 v[{W1+4*i}:{W1+4*i+3}], v{WA}, s[4:7], s{S_U} offen offset:{i*128} sc1"); vm.issue("xf")
def xgaddr():
    e(f"s_xor_b32 s{S_XS}, s{S_PID}, 64\ns_lshl_b32 s{S_XS}, s{S_XS}, 3\ns_add_u32 s{S_XS}, s{S_XS}, s{S_WAVE}\ns_lshl_b32 s{S_XS}, s{S_XS}, 13\ns_add_u32 s{S_XS}, s{S_XS}, {XG:#x}\ns_xor_b32 s{S_XR}, s{S_XS}, {64*8*8192:#x}")
def xmerge():
    wv("xf")
    for r in range(8): e(f"v_permlane16_swap_b32 v{W1+r}, v{W1+8+r}")
def xaddr():
    e(f"v_and_b32 v{WA}, 24, v{TL}\nv_and_b32 v{TM}, 3, v{TL}\nv_lshl_add_u32 v{WA}, v{TM}, 1, v{WA}\nv_bfe_u32 v{TM}, v{TL}, 2, 1\nv_add_u32 v{WA}, v{WA}, v{TM}")
    e(f"v_lshrrev_b32 v{TM}, 5, v{TL}\nv_lshl_add_u32 v{WA}, v{WA}, 1, v{TM}\ns_lshl_b32 s{S_T}, s{S_WAVE}, 10\ns_add_u32 s{S_T}, s{S_T}, {L_XT}\nv_lshl_add_u32 v{WA}, v{WA}, 4, s{S_T}")
def xm(vt, sx):
    d = D0 + 16 * (vt % 2); tb = TABH + 16 * (vt % 2) + 4 * sx
    e(f"v_mfma_f32_32x32x16_bf16 v[{d}:{d+15}], v[{W1+4*sx}:{W1+4*sx+3}], v[{tb}:{tb+3}], " + ("0" if sx == 0 else f"v[{d}:{d+15}]"))
def xw(vt):
    d = D0 + 16 * (vt % 2)
    for r in range(4): e(f"v_cvt_pk_bf16_f32 v{d+r}, v{d+r}, v{d+4+r}")
    e(f"ds_write_b128 v{WA}, v[{d}:{d+3}] offset:{vt*8192}")
def px(mid, end, o, tiles):
    add(mid, o, xfr); add(end, o + 6, xmerge); add(end, o + 7, xaddr)
    for j, vt in enumerate(tiles):
        for sx in range(4): add(mid, o + 8 + 4 * j + sx, lambda vt=vt, sx=sx: xm(vt, sx))
        add(end, o + 13 + 4 * j, lambda vt=vt: xw(vt))
units = qunits(2) + qunits(3); pre = {}; mid = {}; end = {}
px(mid, end, 2, (2, 3))
for k in range(4, 16): add(mid, (0, 1, 3, 4, 5, 6, 8, 9, 11, 12, 14, 15)[k - 4], L(2, k))
for k in range(4): add(mid, 16 + k, L(3, k))
for i in range(8): add(mid, 20 + i, LW(frag_of(i), 16384))
pgen(mid, end, 32, [TABH, TABH + 16, TABH, TABH + 16], [d_, b_, c_, None], True, [None, None, 0, 1])
for k in range(4, 16): add(mid, [int(x) for x in A("L3", "30.31.32.33.34.35.37.38.43.44.45.46").split(".")][k - 4], L(3, k))
for sx in range(4): add(mid, 39 + sx, LT(0, sx)); add(mid, 47 + sx, LT(1, sx))
for k in range(4): add(mid, 57 + 2 * k, L(4, k))
if A("RB", 1): add(pre, 32, lambda: e("s_barrier"))
add(pre, 32, lambda: pst(4))
run(units, pre, mid, end)
tail(units, lambda: [cvt(D0 + r, r) for r in range(16)])
pst(5)
wphase((units[-1][1], (len(units) + 2) % 3), [(3, b_), (2, d_), (0, c_), (1, D0)], {32 + 8 * k: [L(4, 4 + k)] for k in range(4)}, qunits(4)[0])
stamp(8)
XI = W1 + 16
SC = TABH; LN = SC; ROW = SC + 1; PV = SC + 4; RES = SC + 8; XW = SC + 16; X8 = SC + 30
XB = A("XB", 44); SS = A("SS", 5); RQ = A("RQ", 52)
q5 = qunits(5)
units = qunits(4) + q5[:XB - 32] + [(XI + 2 * g, ACCB + 4 * g, None) for g in range(8)] + q5[XB - 32:]
pre = {}; mid = {}; end = {}
add(mid, 0, xgaddr)
px(mid, end, 1, (0, 1))
L4 = [int(x) for x in A("L4", "0.2.4.6.8.10.12.14").split(".")]
L5 = [int(x) for x in A("L5", "15.16.17.18.22.24.26.29.30.31.33.34.35.37.38.39").split(".")]
for k in range(8, 16): add(mid, L4[k - 8], L(4, k))
for k in range(16): add(mid, L5[k], L(5, k))
GB = [ACC, ACC + 8, ACC + 14, ACC + 22, ACC + 28]
def send(i):
    b = GB[i]
    if i < 4:
        v = ACC + 7 * i
        for c in range(4): e(f"v_cvt_pk_bf16_f32 v{b+c}, v{v+2*c}, v{v+2*c+(1 if c < 3 else 0)}")
        e(f"v_mov_b32_sdwa v{b+3}, s{S_N} dst_sel:WORD_1 dst_unused:UNUSED_PRESERVE src0_sel:WORD_0")
    else:
        for c in range(4): e(f"v_mov_b32_sdwa v{b+c}, s{S_N} dst_sel:BYTE_0 dst_unused:UNUSED_PRESERVE src0_sel:BYTE_0")
    e(f"s_nop 0\nbuffer_store_dwordx4 v[{b}:{b+3}], v{VOFF}, s[4:7], s{S_XS} offen offset:{i*128} sc1"); vm.issue()
def recv(i, cnt=True):
    b = GB[i]
    e(f"buffer_load_dwordx4 v[{b}:{b+3}], v{VOFF}, s[4:7], s{S_XR} offen offset:{i*128} sc1")
    if cnt: vm.issue(("r", i))
slow = []
def rcheck(i):
    b = GB[i]; t = SC + 31
    wv(("r", i))
    e(f"s_mov_b32 s{S_CNT}, 0\nrc{i}:")
    if i < 4: e(f"v_cmp_ne_u32_sdwa vcc, v{b+3}, s{S_N} src0_sel:WORD_1 src1_sel:WORD_0")
    else:
        for c in range(4): e(f"v_xor_b32 v{b+c}, v{PV+2}, v{b+c}")
        e(f"v_or3_b32 v{t}, v{b}, v{b+1}, v{b+2}\nv_or_b32 v{t}, v{t}, v{b+3}\nv_and_b32 v{t}, 255, v{t}\nv_cmp_ne_u32 vcc, 0, v{t}")
    e(f"s_cbranch_vccnz rs{i}\nrd{i}:")
    slow.append(i)
def IL(k, d): return [int(x) for x in A(k, d).split(".")]
TS = IL("TS", "12.20.28.32.36"); TR = IL("TR", "46.49.53.57.61"); TC = IL("TC", "53.57.61.65.69"); TE = IL("TE", "54.58.59.62.64.68")
for i in range(5):
    assert TS[i] >= 4 * (min(7 * i + 6, 31) // 4) + 8 and TS[i] < TR[i] < TC[i]
    add(end, TS[i], lambda i=i: send(i)); add(end, TR[i], lambda i=i: recv(i)); add(end, TC[i], lambda i=i: rcheck(i))
for g in range(6): assert TE[g] >= TC[(4 * g + 3) // 7]
def setup():
    lane_to(LN)
    e(f"v_lshlrev_b32 v{X8}, 4, v{LN}\ns_and_b32 s{S_U}, s{S_BS}, 1\ns_lshl_b32 s{S_U}, s{S_U}, 14\ns_sub_u32 s{S_IDX}, s{S_IDX2}, s{S_U}\ns_add_u32 s{S_IDX}, s{S_IDX}, {6*16384}")
    e(f"v_and_b32 v{PV+1}, 15, v{LN}\nv_lshlrev_b32 v{PV+1}, 4, v{PV+1}\nv_lshrrev_b32 v{PV}, 4, v{LN}\nv_lshl_or_b32 v{PV}, v{PV}, 14, v{PV+1}")
    e(f"s_lshl_b32 s70, s{S_BS}, 20\ns_lshl_b32 s71, s{S_WAVE}, 17\ns_add_u32 s70, s70, s71\ns_lshl_b32 s71, s{S_CS}, 8\ns_add_u32 s70, s70, s71")
    e(f"s_add_u32 s70, s70, {PART:#x}\ns_add_u32 s71, s70, 65536")
    e(f"s_and_b32 s{S_U}, s{S_N}, 255\nv_mov_b32 v{PV+2}, s{S_U}\ns_mov_b32 s{S_W1}, 0xffffff00")
    e("s_lshl_b32 s56, s58, 16\ns_and_b32 s57, s58, 0xffff0000\ns_lshl_b32 s58, s59, 16\ns_and_b32 s59, s59, 0xffff0000")
    e("s_xor_b32 s52, s52, 0x80008000\ns_xor_b32 s53, s53, 0x80008000")
    e("s_lshl_b32 s0, s52, 16\ns_and_b32 s1, s52, 0xffff0000\ns_lshl_b32 s52, s53, 16\ns_and_b32 s53, s53, 0xffff0000")
    e(f"v_mov_b32 v{PV+1}, s0\nv_mul_f32 v{SC+3}, s56, v{PV+1}")
    for c, r in ((1, 1), (2, 52), (3, 53)): e(f"v_mov_b32 v{PV+1}, s{r}\nv_fma_f32 v{SC+3}, v{PV+1}, s{56+c}, v{SC+3}")
    e(f"v_xor_b32 v{SC+3}, 0x80000000, v{SC+3}")
    srd(8, 36, 16384 * 26); srd(12, 50, 32768)
add(end, 19, setup)
def xld(g):
    e(f"buffer_load_dwordx4 v[{XI+4*g}:{XI+4*g+3}], v{X8}, s[4:7], s{S_IDX} offen offset:{g*1024} sc1"); vm.issue(("x", g))
for g in range(4): add(mid, A('XL', 21) + 2 * g, lambda g=g: xld(g))
def xswap():
    wv(("x", 3))
    for g in range(4): e(f"v_permlane32_swap_b32 v{XI+4*g}, v{XI+4*g+2}\nv_permlane32_swap_b32 v{XI+4*g+1}, v{XI+4*g+3}")
add(mid, XB - 2, xswap)
add(pre, A("XBAR", 24), lambda: e("s_barrier"))
for b in IL("BARS", "99"): add(pre, b, lambda: e("s_barrier"))
add(pre, A("PY", 99), lambda: e(f"s_cmp_ge_u32 s{S_WAVE}, 4\ns_cbranch_scc0 1f\ns_setprio 1\n1:"))
add(pre, 32, lambda: pst(6))
def wide():
    e(f"s_cmp_lg_u32 s{S_WAVE}, 0\ns_cbranch_scc1 nowide")
    e(f"s_lshr_b32 s{S_T}, s{S_PID}, 2\ns_lshl_b32 s{S_T}, s{S_T}, 8\ns_and_b32 s{S_U}, s{S_PID}, 3\ns_lshl_b32 s{S_U}, s{S_U}, 4\ns_add_u32 s{S_T}, s{S_T}, s{S_U}")
    e(f"v_lshrrev_b32 v{ROW}, 4, v{LN}\nv_and_b32 v{ROW+1}, 15, v{LN}\nv_lshl_add_u32 v{ROW}, v{ROW}, 6, v{ROW+1}\nv_add_u32 v{ROW}, s{S_T}, v{ROW}")
    e(f"v_mul_u32_u24 v{ROW+1}, 26, v{ROW}")
    for j in range(13): e(f"buffer_load_ushort v{XW+j}, v{ROW+1}, s[8:11], 0 offen offset:{2*j}")
    e("nowide:")
add(end, A('XBAR', 24) - 1, wide)
def epi(g):
    a = ACCB + 4 * g
    t = SC + 31
    for c in range(4):
        n = 4 * g + c
        if g == 7: e(f"v_add_f32 v{a+c}, v{a+c}, v{GB[4]+c}"); continue
        r = GB[n // 7] + (n % 7) // 2
        e((f"v_and_b32 v{t}, 0xffff0000, v{r}" if n % 7 % 2 else f"v_lshlrev_b32 v{t}, 16, v{r}") + f"\nv_add_f32 v{a+c}, v{a+c}, v{t}")
    for c in range(4): e(f"v_max_f32 v{a+c}, s{(0, 1, 52, 53)[c]}, v{a+c}")
    e(f"v_fma_f32 v{RES+g}, v{a}, s56, v{SC+3}")
    for c in range(1, 4): e(f"v_fma_f32 v{RES+g}, v{a+c}, s{56+c}, v{RES+g}")
    e(f"v_and_or_b32 v{RES+g}, v{RES+g}, s{S_W1}, v{PV+2}")
    if g % 4 == 3: e(f"buffer_store_dwordx4 v[{RES+g-3}:{RES+g}], v{PV}, s[4:7], s{70 + g//4} offen sc1"); vm.issue()
for g, st in enumerate(TE):
    assert st >= max(i for i, u in enumerate(units) if u[1] == ACCB + 4 * g) + 5
    add(end, st, lambda g=g: epi(g))
for j, st in enumerate((16, 32, 44, 52, 60, 68)): add(pre, st, lambda j=j: pst(1 + j, 7))
run(units, pre, mid, end)
n = len(units)
e("s_waitcnt lgkmcnt(8)"); smf2(ACCB + 28, n % 3)
e("s_waitcnt lgkmcnt(4)"); smf2(ACCB + 28, (n + 1) % 3)
epi(6)
e("s_waitcnt lgkmcnt(0)"); smf2(ACCB + 28, (n + 2) % 3)
e(f"v_lshlrev_b32 v{PV+1}, 4, v{LN}")
e(f"s_lshl_b32 s70, s{S_PID}, 14\ns_lshl_b32 s{S_T}, s{S_WAVE}, 11\ns_add_u32 s70, s70, s{S_T}\ns_add_u32 s70, s70, {PART:#x}")
e(f"s_lshl_b32 s{S_T}, s{S_WAVE}, 8\ns_add_u32 s{S_T}, s{S_T}, {128000}\nv_lshl_add_u32 v{PV+3}, v{LN}, 2, s{S_T}")
e("s_nop 0")
epi(7)
stamp(9)
e(f"s_cmp_lg_u32 s{S_WAVE}, 0\ns_cbranch_scc1 nowide2")
e("s_waitcnt vmcnt(2)")
e(f"s_lshl_b32 s68, s68, 16\ns_lshl_b32 s69, s69, 16\nv_mov_b32 v{XW+13}, s68\nv_add_f32 v{XW+13}, s69, v{XW+13}")
for j in range(13):
    sw = 60 + j // 2
    if j % 2 == 0: e(f"s_lshl_b32 s{S_T}, s{sw}, 16")
    else: e(f"s_and_b32 s{S_T}, s{sw}, 0xffff0000")
    e(f"v_lshlrev_b32 v{XW+j}, 16, v{XW+j}")
    e(f"v_fma_f32 v{XW+13}, v{XW+j}, s{S_T}, v{XW+13}")
e("nowide2:")
e(f"s_mov_b32 s{S_CNT}, 0")
if A("EB", 1) < 2: e("s_waitcnt vmcnt(0)")
if A("EB", 1): e("s_barrier")
stamp(10)
e("poll2:")
e(f"buffer_load_dwordx4 v[{D1}:{D1+3}], v{PV+1}, s[4:7], s70 offen sc1")
e(f"buffer_load_dwordx4 v[{D1+4}:{D1+7}], v{PV+1}, s[4:7], s70 offen offset:1024 sc1")
e(f"s_add_u32 s{S_CNT}, s{S_CNT}, 1\ns_cmp_gt_u32 s{S_CNT}, 0x40000\ns_cbranch_scc1 poll2_done")
e("s_waitcnt vmcnt(0)")
for i in range(8): e(f"v_xor_b32 v{D1+i}, v{PV+2}, v{D1+i}")
e(f"v_or3_b32 v{D1+8}, v{D1}, v{D1+1}, v{D1+2}\nv_or3_b32 v{D1+9}, v{D1+3}, v{D1+4}, v{D1+5}\nv_or3_b32 v{D1+8}, v{D1+8}, v{D1+6}, v{D1+7}")
e(f"v_or_b32 v{D1+8}, v{D1+8}, v{D1+9}\nv_and_b32 v{D1+8}, 255, v{D1+8}\nv_cmp_ne_u32 vcc, 0, v{D1+8}")
if A("PS", 0): e(f"s_cbranch_vccz poll2_done\ns_sleep {A('PS', 0)}\ns_branch poll2")
else: e("s_cbranch_vccnz poll2")
e("poll2_done:\ns_waitcnt vmcnt(0)")
stamp(11)
for c in range(4): e(f"v_add_f32 v{D1+c}, v{D1+c}, v{D1+4+c}")
e(f"s_nop 1\nv_permlane32_swap_b32 v{D1}, v{D1+2}\nv_permlane32_swap_b32 v{D1+1}, v{D1+3}")
e(f"v_add_f32 v{D1}, v{D1}, v{D1+2}\nv_add_f32 v{D1+1}, v{D1+1}, v{D1+3}\ns_nop 1")
e(f"v_permlane16_swap_b32 v{D1}, v{D1+1}\nv_add_f32 v{D1}, v{D1}, v{D1+1}")
e(f"ds_write_b32 v{PV+3}, v{D1}\ns_waitcnt lgkmcnt(0)\ns_barrier")
e(f"s_cmp_lg_u32 s{S_WAVE}, 0\ns_cbranch_scc1 fin")
for i in range(1, 8): e(f"ds_read_b32 v{D1+i}, v{PV+3} offset:{256*i}")
e(f"v_add_f32 v{D1}, v{D1}, v{XW+13}\nv_lshlrev_b32 v{ROW}, 1, v{ROW}")
e("s_waitcnt lgkmcnt(0)")
e(f"v_add_f32 v{D1+1}, v{D1+1}, v{D1+2}\nv_add_f32 v{D1+3}, v{D1+3}, v{D1+4}\nv_add_f32 v{D1+5}, v{D1+5}, v{D1+6}\nv_add_f32 v{D1}, v{D1}, v{D1+7}")
e(f"v_add_f32 v{D1+1}, v{D1+1}, v{D1+3}\nv_add_f32 v{D1}, v{D1}, v{D1+5}\nv_add_f32 v{D1}, v{D1}, v{D1+1}")
e(f"v_mul_f32 v{D1}, 0xbfb8aa3b, v{D1}\nv_exp_f32 v{D1}, v{D1}\ns_nop 0\nv_add_f32 v{D1}, 1.0, v{D1}\nv_rcp_f32 v{D1}, v{D1}\ns_nop 0")
e(f"v_cvt_pk_bf16_f32 v{D1}, v{D1}, v{D1}")
e(f"buffer_store_short v{D1}, v{ROW}, s[12:15], 0 offen")
e("s_cmp_lg_u32 s2, 0\ns_cbranch_scc1 fin")
e(f"v_mov_b32 v{D1+1}, s{S_N}\nv_mov_b32 v{D1+2}, {EPOCH}\ns_mov_b64 exec, 1")
e(f"buffer_store_dword v{D1+1}, v{D1+2}, s[4:7], 0 offen\ns_mov_b64 exec, -1")
e("@ENDREGION\nfin:")
if FIX and A("MINS", 0):
    e("s_load_dwordx2 s[32:33], s[0:1], 80\ns_waitcnt lgkmcnt(0)")
    srd(16, 32, 256)
    e("s_not_b32 s98, s100\nv_mov_b32 v8, 0\nv_mov_b32 v9, s98\ns_mov_b64 exec, 1\nbuffer_atomic_umax v9, v8, s[16:19], 0 offen\ns_waitcnt vmcnt(0)")
    e(f"fixm:\ns_memrealtime s[98:99]\ns_waitcnt lgkmcnt(0)\ns_sub_u32 s98, s98, s100\ns_cmp_lt_u32 s98, {FIX - 1500}\ns_cbranch_scc1 fixm")
    e("buffer_load_dword v9, v8, s[16:19], 0 offen sc1\ns_waitcnt vmcnt(0)\nv_readfirstlane_b32 s100, v9\ns_nop 3\ns_not_b32 s100, s100\ns_mov_b64 exec, -1")
if FIX and A("PW", 255) != 255:
    e(f"s_mov_b32 s98, {A('PW', 255)}\ns_bitcmp0_b32 s98, s{S_WAVE}\ns_cbranch_scc1 done")
if FIX:
    e(f"fixl:\ns_memrealtime s[98:99]\ns_waitcnt lgkmcnt(0)\ns_sub_u32 s98, s98, s{96 if PROBE else 100}")
    e(f"s_cmp_lt_u32 s98, {FIX}\ns_cbranch_scc1 fixl")
if STAMP:
    stamp(12)
    e("s_memrealtime s[98:99]\ns_waitcnt lgkmcnt(0)")
    e(f"s_lshl_b32 s70, s2, 3\ns_add_u32 s70, s70, s{S_WAVE}\ns_lshl_b32 s70, s70, 7\ns_add_u32 s70, s70, {STMP:#x}")
    e("v_mov_b32 v8, 0")
    for i in range(1, 13):
        e(f"s_sub_u32 s{SB+2*i}, s{SB+2*i}, s{SB}\nv_mov_b32 v9, s{SB+2*i}")
        e(f"buffer_store_dword v9, v8, s[4:7], s70 offen offset:{4*(i-1)}")
    for i, r in enumerate((44, 45, 46, 100, 98, 38, 39)):
        e(f"v_mov_b32 v9, s{r}\nbuffer_store_dword v9, v8, s[4:7], s70 offen offset:{48+4*i}")
e("s_endpgm")
for h in slow:
    e(f"rs{h}:\ns_add_u32 s{S_CNT}, s{S_CNT}, 1\ns_cmp_gt_u32 s{S_CNT}, 0x40000\ns_cbranch_scc1 rd{h}\ns_sleep 4")
    recv(h, False)
    e(f"s_waitcnt vmcnt(0)\ns_branch rc{h}")
e("done:\ns_endpgm")

e(f""".section .rodata,"a"
.p2align 6
.amdhsa_kernel {KN}
  .amdhsa_next_free_vgpr 256
  .amdhsa_next_free_sgpr 102
  .amdhsa_accum_offset 256
  .amdhsa_group_segment_fixed_size 0
  .amdhsa_kernarg_size 96
  .amdhsa_user_sgpr_count 2
  .amdhsa_user_sgpr_kernarg_segment_ptr 1
  .amdhsa_system_sgpr_workgroup_id_x 1
.end_amdhsa_kernel""")

bysite = {str(k): v for k, v in waits.items()}
res = []
for l in out:
    if l.startswith("@VM "):
        n = bysite[l[4:]]
        assert 0 <= n <= 63
        l = f"s_waitcnt vmcnt({n})"
    res.append(l)
import re, subprocess, tempfile, os
def is_instr(l): return bool(re.match(r"^(s_|v_|ds_|buffer_|global_)\w*( |$)", l)) and not l.endswith(":")
tmp = [re.sub(r"@SEG_\w+", "done", l) for l in res if not l.startswith("@")]
with tempfile.TemporaryDirectory() as d:
    open(d + "/t.s", "w").write("\n".join(tmp) + "\n")
    subprocess.run(["clang", "-x", "assembler", "-target", "amdgcn-amd-amdhsa", "-mcpu=gfx950", "-c", d + "/t.s", "-o", d + "/t.o"], check=True)
    dis = subprocess.run(["llvm-objdump", "-d", "--mcpu=gfx950", d + "/t.o"], capture_output=True, text=True).stdout
sizes = [4 * len(m.group(1).split()) for m in re.finditer(r"// [0-9A-F]{12}: ([0-9A-F ]+)", dis)]
assert len(sizes) == sum(map(is_instr, tmp)), (len(sizes), sum(map(is_instr, tmp)))
al = 0; nal = 0; fin = []; addr = 0; k = 0; region = None; pads = {}; last = -1
for l in res:
    if l.startswith("@REGION"):
        _, tag, nseg = l.split(); region = tag; pads[tag] = [int(nseg), 0]; last = -1; continue
    if l.startswith("@ENDREGION"): region = None; continue
    if l.startswith("@ALIGN"):
        while addr % int(l.split()[1]): fin.append("s_nop 0"); addr += 4
        continue
    if l.startswith("@AL "): al = int(l.split()[1]); continue
    if is_instr(l):
        if al and sizes[k] == 8 and addr % 8 != (0 if AL == 1 else 4): fin.append("s_nop 0"); addr += 4; nal += 1
        if region and WARM and addr // LINE != last:
            last = addr // LINE
            n = pads[region][1]; pads[region][1] += 1
            fin.append(f"pad_{region}_{n}:"); fin.append(f"@PAD {region} {n}"); addr += 4
        addr += sizes[k]; k += 1
    fin.append(l)
def seg_start(tag, j):
    nseg, n = pads[tag]; return (n * j) // nseg
o2 = []
for l in fin:
    if l.startswith("@PAD"):
        _, tag, n = l.split(); n = int(n)
        starts = [seg_start(tag, j) for j in range(pads[tag][0] + 1)]
        l = f"s_cbranch_execz " + (f"warm_ret_{tag}" if n + 1 in starts else f"pad_{tag}_{n+1}")
    m = re.search(r"@SEG_(\w)_(\d+)", l)
    if m: l = l.replace(m.group(0), f"pad_{m.group(1)}_{seg_start(m.group(1), int(m.group(2)))}")
    o2.append(l)
sys.stderr.write(f"nal {nal} pads {pads} size {addr}\n")
DROP = A("DROP", "")
if DROP:
    i0 = o2.index("pb_done:"); keep = o2[:i0]; masked = False
    for l in o2[i0:]:
        if l.startswith("s_mov_b32 exec_hi"): masked = True
        if l.startswith("s_mov_b64 exec, -1"): masked = False
        if "s" in DROP and "buffer_store" in l and f"s{S_XS} offen" in l: l = "s_nop 0"
        if "r" in DROP and f"s{S_XR} off" in l: l = "s_nop 0"
        if ("s" in DROP or "r" in DROP) and l.startswith("s_cbranch_vccnz rs"): l = "s_nop 0"
        if "x" in DROP and masked and "buffer_load" in l: l = "s_nop 0"
        if "w" in DROP and l.startswith("ds_write_b128"): l = "s_nop 0"
        if "u" in DROP and "buffer_load_ushort" in l: l = "s_nop 0"
        keep.append(l)
    o2 = keep
if A("RT", 0): o2 = [l.replace("s_memtime", "s_memrealtime") for l in o2] + ["; s_memtime RT"]
print("\n".join(o2))
```

```python
import sys
args = dict(a.split("=") for a in sys.argv[1:])
def A(k, d): return type(d)(args.get(k, d))
STAMP = A("STAMP", 0); PROBE = A("PROBE", 0); FIX = A("FIX", 0)
PRIOQ = A("PRIOQ", -1); W1W = A("W1W", 0); CPF = A("CPF", 1); POLLT = A("POLLT", 2); PRE = A("PRE", 2); BAR0 = A("BAR0", 1); MAP = A("MAP", 1); CPL = A("CPL", 9); KPRE = A("KPRE", 8); DEFT = A("DEFT", -1); PREO = A("PREO", 1); HPQ = A("HPQ", 16); R1 = A("R1", 12); R2 = A("R2", 28); XT = A("XT", 1); PFW = A("PFW", 2); PI = A("PI", 0); XMAP = A("XMAP", 1); B2 = A("B2", 1); KT = A("KT", 2); KA = A("KA", 2); OD = A("OD", -1); W7T = A("W7T", 0); SPIN = A("SPIN", 0); W7A = A("W7A", 0); AL = A("AL", 0); MW = A("MW", 0); TRI = A("TRI", 4); DE = A("DE", 0); UNR = A("UNR", 1); DQ = A("DQ", 16); DT = A("DT", 3); SPF = A("SPF", 0); WARM = A("WARM", 0); LINE = A("LINE", 128); WB = A("WB", "L")
CS = [int(c, 32) for c in A("CS", "g")]; assert sum(CS) == 16
C0 = A("C0", 7); SP = A("SP", 8); MP = A("MP", 0)
MQ = [int(c) for c in A("MQ", "01123456")]

M2 = [int(c, 16) for c in A("M2", "")] or [2 * x for x in MQ]
M3 = [int(c, 16) for c in A("M3", "")] or M2
CE = C0 + len(CS) - 1 - 8
assert min(M2 + M3) >= 2 * CE + 1 and max(M2) <= 2 * (C0 - 1) and max(M3) <= 12
KN = "standalone__deep_cross_wide_deep__recsys_kernel"
EPOCH = 0x9a80
FLG = 0x1000
IDXP = 0x10000
ISTR = 6 * 16384 + 4096
W1P = 0x340000
WSTR = 34 * 1024
TABP = 0x570000
XG = 0x1000000
PART = 0x600000
STMP = 0xE00000
WS_SZ = 0x2000000
L_STG = 131072; L_XCH = 155648; L_XT = 131072; L_RED = 0

out = []
emit = True
def e(s):
    if emit:
        for l in s.split("\n"): out.append(l)
class Cnt:
    def __init__(self): self.n = 0; self.tag = {}
    def issue(self, tag=None):
        self.n += 1
        if tag is not None: self.tag[tag] = self.n
    def younger(self, tag): return self.n - self.tag[tag]
vm = Cnt()
waits = {}
def wait_vm(site, tag):
    n = vm.younger(tag)
    waits[site] = min(waits.get(site, 99), n)
    e(f"@VM {site}")
def srd(d, lo, nbytes):
    e(f"s_mov_b32 s{d}, s{lo}\ns_mov_b32 s{d+1}, s{lo+1}\ns_mov_b32 s{d+2}, {nbytes:#x}\ns_mov_b32 s{d+3}, 0x20000")
SB = 72
FINE = A("FINE", 0)
def hstamp(i):
    if STAMP and FINE == 3: e(f"s_memtime s[{SB+2*i}:{SB+1+2*i}]")
def gstamp(i):
    if STAMP and FINE == 2: e(f"s_memtime s[{SB+2*i}:{SB+1+2*i}]")
def fstamp(i):
    if STAMP and FINE == 1: e(f"s_memtime s[{SB+2*i}:{SB+1+2*i}]")
def stamp(i):
    if FINE == 1 and 9 <= i <= 12: return
    if FINE in (2, 4, 6, 7) and 1 <= i <= 6: return
    if FINE == 3 and 10 <= i <= 12: return
    if FINE == 5 and (5 <= i <= 12 or i == 1):
        if i == 7: e(f's_memtime s[{SB+2}:{SB+3}]')
        return
    if PROBE == i: e("s_memrealtime s[96:97]")
    if STAMP: e(f"s_memtime s[{SB+2*i}:{SB+1+2*i}]")

e(f"""; Wide & Deep recsys forward, gfx950: per-field projected tables P[f][v] = table[v] @ W1_f built on MFMA into LDS,
; @launch grid=(256,1,1) block=(512,1,1) lds=163840
.amdgcn_target "amdgcn-amd-amdhsa--gfx950"
.text
.globl {KN}
.p2align 8
.type {KN},@function
{KN}:""")

VOFF = 0; SIDX = 1; T0 = 2; T1 = 3; AC = 4
DAT = 8; TAB = 32; ACC = 96; POOL = 128; D0 = 192; D1 = 208; W1 = 224
S_WAVE = 3; S_IDX = 20; S_IDX2 = 21; S_W1 = 22; S_M0A = 23; S_M0B = 24; S_CNT = 25; S_BS = 26; S_CS = 27; S_PID = 28; S_N = 29
S_T = 30; S_U = 31
LANE = 8; L16 = 9
XA = POOL; XF = POOL + 16; XC = POOL + 48; XD = POOL + 16
PLO = "0x05040100"; PHI = "0x07060302"

HOLD = POOL + 32
FLGB = 0x330000
S_FB = 55; S_HP = 54
L_CTR = L_STG + 8192; L_XC2 = L_STG
DELTA = 28800
def piece_lane():
    e(f"v_lshrrev_b32 v10, 2, v{LANE}\nv_and_b32 v11, 1, v{LANE}\nv_and_b32 v12, 2, v{LANE}")
    e("v_lshlrev_b32 v13, 3, v10\nv_lshl_or_b32 v13, v11, 15, v13\nv_lshl_or_b32 v13, v12, 11, v13")
def piece_src(fp0):
    e(f"s_lshr_b32 s{S_T}, s{S_CS}, 2\ns_lshl_b32 s{S_T}, s{S_T}, 16\ns_and_b32 s{S_U}, s{S_CS}, 3\ns_lshl_b32 s{S_U}, s{S_U}, 13\ns_add_u32 s{S_T}, s{S_T}, s{S_U}")
    e(f"s_lshl_b32 s{S_U}, s{S_BS}, 7\ns_add_u32 s{S_T}, s{S_T}, s{S_U}\ns_add_u32 s{S_T}, s{S_T}, {fp0*65536:#x}")
def piece_ld(b):
    for j in range(8): e(f"buffer_load_dwordx2 v[{b+2*j}:{b+2*j+1}], v13, s[16:19], s{S_T} offen offset:{j*512}")
def piece_dst(fp0):
    e(f"v_mul_u32_u24 v18, {WSTR}, v10\nv_and_b32 v10, 3, v{LANE}\nv_lshl_add_u32 v18, v10, 4, v18")
    e(f"s_mul_i32 s70, s{S_BS}, {16*WSTR}\ns_lshr_b32 s{S_T}, s{S_CS}, 2\ns_lshl_b32 s{S_T}, s{S_T}, 10\ns_add_u32 s70, s70, s{S_T}")
    e(f"s_and_b32 s{S_T}, s{S_CS}, 3\ns_lshl_b32 s{S_T}, s{S_T}, 7\ns_add_u32 s70, s70, s{S_T}\ns_add_u32 s70, s70, {W1P + (fp0-16)*1024:#x}")
def piece_perm(src, dst):
    e(f"s_mov_b32 s{S_T}, {PLO}\ns_mov_b32 s{S_U}, {PHI}")
    for cp in range(2):
        for par in range(2):
            r = dst + 8 * cp + 4 * par
            for jj in range(4):
                r0 = src + 4 * jj + cp
                e(f"v_perm_b32 v{r+jj}, v{r0+2}, v{r0}, s{S_U if par else S_T}")
            e(f"buffer_store_dwordx4 v[{r}:{r+3}], v18, s[4:7], s70 offen offset:{par*512+cp*64} sc1")
def tab_dma(vt, count=True):
    e(f"s_add_u32 s{S_T}, s{S_M0A}, {vt*32768}\ns_mov_b32 m0, s{S_T}\ns_nop 0")
    for i in range(4):
        e(f"buffer_load_dwordx4 v{14 + i%2}, s[12:15], s{S_T} offen offset:{i*1024} lds")
        if count: vm.issue(("t", vt))
def xconsts(rowshift):
    e(f"v_lshl_add_u32 v17, v{LANE}, {rowshift}, s{S_T}")
    for t in range(16):
        e(f"v_add_u32 v16, {t}, v{LANE}\nv_and_b32 v{XF+t}, 15, v16\nv_lshl_add_u32 v{XA+t}, v{XF+t}, 2, v17")
    for u in range(8): e(f"v_lshl_or_b32 v{XC+u}, v{XF+2*u+1}, 16, v{XF+2*u}")
def idx_dst():
    e(f"s_lshr_b32 s70, s{S_PID}, 3\ns_mul_i32 s70, s70, {ISTR}\ns_add_u32 s70, s70, {IDXP:#x}")
    e(f"s_bfe_u32 s{S_T}, s{S_PID}, 0x10002\ns_lshl_b32 s{S_T}, s{S_T}, 13\ns_add_u32 s70, s70, s{S_T}")
    e(f"s_and_b32 s{S_T}, s{S_PID}, 3\ns_lshl_b32 s{S_T}, s{S_T}, 8\ns_add_u32 s70, s70, s{S_T}")
    e(f"s_lshl_b32 s{S_T}, s{S_CNT}, 14\ns_add_u32 s70, s70, s{S_T}\ns_add_u32 s71, s70, 16384")
def xform(off, dst, store):
    for t in range(16): e(f"ds_read_b32 v{XD+t}, v{XA+t} offset:{off}")
    for u in range(8):
        e(f"s_waitcnt lgkmcnt({14-2*u})")
        e(f"v_lshl_add_u32 v{XD+2*u}, v{XD+2*u+1}, 16, v{XD+2*u}")
        e(f"v_lshl_add_u32 v{dst+u}, v{XD+2*u}, 4, v{XC+u}")
        if store and u % 4 == 3: e(f"buffer_store_dwordx4 v[{dst+u-3}:{dst+u}], v{VOFF}, s[4:7], s70 offen offset:{(u//4)*128} sc1")
def role_old(tag, f12, f3, f0):
    e(f"s_cmp_eq_u32 s{S_WAVE}, 0\ns_cbranch_scc1 {tag}_w0\ns_cmp_eq_u32 s{S_WAVE}, 3\ns_cbranch_scc1 {tag}_w3")
    f12(); e(f"s_branch {tag}_join\n{tag}_w3:"); f3(); e(f"s_branch {tag}_join\n{tag}_w0:"); f0(); e(f"{tag}_join:")
def xf3():
    e(f"s_mov_b32 s{S_T}, 0x40014000\ns_mov_b32 s{S_U}, 0x40034002")
    e("v_lshl_add_u32 v28, v29, 16, v28\nv_lshl_add_u32 v30, v31, 16, v30")
    e(f"v_lshl_add_u32 v28, v28, 2, s{S_T}\nv_lshl_add_u32 v30, v30, 2, s{S_U}")
    e(f"v_and_b32 v29, 1, v{LANE}\nv_lshlrev_b32 v29, 4, v29\nv_and_b32 v31, 2, v{LANE}\nv_cmp_ne_u32 vcc, 0, v31")
    e("v_alignbit_b32 v28, v28, v28, v29\nv_alignbit_b32 v30, v30, v30, v29")
    e(f"v_cndmask_b32 v{HOLD}, v28, v30, vcc\nv_cndmask_b32 v{HOLD+1}, v30, v28, vcc")
def raw(lo, hi):
    for n in range(lo, hi):
        s_, j = n // 8, n % 8
        e(f"buffer_load_dword v{POOL+n}, v18, s[16:19], s71 offen offset:{j*512}")
        if j == 7 and s_ < 3: e("s_add_u32 s71, s71, 8192")
def voff_ws():
    e(f"s_load_dword s{S_N}, s[54:55], {EPOCH}")
    srd(4, 54, WS_SZ)
    srd(12, 34, 128000)
    e(f"v_and_b32 v16, 28, v{LANE}\nv_lshlrev_b32 v{VOFF}, 8, v16\nv_and_b32 v16, 1, v{LANE}\nv_lshl_or_b32 v{VOFF}, v16, 6, v{VOFF}")
    e(f"v_and_b32 v16, 32, v{LANE}\nv_or_b32 v{VOFF}, v{VOFF}, v16\nv_and_b32 v16, 2, v{LANE}\nv_lshl_or_b32 v{VOFF}, v16, 3, v{VOFF}")
def sloads(): pass
def params():
    e(f"s_lshl_b32 s{S_T}, s{S_CS}, 3")
    e(f"s_load_dwordx2 s[52:53], s[44:45], s{S_T}")
    e(f"s_load_dwordx2 s[58:59], s[46:47], s{S_T}")
    e("s_load_dwordx8 s[60:67], s[38:39], 0")
    e("s_load_dword s68, s[40:41], 0\ns_load_dword s69, s[48:49], 0")
def common():
    e(f"v_lshlrev_b32 v{L16}, 4, v{LANE}")
    e(f"v_lshrrev_b32 v16, 4, v{LANE}\nv_and_b32 v17, 7, v{LANE}\nv_xor_b32 v16, v16, v17\nv_lshlrev_b32 v16, 4, v16")
    e(f"v_lshrrev_b32 v17, 3, v{LANE}\nv_lshl_or_b32 v14, v17, 7, v16\nv_xor_b32 v15, 64, v14")
    e(f"v_bfe_u32 v19, v{LANE}, 2, 2\nv_bfe_u32 v20, v{LANE}, 4, 1\nv_lshlrev_b32 v20, 1, v20\nv_mov_b32 v21, 0x3f80")
    e("v_cmp_eq_u32 vcc, v19, v20\nv_add_u32 v20, 1, v20\ns_nop 0")
    e(f"v_cndmask_b32 v{AC}, 0, v21, vcc\nv_cndmask_b32 v{AC+1}, 0, v21, vcc")
    e(f"v_cmp_eq_u32 vcc, v19, v20\nv_and_b32 v19, 3, v{LANE}\ns_nop 0")
    e(f"v_cndmask_b32 v{AC+2}, 0, v21, vcc\nv_cndmask_b32 v{AC+3}, 0, v21, vcc")
    e(f"v_mul_u32_u24 v{SIDX}, 0x5555, v19")
    e(f"s_and_b32 s{S_U}, s{S_BS}, 1\ns_lshl_b32 s{S_U}, s{S_U}, 13\ns_mul_i32 s{S_W1}, s{S_CS}, {WSTR}\ns_add_u32 s{S_W1}, s{S_W1}, s{S_U}\ns_add_u32 s{S_W1}, s{S_W1}, {W1P:#x}")
    e(f"s_lshl_b32 s{S_U}, s{S_U}, 1\ns_add_u32 s{S_U}, s{S_U}, {IDXP:#x}\ns_lshl_b32 s{S_T}, s{S_BS}, 3\ns_add_u32 s{S_T}, s{S_T}, s{S_WAVE}\ns_mul_i32 s{S_IDX2}, s{S_T}, {ISTR}\ns_add_u32 s{S_IDX2}, s{S_IDX2}, s{S_U}")
    e(f"s_xor_b32 s{S_T}, s{S_T}, 8\ns_mul_i32 s{S_IDX}, s{S_T}, {ISTR}\ns_add_u32 s{S_IDX}, s{S_IDX}, s{S_U}")
    e(f"s_add_u32 s{S_M0B}, s{S_M0A}, {65536-DELTA}")
    e(f"s_lshl_b32 s{S_U}, s{S_WAVE}, 3\nv_and_b32 v13, 7, v{LANE}\nv_add_u32 v10, s{S_U}, v13")
    e(f"s_and_b32 s{S_U}, s{S_WAVE}, 3\ns_and_b32 s{S_T}, s{S_BS}, 1\ns_lshl_b32 s{S_T}, s{S_T}, 5\ns_add_u32 s{S_U}, s{S_U}, s{S_T}\nv_lshl_add_u32 v11, v13, 2, s{S_U}\nv_lshrrev_b32 v13, 3, v{LANE}\nv_cmp_eq_u32 vcc, 1, v13\ns_nop 1\nv_cndmask_b32 v10, v10, v11, vcc")
    e(f"s_lshr_b32 s{S_T}, s{S_CS}, 4\nv_mov_b32 v11, s{S_T}\nv_mov_b32 v16, s{S_BS}\nv_cmp_eq_u32 vcc, 0, v13\ns_nop 1\nv_cndmask_b32 v11, v11, v16, vcc")
    e(f"v_xor_b32 v16, 1, v16\nv_cmp_eq_u32 vcc, 2, v13\ns_nop 1\nv_cndmask_b32 v11, v11, v16, vcc\nv_lshl_add_u32 v10, v11, 6, v10\nv_lshlrev_b32 v19, 7, v10")
    e(f"v_and_b32 v10, 24, v{LANE}\nv_and_b32 v11, 3, v{LANE}\nv_lshl_add_u32 v10, v11, 1, v10\nv_bfe_u32 v12, v{LANE}, 2, 1\nv_add_u32 v10, v10, v12\nv_lshlrev_b32 v10, 7, v10")
    e(f"v_bfe_u32 v12, v{LANE}, 3, 1\nv_lshl_or_b32 v11, v12, 2, v11\nv_lshrrev_b32 v12, 5, v{LANE}\nv_xor_b32 v11, v11, v12\nv_lshl_or_b32 v10, v11, 4, v10")
    e(f"v_add_u32 v20, s{S_M0A}, v10\nv_add_u32 v12, {L_XCH}, v{L16}")
    for s_ in range(1, 4): e(f"v_xor_b32 v{20+s_}, {s_*32}, v20")
    e(f"v_add_u32 v16, {L_XC2}, v{L16}\ns_lshl_b32 s{S_U}, s{S_WAVE}, 10\nv_add_u32 v17, s{S_U}, v16")
def common_b():
    e(f"s_not_b32 s{S_N}, s{S_N}")
def tab_rd(vt):
    if STAMP and FINE == 5: e(f"s_memtime s[{SB+10+4*vt}:{SB+11+4*vt}]")
    wait_vm(("td", vt), ("t", vt))
    if STAMP and FINE == 5: e(f"s_memtime s[{SB+12+4*vt}:{SB+13+4*vt}]")
    if vt == 2:
        for s in range(4): e(f"v_add_u32 v{20+s}, 0x10000, v{20+s}")
    for s in range(4):
        r = TAB + 16 * vt + 4 * s
        e(f"ds_read_b128 v[{r}:{r+3}], v{20+s} offset:{(vt%2)*32768}")
def ldw(i):
    e(f"buffer_load_dwordx4 v[{W1+4*i}:{W1+4*i+3}], v{VOFF}, s[4:7], s{S_W1} offen offset:{i*128} sc1")
    vm.issue(("w", i))
def ldi(reg, k, tag):
    e(f"buffer_load_dwordx4 v[{reg}:{reg+3}], v{VOFF}, s[4:7], s{S_IDX if k < 8 else S_IDX2} offen offset:{(k%8)*128} sc1")
    vm.issue(tag)
def mf(vt, i, base=D0):
    s, par = i // 2, i % 2
    d = base + 16 * par
    c = "0" if s == 0 else f"v[{d}:{d+15}]"
    e(f"v_mfma_f32_32x32x16_bf16 v[{d}:{d+15}], v[{TAB+16*vt+4*s}:{TAB+16*vt+4*s+3}], v[{W1+16*par+4*s}:{W1+16*par+4*s+3}], {c}")
def frag_of(i): return (i % 2) * 4 + i // 2
def cvt(dst, r, base=D0): e(f"v_cvt_pk_bf16_f32 v{dst}, v{base+r}, v{base+16+r}")
def wr(src, vt, r):
    off = (vt % 2) * 32768 + r * 256 + (DELTA if vt >= 2 else 0)
    e(f"ds_write_addtid_b32 v{src} offset:{off}")
SD = "dst_sel:DWORD dst_unused:UNUSED_PAD src0_sel:DWORD"
def unpack(w0):
    e(f"v_lshlrev_b32_sdwa v{T0}, 3, v{w0} {SD} src1_sel:WORD_1")
    e(f"v_lshlrev_b32_sdwa v{w0}, 3, v{w0} {SD} src1_sel:WORD_0")
    e(f"v_lshlrev_b32_sdwa v{T1}, 3, v{w0+1} {SD} src1_sel:WORD_1")
    e(f"v_lshlrev_b32_sdwa v{w0+1}, 3, v{w0+1} {SD} src1_sel:WORD_0")
def reads(w0, slot):
    d = DAT + 8 * slot
    for i, a in enumerate((w0, T0, w0 + 1, T1)):
        e(f"ds_read_b64 v[{d+2*i}:{d+2*i+1}], v{a}")
def smf(g, slot):
    d = DAT + 8 * slot; a = ACC + 4 * g
    e(f"v_smfmac_f32_16x16x64_bf16 v[{a}:{a+3}], v[{AC}:{AC+3}], v[{d}:{d+7}], v{SIDX}")
def cpf_code(dst):
    e(f"s_getpc_b64 s[70:71]\ncpf_base:\ns_lshr_b32 s{S_U}, s2, 3\ns_mul_i32 s{S_U}, s{S_U}, {CPL*128}\nv_min_u32 v2, {CPL-1}, v{LANE}\nv_lshl_add_u32 v2, v2, 7, s{S_U}\nv_min_u32 v2, done-cpf_base, v2\nv_mov_b32 v3, s71")
    e("v_add_co_u32 v2, vcc, s70, v2\ns_nop 1\nv_addc_co_u32 v3, vcc, 0, v3, vcc")
    e(f"global_load_dword v{dst}, v[2:3], off")
def poll_issue():
    if CPF == 2:
        e(f"s_cmp_lg_u32 s{S_WAVE}, 7\ns_cbranch_scc1 1f")
        cpf_code(11)
        e("1:")
    stamp(5)
    e(f"s_mov_b32 s{S_T}, {FLG:#x}")
    e(f"buffer_load_dword v10, v19, s[4:7], s{S_T} offen sc1"); vm.issue("poll")
def poll_check():
    e(f"s_mov_b32 s{S_CNT}, 0\ns_mov_b32 s{S_T}, {FLG:#x}")
    wait_vm("pollw", "poll")
    e("poll1:")
    e(f"v_cmp_ne_u32 vcc, s{S_N}, v10\ns_cbranch_vccz poll1_done")
    e(f"s_sleep 8\nbuffer_load_dword v10, v19, s[4:7], s{S_T} offen sc1")
    e(f"s_add_u32 s{S_CNT}, s{S_CNT}, 1\ns_waitcnt vmcnt(0)\ns_cmp_lt_u32 s{S_CNT}, 0x40000\ns_cbranch_scc1 poll1")
    e("poll1_done:")
    stamp(6)
    e(f"s_lshl_b32 s{S_T}, s{S_WAVE}, 7\ns_add_u32 s{S_T}, s{S_T}, s{S_W1}")
    e(f"buffer_load_dwordx4 v[24:27], v{VOFF}, s[4:7], s{S_T} offen sc1"); vm.issue("w1x")
    for i in range(8): vm.tag[("w", i)] = vm.n
    for k in range(KA): ldi(POOL + 4 * k, k, ("i", k))

e("s_cmp_ge_u32 s2, 256\ns_cbranch_scc1 done")
e("s_load_dwordx16 s[32:47], s[0:1], 0")
e("s_load_dwordx8 s[48:55], s[0:1], 64")
if STAMP: e(f"s_memtime s[{SB}:{SB+1}]")
if STAMP or FIX: e("s_memrealtime s[100:101]")
e(f"v_lshrrev_b32 v1, 6, v0\nv_and_b32 v{LANE}, 63, v0")
e(f"v_readfirstlane_b32 s{S_WAVE}, v1")
if XMAP == 3:
    e(f"s_bfe_u32 s{S_BS}, s2, 0x10002\ns_lshl_b32 s{S_BS}, s{S_BS}, 1\ns_bfe_u32 s{S_T}, s2, 0x10003\ns_add_u32 s{S_BS}, s{S_BS}, s{S_T}\ns_and_b32 s{S_CS}, s2, 3\ns_lshl_b32 s{S_CS}, s{S_CS}, 4\ns_lshr_b32 s{S_T}, s2, 4\ns_add_u32 s{S_CS}, s{S_CS}, s{S_T}")
elif XMAP == 2:
    e(f"s_and_b32 s{S_BS}, s2, 3\ns_and_b32 s{S_CS}, s2, 4\ns_lshl_b32 s{S_CS}, s{S_CS}, 3\ns_lshr_b32 s{S_T}, s2, 3\ns_add_u32 s{S_CS}, s{S_CS}, s{S_T}")
elif XMAP:
    e(f"s_bfe_u32 s{S_BS}, s2, 0x20002\ns_and_b32 s{S_CS}, s2, 3\ns_lshl_b32 s{S_CS}, s{S_CS}, 4\ns_lshr_b32 s{S_T}, s2, 4\ns_add_u32 s{S_CS}, s{S_CS}, s{S_T}")
else:
    e(f"s_and_b32 s{S_BS}, s2, 3\ns_lshr_b32 s{S_CS}, s2, 2")
e(f"s_lshl_b32 s{S_PID}, s{S_BS}, 6\ns_add_u32 s{S_PID}, s{S_PID}, s{S_CS}")
e(f"s_lshl_b32 s{S_M0A}, s{S_WAVE}, 12\nv_mov_b32 v18, 0\nv_mov_b32 v14, 0\nv_mov_b32 v15, 0\nv_mov_b32 v19, 0\ns_mul_i32 s71, s{S_PID}, 25600")
e("s_mov_b32 s10, 0x640000\ns_mov_b32 s11, 0x20000\ns_mov_b32 s18, 0x320000\ns_mov_b32 s19, 0x20000")
e(f"s_cmp_lt_u32 s{S_WAVE}, 4\ns_cbranch_scc1 a_old")
e(f"s_cmp_eq_u32 s{S_WAVE}, 7\ns_cbranch_scc1 a_w7\ns_cmp_eq_u32 s{S_WAVE}, 6\ns_cbranch_scc1 a_pc")
e(f"s_setprio 3\ns_sub_u32 s{S_CNT}, s{S_WAVE}, 4")
e(f"v_lshrrev_b32 v10, 2, v{LANE}\nv_mul_u32_u24 v10, 400, v10\nv_and_b32 v11, 3, v{LANE}\nv_lshl_add_u32 v10, v11, 4, v10")
e(f"s_lshl_b32 s{S_T}, s{S_CNT}, 6\ns_add_u32 s{S_T}, s{S_T}, s71")
e(f"s_lshl_b32 s{S_U}, s{S_CNT}, 12\ns_add_u32 s{S_U}, s{S_U}, {L_STG}\ns_mov_b32 m0, s{S_U}\nv_lshl_add_u32 v17, v{LANE}, 6, s{S_U}")
e("s_waitcnt lgkmcnt(0)\ns_mov_b32 s8, s32\ns_mov_b32 s9, s33")
for i in range(4):
    e(f"buffer_load_dwordx4 v10, s[8:11], s{S_T} offen lds")
    if i < 3: e(f"s_add_u32 m0, m0, 1024\ns_add_u32 s{S_T}, s{S_T}, 6400")
e("s_barrier\ns_branch b_x")
e("a_pc:\ns_setprio 3")
piece_lane(); piece_src(16)
e(f"s_waitcnt lgkmcnt(0)\ns_mov_b32 s16, s42\ns_mov_b32 s17, s43")
hstamp(10)
if not A("NOP", 0): piece_ld(POOL)
hstamp(11)
e("s_barrier")
hstamp(12)
e("s_branch b_pc")
e("a_old:")
e(f"v_mov_b32 v10, {L_CTR}\nds_write_b64 v10, v[18:19]")
if PFW:
    if XMAP >= 2: e(f"v_lshlrev_b32 v16, 9, v{LANE}\ns_and_b32 s{S_U}, s{S_CS}, 15\ns_lshl_b32 s{S_U}, s{S_U}, 15\ns_lshl_b32 s{S_T}, s{S_CS}, 3\ns_add_u32 s{S_U}, s{S_U}, s{S_T}")
    else: e(f"v_and_b32 v16, 31, v{LANE}\nv_lshlrev_b32 v16, 9, v16\ns_lshr_b32 s{S_U}, s2, 3\ns_lshl_b32 s{S_U}, s{S_U}, 14\ns_lshl_b32 s{S_T}, s{S_CS}, 3\ns_add_u32 s{S_U}, s{S_U}, s{S_T}")
e(f"s_and_b32 s{S_T}, s{S_BS}, 1\ns_lshl_b32 s{S_T}, s{S_T}, 19\ns_add_u32 s{S_U}, s{S_U}, s{S_T}\ns_waitcnt lgkmcnt(0)")
TCH = A("TCH", 1)
def touch():
    e(f"s_cmp_lg_u32 s{S_WAVE}, 2\ns_cbranch_scc1 1f")
    srd(4, 54, WS_SZ)
    e(f"v_lshlrev_b32 v17, {A('TSH', 19)}, v{LANE}\nbuffer_load_dword v{D0}, v17, s[4:7], 0 offen offset:3968")
    if A("TOUT", 1):
        srd(12, 50, 32768)
        e(f"buffer_load_dword v{D0}, off, s[12:15], 0")
    if A("TPAR", 0):
        for b in (36, 38, 40, 44, 46, 48): e(f"global_load_ushort v{D0}, v18, s[{b}:{b+1}]")
    e("1:")
if TCH == 1: touch()
if PFW == 2: e("s_barrier")
if TCH == 2: touch()
if PFW:
    e(f"s_mov_b32 s16, s42\ns_mov_b32 s17, s43\ns_cmp_lg_u32 s{S_WAVE}, 3\ns_cbranch_scc1 1f\nbuffer_load_dword v{D0}, v16, s[16:19], s{S_U} offen\n1:")
if PFW != 2: e("s_barrier")
e("s_branch c_all")
e("a_w7:")
if CPF == 1: cpf_code(D0)
e("s_setprio 2\ns_barrier")
e(f"v_bfe_u32 v16, v{LANE}, 1, 4\nv_lshlrev_b32 v18, 15, v16\nv_lshrrev_b32 v16, 5, v{LANE}\nv_lshl_or_b32 v18, v16, 12, v18\nv_and_b32 v16, 1, v{LANE}\nv_lshl_or_b32 v18, v16, 2, v18")
e(f"v_and_b32 v16, 31, v{LANE}\nv_lshlrev_b32 v16, 7, v16\ns_lshr_b32 s{S_U}, s2, 3\ns_lshl_b32 s{S_U}, s{S_U}, 12")
e(f"s_lshl_b32 s71, s{S_CS}, 3\ns_and_b32 s{S_T}, s{S_BS}, 1\ns_lshl_b32 s{S_T}, s{S_T}, 19\ns_add_u32 s71, s71, s{S_T}")
e("s_waitcnt lgkmcnt(0)\ns_mov_b32 s16, s42\ns_mov_b32 s17, s43")
srd(12, 34, 128000)
e(f"buffer_load_dword v{D0}, v16, s[12:15], s{S_U} offen")
raw(0, R1)
e("s_branch c_all")
e("b_x:")
voff_ws()
e(f"v_and_b32 v16, 15, v{LANE}\nv_lshl_add_u32 v{XA}, v16, 2, v17\nv_xor_b32 v17, 1, v16\nv_lshl_or_b32 v{XC}, v17, 16, v16")
for t in range(1, 16): e(f"v_xor_b32 v{XA+t}, {4*t}, v{XA}")
for u in range(1, 8): e(f"v_xor_b32 v{XC+u}, {2*u*0x10001:#x}, v{XC}")
idx_dst()
e("s_waitcnt vmcnt(0)")
stamp(1)
xform(0, HOLD, True)
e("s_barrier\ns_branch c_all2")
e("b_pc:")
voff_ws()
piece_dst(16)
e("s_waitcnt vmcnt(0)")
stamp(1)
piece_perm(POOL, HOLD)
e("s_barrier\ns_branch c_all2")
e("c_all:")
voff_ws()
e("c_all2:")
sloads(); common()
e(f"s_cmp_eq_u32 s{S_WAVE}, 7\ns_cbranch_scc1 d_w7\ns_cmp_lt_u32 s{S_WAVE}, 4\ns_cbranch_scc1 d_old")
if OD < 0: e("s_barrier")
e(f"v_mov_b32 v10, {L_CTR}\nv_mov_b32 v11, 1\ns_mov_b64 exec, 1\ns_waitcnt vmcnt(0)")
e("ds_add_rtn_u32 v13, v10, v11")
e(f"s_lshl_b32 s{S_T}, s{S_PID}, 7\ns_add_u32 s{S_T}, s{S_T}, {FLG:#x}\nv_mov_b32 v10, 0\ns_waitcnt lgkmcnt(0)")
e(f"v_readfirstlane_b32 s{S_U}, v13\nv_not_b32 v11, s{S_N}\ns_cmp_lg_u32 s{S_U}, 2\ns_cbranch_scc1 b_nosig")
e(f"buffer_store_dword v11, v10, s[4:7], s{S_T} offen sc1")
e("b_nosig:\ns_mov_b64 exec, -1\ns_setprio 0\ns_branch e_join")
e("d_w7:")
stamp(1)
e("s_mov_b32 s16, s42\ns_mov_b32 s17, s43\ns_barrier")
raw(R1, 32)
for vt in range(W7T): tab_dma(vt, False)
if OD < 0: e("s_barrier")
for vt in range(W7T, PRE - W7A): tab_dma(vt, False)
e(f"s_mov_b32 s{S_T}, {PLO}\ns_mov_b32 s{S_U}, {PHI}")
for s in range(4):
    e(f"s_waitcnt vmcnt({24-8*s+4*(PRE-W7A)})")
    for jj in range(4):
        r0 = POOL + 8 * s + 2 * jj
        e(f"v_perm_b32 v{POOL+32+8*s+jj}, v{r0+1}, v{r0}, s{S_T}")
        e(f"v_perm_b32 v{POOL+36+8*s+jj}, v{r0+1}, v{r0}, s{S_U}")
    e(f"ds_write_b128 v12, v[{POOL+32+8*s}:{POOL+35+8*s}] offset:{s*1024}")
    e(f"ds_write_b128 v12, v[{POOL+36+8*s}:{POOL+39+8*s}] offset:{4096+s*1024}")
if SPIN: e(f"v_mov_b32 v10, {L_CTR}\nv_mov_b32 v11, 1\nds_write_b32 v10, v11 offset:4")
stamp(2)
for vt in range(W7A): tab_dma(vt, False)
e("s_branch b_all")
e("d_old:")
stamp(1)
e("s_barrier")
def warm(tag, nseg, w0):
    if not WARM: return
    e("s_mov_b64 exec, 0")
    for k in range(nseg - 1): e(f"s_cmp_eq_u32 s{S_WAVE}, {w0+k}\ns_cbranch_scc1 @SEG_{tag}_{k}")
    e(f"s_branch @SEG_{tag}_{nseg-1}")
    e(f"warm_ret_{tag}:\ns_mov_b64 exec, -1")
if OD > 0: e(f"s_sleep {OD}")
if OD < 0: e("s_barrier")
e("e_join:")
stamp(2)
for vt in range(PRE): tab_dma(vt)
e("s_setprio 0")
warm("B", 7, 0)
e("b_all:")
if SPIN:
    e(f"s_setprio 0\nv_mov_b32 v10, {L_CTR}\ns_mov_b32 s{S_T}, 0")
    e(f"spin1:\nds_read_b32 v11, v10 offset:4\ns_add_u32 s{S_T}, s{S_T}, 1\ns_waitcnt lgkmcnt(0)\ns_cmp_gt_u32 s{S_T}, 0x1000000\ns_cbranch_scc1 1f")
    e("v_cmp_eq_u32 vcc, 0, v11\ns_cbranch_vccnz spin1\n1:")
else: e("s_setprio 0\ns_waitcnt lgkmcnt(0)\ns_barrier")
pass
stamp(3)
for i in range(8): e(f"ds_read_b128 v[{W1+4*i}:{W1+4*i+3}], v12 offset:{i*1024}")
if PI == -1: poll_issue()
common_b()
if PRE < 4: tab_dma(PRE)
tab_rd(0)
stamp(4)
L_PC = L_XCH; L_EX = 128000 + 64; L_HC = 128000; L_TB = L_XC2
ACCB = TAB; TABH = TAB + 32
def lane_to(r): e(f"v_mbcnt_lo_u32_b32 v{r}, -1, 0\nv_mbcnt_hi_u32_b32 v{r}, -1, v{r}")
DA = D0
def dl12():
    e(f"v_lshrrev_b32 v{DA+1}, 3, v{DA}\nv_mul_u32_u24 v{DA+1}, 400, v{DA+1}\nv_and_b32 v{DA}, 7, v{DA}\nv_lshl_add_u32 v{DA}, v{DA}, 4, v{DA+1}")
    e(f"s_lshl_b32 s{S_T}, s{S_WAVE}, 7\ns_add_u32 s{S_T}, s{S_T}, s71")
    e(f"s_lshl_b32 s{S_U}, s{S_WAVE}, 13\ns_add_u32 m0, s{S_U}, {L_STG}\ns_nop 0")
    for i in range(8):
        e(f"buffer_load_dwordx4 v{DA}, s[8:11], s{S_T} offen lds")
        if i < 7: e(f"s_add_u32 m0, m0, 1024\ns_add_u32 s{S_T}, s{S_T}, 3200")
def dlp(fp0, lds):
    e(f"v_lshrrev_b32 v{DA+1}, 3, v{DA}\nv_and_b32 v{DA}, 7, v{DA}\nv_lshlrev_b32 v{DA}, 4, v{DA}\nv_lshl_or_b32 v{DA}, v{DA+1}, 9, v{DA}")
    piece_src(fp0)
    e(f"s_mov_b32 m0, {lds}\ns_nop 0")
    for i in range(4):
        e(f"buffer_load_dwordx4 v{DA}, s[16:19], s{S_T} offen lds")
        if i < 3: e(f"s_add_u32 m0, m0, 1024\ns_add_u32 s{S_T}, s{S_T}, {(4096, 28672, 4096)[i]}")
def dl3():
    e(f"v_mul_u32_u24 v{DA+2}, 400, v{DA}\ns_add_u32 s{S_T}, s71, 384\ns_mov_b32 m0, {L_EX}\ns_nop 0\nbuffer_load_dwordx4 v{DA+2}, s[8:11], s{S_T} offen lds")
    dlp(48, L_PC + 4096)
def dl0():
    e(f"v_and_b32 v{DA+1}, 24, v{DA}\nv_and_b32 v{DA+2}, 3, v{DA}\nv_lshl_add_u32 v{DA+1}, v{DA+2}, 1, v{DA+1}\nv_bfe_u32 v{DA+2}, v{DA}, 2, 1\nv_add_u32 v{DA+1}, v{DA+1}, v{DA+2}\nv_lshlrev_b32 v{DA+1}, 7, v{DA+1}\nv_lshrrev_b32 v{DA+2}, 5, v{DA}\nv_lshl_add_u32 v{DA+2}, v{DA+2}, 4, v{DA+1}")
    e(f"s_lshr_b32 s{S_T}, s{S_CS}, 3\ns_lshl_b32 s{S_T}, s{S_T}, 12\ns_bfe_u32 s{S_U}, s{S_CS}, 0x10002\ns_lshl_b32 s{S_U}, s{S_U}, 15\ns_add_u32 s{S_T}, s{S_T}, s{S_U}\ns_and_b32 s{S_U}, s{S_CS}, 3\ns_lshl_b32 s{S_U}, s{S_U}, 5\ns_mov_b32 m0, {L_TB}\ns_add_u32 s{S_T}, s{S_T}, s{S_U}")
    e(f"buffer_load_dwordx4 v{DA+2}, s[12:15], s{S_T} offen lds")
    srd(8, 36, 16384 * 26)
    e(f"s_lshr_b32 s{S_T}, s{S_PID}, 2\ns_lshl_b32 s{S_T}, s{S_T}, 8\ns_and_b32 s{S_U}, s{S_PID}, 3\ns_lshl_b32 s{S_U}, s{S_U}, 4\ns_add_u32 s{S_T}, s{S_T}, s{S_U}\ns_mul_i32 s{S_T}, s{S_T}, 26\ns_mov_b32 m0, {L_TB+1024}")
    e(f"v_lshrrev_b32 v{DA+1}, 4, v{DA}\nv_mul_u32_u24 v{DA+1}, 1664, v{DA+1}\nv_and_b32 v{DA+2}, 15, v{DA}\nv_mul_u32_u24 v{DA+2}, 28, v{DA+2}\nv_add_u32 v{DA+2}, v{DA+2}, v{DA+1}")
    e(f"buffer_load_dword v{DA+2}, s[8:11], s{S_T} offen lds")
    dlp(32, L_PC)
O0 = O1 = ACCB + 16; U0 = ACCB + 24; U1 = ACCB + 25; DD = ACCB
def dx12():
    e(f"s_lshl_b32 s{S_CNT}, s{S_WAVE}, 1")
    idx_dst()
    e(f"s_lshl_b32 s{S_U}, s{S_WAVE}, 13\ns_add_u32 s{S_U}, s{S_U}, {L_STG}")
    e(f"v_and_b32 v{U1}, 15, v{U0}\nv_lshl_add_u32 v{U0}, v{U0}, 7, s{S_U}\nv_lshl_add_u32 v{U0}, v{U1}, 2, v{U0}\nv_xor_b32 v{O0}, 1, v{U1}\nv_lshl_or_b32 v{U1}, v{O0}, 16, v{U1}")
    for h, o in ((0, O0), (1, O1)):
        for t in range(16): e(f"v_xor_b32 v{DD+t}, {4*t}, v{U0}\nds_read_b32 v{DD+t}, v{DD+t} offset:{64*h}")
        for u in range(8):
            e(f"v_xor_b32 v{o+u}, {2*u*0x10001:#x}, v{U1}\ns_waitcnt lgkmcnt({14-2*u})")
            e(f"v_lshl_add_u32 v{DD+2*u}, v{DD+2*u+1}, 16, v{DD+2*u}")
            e(f"v_lshl_add_u32 v{o+u}, v{DD+2*u}, 4, v{o+u}")
            if u % 4 == 3: e(f"buffer_store_dwordx4 v[{o+u-3}:{o+u}], v{VOFF}, s[4:7], s{70+h} offen offset:{(u//4)*128} sc1")
def dxp(fp0, lds):
    e(f"v_lshrrev_b32 v{O0}, 2, v{U0}\nv_and_b32 v{O0+1}, 1, v{U0}\nv_and_b32 v{O0+2}, 2, v{U0}\nv_lshlrev_b32 v{U1}, 3, v{O0}\nv_lshl_or_b32 v{U1}, v{O0+1}, 11, v{U1}\nv_lshl_or_b32 v{U1}, v{O0+2}, 9, v{U1}\nv_add_u32 v{U1}, {lds}, v{U1}")
    for j in range(8): e(f"ds_read_b64 v[{DD+2*j}:{DD+2*j+1}], v{U1} offset:{j*128}")
    e(f"v_mul_u32_u24 v{O0}, {WSTR}, v{O0}\nv_and_b32 v{U0}, 3, v{U0}\nv_lshl_add_u32 v{U0}, v{U0}, 4, v{O0}")
    e(f"s_mul_i32 s70, s{S_BS}, {16*WSTR}\ns_lshr_b32 s{S_T}, s{S_CS}, 2\ns_lshl_b32 s{S_T}, s{S_T}, 10\ns_add_u32 s70, s70, s{S_T}")
    e(f"s_and_b32 s{S_T}, s{S_CS}, 3\ns_lshl_b32 s{S_T}, s{S_T}, 7\ns_add_u32 s70, s70, s{S_T}\ns_add_u32 s70, s70, {W1P + (fp0-16)*1024:#x}")
    e(f"s_mov_b32 s{S_T}, {PLO}\ns_mov_b32 s{S_U}, {PHI}\ns_waitcnt lgkmcnt(0)")
    for cp in range(2):
        for par in range(2):
            r = (O0, O1)[cp] + 4 * par
            for jj in range(4):
                r0 = DD + 4 * jj + cp
                e(f"v_perm_b32 v{r+jj}, v{r0+2}, v{r0}, s{S_U if par else S_T}")
            e(f"buffer_store_dwordx4 v[{r}:{r+3}], v{U0}, s[4:7], s70 offen offset:{par*512+cp*64} sc1")
def dx3():
    a = DD
    e(f"v_lshlrev_b32 v{U1}, 4, v{U0}\nv_add_u32 v{U1}, {L_EX}, v{U1}\nds_read_b128 v[{a}:{a+3}], v{U1}")
    e(f"s_lshr_b32 s70, s{S_PID}, 3\ns_mul_i32 s70, s70, {ISTR}\ns_add_u32 s70, s70, {IDXP + 6*16384:#x}")
    e(f"s_and_b32 s{S_T}, s{S_PID}, 7\ns_lshl_b32 s{S_T}, s{S_T}, 9\ns_add_u32 s70, s70, s{S_T}")
    e(f"v_and_b32 v{U1}, 31, v{U0}\nv_lshlrev_b32 v{U1}, 4, v{U1}\nv_lshrrev_b32 v{a+4}, 5, v{U0}\nv_lshl_or_b32 v{U1}, v{a+4}, 3, v{U1}")
    e(f"s_mov_b32 s{S_T}, 0x40014000\ns_mov_b32 s{S_U}, 0x40034002\ns_waitcnt lgkmcnt(0)")
    e(f"v_lshl_add_u32 v{a}, v{a+1}, 16, v{a}\nv_lshl_add_u32 v{a+2}, v{a+3}, 16, v{a+2}")
    e(f"v_lshl_add_u32 v{a}, v{a}, 2, s{S_T}\nv_lshl_add_u32 v{a+2}, v{a+2}, 2, s{S_U}")
    e(f"v_and_b32 v{a+1}, 1, v{U0}\nv_lshlrev_b32 v{a+1}, 4, v{a+1}\nv_and_b32 v{a+3}, 2, v{U0}\nv_cmp_ne_u32 vcc, 0, v{a+3}")
    e(f"v_alignbit_b32 v{a}, v{a}, v{a}, v{a+1}\nv_alignbit_b32 v{a+2}, v{a+2}, v{a+2}, v{a+1}")
    e(f"v_cndmask_b32 v{O1+6}, v{a}, v{a+2}, vcc\nv_cndmask_b32 v{O1+7}, v{a+2}, v{a}, vcc")
    e(f"buffer_store_dwordx2 v[{O1+6}:{O1+7}], v{U1}, s[4:7], s70 offen sc1")
    e(f"s_cmp_ge_u32 s{S_CS}, 8\ns_cbranch_scc1 g_join")
    dxp(48, L_PC + 4096)
def dx0():
    e(f"v_lshlrev_b32 v{U1}, 4, v{U0}\nv_add_u32 v{U1}, {L_TB}, v{U1}\nds_read_b128 v[{ACCB+28}:{ACCB+31}], v{U1}")
    e(f"s_lshl_b32 s70, s{S_BS}, 17\ns_lshr_b32 s{S_T}, s{S_CS}, 3\ns_lshl_b32 s{S_T}, s{S_T}, 14\ns_add_u32 s70, s70, s{S_T}\ns_and_b32 s{S_T}, s{S_CS}, 7\ns_lshl_b32 s{S_T}, s{S_T}, 7\ns_add_u32 s70, s70, s{S_T}\ns_add_u32 s70, s70, {TABP:#x}\ns_add_u32 s71, s70, 8192\ns_waitcnt lgkmcnt(0)")
    e(f"buffer_store_dwordx4 v[{ACCB+28}:{ACCB+31}], v{VOFF}, s[4:7], s70 offen sc1")
    dxp(32, L_PC)
DB = [ACC, D0, ACC, D0]
PK = [HOLD, HOLD + 16, ACC, D0]
WQ = [0] + [int(c) for c in A("WQ", "033")] + [2]
BU = A("BU", 0)
pend = []; m0cur = [None]; lds_after = [0]
def flush(n):
    for _ in range(n):
        if not pend: return
        t, r = pend.pop(0)
        want = S_M0A if t < 2 else S_M0B
        if m0cur[0] != want: e(f"s_mov_b32 m0, s{want}\ns_nop 0"); m0cur[0] = want
        wr(PK[t] + r, t, r); lds_after[0] += 1
        g = 16 * t + r - 34
        if 0 <= g < 16: e(f"v_mov_b32 v{ACC+g}, 0")
for vt in range(5):
    m0cur[0] = None
    if vt < 4: e(f"s_waitcnt lgkmcnt({min(lds_after[0], 15)})")
    b = DB[vt - 1]
    for i in range(9):
        if vt < 4 and i < 8: mf(vt, i, base=DB[vt])
        if 0 < vt < 4 and i == 0: e("s_nop 10")
        new = []
        if vt > 0 and i < 8:
            for r in (2 * i, 2 * i + 1):
                cvt(PK[vt - 1] + r, r, b); new.append((vt - 1, r))
                if vt == 3: e(f"v_mov_b32 v{ACC+16+r}, 0")
        if BU and vt < 4: flush(8 * WQ[vt] if i == 8 else 0)
        else: flush(WQ[vt] if (vt, i) != (4, 8) else 99)
        pend += new
        if i == TRI and vt < 3: tab_rd(vt + 1); lds_after[0] = 0
    if not DE and PRE + 1 + vt < 4: tab_dma(PRE + 1 + vt)
    if vt == PI: poll_issue()
    if vt == PI + 1: poll_check()
    if vt == KT:
        assert KT >= PI + 1
        for k in range(KA, KPRE): ldi(POOL + 4 * k, k, ("i", k))
    if vt == (3 if B2 else 4):
        fstamp(9)
        wait_vm("w1xw", "w1x")
        fstamp(10)
        e("ds_write_b128 v17, v[24:27]")
        if B2:
            e("s_waitcnt lgkmcnt(0)\ns_barrier")
            fstamp(11)
            for i in range(8): e(f"ds_read_b128 v[{W1+4*i}:{W1+4*i+3}], v16 offset:{i*1024}")
e(f"s_cmp_lg_u32 s{S_WAVE}, 7\ns_cbranch_scc1 1f\nv_mov_b32 v10, {L_HC}\nv_mov_b32 v11, 0\nds_write_b32 v10, v11\n1:")
fstamp(12)
wait_vm("p0i", ("i", 1))
unpack(POOL)
e(f"s_mov_b32 s{S_CNT}, 3")
e("s_waitcnt lgkmcnt(0)\ns_barrier")
if not B2:
    for i in range(8): e(f"ds_read_b128 v[{W1+4*i}:{W1+4*i+3}], v16 offset:{i*1024}")
e("@ENDREGION")
if not B2: e("s_waitcnt lgkmcnt(0)")
stamp(7)
if STAMP == 1: e(f"s_waitcnt lgkmcnt(0)\ns_mov_b32 s40, s{SB+14}\ns_mov_b32 s42, s{SB+14}\ns_mov_b32 s44, 0\ns_mov_b32 s45, 0\ns_mov_b32 s46, 0")

assert B2
a_, b_, c_, d_ = POOL, POOL + 16, POOL + 32, POOL + 48
def g4(*bases): return [b + 4 * i for b in bases for i in range(4)]
WG = [W1 + 4 * frag_of(i) for i in range(8)]
GRP = [g4(a_, b_, c_, d_), g4(d_) + WG + g4(D1), g4(d_, b_, c_, a_), g4(d_, b_, c_, a_), g4(a_, b_, c_, d_), g4(a_, b_, c_, d_)]
for k in range(KPRE): vm.tag[("i", 0, k)] = vm.tag[("i", k)]
def ld(reg, base, off, tag, extra=""):
    e(f"s_add_u32 s{S_T}, s{base}, {off & ~1023}\nbuffer_load_dwordx4 v[{reg}:{reg+3}], v{VOFF}, s[4:7], s{S_T} offen offset:{off & 1023} sc1")
    vm.issue(tag)
def L(h, k): return lambda: ld(GRP[h][k], S_IDX2 if h % 2 else S_IDX, (h // 2) * 32768 + (k // 8) * 8192 + (k % 8) * 128, ("i", h, k))
def LW(i, off): return lambda: ld(W1 + 4 * i, S_W1, off + i * 128, ("w", i))
S_TB = 54; S_XS = 55; S_XR = 24 + 0
def LT(vt, sx): return lambda: ld(TABH + 16 * (vt % 2) + 4 * sx, S_TB, (vt // 2) * 8192 + ((vt % 2) * 4 + sx) * 128, ("tb", vt))
skip_n = [0]
def wv(tag):
    n = vm.younger(tag); assert n < 64
    if vm.tag[tag] <= skip_n[0]: e(f"s_cmp_lt_u32 s{S_WAVE}, 4\ns_cbranch_scc1 1f\ns_waitcnt vmcnt({n})\n1:")
    else: e(f"s_waitcnt vmcnt({n})")
def smf2(a, slot):
    d = DAT + 8 * slot
    e(f"v_smfmac_f32_16x16x64_bf16 v[{a}:{a+3}], v[{AC}:{AC+3}], v[{d}:{d+7}], v{SIDX}")
def mf2(tb, i):
    sx, par = i // 2, i % 2
    d = D0 + 16 * par
    c = "0" if sx == 0 else f"v[{d}:{d+15}]"
    e(f"v_mfma_f32_32x32x16_bf16 v[{d}:{d+15}], v[{tb+4*sx}:{tb+4*sx+3}], v[{W1+16*par+4*sx}:{W1+16*par+4*sx+3}], {c}")
def qunits(h): return [(GRP[h][q // 2] + 2 * (q % 2), (ACCB if h % 2 else ACC) + 4 * (q // 4), ("i", h, q // 2 + 1) if q % 4 == 0 else None) for q in range(32)]
def run(units, pre, mid, end):
    for i, u in enumerate(units):
        if i >= 3:
            e("s_waitcnt lgkmcnt(8)"); smf2(units[i - 3][1], i % 3)
        for f in pre.get(i, []): f()
        reads(u[0], i % 3)
        for f in mid.get(i, []): f()
        if i + 1 < len(units):
            if units[i + 1][2]: wv(units[i + 1][2])
            unpack(units[i + 1][0])
        for f in end.get(i, []): f()
def add(d, i, *f): d.setdefault(i, []).extend(f)
def pgen(mid, end, o, tbs, stg, waitw, waitt):
    for t in range(4):
        for i in range(8):
            if t == 0 and i % 2 == 0 and waitw: add(mid, o + MQ[i], lambda i=i: wv(("w", frag_of(i + 1))))
            if i == 0 and waitt[t] is not None: add(mid, o + 8 * t + MQ[0], lambda t=t: wv(("tb", waitt[t])))
            add(mid, o + 8 * t + MQ[i], lambda t=t, i=i: mf2(tbs[t], i))
        if stg[t] is not None: add(end, o + 8 * t + 7, lambda t=t: [cvt(stg[t] + r, r) for r in range(16)])
def tail(units, before_bar):
    n = len(units)
    e("s_waitcnt lgkmcnt(8)"); smf2(units[n - 3][1], n % 3)
    e("s_waitcnt lgkmcnt(4)"); smf2(units[n - 2][1], (n + 1) % 3)
    before_bar()
    e("s_waitcnt lgkmcnt(0)\ns_barrier")
def wphase(last, order, acts, nxt):
    n = 0; cur = None
    for vt, src in order:
        want = S_M0A if vt < 2 else S_M0B
        if want != cur: e(f"s_mov_b32 m0, s{want}\ns_nop 0"); cur = want
        for r in range(16):
            for f in acts.get(n, []): f()
            wr(src + r, vt, r)
            if n == SP: smf2(*last)
            n += 1
    wv(nxt[2]); unpack(nxt[0])
    e("s_waitcnt lgkmcnt(0)\ns_barrier")
def pst(i, f=4):
    if f == 4 and PROBE == 20 + i: e("s_memrealtime s[96:97]")
    if FINE == f and STAMP: e(f"s_memtime s[{SB+2*i}:{SB+1+2*i}]")

XQ = A("XQ", 32); SQ = A("SQ", 40)
units = qunits(0) + qunits(1); pre = {}; mid = {}; end = {}
pgen(mid, end, 0, [TAB, TAB + 16, TAB + 32, TAB + 48], [a_, b_, c_, D0], False, [None] * 4)
for j, k in enumerate(range(KPRE, 16)): add(mid, j * A("LS", 10) // (16 - KPRE), L(0, k))
for k in range(4): add(mid, 25 + 2 * k, L(1, k))
for k in range(4, 12): add(mid, (26, 28, 30, 32, 34, 36, 38, 40)[k - 4], L(1, k))
for k in range(12, 16): add(mid, 42 + 2 * (k - 12), L(1, k))
def hook_d():
    e(f"s_cmp_ge_u32 s{S_WAVE}, 4\ns_cbranch_scc1 d_join")
    e("s_mov_b32 s8, s32\ns_mov_b32 s9, s33\ns_mov_b32 s16, s42\ns_mov_b32 s17, s43\ns_waitcnt vmcnt(0)")
    lane_to(DA); role_old("d", dl12, dl3, dl0); skip_n[0] = vm.n
def hook_x():
    e(f"s_cmp_ge_u32 s{S_WAVE}, 4\ns_cbranch_scc1 g_join")
    lane_to(U0); e("s_waitcnt vmcnt(0)"); role_old("g", dx12, dx3, dx0); skip_n[0] = vm.n; vm.tag["dst"] = vm.n
def hook_s():
    r = ACCB + 28
    e(f"s_cmp_ge_u32 s{S_WAVE}, 4\ns_cbranch_scc1 s_join")
    e(f"v_mov_b32 v{r}, {L_HC}\nv_mov_b32 v{r+1}, 1\ns_mov_b64 exec, 1\ns_waitcnt vmcnt({vm.younger('dst')})\nds_add_rtn_u32 v{r+2}, v{r}, v{r+1}")
    e(f"s_lshl_b32 s{S_T}, s{S_PID}, 7\ns_add_u32 s{S_T}, s{S_T}, {FLGB:#x}\nv_mov_b32 v{r}, 0\nv_mov_b32 v{r+1}, s{S_N}\ns_waitcnt lgkmcnt(0)")
    e(f"v_readfirstlane_b32 s{S_U}, v{r+2}\ns_nop 0\ns_cmp_lg_u32 s{S_U}, 3\ns_cbranch_scc1 1f\nbuffer_store_dword v{r+1}, v{r}, s[4:7], s{S_T} offen sc1\n1:\ns_mov_b64 exec, -1\ns_join:")
add(end, A("HD", 15), hook_d); add(end, XQ, lambda: pst(1, 6), hook_x, lambda: pst(2, 6)); add(end, SQ, hook_s, lambda: pst(3, 6))
assert 15 <= XQ <= 32 and XQ < SQ < 58
for g in range(8): add(end, 33 + 4 * g, lambda g=g: [e(f"v_mov_b32 v{ACCB+4*g+c}, 0") for c in range(4)])
add(pre, 32, lambda: pst(1))
def pb_issue():
    r = W1
    lane_to(r)
    e(f"s_lshr_b32 s{S_T}, s{S_CS}, 4\nv_mov_b32 v{r+1}, s{S_T}\nv_lshrrev_b32 v{r+2}, 3, v{r}\nv_xor_b32 v{r+2}, s{S_BS}, v{r+2}\nv_cmp_gt_u32 vcc, 16, v{r}\nv_and_b32 v{r}, 7, v{r}\ns_lshl_b32 s70, s{S_WAVE}, 10")
    e(f"v_cndmask_b32 v{r+1}, v{r+1}, v{r+2}, vcc\nv_lshl_add_u32 v{r}, v{r+1}, 6, v{r}\nv_lshlrev_b32 v{r}, 7, v{r}\ns_add_u32 s70, s70, {FLGB:#x}")
    e(f"buffer_load_dword v{r+1}, v{r}, s[4:7], s70 offen sc1"); vm.issue("pb")
add(end, A("PQ", 56), pb_issue)
run(units, pre, mid, end)
def poll_b():
    r = W1
    e(f"s_mov_b32 s{S_U}, 0\npb_loop:\ns_waitcnt vmcnt(0)\nv_cmp_ne_u32 vcc, s{S_N}, v{r+1}\ns_cbranch_vccz pb_done")
    e(f"s_add_u32 s{S_U}, s{S_U}, 1\ns_cmp_gt_u32 s{S_U}, 0x40000\ns_cbranch_scc1 pb_done\ns_sleep 8\nbuffer_load_dword v{r+1}, v{r}, s[4:7], s70 offen sc1\ns_branch pb_loop\npb_done:")
tail(units, lambda: (pst(4, 6), poll_b(), pst(5, 6)))
pst(6, 6)
skip_n[0] = 0
pst(2)
params()
e(f"s_lshr_b32 s{S_TB}, s{S_CS}, 4\ns_lshl_b32 s{S_TB}, s{S_TB}, 3\ns_add_u32 s{S_TB}, s{S_TB}, s{S_WAVE}\ns_lshl_b32 s{S_TB}, s{S_TB}, 14\ns_add_u32 s{S_TB}, s{S_TB}, {TABP:#x}")
wphase((units[-1][1], (len(units) + 2) % 3), [(1, b_), (0, a_), (2, c_), (3, D0)], {0: [L(2, 0)], 4: [L(2, 1)], 16: [L(2, 2)], 32: [L(2, 3)]}, qunits(2)[0])
pst(3)
WA = W1 + 16; TL = W1 + 17; TM = W1 + 18
def xfr():
    lane_to(TL)
    e(f"v_and_b32 v{WA}, 0x7f, v{VOFF}\nv_and_b32 v{TM}, 4, v{TL}\nv_lshl_or_b32 v{WA}, v{TM}, 8, v{WA}\nv_and_b32 v{TM}, 8, v{TL}\nv_lshl_or_b32 v{WA}, v{TM}, 6, v{WA}\nv_and_b32 v{TM}, 16, v{TL}\nv_lshl_or_b32 v{WA}, v{TM}, 4, v{WA}")
    e(f"s_and_b32 s{S_U}, s{S_BS}, 1\ns_lshl_b32 s{S_U}, s{S_U}, 13\ns_sub_u32 s{S_U}, s{S_W1}, s{S_U}\ns_add_u32 s{S_U}, s{S_U}, 32768")
    for i in range(2): e(f"buffer_load_dwordx4 v[{W1+4*i}:{W1+4*i+3}], v{WA}, s[4:7], s{S_U} offen offset:{i*128} sc1"); vm.issue("xf")
def xgaddr():
    e(f"s_xor_b32 s{S_XS}, s{S_PID}, 64\ns_lshl_b32 s{S_XS}, s{S_XS}, 3\ns_add_u32 s{S_XS}, s{S_XS}, s{S_WAVE}\ns_lshl_b32 s{S_XS}, s{S_XS}, 13\ns_add_u32 s{S_XS}, s{S_XS}, {XG:#x}\ns_xor_b32 s{S_XR}, s{S_XS}, {64*8*8192:#x}")
def xmerge():
    wv("xf")
    for r in range(8): e(f"v_permlane16_swap_b32 v{W1+r}, v{W1+8+r}")
def xaddr():
    e(f"v_and_b32 v{WA}, 24, v{TL}\nv_and_b32 v{TM}, 3, v{TL}\nv_lshl_add_u32 v{WA}, v{TM}, 1, v{WA}\nv_bfe_u32 v{TM}, v{TL}, 2, 1\nv_add_u32 v{WA}, v{WA}, v{TM}")
    e(f"v_lshrrev_b32 v{TM}, 5, v{TL}\nv_lshl_add_u32 v{WA}, v{WA}, 1, v{TM}\ns_lshl_b32 s{S_T}, s{S_WAVE}, 10\ns_add_u32 s{S_T}, s{S_T}, {L_XT}\nv_lshl_add_u32 v{WA}, v{WA}, 4, s{S_T}")
def xm(vt, sx):
    d = D0 + 16 * (vt % 2); tb = TABH + 16 * (vt % 2) + 4 * sx
    e(f"v_mfma_f32_32x32x16_bf16 v[{d}:{d+15}], v[{W1+4*sx}:{W1+4*sx+3}], v[{tb}:{tb+3}], " + ("0" if sx == 0 else f"v[{d}:{d+15}]"))
def xw(vt):
    d = D0 + 16 * (vt % 2)
    for r in range(4): e(f"v_cvt_pk_bf16_f32 v{d+r}, v{d+r}, v{d+4+r}")
    e(f"ds_write_b128 v{WA}, v[{d}:{d+3}] offset:{vt*8192}")
def px(mid, end, o, tiles):
    add(mid, o, xfr); add(end, o + 6, xmerge); add(end, o + 7, xaddr)
    for j, vt in enumerate(tiles):
        for sx in range(4): add(mid, o + 8 + 4 * j + sx, lambda vt=vt, sx=sx: xm(vt, sx))
        add(end, o + 13 + 4 * j, lambda vt=vt: xw(vt))
units = qunits(2) + qunits(3); pre = {}; mid = {}; end = {}
px(mid, end, 2, (2, 3))
for k in range(4, 16): add(mid, (0, 1, 3, 4, 5, 6, 8, 9, 11, 12, 14, 15)[k - 4], L(2, k))
for k in range(4): add(mid, 16 + k, L(3, k))
for i in range(8): add(mid, 20 + i, LW(frag_of(i), 16384))
pgen(mid, end, 32, [TABH, TABH + 16, TABH, TABH + 16], [d_, b_, c_, None], True, [None, None, 0, 1])
for k in range(4, 16): add(mid, [int(x) for x in A("L3", "30.31.32.33.34.35.37.38.43.44.45.46").split(".")][k - 4], L(3, k))
for sx in range(4): add(mid, 39 + sx, LT(0, sx)); add(mid, 47 + sx, LT(1, sx))
for k in range(4): add(mid, 57 + 2 * k, L(4, k))
if A("RB", 1): add(pre, 32, lambda: e("s_barrier"))
add(pre, 32, lambda: pst(4))
run(units, pre, mid, end)
tail(units, lambda: [cvt(D0 + r, r) for r in range(16)])
pst(5)
wphase((units[-1][1], (len(units) + 2) % 3), [(3, b_), (2, d_), (0, c_), (1, D0)], {32 + 8 * k: [L(4, 4 + k)] for k in range(4)}, qunits(4)[0])
stamp(8)
XI = W1 + 16
SC = TABH; LN = SC; ROW = SC + 1; PV = SC + 4; RES = SC + 8; XW = SC + 16; X8 = SC + 30
XB = A("XB", 44); SS = A("SS", 5); RQ = A("RQ", 52)
q5 = qunits(5)
units = qunits(4) + q5[:XB - 32] + [(XI + 2 * g, ACCB + 4 * g, None) for g in range(8)] + q5[XB - 32:]
pre = {}; mid = {}; end = {}
add(mid, 0, xgaddr)
px(mid, end, 1, (0, 1))
L4 = [int(x) for x in A("L4", "0.2.4.6.8.10.12.14").split(".")]
L5 = [int(x) for x in A("L5", "15.16.17.18.22.24.26.29.30.31.33.34.35.37.38.39").split(".")]
for k in range(8, 16): add(mid, L4[k - 8], L(4, k))
for k in range(16): add(mid, L5[k], L(5, k))
GB = [ACC, ACC + 8, ACC + 14, ACC + 22, ACC + 28]
def send(i):
    b = GB[i]
    if i < 4:
        v = ACC + 7 * i
        for c in range(4): e(f"v_cvt_pk_bf16_f32 v{b+c}, v{v+2*c}, v{v+2*c+(1 if c < 3 else 0)}")
        e(f"v_mov_b32_sdwa v{b+3}, s{S_N} dst_sel:WORD_1 dst_unused:UNUSED_PRESERVE src0_sel:WORD_0")
    else:
        for c in range(4): e(f"v_mov_b32_sdwa v{b+c}, s{S_N} dst_sel:BYTE_0 dst_unused:UNUSED_PRESERVE src0_sel:BYTE_0")
    e(f"s_nop 0\nbuffer_store_dwordx4 v[{b}:{b+3}], v{VOFF}, s[4:7], s{S_XS} offen offset:{i*128} sc1"); vm.issue()
def recv(i, cnt=True):
    b = GB[i]
    e(f"buffer_load_dwordx4 v[{b}:{b+3}], v{VOFF}, s[4:7], s{S_XR} offen offset:{i*128} sc1")
    if cnt: vm.issue(("r", i))
slow = []
def rcheck(i):
    b = GB[i]; t = SC + 31
    wv(("r", i))
    e(f"s_mov_b32 s{S_CNT}, 0\nrc{i}:")
    if i < 4: e(f"v_cmp_ne_u32_sdwa vcc, v{b+3}, s{S_N} src0_sel:WORD_1 src1_sel:WORD_0")
    else:
        for c in range(4): e(f"v_xor_b32 v{b+c}, v{PV+2}, v{b+c}")
        e(f"v_or3_b32 v{t}, v{b}, v{b+1}, v{b+2}\nv_or_b32 v{t}, v{t}, v{b+3}\nv_and_b32 v{t}, 255, v{t}\nv_cmp_ne_u32 vcc, 0, v{t}")
    e(f"s_cbranch_vccnz rs{i}\nrd{i}:")
    slow.append(i)
def IL(k, d): return [int(x) for x in A(k, d).split(".")]
TS = IL("TS", "12.20.28.32.36"); TR = IL("TR", "46.49.53.57.61"); TC = IL("TC", "53.57.61.65.69"); TE = IL("TE", "54.58.59.62.64.68")
for i in range(5):
    assert TS[i] >= 4 * (min(7 * i + 6, 31) // 4) + 8 and TS[i] < TR[i] < TC[i]
    add(end, TS[i], lambda i=i: send(i)); add(end, TR[i], lambda i=i: recv(i)); add(end, TC[i], lambda i=i: rcheck(i))
for g in range(6): assert TE[g] >= TC[(4 * g + 3) // 7]
def setup():
    lane_to(LN)
    e(f"v_lshlrev_b32 v{X8}, 4, v{LN}\ns_and_b32 s{S_U}, s{S_BS}, 1\ns_lshl_b32 s{S_U}, s{S_U}, 14\ns_sub_u32 s{S_IDX}, s{S_IDX2}, s{S_U}\ns_add_u32 s{S_IDX}, s{S_IDX}, {6*16384}")
    e(f"v_and_b32 v{PV+1}, 15, v{LN}\nv_lshlrev_b32 v{PV+1}, 4, v{PV+1}\nv_lshrrev_b32 v{PV}, 4, v{LN}\nv_lshl_or_b32 v{PV}, v{PV}, 14, v{PV+1}")
    e(f"s_lshl_b32 s70, s{S_BS}, 20\ns_lshl_b32 s71, s{S_WAVE}, 17\ns_add_u32 s70, s70, s71\ns_lshl_b32 s71, s{S_CS}, 8\ns_add_u32 s70, s70, s71")
    e(f"s_add_u32 s70, s70, {PART:#x}\ns_add_u32 s71, s70, 65536")
    e(f"s_and_b32 s{S_U}, s{S_N}, 255\nv_mov_b32 v{PV+2}, s{S_U}\ns_mov_b32 s{S_W1}, 0xffffff00")
    e("s_lshl_b32 s56, s58, 16\ns_and_b32 s57, s58, 0xffff0000\ns_lshl_b32 s58, s59, 16\ns_and_b32 s59, s59, 0xffff0000")
    e("s_xor_b32 s52, s52, 0x80008000\ns_xor_b32 s53, s53, 0x80008000")
    e("s_lshl_b32 s0, s52, 16\ns_and_b32 s1, s52, 0xffff0000\ns_lshl_b32 s52, s53, 16\ns_and_b32 s53, s53, 0xffff0000")
    e(f"v_mov_b32 v{PV+1}, s0\nv_mul_f32 v{SC+3}, s56, v{PV+1}")
    for c, r in ((1, 1), (2, 52), (3, 53)): e(f"v_mov_b32 v{PV+1}, s{r}\nv_fma_f32 v{SC+3}, v{PV+1}, s{56+c}, v{SC+3}")
    e(f"v_xor_b32 v{SC+3}, 0x80000000, v{SC+3}")
    srd(8, 36, 16384 * 26); srd(12, 50, 32768)
add(end, 19, setup)
def xld(g):
    e(f"buffer_load_dwordx4 v[{XI+4*g}:{XI+4*g+3}], v{X8}, s[4:7], s{S_IDX} offen offset:{g*1024} sc1"); vm.issue(("x", g))
for g in range(4): add(mid, A('XL', 21) + 2 * g, lambda g=g: xld(g))
def xswap():
    wv(("x", 3))
    for g in range(4): e(f"v_permlane32_swap_b32 v{XI+4*g}, v{XI+4*g+2}\nv_permlane32_swap_b32 v{XI+4*g+1}, v{XI+4*g+3}")
add(mid, XB - 2, xswap)
add(pre, A("XBAR", 24), lambda: e("s_barrier"))
for b in IL("BARS", "52"): add(pre, b, lambda: e("s_barrier"))
add(pre, A("PY", 99), lambda: e(f"s_cmp_ge_u32 s{S_WAVE}, 4\ns_cbranch_scc0 1f\ns_setprio 1\n1:"))
add(pre, 32, lambda: pst(6))
def wide():
    e(f"s_cmp_lg_u32 s{S_WAVE}, 0\ns_cbranch_scc1 nowide")
    e(f"s_lshr_b32 s{S_T}, s{S_PID}, 2\ns_lshl_b32 s{S_T}, s{S_T}, 8\ns_and_b32 s{S_U}, s{S_PID}, 3\ns_lshl_b32 s{S_U}, s{S_U}, 4\ns_add_u32 s{S_T}, s{S_T}, s{S_U}")
    e(f"v_lshrrev_b32 v{ROW}, 4, v{LN}\nv_and_b32 v{ROW+1}, 15, v{LN}\nv_lshl_add_u32 v{ROW}, v{ROW}, 6, v{ROW+1}\nv_add_u32 v{ROW}, s{S_T}, v{ROW}")
    e(f"v_mul_u32_u24 v{ROW+1}, 26, v{ROW}")
    for j in range(13): e(f"buffer_load_ushort v{XW+j}, v{ROW+1}, s[8:11], 0 offen offset:{2*j}")
    e("nowide:")
add(end, A('XBAR', 24) - 1, wide)
def epi(g):
    a = ACCB + 4 * g
    t = SC + 31
    for c in range(4):
        n = 4 * g + c
        if g == 7: e(f"v_add_f32 v{a+c}, v{a+c}, v{GB[4]+c}"); continue
        r = GB[n // 7] + (n % 7) // 2
        e((f"v_and_b32 v{t}, 0xffff0000, v{r}" if n % 7 % 2 else f"v_lshlrev_b32 v{t}, 16, v{r}") + f"\nv_add_f32 v{a+c}, v{a+c}, v{t}")
    for c in range(4): e(f"v_max_f32 v{a+c}, s{(0, 1, 52, 53)[c]}, v{a+c}")
    e(f"v_fma_f32 v{RES+g}, v{a}, s56, v{SC+3}")
    for c in range(1, 4): e(f"v_fma_f32 v{RES+g}, v{a+c}, s{56+c}, v{RES+g}")
    e(f"v_and_or_b32 v{RES+g}, v{RES+g}, s{S_W1}, v{PV+2}")
    if g % 4 == 3: e(f"buffer_store_dwordx4 v[{RES+g-3}:{RES+g}], v{PV}, s[4:7], s{70 + g//4} offen sc1"); vm.issue()
for g, st in enumerate(TE):
    assert st >= max(i for i, u in enumerate(units) if u[1] == ACCB + 4 * g) + 5
    add(end, st, lambda g=g: epi(g))
for j, st in enumerate((16, 32, 44, 52, 60, 68)): add(pre, st, lambda j=j: pst(1 + j, 7))
run(units, pre, mid, end)
n = len(units)
e("s_waitcnt lgkmcnt(8)"); smf2(ACCB + 28, n % 3)
e("s_waitcnt lgkmcnt(4)"); smf2(ACCB + 28, (n + 1) % 3)
epi(6)
e("s_waitcnt lgkmcnt(0)"); smf2(ACCB + 28, (n + 2) % 3)
e(f"v_lshlrev_b32 v{PV+1}, 4, v{LN}")
e(f"s_lshl_b32 s70, s{S_PID}, 14\ns_lshl_b32 s{S_T}, s{S_WAVE}, 11\ns_add_u32 s70, s70, s{S_T}\ns_add_u32 s70, s70, {PART:#x}")
e(f"s_lshl_b32 s{S_T}, s{S_WAVE}, 8\ns_add_u32 s{S_T}, s{S_T}, {128000}\nv_lshl_add_u32 v{PV+3}, v{LN}, 2, s{S_T}")
e("s_nop 0")
epi(7)
stamp(9)
e(f"s_cmp_lg_u32 s{S_WAVE}, 0\ns_cbranch_scc1 nowide2")
e("s_waitcnt vmcnt(2)")
e(f"s_lshl_b32 s68, s68, 16\ns_lshl_b32 s69, s69, 16\nv_mov_b32 v{XW+13}, s68\nv_add_f32 v{XW+13}, s69, v{XW+13}")
for j in range(13):
    sw = 60 + j // 2
    if j % 2 == 0: e(f"s_lshl_b32 s{S_T}, s{sw}, 16")
    else: e(f"s_and_b32 s{S_T}, s{sw}, 0xffff0000")
    e(f"v_lshlrev_b32 v{XW+j}, 16, v{XW+j}")
    e(f"v_fma_f32 v{XW+13}, v{XW+j}, s{S_T}, v{XW+13}")
e("nowide2:")
e(f"s_mov_b32 s{S_CNT}, 0")
if A("EB", 1) < 2: e("s_waitcnt vmcnt(0)")
if A("EB", 1): e("s_barrier")
stamp(10)
e("poll2:")
e(f"buffer_load_dwordx4 v[{D1}:{D1+3}], v{PV+1}, s[4:7], s70 offen sc1")
e(f"buffer_load_dwordx4 v[{D1+4}:{D1+7}], v{PV+1}, s[4:7], s70 offen offset:1024 sc1")
e(f"s_add_u32 s{S_CNT}, s{S_CNT}, 1\ns_cmp_gt_u32 s{S_CNT}, 0x40000\ns_cbranch_scc1 poll2_done")
e("s_waitcnt vmcnt(0)")
for i in range(8): e(f"v_xor_b32 v{D1+i}, v{PV+2}, v{D1+i}")
e(f"v_or3_b32 v{D1+8}, v{D1}, v{D1+1}, v{D1+2}\nv_or3_b32 v{D1+9}, v{D1+3}, v{D1+4}, v{D1+5}\nv_or3_b32 v{D1+8}, v{D1+8}, v{D1+6}, v{D1+7}")
e(f"v_or_b32 v{D1+8}, v{D1+8}, v{D1+9}\nv_and_b32 v{D1+8}, 255, v{D1+8}\nv_cmp_ne_u32 vcc, 0, v{D1+8}")
if A("PS", 0): e(f"s_cbranch_vccz poll2_done\ns_sleep {A('PS', 0)}\ns_branch poll2")
else: e("s_cbranch_vccnz poll2")
e("poll2_done:\ns_waitcnt vmcnt(0)")
stamp(11)
for c in range(4): e(f"v_add_f32 v{D1+c}, v{D1+c}, v{D1+4+c}")
e(f"s_nop 1\nv_permlane32_swap_b32 v{D1}, v{D1+2}\nv_permlane32_swap_b32 v{D1+1}, v{D1+3}")
e(f"v_add_f32 v{D1}, v{D1}, v{D1+2}\nv_add_f32 v{D1+1}, v{D1+1}, v{D1+3}\ns_nop 1")
e(f"v_permlane16_swap_b32 v{D1}, v{D1+1}\nv_add_f32 v{D1}, v{D1}, v{D1+1}")
e(f"ds_write_b32 v{PV+3}, v{D1}\ns_waitcnt lgkmcnt(0)\ns_barrier")
e(f"s_cmp_lg_u32 s{S_WAVE}, 0\ns_cbranch_scc1 fin")
for i in range(1, 8): e(f"ds_read_b32 v{D1+i}, v{PV+3} offset:{256*i}")
e(f"v_add_f32 v{D1}, v{D1}, v{XW+13}\nv_lshlrev_b32 v{ROW}, 1, v{ROW}")
e("s_waitcnt lgkmcnt(0)")
e(f"v_add_f32 v{D1+1}, v{D1+1}, v{D1+2}\nv_add_f32 v{D1+3}, v{D1+3}, v{D1+4}\nv_add_f32 v{D1+5}, v{D1+5}, v{D1+6}\nv_add_f32 v{D1}, v{D1}, v{D1+7}")
e(f"v_add_f32 v{D1+1}, v{D1+1}, v{D1+3}\nv_add_f32 v{D1}, v{D1}, v{D1+5}\nv_add_f32 v{D1}, v{D1}, v{D1+1}")
e(f"v_mul_f32 v{D1}, 0xbfb8aa3b, v{D1}\nv_exp_f32 v{D1}, v{D1}\ns_nop 0\nv_add_f32 v{D1}, 1.0, v{D1}\nv_rcp_f32 v{D1}, v{D1}\ns_nop 0")
e(f"v_cvt_pk_bf16_f32 v{D1}, v{D1}, v{D1}")
e(f"buffer_store_short v{D1}, v{ROW}, s[12:15], 0 offen")
e("s_cmp_lg_u32 s2, 0\ns_cbranch_scc1 fin")
e(f"v_mov_b32 v{D1+1}, s{S_N}\nv_mov_b32 v{D1+2}, {EPOCH}\ns_mov_b64 exec, 1")
e(f"buffer_store_dword v{D1+1}, v{D1+2}, s[4:7], 0 offen\ns_mov_b64 exec, -1")
e("@ENDREGION\nfin:")
if FIX and A("MINS", 0):
    e("s_load_dwordx2 s[32:33], s[0:1], 80\ns_waitcnt lgkmcnt(0)")
    srd(16, 32, 256)
    e("s_not_b32 s98, s100\nv_mov_b32 v8, 0\nv_mov_b32 v9, s98\ns_mov_b64 exec, 1\nbuffer_atomic_umax v9, v8, s[16:19], 0 offen\ns_waitcnt vmcnt(0)")
    e(f"fixm:\ns_memrealtime s[98:99]\ns_waitcnt lgkmcnt(0)\ns_sub_u32 s98, s98, s100\ns_cmp_lt_u32 s98, {FIX - 1500}\ns_cbranch_scc1 fixm")
    e("buffer_load_dword v9, v8, s[16:19], 0 offen sc1\ns_waitcnt vmcnt(0)\nv_readfirstlane_b32 s100, v9\ns_nop 3\ns_not_b32 s100, s100\ns_mov_b64 exec, -1")
if FIX and A("PW", 255) != 255:
    e(f"s_mov_b32 s98, {A('PW', 255)}\ns_bitcmp0_b32 s98, s{S_WAVE}\ns_cbranch_scc1 done")
if FIX:
    e(f"fixl:\ns_memrealtime s[98:99]\ns_waitcnt lgkmcnt(0)\ns_sub_u32 s98, s98, s{96 if PROBE else 100}")
    e(f"s_cmp_lt_u32 s98, {FIX}\ns_cbranch_scc1 fixl")
if STAMP:
    stamp(12)
    e("s_memrealtime s[98:99]\ns_waitcnt lgkmcnt(0)")
    e(f"s_lshl_b32 s70, s2, 3\ns_add_u32 s70, s70, s{S_WAVE}\ns_lshl_b32 s70, s70, 7\ns_add_u32 s70, s70, {STMP:#x}")
    e("v_mov_b32 v8, 0")
    for i in range(1, 13):
        e(f"s_sub_u32 s{SB+2*i}, s{SB+2*i}, s{SB}\nv_mov_b32 v9, s{SB+2*i}")
        e(f"buffer_store_dword v9, v8, s[4:7], s70 offen offset:{4*(i-1)}")
    for i, r in enumerate((44, 45, 46, 100, 98, 38, 39)):
        e(f"v_mov_b32 v9, s{r}\nbuffer_store_dword v9, v8, s[4:7], s70 offen offset:{48+4*i}")
e("s_endpgm")
for h in slow:
    e(f"rs{h}:\ns_add_u32 s{S_CNT}, s{S_CNT}, 1\ns_cmp_gt_u32 s{S_CNT}, 0x40000\ns_cbranch_scc1 rd{h}\ns_sleep 4")
    recv(h, False)
    e(f"s_waitcnt vmcnt(0)\ns_branch rc{h}")
e("done:\ns_endpgm")

e(f""".section .rodata,"a"
.p2align 6
.amdhsa_kernel {KN}
  .amdhsa_next_free_vgpr 256
  .amdhsa_next_free_sgpr 102
  .amdhsa_accum_offset 256
  .amdhsa_group_segment_fixed_size 0
  .amdhsa_kernarg_size 96
  .amdhsa_user_sgpr_count 2
  .amdhsa_user_sgpr_kernarg_segment_ptr 1
  .amdhsa_system_sgpr_workgroup_id_x 1
.end_amdhsa_kernel""")

bysite = {str(k): v for k, v in waits.items()}
res = []
for l in out:
    if l.startswith("@VM "):
        n = bysite[l[4:]]
        assert 0 <= n <= 63
        l = f"s_waitcnt vmcnt({n})"
    res.append(l)
import re, subprocess, tempfile, os
def is_instr(l): return bool(re.match(r"^(s_|v_|ds_|buffer_|global_)\w*( |$)", l)) and not l.endswith(":")
tmp = [re.sub(r"@SEG_\w+", "done", l) for l in res if not l.startswith("@")]
with tempfile.TemporaryDirectory() as d:
    open(d + "/t.s", "w").write("\n".join(tmp) + "\n")
    subprocess.run(["clang", "-x", "assembler", "-target", "amdgcn-amd-amdhsa", "-mcpu=gfx950", "-c", d + "/t.s", "-o", d + "/t.o"], check=True)
    dis = subprocess.run(["llvm-objdump", "-d", "--mcpu=gfx950", d + "/t.o"], capture_output=True, text=True).stdout
sizes = [4 * len(m.group(1).split()) for m in re.finditer(r"// [0-9A-F]{12}: ([0-9A-F ]+)", dis)]
assert len(sizes) == sum(map(is_instr, tmp)), (len(sizes), sum(map(is_instr, tmp)))
al = 0; nal = 0; fin = []; addr = 0; k = 0; region = None; pads = {}; last = -1
for l in res:
    if l.startswith("@REGION"):
        _, tag, nseg = l.split(); region = tag; pads[tag] = [int(nseg), 0]; last = -1; continue
    if l.startswith("@ENDREGION"): region = None; continue
    if l.startswith("@ALIGN"):
        while addr % int(l.split()[1]): fin.append("s_nop 0"); addr += 4
        continue
    if l.startswith("@AL "): al = int(l.split()[1]); continue
    if is_instr(l):
        if al and sizes[k] == 8 and addr % 8 != (0 if AL == 1 else 4): fin.append("s_nop 0"); addr += 4; nal += 1
        if region and WARM and addr // LINE != last:
            last = addr // LINE
            n = pads[region][1]; pads[region][1] += 1
            fin.append(f"pad_{region}_{n}:"); fin.append(f"@PAD {region} {n}"); addr += 4
        addr += sizes[k]; k += 1
    fin.append(l)
def seg_start(tag, j):
    nseg, n = pads[tag]; return (n * j) // nseg
o2 = []
for l in fin:
    if l.startswith("@PAD"):
        _, tag, n = l.split(); n = int(n)
        starts = [seg_start(tag, j) for j in range(pads[tag][0] + 1)]
        l = f"s_cbranch_execz " + (f"warm_ret_{tag}" if n + 1 in starts else f"pad_{tag}_{n+1}")
    m = re.search(r"@SEG_(\w)_(\d+)", l)
    if m: l = l.replace(m.group(0), f"pad_{m.group(1)}_{seg_start(m.group(1), int(m.group(2)))}")
    o2.append(l)
sys.stderr.write(f"nal {nal} pads {pads} size {addr}\n")
DROP = A("DROP", "")
if DROP:
    i0 = o2.index("pb_done:"); keep = o2[:i0]; masked = False
    for l in o2[i0:]:
        if l.startswith("s_mov_b32 exec_hi"): masked = True
        if l.startswith("s_mov_b64 exec, -1"): masked = False
        if "s" in DROP and "buffer_store" in l and f"s{S_XS} offen" in l: l = "s_nop 0"
        if "r" in DROP and f"s{S_XR} off" in l: l = "s_nop 0"
        if ("s" in DROP or "r" in DROP) and l.startswith("s_cbranch_vccnz rs"): l = "s_nop 0"
        if "x" in DROP and masked and "buffer_load" in l: l = "s_nop 0"
        if "w" in DROP and l.startswith("ds_write_b128"): l = "s_nop 0"
        if "u" in DROP and "buffer_load_ushort" in l: l = "s_nop 0"
        keep.append(l)
    o2 = keep
if A("RT", 0): o2 = [l.replace("s_memtime", "s_memrealtime") for l in o2] + ["; s_memtime RT"]
print("\n".join(o2))
```

```python
import sys
args = dict(a.split("=") for a in sys.argv[1:])
def A(k, d): return type(d)(args.get(k, d))
STAMP = A("STAMP", 0); PROBE = A("PROBE", 0); FIX = A("FIX", 0)
PRIOQ = A("PRIOQ", -1); W1W = A("W1W", 0); CPF = A("CPF", 1); POLLT = A("POLLT", 2); PRE = A("PRE", 2); BAR0 = A("BAR0", 1); MAP = A("MAP", 1); CPL = A("CPL", 9); KPRE = A("KPRE", 8); DEFT = A("DEFT", -1); PREO = A("PREO", 1); HPQ = A("HPQ", 16); R1 = A("R1", 12); R2 = A("R2", 28); XT = A("XT", 1); PFW = A("PFW", 2); PI = A("PI", 0); XMAP = A("XMAP", 1); B2 = A("B2", 1); KT = A("KT", 2); KA = A("KA", 2); OD = A("OD", -1); W7T = A("W7T", 0); SPIN = A("SPIN", 0); W7A = A("W7A", 0); AL = A("AL", 0); MW = A("MW", 0); TRI = A("TRI", 4); DE = A("DE", 0); UNR = A("UNR", 1); DQ = A("DQ", 16); DT = A("DT", 3); SPF = A("SPF", 0); WARM = A("WARM", 0); LINE = A("LINE", 128); WB = A("WB", "L")
CS = [int(c, 32) for c in A("CS", "g")]; assert sum(CS) == 16
C0 = A("C0", 7); SP = A("SP", 8); MP = A("MP", 0)
MQ = [int(c) for c in A("MQ", "01123456")]

M2 = [int(c, 16) for c in A("M2", "")] or [2 * x for x in MQ]
M3 = [int(c, 16) for c in A("M3", "")] or M2
CE = C0 + len(CS) - 1 - 8
assert min(M2 + M3) >= 2 * CE + 1 and max(M2) <= 2 * (C0 - 1) and max(M3) <= 12
KN = "standalone__deep_cross_wide_deep__recsys_kernel"
EPOCH = 0x9a80
FLG = 0x1000
IDXP = 0x10000
ISTR = 6 * 16384 + 4096
W1P = 0x340000
WSTR = 34 * 1024
TABP = 0x570000
XG = 0x1000000
PART = 0x600000
STMP = 0xE00000
WS_SZ = 0x2000000
L_STG = 131072; L_XCH = 155648; L_XT = 131072; L_RED = 0

out = []
emit = True
def e(s):
    if emit:
        for l in s.split("\n"): out.append(l)
class Cnt:
    def __init__(self): self.n = 0; self.tag = {}
    def issue(self, tag=None):
        self.n += 1
        if tag is not None: self.tag[tag] = self.n
    def younger(self, tag): return self.n - self.tag[tag]
vm = Cnt()
waits = {}
def wait_vm(site, tag):
    n = vm.younger(tag)
    waits[site] = min(waits.get(site, 99), n)
    e(f"@VM {site}")
def srd(d, lo, nbytes):
    e(f"s_mov_b32 s{d}, s{lo}\ns_mov_b32 s{d+1}, s{lo+1}\ns_mov_b32 s{d+2}, {nbytes:#x}\ns_mov_b32 s{d+3}, 0x20000")
SB = 72
FINE = A("FINE", 0)
def hstamp(i):
    if STAMP and FINE == 3: e(f"s_memtime s[{SB+2*i}:{SB+1+2*i}]")
def gstamp(i):
    if STAMP and FINE == 2: e(f"s_memtime s[{SB+2*i}:{SB+1+2*i}]")
def fstamp(i):
    if STAMP and FINE == 1: e(f"s_memtime s[{SB+2*i}:{SB+1+2*i}]")
def stamp(i):
    if FINE == 1 and 9 <= i <= 12: return
    if FINE in (2, 4, 6, 7) and 1 <= i <= 6: return
    if FINE == 3 and 10 <= i <= 12: return
    if FINE == 5 and (5 <= i <= 12 or i == 1):
        if i == 7: e(f's_memtime s[{SB+2}:{SB+3}]')
        return
    if PROBE == i: e("s_memrealtime s[96:97]")
    if STAMP: e(f"s_memtime s[{SB+2*i}:{SB+1+2*i}]")

e(f"""; Wide & Deep recsys forward, gfx950: per-field projected tables P[f][v] = table[v] @ W1_f built on MFMA into LDS,
; @launch grid=(256,1,1) block=(512,1,1) lds=163840
.amdgcn_target "amdgcn-amd-amdhsa--gfx950"
.text
.globl {KN}
.p2align 8
.type {KN},@function
{KN}:""")

VOFF = 0; SIDX = 1; T0 = 2; T1 = 3; AC = 4
DAT = 8; TAB = 32; ACC = 96; POOL = 128; D0 = 192; D1 = 208; W1 = 224
S_WAVE = 3; S_IDX = 20; S_IDX2 = 21; S_W1 = 22; S_M0A = 23; S_M0B = 24; S_CNT = 25; S_BS = 26; S_CS = 27; S_PID = 28; S_N = 29
S_T = 30; S_U = 31
LANE = 8; L16 = 9
XA = POOL; XF = POOL + 16; XC = POOL + 48; XD = POOL + 16
PLO = "0x05040100"; PHI = "0x07060302"

HOLD = POOL + 32
FLGB = 0x330000
S_FB = 55; S_HP = 54
L_CTR = L_STG + 8192; L_XC2 = L_STG
DELTA = 28800
def piece_lane():
    e(f"v_lshrrev_b32 v10, 2, v{LANE}\nv_and_b32 v11, 1, v{LANE}\nv_and_b32 v12, 2, v{LANE}")
    e("v_lshlrev_b32 v13, 3, v10\nv_lshl_or_b32 v13, v11, 15, v13\nv_lshl_or_b32 v13, v12, 11, v13")
def piece_src(fp0):
    e(f"s_lshr_b32 s{S_T}, s{S_CS}, 2\ns_lshl_b32 s{S_T}, s{S_T}, 16\ns_and_b32 s{S_U}, s{S_CS}, 3\ns_lshl_b32 s{S_U}, s{S_U}, 13\ns_add_u32 s{S_T}, s{S_T}, s{S_U}")
    e(f"s_lshl_b32 s{S_U}, s{S_BS}, 7\ns_add_u32 s{S_T}, s{S_T}, s{S_U}\ns_add_u32 s{S_T}, s{S_T}, {fp0*65536:#x}")
def piece_ld(b):
    for j in range(8): e(f"buffer_load_dwordx2 v[{b+2*j}:{b+2*j+1}], v13, s[16:19], s{S_T} offen offset:{j*512}")
def piece_dst(fp0):
    e(f"v_mul_u32_u24 v18, {WSTR}, v10\nv_and_b32 v10, 3, v{LANE}\nv_lshl_add_u32 v18, v10, 4, v18")
    e(f"s_mul_i32 s70, s{S_BS}, {16*WSTR}\ns_lshr_b32 s{S_T}, s{S_CS}, 2\ns_lshl_b32 s{S_T}, s{S_T}, 10\ns_add_u32 s70, s70, s{S_T}")
    e(f"s_and_b32 s{S_T}, s{S_CS}, 3\ns_lshl_b32 s{S_T}, s{S_T}, 7\ns_add_u32 s70, s70, s{S_T}\ns_add_u32 s70, s70, {W1P + (fp0-16)*1024:#x}")
def piece_perm(src, dst):
    e(f"s_mov_b32 s{S_T}, {PLO}\ns_mov_b32 s{S_U}, {PHI}")
    for cp in range(2):
        for par in range(2):
            r = dst + 8 * cp + 4 * par
            for jj in range(4):
                r0 = src + 4 * jj + cp
                e(f"v_perm_b32 v{r+jj}, v{r0+2}, v{r0}, s{S_U if par else S_T}")
            e(f"buffer_store_dwordx4 v[{r}:{r+3}], v18, s[4:7], s70 offen offset:{par*512+cp*64} sc1")
def tab_dma(vt, count=True):
    e(f"s_add_u32 s{S_T}, s{S_M0A}, {vt*32768}\ns_mov_b32 m0, s{S_T}\ns_nop 0")
    for i in range(4):
        e(f"buffer_load_dwordx4 v{14 + i%2}, s[12:15], s{S_T} offen offset:{i*1024} lds")
        if count: vm.issue(("t", vt))
def xconsts(rowshift):
    e(f"v_lshl_add_u32 v17, v{LANE}, {rowshift}, s{S_T}")
    for t in range(16):
        e(f"v_add_u32 v16, {t}, v{LANE}\nv_and_b32 v{XF+t}, 15, v16\nv_lshl_add_u32 v{XA+t}, v{XF+t}, 2, v17")
    for u in range(8): e(f"v_lshl_or_b32 v{XC+u}, v{XF+2*u+1}, 16, v{XF+2*u}")
def idx_dst():
    e(f"s_lshr_b32 s70, s{S_PID}, 3\ns_mul_i32 s70, s70, {ISTR}\ns_add_u32 s70, s70, {IDXP:#x}")
    e(f"s_bfe_u32 s{S_T}, s{S_PID}, 0x10002\ns_lshl_b32 s{S_T}, s{S_T}, 13\ns_add_u32 s70, s70, s{S_T}")
    e(f"s_and_b32 s{S_T}, s{S_PID}, 3\ns_lshl_b32 s{S_T}, s{S_T}, 8\ns_add_u32 s70, s70, s{S_T}")
    e(f"s_lshl_b32 s{S_T}, s{S_CNT}, 14\ns_add_u32 s70, s70, s{S_T}\ns_add_u32 s71, s70, 16384")
def xform(off, dst, store):
    for t in range(16): e(f"ds_read_b32 v{XD+t}, v{XA+t} offset:{off}")
    for u in range(8):
        e(f"s_waitcnt lgkmcnt({14-2*u})")
        e(f"v_lshl_add_u32 v{XD+2*u}, v{XD+2*u+1}, 16, v{XD+2*u}")
        e(f"v_lshl_add_u32 v{dst+u}, v{XD+2*u}, 4, v{XC+u}")
        if store and u % 4 == 3: e(f"buffer_store_dwordx4 v[{dst+u-3}:{dst+u}], v{VOFF}, s[4:7], s70 offen offset:{(u//4)*128} sc1")
def role_old(tag, f12, f3, f0):
    e(f"s_cmp_eq_u32 s{S_WAVE}, 0\ns_cbranch_scc1 {tag}_w0\ns_cmp_eq_u32 s{S_WAVE}, 3\ns_cbranch_scc1 {tag}_w3")
    f12(); e(f"s_branch {tag}_join\n{tag}_w3:"); f3(); e(f"s_branch {tag}_join\n{tag}_w0:"); f0(); e(f"{tag}_join:")
def xf3():
    e(f"s_mov_b32 s{S_T}, 0x40014000\ns_mov_b32 s{S_U}, 0x40034002")
    e("v_lshl_add_u32 v28, v29, 16, v28\nv_lshl_add_u32 v30, v31, 16, v30")
    e(f"v_lshl_add_u32 v28, v28, 2, s{S_T}\nv_lshl_add_u32 v30, v30, 2, s{S_U}")
    e(f"v_and_b32 v29, 1, v{LANE}\nv_lshlrev_b32 v29, 4, v29\nv_and_b32 v31, 2, v{LANE}\nv_cmp_ne_u32 vcc, 0, v31")
    e("v_alignbit_b32 v28, v28, v28, v29\nv_alignbit_b32 v30, v30, v30, v29")
    e(f"v_cndmask_b32 v{HOLD}, v28, v30, vcc\nv_cndmask_b32 v{HOLD+1}, v30, v28, vcc")
def raw(lo, hi):
    for n in range(lo, hi):
        s_, j = n // 8, n % 8
        e(f"buffer_load_dword v{POOL+n}, v18, s[16:19], s71 offen offset:{j*512}")
        if j == 7 and s_ < 3: e("s_add_u32 s71, s71, 8192")
def voff_ws():
    e(f"s_load_dword s{S_N}, s[54:55], {EPOCH}")
    srd(4, 54, WS_SZ)
    srd(12, 34, 128000)
    e(f"v_and_b32 v16, 28, v{LANE}\nv_lshlrev_b32 v{VOFF}, 8, v16\nv_and_b32 v16, 1, v{LANE}\nv_lshl_or_b32 v{VOFF}, v16, 6, v{VOFF}")
    e(f"v_and_b32 v16, 32, v{LANE}\nv_or_b32 v{VOFF}, v{VOFF}, v16\nv_and_b32 v16, 2, v{LANE}\nv_lshl_or_b32 v{VOFF}, v16, 3, v{VOFF}")
def sloads(): pass
def params():
    e(f"s_lshl_b32 s{S_T}, s{S_CS}, 3")
    e(f"s_load_dwordx2 s[52:53], s[44:45], s{S_T}")
    e(f"s_load_dwordx2 s[58:59], s[46:47], s{S_T}")
    e("s_load_dwordx8 s[60:67], s[38:39], 0")
    e("s_load_dword s68, s[40:41], 0\ns_load_dword s69, s[48:49], 0")
def common():
    e(f"v_lshlrev_b32 v{L16}, 4, v{LANE}")
    e(f"v_lshrrev_b32 v16, 4, v{LANE}\nv_and_b32 v17, 7, v{LANE}\nv_xor_b32 v16, v16, v17\nv_lshlrev_b32 v16, 4, v16")
    e(f"v_lshrrev_b32 v17, 3, v{LANE}\nv_lshl_or_b32 v14, v17, 7, v16\nv_xor_b32 v15, 64, v14")
    e(f"v_bfe_u32 v19, v{LANE}, 2, 2\nv_bfe_u32 v20, v{LANE}, 4, 1\nv_lshlrev_b32 v20, 1, v20\nv_mov_b32 v21, 0x3f80")
    e("v_cmp_eq_u32 vcc, v19, v20\nv_add_u32 v20, 1, v20\ns_nop 0")
    e(f"v_cndmask_b32 v{AC}, 0, v21, vcc\nv_cndmask_b32 v{AC+1}, 0, v21, vcc")
    e(f"v_cmp_eq_u32 vcc, v19, v20\nv_and_b32 v19, 3, v{LANE}\ns_nop 0")
    e(f"v_cndmask_b32 v{AC+2}, 0, v21, vcc\nv_cndmask_b32 v{AC+3}, 0, v21, vcc")
    e(f"v_mul_u32_u24 v{SIDX}, 0x5555, v19")
    e(f"s_and_b32 s{S_U}, s{S_BS}, 1\ns_lshl_b32 s{S_U}, s{S_U}, 13\ns_mul_i32 s{S_W1}, s{S_CS}, {WSTR}\ns_add_u32 s{S_W1}, s{S_W1}, s{S_U}\ns_add_u32 s{S_W1}, s{S_W1}, {W1P:#x}")
    e(f"s_lshl_b32 s{S_U}, s{S_U}, 1\ns_add_u32 s{S_U}, s{S_U}, {IDXP:#x}\ns_lshl_b32 s{S_T}, s{S_BS}, 3\ns_add_u32 s{S_T}, s{S_T}, s{S_WAVE}\ns_mul_i32 s{S_IDX2}, s{S_T}, {ISTR}\ns_add_u32 s{S_IDX2}, s{S_IDX2}, s{S_U}")
    e(f"s_xor_b32 s{S_T}, s{S_T}, 8\ns_mul_i32 s{S_IDX}, s{S_T}, {ISTR}\ns_add_u32 s{S_IDX}, s{S_IDX}, s{S_U}")
    e(f"s_add_u32 s{S_M0B}, s{S_M0A}, {65536-DELTA}")
    e(f"s_lshl_b32 s{S_U}, s{S_WAVE}, 3\nv_and_b32 v13, 7, v{LANE}\nv_add_u32 v10, s{S_U}, v13")
    e(f"s_and_b32 s{S_U}, s{S_WAVE}, 3\ns_and_b32 s{S_T}, s{S_BS}, 1\ns_lshl_b32 s{S_T}, s{S_T}, 5\ns_add_u32 s{S_U}, s{S_U}, s{S_T}\nv_lshl_add_u32 v11, v13, 2, s{S_U}\nv_lshrrev_b32 v13, 3, v{LANE}\nv_cmp_eq_u32 vcc, 1, v13\ns_nop 1\nv_cndmask_b32 v10, v10, v11, vcc")
    e(f"s_lshr_b32 s{S_T}, s{S_CS}, 4\nv_mov_b32 v11, s{S_T}\nv_mov_b32 v16, s{S_BS}\nv_cmp_eq_u32 vcc, 0, v13\ns_nop 1\nv_cndmask_b32 v11, v11, v16, vcc")
    e(f"v_xor_b32 v16, 1, v16\nv_cmp_eq_u32 vcc, 2, v13\ns_nop 1\nv_cndmask_b32 v11, v11, v16, vcc\nv_lshl_add_u32 v10, v11, 6, v10\nv_lshlrev_b32 v19, 7, v10")
    e(f"v_and_b32 v10, 24, v{LANE}\nv_and_b32 v11, 3, v{LANE}\nv_lshl_add_u32 v10, v11, 1, v10\nv_bfe_u32 v12, v{LANE}, 2, 1\nv_add_u32 v10, v10, v12\nv_lshlrev_b32 v10, 7, v10")
    e(f"v_bfe_u32 v12, v{LANE}, 3, 1\nv_lshl_or_b32 v11, v12, 2, v11\nv_lshrrev_b32 v12, 5, v{LANE}\nv_xor_b32 v11, v11, v12\nv_lshl_or_b32 v10, v11, 4, v10")
    e(f"v_add_u32 v20, s{S_M0A}, v10\nv_add_u32 v12, {L_XCH}, v{L16}")
    for s_ in range(1, 4): e(f"v_xor_b32 v{20+s_}, {s_*32}, v20")
    e(f"v_add_u32 v16, {L_XC2}, v{L16}\ns_lshl_b32 s{S_U}, s{S_WAVE}, 10\nv_add_u32 v17, s{S_U}, v16")
def common_b():
    e(f"s_not_b32 s{S_N}, s{S_N}")
def tab_rd(vt):
    if STAMP and FINE == 5: e(f"s_memtime s[{SB+10+4*vt}:{SB+11+4*vt}]")
    wait_vm(("td", vt), ("t", vt))
    if STAMP and FINE == 5: e(f"s_memtime s[{SB+12+4*vt}:{SB+13+4*vt}]")
    if vt == 2:
        for s in range(4): e(f"v_add_u32 v{20+s}, 0x10000, v{20+s}")
    for s in range(4):
        r = TAB + 16 * vt + 4 * s
        e(f"ds_read_b128 v[{r}:{r+3}], v{20+s} offset:{(vt%2)*32768}")
def ldw(i):
    e(f"buffer_load_dwordx4 v[{W1+4*i}:{W1+4*i+3}], v{VOFF}, s[4:7], s{S_W1} offen offset:{i*128} sc1")
    vm.issue(("w", i))
def ldi(reg, k, tag):
    e(f"buffer_load_dwordx4 v[{reg}:{reg+3}], v{VOFF}, s[4:7], s{S_IDX if k < 8 else S_IDX2} offen offset:{(k%8)*128} sc1")
    vm.issue(tag)
def mf(vt, i, base=D0):
    s, par = i // 2, i % 2
    d = base + 16 * par
    c = "0" if s == 0 else f"v[{d}:{d+15}]"
    e(f"v_mfma_f32_32x32x16_bf16 v[{d}:{d+15}], v[{TAB+16*vt+4*s}:{TAB+16*vt+4*s+3}], v[{W1+16*par+4*s}:{W1+16*par+4*s+3}], {c}")
def frag_of(i): return (i % 2) * 4 + i // 2
def cvt(dst, r, base=D0): e(f"v_cvt_pk_bf16_f32 v{dst}, v{base+r}, v{base+16+r}")
def wr(src, vt, r):
    off = (vt % 2) * 32768 + r * 256 + (DELTA if vt >= 2 else 0)
    e(f"ds_write_addtid_b32 v{src} offset:{off}")
SD = "dst_sel:DWORD dst_unused:UNUSED_PAD src0_sel:DWORD"
def unpack(w0):
    e(f"v_lshlrev_b32_sdwa v{T0}, 3, v{w0} {SD} src1_sel:WORD_1")
    e(f"v_lshlrev_b32_sdwa v{w0}, 3, v{w0} {SD} src1_sel:WORD_0")
    e(f"v_lshlrev_b32_sdwa v{T1}, 3, v{w0+1} {SD} src1_sel:WORD_1")
    e(f"v_lshlrev_b32_sdwa v{w0+1}, 3, v{w0+1} {SD} src1_sel:WORD_0")
def reads(w0, slot):
    d = DAT + 8 * slot
    for i, a in enumerate((w0, T0, w0 + 1, T1)):
        e(f"ds_read_b64 v[{d+2*i}:{d+2*i+1}], v{a}")
def smf(g, slot):
    d = DAT + 8 * slot; a = ACC + 4 * g
    e(f"v_smfmac_f32_16x16x64_bf16 v[{a}:{a+3}], v[{AC}:{AC+3}], v[{d}:{d+7}], v{SIDX}")
def cpf_code(dst):
    e(f"s_getpc_b64 s[70:71]\ncpf_base:\ns_lshr_b32 s{S_U}, s2, 3\ns_mul_i32 s{S_U}, s{S_U}, {CPL*128}\nv_min_u32 v2, {CPL-1}, v{LANE}\nv_lshl_add_u32 v2, v2, 7, s{S_U}\nv_min_u32 v2, done-cpf_base, v2\nv_mov_b32 v3, s71")
    e("v_add_co_u32 v2, vcc, s70, v2\ns_nop 1\nv_addc_co_u32 v3, vcc, 0, v3, vcc")
    e(f"global_load_dword v{dst}, v[2:3], off")
def poll_issue():
    if CPF == 2:
        e(f"s_cmp_lg_u32 s{S_WAVE}, 7\ns_cbranch_scc1 1f")
        cpf_code(11)
        e("1:")
    stamp(5)
    e(f"s_mov_b32 s{S_T}, {FLG:#x}")
    e(f"buffer_load_dword v10, v19, s[4:7], s{S_T} offen sc1"); vm.issue("poll")
def poll_check():
    e(f"s_mov_b32 s{S_CNT}, 0\ns_mov_b32 s{S_T}, {FLG:#x}")
    wait_vm("pollw", "poll")
    e("poll1:")
    e(f"v_cmp_ne_u32 vcc, s{S_N}, v10\ns_cbranch_vccz poll1_done")
    e(f"s_sleep 8\nbuffer_load_dword v10, v19, s[4:7], s{S_T} offen sc1")
    e(f"s_add_u32 s{S_CNT}, s{S_CNT}, 1\ns_waitcnt vmcnt(0)\ns_cmp_lt_u32 s{S_CNT}, 0x40000\ns_cbranch_scc1 poll1")
    e("poll1_done:")
    stamp(6)
    e(f"s_lshl_b32 s{S_T}, s{S_WAVE}, 7\ns_add_u32 s{S_T}, s{S_T}, s{S_W1}")
    e(f"buffer_load_dwordx4 v[24:27], v{VOFF}, s[4:7], s{S_T} offen sc1"); vm.issue("w1x")
    for i in range(8): vm.tag[("w", i)] = vm.n
    for k in range(KA): ldi(POOL + 4 * k, k, ("i", k))

e("s_cmp_ge_u32 s2, 256\ns_cbranch_scc1 done")
e("s_load_dwordx16 s[32:47], s[0:1], 0")
e("s_load_dwordx8 s[48:55], s[0:1], 64")
if STAMP: e(f"s_memtime s[{SB}:{SB+1}]")
if STAMP or FIX: e("s_memrealtime s[100:101]")
e(f"v_lshrrev_b32 v1, 6, v0\nv_and_b32 v{LANE}, 63, v0")
e(f"v_readfirstlane_b32 s{S_WAVE}, v1")
if XMAP == 3:
    e(f"s_bfe_u32 s{S_BS}, s2, 0x10002\ns_lshl_b32 s{S_BS}, s{S_BS}, 1\ns_bfe_u32 s{S_T}, s2, 0x10003\ns_add_u32 s{S_BS}, s{S_BS}, s{S_T}\ns_and_b32 s{S_CS}, s2, 3\ns_lshl_b32 s{S_CS}, s{S_CS}, 4\ns_lshr_b32 s{S_T}, s2, 4\ns_add_u32 s{S_CS}, s{S_CS}, s{S_T}")
elif XMAP == 2:
    e(f"s_and_b32 s{S_BS}, s2, 3\ns_and_b32 s{S_CS}, s2, 4\ns_lshl_b32 s{S_CS}, s{S_CS}, 3\ns_lshr_b32 s{S_T}, s2, 3\ns_add_u32 s{S_CS}, s{S_CS}, s{S_T}")
elif XMAP:
    e(f"s_bfe_u32 s{S_BS}, s2, 0x20002\ns_and_b32 s{S_CS}, s2, 3\ns_lshl_b32 s{S_CS}, s{S_CS}, 4\ns_lshr_b32 s{S_T}, s2, 4\ns_add_u32 s{S_CS}, s{S_CS}, s{S_T}")
else:
    e(f"s_and_b32 s{S_BS}, s2, 3\ns_lshr_b32 s{S_CS}, s2, 2")
e(f"s_lshl_b32 s{S_PID}, s{S_BS}, 6\ns_add_u32 s{S_PID}, s{S_PID}, s{S_CS}")
e(f"s_lshl_b32 s{S_M0A}, s{S_WAVE}, 12\nv_mov_b32 v18, 0\nv_mov_b32 v14, 0\nv_mov_b32 v15, 0\nv_mov_b32 v19, 0\ns_mul_i32 s71, s{S_PID}, 25600")
e("s_mov_b32 s10, 0x640000\ns_mov_b32 s11, 0x20000\ns_mov_b32 s18, 0x320000\ns_mov_b32 s19, 0x20000")
e(f"s_cmp_lt_u32 s{S_WAVE}, 4\ns_cbranch_scc1 a_old")
e(f"s_cmp_eq_u32 s{S_WAVE}, 7\ns_cbranch_scc1 a_w7\ns_cmp_eq_u32 s{S_WAVE}, 6\ns_cbranch_scc1 a_pc")
e(f"s_setprio 3\ns_sub_u32 s{S_CNT}, s{S_WAVE}, 4")
e(f"v_lshrrev_b32 v10, 2, v{LANE}\nv_mul_u32_u24 v10, 400, v10\nv_and_b32 v11, 3, v{LANE}\nv_lshl_add_u32 v10, v11, 4, v10")
e(f"s_lshl_b32 s{S_T}, s{S_CNT}, 6\ns_add_u32 s{S_T}, s{S_T}, s71")
e(f"s_lshl_b32 s{S_U}, s{S_CNT}, 12\ns_add_u32 s{S_U}, s{S_U}, {L_STG}\ns_mov_b32 m0, s{S_U}\nv_lshl_add_u32 v17, v{LANE}, 6, s{S_U}")
e("s_waitcnt lgkmcnt(0)\ns_mov_b32 s8, s32\ns_mov_b32 s9, s33")
for i in range(4):
    e(f"buffer_load_dwordx4 v10, s[8:11], s{S_T} offen lds")
    if i < 3: e(f"s_add_u32 m0, m0, 1024\ns_add_u32 s{S_T}, s{S_T}, 6400")
e("s_barrier\ns_branch b_x")
e("a_pc:\ns_setprio 3")
piece_lane(); piece_src(16)
e(f"s_waitcnt lgkmcnt(0)\ns_mov_b32 s16, s42\ns_mov_b32 s17, s43")
hstamp(10)
if not A("NOP", 0): piece_ld(POOL)
hstamp(11)
e("s_barrier")
hstamp(12)
e("s_branch b_pc")
e("a_old:")
e(f"v_mov_b32 v10, {L_CTR}\nds_write_b64 v10, v[18:19]")
if PFW:
    if XMAP >= 2: e(f"v_lshlrev_b32 v16, 9, v{LANE}\ns_and_b32 s{S_U}, s{S_CS}, 15\ns_lshl_b32 s{S_U}, s{S_U}, 15\ns_lshl_b32 s{S_T}, s{S_CS}, 3\ns_add_u32 s{S_U}, s{S_U}, s{S_T}")
    else: e(f"v_and_b32 v16, 31, v{LANE}\nv_lshlrev_b32 v16, 9, v16\ns_lshr_b32 s{S_U}, s2, 3\ns_lshl_b32 s{S_U}, s{S_U}, 14\ns_lshl_b32 s{S_T}, s{S_CS}, 3\ns_add_u32 s{S_U}, s{S_U}, s{S_T}")
e(f"s_and_b32 s{S_T}, s{S_BS}, 1\ns_lshl_b32 s{S_T}, s{S_T}, 19\ns_add_u32 s{S_U}, s{S_U}, s{S_T}\ns_waitcnt lgkmcnt(0)")
TCH = A("TCH", 1)
def touch():
    e(f"s_cmp_lg_u32 s{S_WAVE}, 2\ns_cbranch_scc1 1f")
    srd(4, 54, WS_SZ)
    e(f"v_lshlrev_b32 v17, {A('TSH', 19)}, v{LANE}\nbuffer_load_dword v{D0}, v17, s[4:7], 0 offen offset:3968")
    if A("TOUT", 1):
        srd(12, 50, 32768)
        e(f"buffer_load_dword v{D0}, off, s[12:15], 0")
    if A("TPAR", 0):
        for b in (36, 38, 40, 44, 46, 48): e(f"global_load_ushort v{D0}, v18, s[{b}:{b+1}]")
    e("1:")
if TCH == 1: touch()
if PFW == 2: e("s_barrier")
if TCH == 2: touch()
if PFW:
    e(f"s_mov_b32 s16, s42\ns_mov_b32 s17, s43\ns_cmp_lg_u32 s{S_WAVE}, 3\ns_cbranch_scc1 1f\nbuffer_load_dword v{D0}, v16, s[16:19], s{S_U} offen\n1:")
if PFW != 2: e("s_barrier")
e("s_branch c_all")
e("a_w7:")
if CPF == 1: cpf_code(D0)
e("s_setprio 2\ns_barrier")
e(f"v_bfe_u32 v16, v{LANE}, 1, 4\nv_lshlrev_b32 v18, 15, v16\nv_lshrrev_b32 v16, 5, v{LANE}\nv_lshl_or_b32 v18, v16, 12, v18\nv_and_b32 v16, 1, v{LANE}\nv_lshl_or_b32 v18, v16, 2, v18")
e(f"v_and_b32 v16, 31, v{LANE}\nv_lshlrev_b32 v16, 7, v16\ns_lshr_b32 s{S_U}, s2, 3\ns_lshl_b32 s{S_U}, s{S_U}, 12")
e(f"s_lshl_b32 s71, s{S_CS}, 3\ns_and_b32 s{S_T}, s{S_BS}, 1\ns_lshl_b32 s{S_T}, s{S_T}, 19\ns_add_u32 s71, s71, s{S_T}")
e("s_waitcnt lgkmcnt(0)\ns_mov_b32 s16, s42\ns_mov_b32 s17, s43")
srd(12, 34, 128000)
e(f"buffer_load_dword v{D0}, v16, s[12:15], s{S_U} offen")
raw(0, R1)
e("s_branch c_all")
e("b_x:")
voff_ws()
e(f"v_and_b32 v16, 15, v{LANE}\nv_lshl_add_u32 v{XA}, v16, 2, v17\nv_xor_b32 v17, 1, v16\nv_lshl_or_b32 v{XC}, v17, 16, v16")
for t in range(1, 16): e(f"v_xor_b32 v{XA+t}, {4*t}, v{XA}")
for u in range(1, 8): e(f"v_xor_b32 v{XC+u}, {2*u*0x10001:#x}, v{XC}")
idx_dst()
e("s_waitcnt vmcnt(0)")
stamp(1)
xform(0, HOLD, True)
e("s_barrier\ns_branch c_all2")
e("b_pc:")
voff_ws()
piece_dst(16)
e("s_waitcnt vmcnt(0)")
stamp(1)
piece_perm(POOL, HOLD)
e("s_barrier\ns_branch c_all2")
e("c_all:")
voff_ws()
e("c_all2:")
if PROBE == 13: e("s_memrealtime s[96:97]")
sloads(); common()
e(f"s_cmp_eq_u32 s{S_WAVE}, 7\ns_cbranch_scc1 d_w7\ns_cmp_lt_u32 s{S_WAVE}, 4\ns_cbranch_scc1 d_old")
if PROBE == 14: e("s_memrealtime s[96:97]")
if OD < 0: e("s_barrier")
if PROBE == 15: e("s_memrealtime s[96:97]")
e(f"v_mov_b32 v10, {L_CTR}\nv_mov_b32 v11, 1\ns_mov_b64 exec, 1\ns_waitcnt vmcnt(0)")
e("ds_add_rtn_u32 v13, v10, v11")
e(f"s_lshl_b32 s{S_T}, s{S_PID}, 7\ns_add_u32 s{S_T}, s{S_T}, {FLG:#x}\nv_mov_b32 v10, 0\ns_waitcnt lgkmcnt(0)")
e(f"v_readfirstlane_b32 s{S_U}, v13\nv_not_b32 v11, s{S_N}\ns_cmp_lg_u32 s{S_U}, 2\ns_cbranch_scc1 b_nosig")
e(f"buffer_store_dword v11, v10, s[4:7], s{S_T} offen sc1")
e("b_nosig:\ns_mov_b64 exec, -1\ns_setprio 0\ns_branch e_join")
e("d_w7:")
stamp(1)
e("s_mov_b32 s16, s42\ns_mov_b32 s17, s43\ns_barrier")
raw(R1, 32)
for vt in range(W7T): tab_dma(vt, False)
if OD < 0: e("s_barrier")
for vt in range(W7T, PRE - W7A): tab_dma(vt, False)
e(f"s_mov_b32 s{S_T}, {PLO}\ns_mov_b32 s{S_U}, {PHI}")
for s in range(4):
    e(f"s_waitcnt vmcnt({24-8*s+4*(PRE-W7A)})")
    for jj in range(4):
        r0 = POOL + 8 * s + 2 * jj
        e(f"v_perm_b32 v{POOL+32+8*s+jj}, v{r0+1}, v{r0}, s{S_T}")
        e(f"v_perm_b32 v{POOL+36+8*s+jj}, v{r0+1}, v{r0}, s{S_U}")
    e(f"ds_write_b128 v12, v[{POOL+32+8*s}:{POOL+35+8*s}] offset:{s*1024}")
    e(f"ds_write_b128 v12, v[{POOL+36+8*s}:{POOL+39+8*s}] offset:{4096+s*1024}")
if SPIN: e(f"v_mov_b32 v10, {L_CTR}\nv_mov_b32 v11, 1\nds_write_b32 v10, v11 offset:4")
stamp(2)
for vt in range(W7A): tab_dma(vt, False)
e("s_branch b_all")
e("d_old:")
stamp(1)
e("s_barrier")
def warm(tag, nseg, w0):
    if not WARM: return
    e("s_mov_b64 exec, 0")
    for k in range(nseg - 1): e(f"s_cmp_eq_u32 s{S_WAVE}, {w0+k}\ns_cbranch_scc1 @SEG_{tag}_{k}")
    e(f"s_branch @SEG_{tag}_{nseg-1}")
    e(f"warm_ret_{tag}:\ns_mov_b64 exec, -1")
if OD > 0: e(f"s_sleep {OD}")
if OD < 0: e("s_barrier")
e("e_join:")
stamp(2)
for vt in range(PRE): tab_dma(vt)
e("s_setprio 0")
warm("B", 7, 0)
e("b_all:")
if SPIN:
    e(f"s_setprio 0\nv_mov_b32 v10, {L_CTR}\ns_mov_b32 s{S_T}, 0")
    e(f"spin1:\nds_read_b32 v11, v10 offset:4\ns_add_u32 s{S_T}, s{S_T}, 1\ns_waitcnt lgkmcnt(0)\ns_cmp_gt_u32 s{S_T}, 0x1000000\ns_cbranch_scc1 1f")
    e("v_cmp_eq_u32 vcc, 0, v11\ns_cbranch_vccnz spin1\n1:")
else: e("s_setprio 0\ns_waitcnt lgkmcnt(0)\ns_barrier")
pass
stamp(3)
for i in range(8): e(f"ds_read_b128 v[{W1+4*i}:{W1+4*i+3}], v12 offset:{i*1024}")
if PI == -1: poll_issue()
common_b()
if PRE < 4: tab_dma(PRE)
tab_rd(0)
stamp(4)
L_PC = L_XCH; L_EX = 128000 + 64; L_HC = 128000; L_TB = L_XC2
ACCB = TAB; TABH = TAB + 32
def lane_to(r): e(f"v_mbcnt_lo_u32_b32 v{r}, -1, 0\nv_mbcnt_hi_u32_b32 v{r}, -1, v{r}")
DA = D0
def dl12():
    e(f"v_lshrrev_b32 v{DA+1}, 3, v{DA}\nv_mul_u32_u24 v{DA+1}, 400, v{DA+1}\nv_and_b32 v{DA}, 7, v{DA}\nv_lshl_add_u32 v{DA}, v{DA}, 4, v{DA+1}")
    e(f"s_lshl_b32 s{S_T}, s{S_WAVE}, 7\ns_add_u32 s{S_T}, s{S_T}, s71")
    e(f"s_lshl_b32 s{S_U}, s{S_WAVE}, 13\ns_add_u32 m0, s{S_U}, {L_STG}\ns_nop 0")
    for i in range(8):
        e(f"buffer_load_dwordx4 v{DA}, s[8:11], s{S_T} offen lds")
        if i < 7: e(f"s_add_u32 m0, m0, 1024\ns_add_u32 s{S_T}, s{S_T}, 3200")
def dlp(fp0, lds):
    e(f"v_lshrrev_b32 v{DA+1}, 3, v{DA}\nv_and_b32 v{DA}, 7, v{DA}\nv_lshlrev_b32 v{DA}, 4, v{DA}\nv_lshl_or_b32 v{DA}, v{DA+1}, 9, v{DA}")
    piece_src(fp0)
    e(f"s_mov_b32 m0, {lds}\ns_nop 0")
    for i in range(4):
        e(f"buffer_load_dwordx4 v{DA}, s[16:19], s{S_T} offen lds")
        if i < 3: e(f"s_add_u32 m0, m0, 1024\ns_add_u32 s{S_T}, s{S_T}, {(4096, 28672, 4096)[i]}")
def dl3():
    e(f"v_mul_u32_u24 v{DA+2}, 400, v{DA}\ns_add_u32 s{S_T}, s71, 384\ns_mov_b32 m0, {L_EX}\ns_nop 0\nbuffer_load_dwordx4 v{DA+2}, s[8:11], s{S_T} offen lds")
    dlp(48, L_PC + 4096)
def dl0():
    e(f"v_and_b32 v{DA+1}, 24, v{DA}\nv_and_b32 v{DA+2}, 3, v{DA}\nv_lshl_add_u32 v{DA+1}, v{DA+2}, 1, v{DA+1}\nv_bfe_u32 v{DA+2}, v{DA}, 2, 1\nv_add_u32 v{DA+1}, v{DA+1}, v{DA+2}\nv_lshlrev_b32 v{DA+1}, 7, v{DA+1}\nv_lshrrev_b32 v{DA+2}, 5, v{DA}\nv_lshl_add_u32 v{DA+2}, v{DA+2}, 4, v{DA+1}")
    e(f"s_lshr_b32 s{S_T}, s{S_CS}, 3\ns_lshl_b32 s{S_T}, s{S_T}, 12\ns_bfe_u32 s{S_U}, s{S_CS}, 0x10002\ns_lshl_b32 s{S_U}, s{S_U}, 15\ns_add_u32 s{S_T}, s{S_T}, s{S_U}\ns_and_b32 s{S_U}, s{S_CS}, 3\ns_lshl_b32 s{S_U}, s{S_U}, 5\ns_mov_b32 m0, {L_TB}\ns_add_u32 s{S_T}, s{S_T}, s{S_U}")
    e(f"buffer_load_dwordx4 v{DA+2}, s[12:15], s{S_T} offen lds")
    srd(8, 36, 16384 * 26)
    e(f"s_lshr_b32 s{S_T}, s{S_PID}, 2\ns_lshl_b32 s{S_T}, s{S_T}, 8\ns_and_b32 s{S_U}, s{S_PID}, 3\ns_lshl_b32 s{S_U}, s{S_U}, 4\ns_add_u32 s{S_T}, s{S_T}, s{S_U}\ns_mul_i32 s{S_T}, s{S_T}, 26\ns_mov_b32 m0, {L_TB+1024}")
    e(f"v_lshrrev_b32 v{DA+1}, 4, v{DA}\nv_mul_u32_u24 v{DA+1}, 1664, v{DA+1}\nv_and_b32 v{DA+2}, 15, v{DA}\nv_mul_u32_u24 v{DA+2}, 28, v{DA+2}\nv_add_u32 v{DA+2}, v{DA+2}, v{DA+1}")
    e(f"buffer_load_dword v{DA+2}, s[8:11], s{S_T} offen lds")
    dlp(32, L_PC)
O0 = O1 = ACCB + 16; U0 = ACCB + 24; U1 = ACCB + 25; DD = ACCB
def dx12():
    e(f"s_lshl_b32 s{S_CNT}, s{S_WAVE}, 1")
    idx_dst()
    e(f"s_lshl_b32 s{S_U}, s{S_WAVE}, 13\ns_add_u32 s{S_U}, s{S_U}, {L_STG}")
    e(f"v_and_b32 v{U1}, 15, v{U0}\nv_lshl_add_u32 v{U0}, v{U0}, 7, s{S_U}\nv_lshl_add_u32 v{U0}, v{U1}, 2, v{U0}\nv_xor_b32 v{O0}, 1, v{U1}\nv_lshl_or_b32 v{U1}, v{O0}, 16, v{U1}")
    for h, o in ((0, O0), (1, O1)):
        for t in range(16): e(f"v_xor_b32 v{DD+t}, {4*t}, v{U0}\nds_read_b32 v{DD+t}, v{DD+t} offset:{64*h}")
        for u in range(8):
            e(f"v_xor_b32 v{o+u}, {2*u*0x10001:#x}, v{U1}\ns_waitcnt lgkmcnt({14-2*u})")
            e(f"v_lshl_add_u32 v{DD+2*u}, v{DD+2*u+1}, 16, v{DD+2*u}")
            e(f"v_lshl_add_u32 v{o+u}, v{DD+2*u}, 4, v{o+u}")
            if u % 4 == 3: e(f"buffer_store_dwordx4 v[{o+u-3}:{o+u}], v{VOFF}, s[4:7], s{70+h} offen offset:{(u//4)*128} sc1")
def dxp(fp0, lds):
    e(f"v_lshrrev_b32 v{O0}, 2, v{U0}\nv_and_b32 v{O0+1}, 1, v{U0}\nv_and_b32 v{O0+2}, 2, v{U0}\nv_lshlrev_b32 v{U1}, 3, v{O0}\nv_lshl_or_b32 v{U1}, v{O0+1}, 11, v{U1}\nv_lshl_or_b32 v{U1}, v{O0+2}, 9, v{U1}\nv_add_u32 v{U1}, {lds}, v{U1}")
    for j in range(8): e(f"ds_read_b64 v[{DD+2*j}:{DD+2*j+1}], v{U1} offset:{j*128}")
    e(f"v_mul_u32_u24 v{O0}, {WSTR}, v{O0}\nv_and_b32 v{U0}, 3, v{U0}\nv_lshl_add_u32 v{U0}, v{U0}, 4, v{O0}")
    e(f"s_mul_i32 s70, s{S_BS}, {16*WSTR}\ns_lshr_b32 s{S_T}, s{S_CS}, 2\ns_lshl_b32 s{S_T}, s{S_T}, 10\ns_add_u32 s70, s70, s{S_T}")
    e(f"s_and_b32 s{S_T}, s{S_CS}, 3\ns_lshl_b32 s{S_T}, s{S_T}, 7\ns_add_u32 s70, s70, s{S_T}\ns_add_u32 s70, s70, {W1P + (fp0-16)*1024:#x}")
    e(f"s_mov_b32 s{S_T}, {PLO}\ns_mov_b32 s{S_U}, {PHI}\ns_waitcnt lgkmcnt(0)")
    for cp in range(2):
        for par in range(2):
            r = (O0, O1)[cp] + 4 * par
            for jj in range(4):
                r0 = DD + 4 * jj + cp
                e(f"v_perm_b32 v{r+jj}, v{r0+2}, v{r0}, s{S_U if par else S_T}")
            e(f"buffer_store_dwordx4 v[{r}:{r+3}], v{U0}, s[4:7], s70 offen offset:{par*512+cp*64} sc1")
def dx3():
    a = DD
    e(f"v_lshlrev_b32 v{U1}, 4, v{U0}\nv_add_u32 v{U1}, {L_EX}, v{U1}\nds_read_b128 v[{a}:{a+3}], v{U1}")
    e(f"s_lshr_b32 s70, s{S_PID}, 3\ns_mul_i32 s70, s70, {ISTR}\ns_add_u32 s70, s70, {IDXP + 6*16384:#x}")
    e(f"s_and_b32 s{S_T}, s{S_PID}, 7\ns_lshl_b32 s{S_T}, s{S_T}, 9\ns_add_u32 s70, s70, s{S_T}")
    e(f"v_and_b32 v{U1}, 31, v{U0}\nv_lshlrev_b32 v{U1}, 4, v{U1}\nv_lshrrev_b32 v{a+4}, 5, v{U0}\nv_lshl_or_b32 v{U1}, v{a+4}, 3, v{U1}")
    e(f"s_mov_b32 s{S_T}, 0x40014000\ns_mov_b32 s{S_U}, 0x40034002\ns_waitcnt lgkmcnt(0)")
    e(f"v_lshl_add_u32 v{a}, v{a+1}, 16, v{a}\nv_lshl_add_u32 v{a+2}, v{a+3}, 16, v{a+2}")
    e(f"v_lshl_add_u32 v{a}, v{a}, 2, s{S_T}\nv_lshl_add_u32 v{a+2}, v{a+2}, 2, s{S_U}")
    e(f"v_and_b32 v{a+1}, 1, v{U0}\nv_lshlrev_b32 v{a+1}, 4, v{a+1}\nv_and_b32 v{a+3}, 2, v{U0}\nv_cmp_ne_u32 vcc, 0, v{a+3}")
    e(f"v_alignbit_b32 v{a}, v{a}, v{a}, v{a+1}\nv_alignbit_b32 v{a+2}, v{a+2}, v{a+2}, v{a+1}")
    e(f"v_cndmask_b32 v{O1+6}, v{a}, v{a+2}, vcc\nv_cndmask_b32 v{O1+7}, v{a+2}, v{a}, vcc")
    e(f"buffer_store_dwordx2 v[{O1+6}:{O1+7}], v{U1}, s[4:7], s70 offen sc1")
    e(f"s_cmp_ge_u32 s{S_CS}, 8\ns_cbranch_scc1 g_join")
    dxp(48, L_PC + 4096)
def dx0():
    e(f"v_lshlrev_b32 v{U1}, 4, v{U0}\nv_add_u32 v{U1}, {L_TB}, v{U1}\nds_read_b128 v[{ACCB+28}:{ACCB+31}], v{U1}")
    e(f"s_lshl_b32 s70, s{S_BS}, 17\ns_lshr_b32 s{S_T}, s{S_CS}, 3\ns_lshl_b32 s{S_T}, s{S_T}, 14\ns_add_u32 s70, s70, s{S_T}\ns_and_b32 s{S_T}, s{S_CS}, 7\ns_lshl_b32 s{S_T}, s{S_T}, 7\ns_add_u32 s70, s70, s{S_T}\ns_add_u32 s70, s70, {TABP:#x}\ns_add_u32 s71, s70, 8192\ns_waitcnt lgkmcnt(0)")
    e(f"buffer_store_dwordx4 v[{ACCB+28}:{ACCB+31}], v{VOFF}, s[4:7], s70 offen sc1")
    dxp(32, L_PC)
DB = [ACC, D0, ACC, D0]
PK = [HOLD, HOLD + 16, ACC, D0]
WQ = [0] + [int(c) for c in A("WQ", "033")] + [2]
BU = A("BU", 0)
pend = []; m0cur = [None]; lds_after = [0]
def flush(n):
    for _ in range(n):
        if not pend: return
        t, r = pend.pop(0)
        want = S_M0A if t < 2 else S_M0B
        if m0cur[0] != want: e(f"s_mov_b32 m0, s{want}\ns_nop 0"); m0cur[0] = want
        wr(PK[t] + r, t, r); lds_after[0] += 1
        g = 16 * t + r - 34
        if 0 <= g < 16: e(f"v_mov_b32 v{ACC+g}, 0")
for vt in range(5):
    m0cur[0] = None
    if vt < 4: e(f"s_waitcnt lgkmcnt({min(lds_after[0], 15)})")
    b = DB[vt - 1]
    for i in range(9):
        if vt < 4 and i < 8: mf(vt, i, base=DB[vt])
        if 0 < vt < 4 and i == 0: e("s_nop 10")
        new = []
        if vt > 0 and i < 8:
            for r in (2 * i, 2 * i + 1):
                cvt(PK[vt - 1] + r, r, b); new.append((vt - 1, r))
                if vt == 3: e(f"v_mov_b32 v{ACC+16+r}, 0")
        if BU and vt < 4: flush(8 * WQ[vt] if i == 8 else 0)
        else: flush(WQ[vt] if (vt, i) != (4, 8) else 99)
        pend += new
        if i == TRI and vt < 3: tab_rd(vt + 1); lds_after[0] = 0
    if not DE and PRE + 1 + vt < 4: tab_dma(PRE + 1 + vt)
    if vt == PI: poll_issue()
    if vt == PI + 1: poll_check()
    if vt == KT:
        assert KT >= PI + 1
        for k in range(KA, KPRE): ldi(POOL + 4 * k, k, ("i", k))
    if vt == (3 if B2 else 4):
        fstamp(9)
        wait_vm("w1xw", "w1x")
        fstamp(10)
        e("ds_write_b128 v17, v[24:27]")
        if B2:
            e("s_waitcnt lgkmcnt(0)\ns_barrier")
            fstamp(11)
            for i in range(8): e(f"ds_read_b128 v[{W1+4*i}:{W1+4*i+3}], v16 offset:{i*1024}")
e(f"s_cmp_lg_u32 s{S_WAVE}, 7\ns_cbranch_scc1 1f\nv_mov_b32 v10, {L_HC}\nv_mov_b32 v11, 0\nds_write_b32 v10, v11\n1:")
fstamp(12)
wait_vm("p0i", ("i", 1))
unpack(POOL)
e(f"s_mov_b32 s{S_CNT}, 3")
e("s_waitcnt lgkmcnt(0)\ns_barrier")
if not B2:
    for i in range(8): e(f"ds_read_b128 v[{W1+4*i}:{W1+4*i+3}], v16 offset:{i*1024}")
e("@ENDREGION")
if not B2: e("s_waitcnt lgkmcnt(0)")
stamp(7)
if STAMP == 1: e(f"s_waitcnt lgkmcnt(0)\ns_mov_b32 s40, s{SB+14}\ns_mov_b32 s42, s{SB+14}\ns_mov_b32 s44, 0\ns_mov_b32 s45, 0\ns_mov_b32 s46, 0")

assert B2
a_, b_, c_, d_ = POOL, POOL + 16, POOL + 32, POOL + 48
def g4(*bases): return [b + 4 * i for b in bases for i in range(4)]
WG = [W1 + 4 * frag_of(i) for i in range(8)]
GRP = [g4(a_, b_, c_, d_), g4(d_) + WG + g4(D1), g4(d_, b_, c_, a_), g4(d_, b_, c_, a_), g4(a_, b_, c_, d_), g4(a_, b_, c_, d_)]
for k in range(KPRE): vm.tag[("i", 0, k)] = vm.tag[("i", k)]
def ld(reg, base, off, tag, extra=""):
    e(f"s_add_u32 s{S_T}, s{base}, {off & ~1023}\nbuffer_load_dwordx4 v[{reg}:{reg+3}], v{VOFF}, s[4:7], s{S_T} offen offset:{off & 1023} sc1")
    vm.issue(tag)
def L(h, k): return lambda: ld(GRP[h][k], S_IDX2 if h % 2 else S_IDX, (h // 2) * 32768 + (k // 8) * 8192 + (k % 8) * 128, ("i", h, k))
def LW(i, off): return lambda: ld(W1 + 4 * i, S_W1, off + i * 128, ("w", i))
S_TB = 54; S_XS = 55; S_XR = 24 + 0
def LT(vt, sx): return lambda: ld(TABH + 16 * (vt % 2) + 4 * sx, S_TB, (vt // 2) * 8192 + ((vt % 2) * 4 + sx) * 128, ("tb", vt))
skip_n = [0]
def wv(tag):
    n = vm.younger(tag); assert n < 64
    if vm.tag[tag] <= skip_n[0]: e(f"s_cmp_lt_u32 s{S_WAVE}, 4\ns_cbranch_scc1 1f\ns_waitcnt vmcnt({n})\n1:")
    else: e(f"s_waitcnt vmcnt({n})")
def smf2(a, slot):
    d = DAT + 8 * slot
    e(f"v_smfmac_f32_16x16x64_bf16 v[{a}:{a+3}], v[{AC}:{AC+3}], v[{d}:{d+7}], v{SIDX}")
def mf2(tb, i):
    sx, par = i // 2, i % 2
    d = D0 + 16 * par
    c = "0" if sx == 0 else f"v[{d}:{d+15}]"
    e(f"v_mfma_f32_32x32x16_bf16 v[{d}:{d+15}], v[{tb+4*sx}:{tb+4*sx+3}], v[{W1+16*par+4*sx}:{W1+16*par+4*sx+3}], {c}")
def qunits(h): return [(GRP[h][q // 2] + 2 * (q % 2), (ACCB if h % 2 else ACC) + 4 * (q // 4), ("i", h, q // 2 + 1) if q % 4 == 0 else None) for q in range(32)]
def run(units, pre, mid, end):
    for i, u in enumerate(units):
        if i >= 3:
            e("s_waitcnt lgkmcnt(8)"); smf2(units[i - 3][1], i % 3)
        for f in pre.get(i, []): f()
        reads(u[0], i % 3)
        for f in mid.get(i, []): f()
        if i + 1 < len(units):
            if units[i + 1][2]: wv(units[i + 1][2])
            unpack(units[i + 1][0])
        for f in end.get(i, []): f()
def add(d, i, *f): d.setdefault(i, []).extend(f)
def pgen(mid, end, o, tbs, stg, waitw, waitt):
    for t in range(4):
        for i in range(8):
            if t == 0 and i % 2 == 0 and waitw: add(mid, o + MQ[i], lambda i=i: wv(("w", frag_of(i + 1))))
            if i == 0 and waitt[t] is not None: add(mid, o + 8 * t + MQ[0], lambda t=t: wv(("tb", waitt[t])))
            add(mid, o + 8 * t + MQ[i], lambda t=t, i=i: mf2(tbs[t], i))
        if stg[t] is not None: add(end, o + 8 * t + 7, lambda t=t: [cvt(stg[t] + r, r) for r in range(16)])
def tail(units, before_bar):
    n = len(units)
    e("s_waitcnt lgkmcnt(8)"); smf2(units[n - 3][1], n % 3)
    e("s_waitcnt lgkmcnt(4)"); smf2(units[n - 2][1], (n + 1) % 3)
    before_bar()
    e("s_waitcnt lgkmcnt(0)\ns_barrier")
def wphase(last, order, acts, nxt):
    n = 0; cur = None
    for vt, src in order:
        want = S_M0A if vt < 2 else S_M0B
        if want != cur: e(f"s_mov_b32 m0, s{want}\ns_nop 0"); cur = want
        for r in range(16):
            for f in acts.get(n, []): f()
            wr(src + r, vt, r)
            if n == SP: smf2(*last)
            n += 1
    wv(nxt[2]); unpack(nxt[0])
    e("s_waitcnt lgkmcnt(0)\ns_barrier")
def pst(i, f=4):
    if f == 4 and PROBE == 20 + i: e("s_memrealtime s[96:97]")
    if FINE == f and STAMP: e(f"s_memtime s[{SB+2*i}:{SB+1+2*i}]")

XQ = A("XQ", 32); SQ = A("SQ", 40)
units = qunits(0) + qunits(1); pre = {}; mid = {}; end = {}
pgen(mid, end, 0, [TAB, TAB + 16, TAB + 32, TAB + 48], [a_, b_, c_, D0], False, [None] * 4)
for j, k in enumerate(range(KPRE, 16)): add(mid, j * A("LS", 10) // (16 - KPRE), L(0, k))
for k in range(4): add(mid, 25 + 2 * k, L(1, k))
for k in range(4, 12): add(mid, (26, 28, 30, 32, 34, 36, 38, 40)[k - 4], L(1, k))
for k in range(12, 16): add(mid, 42 + 2 * (k - 12), L(1, k))
def hook_d():
    e(f"s_cmp_ge_u32 s{S_WAVE}, 4\ns_cbranch_scc1 d_join")
    e("s_mov_b32 s8, s32\ns_mov_b32 s9, s33\ns_mov_b32 s16, s42\ns_mov_b32 s17, s43\ns_waitcnt vmcnt(0)")
    lane_to(DA); role_old("d", dl12, dl3, dl0); skip_n[0] = vm.n
def hook_x():
    e(f"s_cmp_ge_u32 s{S_WAVE}, 4\ns_cbranch_scc1 g_join")
    lane_to(U0); e("s_waitcnt vmcnt(0)"); role_old("g", dx12, dx3, dx0); skip_n[0] = vm.n; vm.tag["dst"] = vm.n
def hook_s():
    r = ACCB + 28
    e(f"s_cmp_ge_u32 s{S_WAVE}, 4\ns_cbranch_scc1 s_join")
    e(f"v_mov_b32 v{r}, {L_HC}\nv_mov_b32 v{r+1}, 1\ns_mov_b64 exec, 1\ns_waitcnt vmcnt({vm.younger('dst')})\nds_add_rtn_u32 v{r+2}, v{r}, v{r+1}")
    e(f"s_lshl_b32 s{S_T}, s{S_PID}, 7\ns_add_u32 s{S_T}, s{S_T}, {FLGB:#x}\nv_mov_b32 v{r}, 0\nv_mov_b32 v{r+1}, s{S_N}\ns_waitcnt lgkmcnt(0)")
    e(f"v_readfirstlane_b32 s{S_U}, v{r+2}\ns_nop 0\ns_cmp_lg_u32 s{S_U}, 3\ns_cbranch_scc1 1f\nbuffer_store_dword v{r+1}, v{r}, s[4:7], s{S_T} offen sc1\n1:\ns_mov_b64 exec, -1\ns_join:")
add(end, A("HD", 15), hook_d); add(end, XQ, lambda: pst(1, 6), hook_x, lambda: pst(2, 6)); add(end, SQ, hook_s, lambda: pst(3, 6))
assert 15 <= XQ <= 32 and XQ < SQ < 58
for g in range(8): add(end, 33 + 4 * g, lambda g=g: [e(f"v_mov_b32 v{ACCB+4*g+c}, 0") for c in range(4)])
add(pre, 32, lambda: pst(1))
def pb_issue():
    r = W1
    lane_to(r)
    e(f"s_lshr_b32 s{S_T}, s{S_CS}, 4\nv_mov_b32 v{r+1}, s{S_T}\nv_lshrrev_b32 v{r+2}, 3, v{r}\nv_xor_b32 v{r+2}, s{S_BS}, v{r+2}\nv_cmp_gt_u32 vcc, 16, v{r}\nv_and_b32 v{r}, 7, v{r}\ns_lshl_b32 s70, s{S_WAVE}, 10")
    e(f"v_cndmask_b32 v{r+1}, v{r+1}, v{r+2}, vcc\nv_lshl_add_u32 v{r}, v{r+1}, 6, v{r}\nv_lshlrev_b32 v{r}, 7, v{r}\ns_add_u32 s70, s70, {FLGB:#x}")
    e(f"buffer_load_dword v{r+1}, v{r}, s[4:7], s70 offen sc1"); vm.issue("pb")
add(end, A("PQ", 56), pb_issue)
run(units, pre, mid, end)
def poll_b():
    r = W1
    e(f"s_mov_b32 s{S_U}, 0\npb_loop:\ns_waitcnt vmcnt(0)\nv_cmp_ne_u32 vcc, s{S_N}, v{r+1}\ns_cbranch_vccz pb_done")
    e(f"s_add_u32 s{S_U}, s{S_U}, 1\ns_cmp_gt_u32 s{S_U}, 0x40000\ns_cbranch_scc1 pb_done\ns_sleep 8\nbuffer_load_dword v{r+1}, v{r}, s[4:7], s70 offen sc1\ns_branch pb_loop\npb_done:")
tail(units, lambda: (pst(4, 6), poll_b(), pst(5, 6)))
pst(6, 6)
skip_n[0] = 0
pst(2)
params()
e(f"s_lshr_b32 s{S_TB}, s{S_CS}, 4\ns_lshl_b32 s{S_TB}, s{S_TB}, 3\ns_add_u32 s{S_TB}, s{S_TB}, s{S_WAVE}\ns_lshl_b32 s{S_TB}, s{S_TB}, 14\ns_add_u32 s{S_TB}, s{S_TB}, {TABP:#x}")
wphase((units[-1][1], (len(units) + 2) % 3), [(1, b_), (0, a_), (2, c_), (3, D0)], {0: [L(2, 0)], 4: [L(2, 1)], 16: [L(2, 2)], 32: [L(2, 3)]}, qunits(2)[0])
pst(3)
WA = W1 + 16; TL = W1 + 17; TM = W1 + 18
def xfr():
    lane_to(TL)
    e(f"v_and_b32 v{WA}, 0x7f, v{VOFF}\nv_and_b32 v{TM}, 4, v{TL}\nv_lshl_or_b32 v{WA}, v{TM}, 8, v{WA}\nv_and_b32 v{TM}, 8, v{TL}\nv_lshl_or_b32 v{WA}, v{TM}, 6, v{WA}\nv_and_b32 v{TM}, 16, v{TL}\nv_lshl_or_b32 v{WA}, v{TM}, 4, v{WA}")
    e(f"s_and_b32 s{S_U}, s{S_BS}, 1\ns_lshl_b32 s{S_U}, s{S_U}, 13\ns_sub_u32 s{S_U}, s{S_W1}, s{S_U}\ns_add_u32 s{S_U}, s{S_U}, 32768")
    for i in range(2): e(f"buffer_load_dwordx4 v[{W1+4*i}:{W1+4*i+3}], v{WA}, s[4:7], s{S_U} offen offset:{i*128} sc1"); vm.issue("xf")
def xgaddr():
    e(f"s_xor_b32 s{S_XS}, s{S_PID}, 64\ns_lshl_b32 s{S_XS}, s{S_XS}, 3\ns_add_u32 s{S_XS}, s{S_XS}, s{S_WAVE}\ns_lshl_b32 s{S_XS}, s{S_XS}, 13\ns_add_u32 s{S_XS}, s{S_XS}, {XG:#x}\ns_xor_b32 s{S_XR}, s{S_XS}, {64*8*8192:#x}")
def xmerge():
    wv("xf")
    for r in range(8): e(f"v_permlane16_swap_b32 v{W1+r}, v{W1+8+r}")
def xaddr():
    e(f"v_and_b32 v{WA}, 24, v{TL}\nv_and_b32 v{TM}, 3, v{TL}\nv_lshl_add_u32 v{WA}, v{TM}, 1, v{WA}\nv_bfe_u32 v{TM}, v{TL}, 2, 1\nv_add_u32 v{WA}, v{WA}, v{TM}")
    e(f"v_lshrrev_b32 v{TM}, 5, v{TL}\nv_lshl_add_u32 v{WA}, v{WA}, 1, v{TM}\ns_lshl_b32 s{S_T}, s{S_WAVE}, 10\ns_add_u32 s{S_T}, s{S_T}, {L_XT}\nv_lshl_add_u32 v{WA}, v{WA}, 4, s{S_T}")
def xm(vt, sx):
    d = D0 + 16 * (vt % 2); tb = TABH + 16 * (vt % 2) + 4 * sx
    e(f"v_mfma_f32_32x32x16_bf16 v[{d}:{d+15}], v[{W1+4*sx}:{W1+4*sx+3}], v[{tb}:{tb+3}], " + ("0" if sx == 0 else f"v[{d}:{d+15}]"))
def xw(vt):
    d = D0 + 16 * (vt % 2)
    for r in range(4): e(f"v_cvt_pk_bf16_f32 v{d+r}, v{d+r}, v{d+4+r}")
    e(f"ds_write_b128 v{WA}, v[{d}:{d+3}] offset:{vt*8192}")
def px(mid, end, o, tiles):
    add(mid, o, xfr); add(end, o + 6, xmerge); add(end, o + 7, xaddr)
    for j, vt in enumerate(tiles):
        for sx in range(4): add(mid, o + 8 + 4 * j + sx, lambda vt=vt, sx=sx: xm(vt, sx))
        add(end, o + 13 + 4 * j, lambda vt=vt: xw(vt))
units = qunits(2) + qunits(3); pre = {}; mid = {}; end = {}
px(mid, end, 2, (2, 3))
for k in range(4, 16): add(mid, (0, 1, 3, 4, 5, 6, 8, 9, 11, 12, 14, 15)[k - 4], L(2, k))
for k in range(4): add(mid, 16 + k, L(3, k))
for i in range(8): add(mid, 20 + i, LW(frag_of(i), 16384))
pgen(mid, end, 32, [TABH, TABH + 16, TABH, TABH + 16], [d_, b_, c_, None], True, [None, None, 0, 1])
for k in range(4, 16): add(mid, [int(x) for x in A("L3", "30.31.32.33.34.35.37.38.43.44.45.46").split(".")][k - 4], L(3, k))
for sx in range(4): add(mid, 39 + sx, LT(0, sx)); add(mid, 47 + sx, LT(1, sx))
for k in range(4): add(mid, 57 + 2 * k, L(4, k))
if A("RB", 1): add(pre, 32, lambda: e("s_barrier"))
add(pre, 32, lambda: pst(4))
run(units, pre, mid, end)
tail(units, lambda: [cvt(D0 + r, r) for r in range(16)])
pst(5)
wphase((units[-1][1], (len(units) + 2) % 3), [(3, b_), (2, d_), (0, c_), (1, D0)], {32 + 8 * k: [L(4, 4 + k)] for k in range(4)}, qunits(4)[0])
stamp(8)
XI = W1 + 16
SC = TABH; LN = SC; ROW = SC + 1; PV = SC + 4; RES = SC + 8; XW = SC + 16; X8 = SC + 30
XB = A("XB", 44); SS = A("SS", 5); RQ = A("RQ", 52)
q5 = qunits(5)
units = qunits(4) + q5[:XB - 32] + [(XI + 2 * g, ACCB + 4 * g, None) for g in range(8)] + q5[XB - 32:]
pre = {}; mid = {}; end = {}
add(mid, 0, xgaddr)
px(mid, end, 1, (0, 1))
L4 = [int(x) for x in A("L4", "0.2.4.6.8.10.12.14").split(".")]
L5 = [int(x) for x in A("L5", "15.16.17.18.22.24.26.29.30.31.33.34.35.37.38.39").split(".")]
for k in range(8, 16): add(mid, L4[k - 8], L(4, k))
for k in range(16): add(mid, L5[k], L(5, k))
GB = [ACC, ACC + 8, ACC + 14, ACC + 22, ACC + 28]
def send(i):
    b = GB[i]
    if i < 4:
        v = ACC + 7 * i
        for c in range(4): e(f"v_cvt_pk_bf16_f32 v{b+c}, v{v+2*c}, v{v+2*c+(1 if c < 3 else 0)}")
        e(f"v_mov_b32_sdwa v{b+3}, s{S_N} dst_sel:WORD_1 dst_unused:UNUSED_PRESERVE src0_sel:WORD_0")
    else:
        for c in range(4): e(f"v_mov_b32_sdwa v{b+c}, s{S_N} dst_sel:BYTE_0 dst_unused:UNUSED_PRESERVE src0_sel:BYTE_0")
    e(f"s_nop 0\nbuffer_store_dwordx4 v[{b}:{b+3}], v{VOFF}, s[4:7], s{S_XS} offen offset:{i*128} sc1"); vm.issue()
def recv(i, cnt=True):
    b = GB[i]
    e(f"buffer_load_dwordx4 v[{b}:{b+3}], v{VOFF}, s[4:7], s{S_XR} offen offset:{i*128} sc1")
    if cnt: vm.issue(("r", i))
slow = []
def rcheck(i):
    b = GB[i]; t = SC + 31
    wv(("r", i))
    e(f"s_mov_b32 s{S_CNT}, 0\nrc{i}:")
    if i < 4: e(f"v_cmp_ne_u32_sdwa vcc, v{b+3}, s{S_N} src0_sel:WORD_1 src1_sel:WORD_0")
    else:
        for c in range(4): e(f"v_xor_b32 v{b+c}, v{PV+2}, v{b+c}")
        e(f"v_or3_b32 v{t}, v{b}, v{b+1}, v{b+2}\nv_or_b32 v{t}, v{t}, v{b+3}\nv_and_b32 v{t}, 255, v{t}\nv_cmp_ne_u32 vcc, 0, v{t}")
    e(f"s_cbranch_vccnz rs{i}\nrd{i}:")
    slow.append(i)
def IL(k, d): return [int(x) for x in A(k, d).split(".")]
TS = IL("TS", "12.20.28.32.36"); TR = IL("TR", "46.49.53.57.61"); TC = IL("TC", "53.57.61.65.69"); TE = IL("TE", "54.58.59.62.64.68")
for i in range(5):
    assert TS[i] >= 4 * (min(7 * i + 6, 31) // 4) + 8 and TS[i] < TR[i] < TC[i]
    add(end, TS[i], lambda i=i: send(i)); add(end, TR[i], lambda i=i: recv(i)); add(end, TC[i], lambda i=i: rcheck(i))
for g in range(6): assert TE[g] >= TC[(4 * g + 3) // 7]
def setup():
    lane_to(LN)
    e(f"v_lshlrev_b32 v{X8}, 4, v{LN}\ns_and_b32 s{S_U}, s{S_BS}, 1\ns_lshl_b32 s{S_U}, s{S_U}, 14\ns_sub_u32 s{S_IDX}, s{S_IDX2}, s{S_U}\ns_add_u32 s{S_IDX}, s{S_IDX}, {6*16384}")
    e(f"v_and_b32 v{PV+1}, 15, v{LN}\nv_lshlrev_b32 v{PV+1}, 4, v{PV+1}\nv_lshrrev_b32 v{PV}, 4, v{LN}\nv_lshl_or_b32 v{PV}, v{PV}, 14, v{PV+1}")
    e(f"s_lshl_b32 s70, s{S_BS}, 20\ns_lshl_b32 s71, s{S_WAVE}, 17\ns_add_u32 s70, s70, s71\ns_lshl_b32 s71, s{S_CS}, 8\ns_add_u32 s70, s70, s71")
    e(f"s_add_u32 s70, s70, {PART:#x}\ns_add_u32 s71, s70, 65536")
    e(f"s_and_b32 s{S_U}, s{S_N}, 255\nv_mov_b32 v{PV+2}, s{S_U}\ns_mov_b32 s{S_W1}, 0xffffff00")
    e("s_lshl_b32 s56, s58, 16\ns_and_b32 s57, s58, 0xffff0000\ns_lshl_b32 s58, s59, 16\ns_and_b32 s59, s59, 0xffff0000")
    e("s_xor_b32 s52, s52, 0x80008000\ns_xor_b32 s53, s53, 0x80008000")
    e("s_lshl_b32 s0, s52, 16\ns_and_b32 s1, s52, 0xffff0000\ns_lshl_b32 s52, s53, 16\ns_and_b32 s53, s53, 0xffff0000")
    e(f"v_mov_b32 v{PV+1}, s0\nv_mul_f32 v{SC+3}, s56, v{PV+1}")
    for c, r in ((1, 1), (2, 52), (3, 53)): e(f"v_mov_b32 v{PV+1}, s{r}\nv_fma_f32 v{SC+3}, v{PV+1}, s{56+c}, v{SC+3}")
    e(f"v_xor_b32 v{SC+3}, 0x80000000, v{SC+3}")
    srd(8, 36, 16384 * 26); srd(12, 50, 32768)
add(end, 19, setup)
def xld(g):
    e(f"buffer_load_dwordx4 v[{XI+4*g}:{XI+4*g+3}], v{X8}, s[4:7], s{S_IDX} offen offset:{g*1024} sc1"); vm.issue(("x", g))
for g in range(4): add(mid, A('XL', 21) + 2 * g, lambda g=g: xld(g))
def xswap():
    wv(("x", 3))
    for g in range(4): e(f"v_permlane32_swap_b32 v{XI+4*g}, v{XI+4*g+2}\nv_permlane32_swap_b32 v{XI+4*g+1}, v{XI+4*g+3}")
add(mid, XB - 2, xswap)
add(pre, A("XBAR", 24), lambda: e("s_barrier"))
for b in IL("BARS", "52"): add(pre, b, lambda: e("s_barrier"))
add(pre, A("PY", 99), lambda: e(f"s_cmp_ge_u32 s{S_WAVE}, 4\ns_cbranch_scc0 1f\ns_setprio 1\n1:"))
add(pre, 32, lambda: pst(6))
def wide():
    e(f"s_cmp_lg_u32 s{S_WAVE}, 0\ns_cbranch_scc1 nowide")
    e(f"s_lshr_b32 s{S_T}, s{S_PID}, 2\ns_lshl_b32 s{S_T}, s{S_T}, 8\ns_and_b32 s{S_U}, s{S_PID}, 3\ns_lshl_b32 s{S_U}, s{S_U}, 4\ns_add_u32 s{S_T}, s{S_T}, s{S_U}")
    e(f"v_lshrrev_b32 v{ROW}, 4, v{LN}\nv_and_b32 v{ROW+1}, 15, v{LN}\nv_lshl_add_u32 v{ROW}, v{ROW}, 6, v{ROW+1}\nv_add_u32 v{ROW}, s{S_T}, v{ROW}")
    e(f"v_mul_u32_u24 v{ROW+1}, 26, v{ROW}")
    for j in range(13): e(f"buffer_load_ushort v{XW+j}, v{ROW+1}, s[8:11], 0 offen offset:{2*j}")
    e("nowide:")
add(end, A('XBAR', 24) - 1, wide)
def epi(g):
    a = ACCB + 4 * g
    t = SC + 31
    for c in range(4):
        n = 4 * g + c
        if g == 7: e(f"v_add_f32 v{a+c}, v{a+c}, v{GB[4]+c}"); continue
        r = GB[n // 7] + (n % 7) // 2
        e((f"v_and_b32 v{t}, 0xffff0000, v{r}" if n % 7 % 2 else f"v_lshlrev_b32 v{t}, 16, v{r}") + f"\nv_add_f32 v{a+c}, v{a+c}, v{t}")
    for c in range(4): e(f"v_max_f32 v{a+c}, s{(0, 1, 52, 53)[c]}, v{a+c}")
    e(f"v_fma_f32 v{RES+g}, v{a}, s56, v{SC+3}")
    for c in range(1, 4): e(f"v_fma_f32 v{RES+g}, v{a+c}, s{56+c}, v{RES+g}")
    e(f"v_and_or_b32 v{RES+g}, v{RES+g}, s{S_W1}, v{PV+2}")
    if g % 4 == 3: e(f"buffer_store_dwordx4 v[{RES+g-3}:{RES+g}], v{PV}, s[4:7], s{70 + g//4} offen sc1"); vm.issue()
for g, st in enumerate(TE):
    assert st >= max(i for i, u in enumerate(units) if u[1] == ACCB + 4 * g) + 5
    add(end, st, lambda g=g: epi(g))
for j, st in enumerate((16, 32, 44, 52, 60, 68)): add(pre, st, lambda j=j: pst(1 + j, 7))
run(units, pre, mid, end)
n = len(units)
e("s_waitcnt lgkmcnt(8)"); smf2(ACCB + 28, n % 3)
e("s_waitcnt lgkmcnt(4)"); smf2(ACCB + 28, (n + 1) % 3)
epi(6)
e("s_waitcnt lgkmcnt(0)"); smf2(ACCB + 28, (n + 2) % 3)
e(f"v_lshlrev_b32 v{PV+1}, 4, v{LN}")
e(f"s_lshl_b32 s70, s{S_PID}, 14\ns_lshl_b32 s{S_T}, s{S_WAVE}, 11\ns_add_u32 s70, s70, s{S_T}\ns_add_u32 s70, s70, {PART:#x}")
e(f"s_lshl_b32 s{S_T}, s{S_WAVE}, 8\ns_add_u32 s{S_T}, s{S_T}, {128000}\nv_lshl_add_u32 v{PV+3}, v{LN}, 2, s{S_T}")
e("s_nop 0")
epi(7)
stamp(9)
e(f"s_cmp_lg_u32 s{S_WAVE}, 0\ns_cbranch_scc1 nowide2")
e("s_waitcnt vmcnt(2)")
e(f"s_lshl_b32 s68, s68, 16\ns_lshl_b32 s69, s69, 16\nv_mov_b32 v{XW+13}, s68\nv_add_f32 v{XW+13}, s69, v{XW+13}")
for j in range(13):
    sw = 60 + j // 2
    if j % 2 == 0: e(f"s_lshl_b32 s{S_T}, s{sw}, 16")
    else: e(f"s_and_b32 s{S_T}, s{sw}, 0xffff0000")
    e(f"v_lshlrev_b32 v{XW+j}, 16, v{XW+j}")
    e(f"v_fma_f32 v{XW+13}, v{XW+j}, s{S_T}, v{XW+13}")
e("nowide2:")
e(f"s_mov_b32 s{S_CNT}, 0")
if A("EB", 1) < 2: e("s_waitcnt vmcnt(0)")
if A("EB", 1): e("s_barrier")
stamp(10)
e("poll2:")
e(f"buffer_load_dwordx4 v[{D1}:{D1+3}], v{PV+1}, s[4:7], s70 offen sc1")
e(f"buffer_load_dwordx4 v[{D1+4}:{D1+7}], v{PV+1}, s[4:7], s70 offen offset:1024 sc1")
e(f"s_add_u32 s{S_CNT}, s{S_CNT}, 1\ns_cmp_gt_u32 s{S_CNT}, 0x40000\ns_cbranch_scc1 poll2_done")
e("s_waitcnt vmcnt(0)")
for i in range(8): e(f"v_xor_b32 v{D1+i}, v{PV+2}, v{D1+i}")
e(f"v_or3_b32 v{D1+8}, v{D1}, v{D1+1}, v{D1+2}\nv_or3_b32 v{D1+9}, v{D1+3}, v{D1+4}, v{D1+5}\nv_or3_b32 v{D1+8}, v{D1+8}, v{D1+6}, v{D1+7}")
e(f"v_or_b32 v{D1+8}, v{D1+8}, v{D1+9}\nv_and_b32 v{D1+8}, 255, v{D1+8}\nv_cmp_ne_u32 vcc, 0, v{D1+8}")
if A("PS", 0): e(f"s_cbranch_vccz poll2_done\ns_sleep {A('PS', 0)}\ns_branch poll2")
else: e("s_cbranch_vccnz poll2")
e("poll2_done:\ns_waitcnt vmcnt(0)")
stamp(11)
for c in range(4): e(f"v_add_f32 v{D1+c}, v{D1+c}, v{D1+4+c}")
e(f"s_nop 1\nv_permlane32_swap_b32 v{D1}, v{D1+2}\nv_permlane32_swap_b32 v{D1+1}, v{D1+3}")
e(f"v_add_f32 v{D1}, v{D1}, v{D1+2}\nv_add_f32 v{D1+1}, v{D1+1}, v{D1+3}\ns_nop 1")
e(f"v_permlane16_swap_b32 v{D1}, v{D1+1}\nv_add_f32 v{D1}, v{D1}, v{D1+1}")
e(f"ds_write_b32 v{PV+3}, v{D1}\ns_waitcnt lgkmcnt(0)\ns_barrier")
e(f"s_cmp_lg_u32 s{S_WAVE}, 0\ns_cbranch_scc1 fin")
for i in range(1, 8): e(f"ds_read_b32 v{D1+i}, v{PV+3} offset:{256*i}")
e(f"v_add_f32 v{D1}, v{D1}, v{XW+13}\nv_lshlrev_b32 v{ROW}, 1, v{ROW}")
e("s_waitcnt lgkmcnt(0)")
e(f"v_add_f32 v{D1+1}, v{D1+1}, v{D1+2}\nv_add_f32 v{D1+3}, v{D1+3}, v{D1+4}\nv_add_f32 v{D1+5}, v{D1+5}, v{D1+6}\nv_add_f32 v{D1}, v{D1}, v{D1+7}")
e(f"v_add_f32 v{D1+1}, v{D1+1}, v{D1+3}\nv_add_f32 v{D1}, v{D1}, v{D1+5}\nv_add_f32 v{D1}, v{D1}, v{D1+1}")
e(f"v_mul_f32 v{D1}, 0xbfb8aa3b, v{D1}\nv_exp_f32 v{D1}, v{D1}\ns_nop 0\nv_add_f32 v{D1}, 1.0, v{D1}\nv_rcp_f32 v{D1}, v{D1}\ns_nop 0")
e(f"v_cvt_pk_bf16_f32 v{D1}, v{D1}, v{D1}")
e(f"buffer_store_short v{D1}, v{ROW}, s[12:15], 0 offen")
e("s_cmp_lg_u32 s2, 0\ns_cbranch_scc1 fin")
e(f"v_mov_b32 v{D1+1}, s{S_N}\nv_mov_b32 v{D1+2}, {EPOCH}\ns_mov_b64 exec, 1")
e(f"buffer_store_dword v{D1+1}, v{D1+2}, s[4:7], 0 offen\ns_mov_b64 exec, -1")
e("@ENDREGION\nfin:")
if FIX and A("MINS", 0):
    e("s_load_dwordx2 s[32:33], s[0:1], 80\ns_waitcnt lgkmcnt(0)")
    srd(16, 32, 256)
    e("s_not_b32 s98, s100\nv_mov_b32 v8, 0\nv_mov_b32 v9, s98\ns_mov_b64 exec, 1\nbuffer_atomic_umax v9, v8, s[16:19], 0 offen\ns_waitcnt vmcnt(0)")
    e(f"fixm:\ns_memrealtime s[98:99]\ns_waitcnt lgkmcnt(0)\ns_sub_u32 s98, s98, s100\ns_cmp_lt_u32 s98, {FIX - 1500}\ns_cbranch_scc1 fixm")
    e("buffer_load_dword v9, v8, s[16:19], 0 offen sc1\ns_waitcnt vmcnt(0)\nv_readfirstlane_b32 s100, v9\ns_nop 3\ns_not_b32 s100, s100\ns_mov_b64 exec, -1")
if FIX and A("PW", 255) != 255:
    e(f"s_mov_b32 s98, {A('PW', 255)}\ns_bitcmp0_b32 s98, s{S_WAVE}\ns_cbranch_scc1 done")
if FIX:
    e(f"fixl:\ns_memrealtime s[98:99]\ns_waitcnt lgkmcnt(0)\ns_sub_u32 s98, s98, s{96 if PROBE else 100}")
    e(f"s_cmp_lt_u32 s98, {FIX}\ns_cbranch_scc1 fixl")
if STAMP:
    stamp(12)
    e("s_memrealtime s[98:99]\ns_waitcnt lgkmcnt(0)")
    e(f"s_lshl_b32 s70, s2, 3\ns_add_u32 s70, s70, s{S_WAVE}\ns_lshl_b32 s70, s70, 7\ns_add_u32 s70, s70, {STMP:#x}")
    e("v_mov_b32 v8, 0")
    for i in range(1, 13):
        e(f"s_sub_u32 s{SB+2*i}, s{SB+2*i}, s{SB}\nv_mov_b32 v9, s{SB+2*i}")
        e(f"buffer_store_dword v9, v8, s[4:7], s70 offen offset:{4*(i-1)}")
    for i, r in enumerate((44, 45, 46, 100, 98, 38, 39)):
        e(f"v_mov_b32 v9, s{r}\nbuffer_store_dword v9, v8, s[4:7], s70 offen offset:{48+4*i}")
e("s_endpgm")
for h in slow:
    e(f"rs{h}:\ns_add_u32 s{S_CNT}, s{S_CNT}, 1\ns_cmp_gt_u32 s{S_CNT}, 0x40000\ns_cbranch_scc1 rd{h}\ns_sleep 4")
    recv(h, False)
    e(f"s_waitcnt vmcnt(0)\ns_branch rc{h}")
e("done:\ns_endpgm")

e(f""".section .rodata,"a"
.p2align 6
.amdhsa_kernel {KN}
  .amdhsa_next_free_vgpr 256
  .amdhsa_next_free_sgpr 102
  .amdhsa_accum_offset 256
  .amdhsa_group_segment_fixed_size 0
  .amdhsa_kernarg_size 96
  .amdhsa_user_sgpr_count 2
  .amdhsa_user_sgpr_kernarg_segment_ptr 1
  .amdhsa_system_sgpr_workgroup_id_x 1
.end_amdhsa_kernel""")

bysite = {str(k): v for k, v in waits.items()}
res = []
for l in out:
    if l.startswith("@VM "):
        n = bysite[l[4:]]
        assert 0 <= n <= 63
        l = f"s_waitcnt vmcnt({n})"
    res.append(l)
import re, subprocess, tempfile, os
def is_instr(l): return bool(re.match(r"^(s_|v_|ds_|buffer_|global_)\w*( |$)", l)) and not l.endswith(":")
tmp = [re.sub(r"@SEG_\w+", "done", l) for l in res if not l.startswith("@")]
with tempfile.TemporaryDirectory() as d:
    open(d + "/t.s", "w").write("\n".join(tmp) + "\n")
    subprocess.run(["clang", "-x", "assembler", "-target", "amdgcn-amd-amdhsa", "-mcpu=gfx950", "-c", d + "/t.s", "-o", d + "/t.o"], check=True)
    dis = subprocess.run(["llvm-objdump", "-d", "--mcpu=gfx950", d + "/t.o"], capture_output=True, text=True).stdout
sizes = [4 * len(m.group(1).split()) for m in re.finditer(r"// [0-9A-F]{12}: ([0-9A-F ]+)", dis)]
assert len(sizes) == sum(map(is_instr, tmp)), (len(sizes), sum(map(is_instr, tmp)))
al = 0; nal = 0; fin = []; addr = 0; k = 0; region = None; pads = {}; last = -1
for l in res:
    if l.startswith("@REGION"):
        _, tag, nseg = l.split(); region = tag; pads[tag] = [int(nseg), 0]; last = -1; continue
    if l.startswith("@ENDREGION"): region = None; continue
    if l.startswith("@ALIGN"):
        while addr % int(l.split()[1]): fin.append("s_nop 0"); addr += 4
        continue
    if l.startswith("@AL "): al = int(l.split()[1]); continue
    if is_instr(l):
        if al and sizes[k] == 8 and addr % 8 != (0 if AL == 1 else 4): fin.append("s_nop 0"); addr += 4; nal += 1
        if region and WARM and addr // LINE != last:
            last = addr // LINE
            n = pads[region][1]; pads[region][1] += 1
            fin.append(f"pad_{region}_{n}:"); fin.append(f"@PAD {region} {n}"); addr += 4
        addr += sizes[k]; k += 1
    fin.append(l)
def seg_start(tag, j):
    nseg, n = pads[tag]; return (n * j) // nseg
o2 = []
for l in fin:
    if l.startswith("@PAD"):
        _, tag, n = l.split(); n = int(n)
        starts = [seg_start(tag, j) for j in range(pads[tag][0] + 1)]
        l = f"s_cbranch_execz " + (f"warm_ret_{tag}" if n + 1 in starts else f"pad_{tag}_{n+1}")
    m = re.search(r"@SEG_(\w)_(\d+)", l)
    if m: l = l.replace(m.group(0), f"pad_{m.group(1)}_{seg_start(m.group(1), int(m.group(2)))}")
    o2.append(l)
sys.stderr.write(f"nal {nal} pads {pads} size {addr}\n")
DROP = A("DROP", "")
if DROP:
    i0 = o2.index("pb_done:"); keep = o2[:i0]; masked = False
    for l in o2[i0:]:
        if l.startswith("s_mov_b32 exec_hi"): masked = True
        if l.startswith("s_mov_b64 exec, -1"): masked = False
        if "s" in DROP and "buffer_store" in l and f"s{S_XS} offen" in l: l = "s_nop 0"
        if "r" in DROP and f"s{S_XR} off" in l: l = "s_nop 0"
        if ("s" in DROP or "r" in DROP) and l.startswith("s_cbranch_vccnz rs"): l = "s_nop 0"
        if "x" in DROP and masked and "buffer_load" in l: l = "s_nop 0"
        if "w" in DROP and l.startswith("ds_write_b128"): l = "s_nop 0"
        if "u" in DROP and "buffer_load_ushort" in l: l = "s_nop 0"
        keep.append(l)
    o2 = keep
if A("RT", 0): o2 = [l.replace("s_memtime", "s_memrealtime") for l in o2] + ["; s_memtime RT"]
print("\n".join(o2))
```

```python
import sys
args = dict(a.split("=") for a in sys.argv[1:])
def A(k, d): return type(d)(args.get(k, d))
STAMP = A("STAMP", 0); PROBE = A("PROBE", 0); FIX = A("FIX", 0)
PRIOQ = A("PRIOQ", -1); W1W = A("W1W", 0); CPF = A("CPF", 1); POLLT = A("POLLT", 2); PRE = A("PRE", 2); BAR0 = A("BAR0", 1); MAP = A("MAP", 1); CPL = A("CPL", 9); KPRE = A("KPRE", 8); DEFT = A("DEFT", -1); PREO = A("PREO", 1); HPQ = A("HPQ", 16); R1 = A("R1", 12); R2 = A("R2", 28); XT = A("XT", 1); PFW = A("PFW", 2); PI = A("PI", 0); XMAP = A("XMAP", 1); B2 = A("B2", 1); KT = A("KT", 2); KA = A("KA", 2); OD = A("OD", -1); W7T = A("W7T", 0); SPIN = A("SPIN", 0); W7A = A("W7A", 0); AL = A("AL", 0); MW = A("MW", 0); TRI = A("TRI", 4); DE = A("DE", 0); UNR = A("UNR", 1); DQ = A("DQ", 16); DT = A("DT", 3); SPF = A("SPF", 0); WARM = A("WARM", 0); LINE = A("LINE", 128); WB = A("WB", "L")
CS = [int(c, 32) for c in A("CS", "g")]; assert sum(CS) == 16
C0 = A("C0", 7); SP = A("SP", 8); MP = A("MP", 0)
MQ = [int(c) for c in A("MQ", "01123456")]

M2 = [int(c, 16) for c in A("M2", "")] or [2 * x for x in MQ]
M3 = [int(c, 16) for c in A("M3", "")] or M2
CE = C0 + len(CS) - 1 - 8
assert min(M2 + M3) >= 2 * CE + 1 and max(M2) <= 2 * (C0 - 1) and max(M3) <= 12
KN = "standalone__deep_cross_wide_deep__recsys_kernel"
EPOCH = 0x9a80
FLG = 0x1000
IDXP = 0x10000
ISTR = 6 * 16384 + 4096
W1P = 0x340000
WSTR = 34 * 1024
TABP = 0x570000
XG = 0x1000000
PART = 0x600000
STMP = 0xE00000
WS_SZ = 0x2000000
L_STG = 131072; L_XCH = 155648; L_XT = 131072; L_RED = 0

out = []
emit = True
def e(s):
    if emit:
        for l in s.split("\n"): out.append(l)
class Cnt:
    def __init__(self): self.n = 0; self.tag = {}
    def issue(self, tag=None):
        self.n += 1
        if tag is not None: self.tag[tag] = self.n
    def younger(self, tag): return self.n - self.tag[tag]
vm = Cnt()
waits = {}
def wait_vm(site, tag):
    n = vm.younger(tag)
    waits[site] = min(waits.get(site, 99), n)
    e(f"@VM {site}")
def srd(d, lo, nbytes):
    e(f"s_mov_b32 s{d}, s{lo}\ns_mov_b32 s{d+1}, s{lo+1}\ns_mov_b32 s{d+2}, {nbytes:#x}\ns_mov_b32 s{d+3}, 0x20000")
SB = 72
FINE = A("FINE", 0)
def hstamp(i):
    if STAMP and FINE == 3: e(f"s_memtime s[{SB+2*i}:{SB+1+2*i}]")
def gstamp(i):
    if STAMP and FINE == 2: e(f"s_memtime s[{SB+2*i}:{SB+1+2*i}]")
def fstamp(i):
    if STAMP and FINE == 1: e(f"s_memtime s[{SB+2*i}:{SB+1+2*i}]")
def stamp(i):
    if FINE == 1 and 9 <= i <= 12: return
    if FINE in (2, 4, 6, 7) and 1 <= i <= 6: return
    if FINE == 3 and 10 <= i <= 12: return
    if FINE == 5 and (5 <= i <= 12 or i == 1):
        if i == 7: e(f's_memtime s[{SB+2}:{SB+3}]')
        return
    if PROBE == i: e("s_memrealtime s[96:97]")
    if STAMP: e(f"s_memtime s[{SB+2*i}:{SB+1+2*i}]")

e(f"""; Wide & Deep recsys forward, gfx950: per-field projected tables P[f][v] = table[v] @ W1_f built on MFMA into LDS,
; @launch grid=(256,1,1) block=(512,1,1) lds=163840
.amdgcn_target "amdgcn-amd-amdhsa--gfx950"
.text
.globl {KN}
.p2align 8
.type {KN},@function
{KN}:""")

VOFF = 0; SIDX = 1; T0 = 2; T1 = 3; AC = 4
DAT = 8; TAB = 32; ACC = 96; POOL = 128; D0 = 192; D1 = 208; W1 = 224
S_WAVE = 3; S_IDX = 20; S_IDX2 = 21; S_W1 = 22; S_M0A = 23; S_M0B = 24; S_CNT = 25; S_BS = 26; S_CS = 27; S_PID = 28; S_N = 29
S_T = 30; S_U = 31
LANE = 8; L16 = 9
XA = POOL; XF = POOL + 16; XC = POOL + 48; XD = POOL + 16
PLO = "0x05040100"; PHI = "0x07060302"

HOLD = POOL + 32
FLGB = 0x330000
S_FB = 55; S_HP = 54
L_CTR = L_STG + 8192; L_XC2 = L_STG
DELTA = 28800
def piece_lane():
    e(f"v_lshrrev_b32 v10, 2, v{LANE}\nv_and_b32 v11, 1, v{LANE}\nv_and_b32 v12, 2, v{LANE}")
    e("v_lshlrev_b32 v13, 3, v10\nv_lshl_or_b32 v13, v11, 15, v13\nv_lshl_or_b32 v13, v12, 11, v13")
def piece_src(fp0):
    e(f"s_lshr_b32 s{S_T}, s{S_CS}, 2\ns_lshl_b32 s{S_T}, s{S_T}, 16\ns_and_b32 s{S_U}, s{S_CS}, 3\ns_lshl_b32 s{S_U}, s{S_U}, 13\ns_add_u32 s{S_T}, s{S_T}, s{S_U}")
    e(f"s_lshl_b32 s{S_U}, s{S_BS}, 7\ns_add_u32 s{S_T}, s{S_T}, s{S_U}\ns_add_u32 s{S_T}, s{S_T}, {fp0*65536:#x}")
def piece_ld(b):
    for j in range(8): e(f"buffer_load_dwordx2 v[{b+2*j}:{b+2*j+1}], v13, s[16:19], s{S_T} offen offset:{j*512}")
def piece_dst(fp0):
    e(f"v_mul_u32_u24 v18, {WSTR}, v10\nv_and_b32 v10, 3, v{LANE}\nv_lshl_add_u32 v18, v10, 4, v18")
    e(f"s_mul_i32 s70, s{S_BS}, {16*WSTR}\ns_lshr_b32 s{S_T}, s{S_CS}, 2\ns_lshl_b32 s{S_T}, s{S_T}, 10\ns_add_u32 s70, s70, s{S_T}")
    e(f"s_and_b32 s{S_T}, s{S_CS}, 3\ns_lshl_b32 s{S_T}, s{S_T}, 7\ns_add_u32 s70, s70, s{S_T}\ns_add_u32 s70, s70, {W1P + (fp0-16)*1024:#x}")
def piece_perm(src, dst):
    e(f"s_mov_b32 s{S_T}, {PLO}\ns_mov_b32 s{S_U}, {PHI}")
    for cp in range(2):
        for par in range(2):
            r = dst + 8 * cp + 4 * par
            for jj in range(4):
                r0 = src + 4 * jj + cp
                e(f"v_perm_b32 v{r+jj}, v{r0+2}, v{r0}, s{S_U if par else S_T}")
            e(f"buffer_store_dwordx4 v[{r}:{r+3}], v18, s[4:7], s70 offen offset:{par*512+cp*64} sc1")
def tab_dma(vt, count=True):
    e(f"s_add_u32 s{S_T}, s{S_M0A}, {vt*32768}\ns_mov_b32 m0, s{S_T}\ns_nop 0")
    for i in range(4):
        e(f"buffer_load_dwordx4 v{14 + i%2}, s[12:15], s{S_T} offen offset:{i*1024} lds")
        if count: vm.issue(("t", vt))
def xconsts(rowshift):
    e(f"v_lshl_add_u32 v17, v{LANE}, {rowshift}, s{S_T}")
    for t in range(16):
        e(f"v_add_u32 v16, {t}, v{LANE}\nv_and_b32 v{XF+t}, 15, v16\nv_lshl_add_u32 v{XA+t}, v{XF+t}, 2, v17")
    for u in range(8): e(f"v_lshl_or_b32 v{XC+u}, v{XF+2*u+1}, 16, v{XF+2*u}")
def idx_dst():
    e(f"s_lshr_b32 s70, s{S_PID}, 3\ns_mul_i32 s70, s70, {ISTR}\ns_add_u32 s70, s70, {IDXP:#x}")
    e(f"s_bfe_u32 s{S_T}, s{S_PID}, 0x10002\ns_lshl_b32 s{S_T}, s{S_T}, 13\ns_add_u32 s70, s70, s{S_T}")
    e(f"s_and_b32 s{S_T}, s{S_PID}, 3\ns_lshl_b32 s{S_T}, s{S_T}, 8\ns_add_u32 s70, s70, s{S_T}")
    e(f"s_lshl_b32 s{S_T}, s{S_CNT}, 14\ns_add_u32 s70, s70, s{S_T}\ns_add_u32 s71, s70, 16384")
def xform(off, dst, store):
    for t in range(16): e(f"ds_read_b32 v{XD+t}, v{XA+t} offset:{off}")
    for u in range(8):
        e(f"s_waitcnt lgkmcnt({14-2*u})")
        e(f"v_lshl_add_u32 v{XD+2*u}, v{XD+2*u+1}, 16, v{XD+2*u}")
        e(f"v_lshl_add_u32 v{dst+u}, v{XD+2*u}, 4, v{XC+u}")
        if store and u % 4 == 3: e(f"buffer_store_dwordx4 v[{dst+u-3}:{dst+u}], v{VOFF}, s[4:7], s70 offen offset:{(u//4)*128} sc1")
def role_old(tag, f12, f3, f0):
    e(f"s_cmp_eq_u32 s{S_WAVE}, 0\ns_cbranch_scc1 {tag}_w0\ns_cmp_eq_u32 s{S_WAVE}, 3\ns_cbranch_scc1 {tag}_w3")
    f12(); e(f"s_branch {tag}_join\n{tag}_w3:"); f3(); e(f"s_branch {tag}_join\n{tag}_w0:"); f0(); e(f"{tag}_join:")
def xf3():
    e(f"s_mov_b32 s{S_T}, 0x40014000\ns_mov_b32 s{S_U}, 0x40034002")
    e("v_lshl_add_u32 v28, v29, 16, v28\nv_lshl_add_u32 v30, v31, 16, v30")
    e(f"v_lshl_add_u32 v28, v28, 2, s{S_T}\nv_lshl_add_u32 v30, v30, 2, s{S_U}")
    e(f"v_and_b32 v29, 1, v{LANE}\nv_lshlrev_b32 v29, 4, v29\nv_and_b32 v31, 2, v{LANE}\nv_cmp_ne_u32 vcc, 0, v31")
    e("v_alignbit_b32 v28, v28, v28, v29\nv_alignbit_b32 v30, v30, v30, v29")
    e(f"v_cndmask_b32 v{HOLD}, v28, v30, vcc\nv_cndmask_b32 v{HOLD+1}, v30, v28, vcc")
def raw(lo, hi):
    for n in range(lo, hi):
        s_, j = n // 8, n % 8
        e(f"buffer_load_dword v{POOL+n}, v18, s[16:19], s71 offen offset:{j*512}")
        if j == 7 and s_ < 3: e("s_add_u32 s71, s71, 8192")
def voff_ws():
    e(f"s_load_dword s{S_N}, s[54:55], {EPOCH}")
    srd(4, 54, WS_SZ)
    srd(12, 34, 128000)
    e(f"v_and_b32 v16, 28, v{LANE}\nv_lshlrev_b32 v{VOFF}, 8, v16\nv_and_b32 v16, 1, v{LANE}\nv_lshl_or_b32 v{VOFF}, v16, 6, v{VOFF}")
    e(f"v_and_b32 v16, 32, v{LANE}\nv_or_b32 v{VOFF}, v{VOFF}, v16\nv_and_b32 v16, 2, v{LANE}\nv_lshl_or_b32 v{VOFF}, v16, 3, v{VOFF}")
def sloads(): pass
def params():
    e(f"s_lshl_b32 s{S_T}, s{S_CS}, 3")
    e(f"s_load_dwordx2 s[52:53], s[44:45], s{S_T}")
    e(f"s_load_dwordx2 s[58:59], s[46:47], s{S_T}")
    e("s_load_dwordx8 s[60:67], s[38:39], 0")
    e("s_load_dword s68, s[40:41], 0\ns_load_dword s69, s[48:49], 0")
def common():
    e(f"v_lshlrev_b32 v{L16}, 4, v{LANE}")
    e(f"v_lshrrev_b32 v16, 4, v{LANE}\nv_and_b32 v17, 7, v{LANE}\nv_xor_b32 v16, v16, v17\nv_lshlrev_b32 v16, 4, v16")
    e(f"v_lshrrev_b32 v17, 3, v{LANE}\nv_lshl_or_b32 v14, v17, 7, v16\nv_xor_b32 v15, 64, v14")
    e(f"v_bfe_u32 v19, v{LANE}, 2, 2\nv_bfe_u32 v20, v{LANE}, 4, 1\nv_lshlrev_b32 v20, 1, v20\nv_mov_b32 v21, 0x3f80")
    e("v_cmp_eq_u32 vcc, v19, v20\nv_add_u32 v20, 1, v20\ns_nop 0")
    e(f"v_cndmask_b32 v{AC}, 0, v21, vcc\nv_cndmask_b32 v{AC+1}, 0, v21, vcc")
    e(f"v_cmp_eq_u32 vcc, v19, v20\nv_and_b32 v19, 3, v{LANE}\ns_nop 0")
    e(f"v_cndmask_b32 v{AC+2}, 0, v21, vcc\nv_cndmask_b32 v{AC+3}, 0, v21, vcc")
    e(f"v_mul_u32_u24 v{SIDX}, 0x5555, v19")
    e(f"s_and_b32 s{S_U}, s{S_BS}, 1\ns_lshl_b32 s{S_U}, s{S_U}, 13\ns_mul_i32 s{S_W1}, s{S_CS}, {WSTR}\ns_add_u32 s{S_W1}, s{S_W1}, s{S_U}\ns_add_u32 s{S_W1}, s{S_W1}, {W1P:#x}")
    e(f"s_lshl_b32 s{S_U}, s{S_U}, 1\ns_add_u32 s{S_U}, s{S_U}, {IDXP:#x}\ns_lshl_b32 s{S_T}, s{S_BS}, 3\ns_add_u32 s{S_T}, s{S_T}, s{S_WAVE}\ns_mul_i32 s{S_IDX2}, s{S_T}, {ISTR}\ns_add_u32 s{S_IDX2}, s{S_IDX2}, s{S_U}")
    e(f"s_xor_b32 s{S_T}, s{S_T}, 8\ns_mul_i32 s{S_IDX}, s{S_T}, {ISTR}\ns_add_u32 s{S_IDX}, s{S_IDX}, s{S_U}")
    e(f"s_add_u32 s{S_M0B}, s{S_M0A}, {65536-DELTA}")
    e(f"s_lshl_b32 s{S_U}, s{S_WAVE}, 3\nv_and_b32 v13, 7, v{LANE}\nv_add_u32 v10, s{S_U}, v13")
    e(f"s_and_b32 s{S_U}, s{S_WAVE}, 3\ns_and_b32 s{S_T}, s{S_BS}, 1\ns_lshl_b32 s{S_T}, s{S_T}, 5\ns_add_u32 s{S_U}, s{S_U}, s{S_T}\nv_lshl_add_u32 v11, v13, 2, s{S_U}\nv_lshrrev_b32 v13, 3, v{LANE}\nv_cmp_eq_u32 vcc, 1, v13\ns_nop 1\nv_cndmask_b32 v10, v10, v11, vcc")
    e(f"s_lshr_b32 s{S_T}, s{S_CS}, 4\nv_mov_b32 v11, s{S_T}\nv_mov_b32 v16, s{S_BS}\nv_cmp_eq_u32 vcc, 0, v13\ns_nop 1\nv_cndmask_b32 v11, v11, v16, vcc")
    e(f"v_xor_b32 v16, 1, v16\nv_cmp_eq_u32 vcc, 2, v13\ns_nop 1\nv_cndmask_b32 v11, v11, v16, vcc\nv_lshl_add_u32 v10, v11, 6, v10\nv_lshlrev_b32 v19, 7, v10")
    e(f"v_and_b32 v10, 24, v{LANE}\nv_and_b32 v11, 3, v{LANE}\nv_lshl_add_u32 v10, v11, 1, v10\nv_bfe_u32 v12, v{LANE}, 2, 1\nv_add_u32 v10, v10, v12\nv_lshlrev_b32 v10, 7, v10")
    e(f"v_bfe_u32 v12, v{LANE}, 3, 1\nv_lshl_or_b32 v11, v12, 2, v11\nv_lshrrev_b32 v12, 5, v{LANE}\nv_xor_b32 v11, v11, v12\nv_lshl_or_b32 v10, v11, 4, v10")
    e(f"v_add_u32 v20, s{S_M0A}, v10\nv_add_u32 v12, {L_XCH}, v{L16}")
    for s_ in range(1, 4): e(f"v_xor_b32 v{20+s_}, {s_*32}, v20")
    e(f"v_add_u32 v16, {L_XC2}, v{L16}\ns_lshl_b32 s{S_U}, s{S_WAVE}, 10\nv_add_u32 v17, s{S_U}, v16")
def common_b():
    e(f"s_not_b32 s{S_N}, s{S_N}")
def tab_rd(vt):
    if STAMP and FINE == 5: e(f"s_memtime s[{SB+10+4*vt}:{SB+11+4*vt}]")
    wait_vm(("td", vt), ("t", vt))
    if STAMP and FINE == 5: e(f"s_memtime s[{SB+12+4*vt}:{SB+13+4*vt}]")
    if vt == 2:
        for s in range(4): e(f"v_add_u32 v{20+s}, 0x10000, v{20+s}")
    for s in range(4):
        r = TAB + 16 * vt + 4 * s
        e(f"ds_read_b128 v[{r}:{r+3}], v{20+s} offset:{(vt%2)*32768}")
def ldw(i):
    e(f"buffer_load_dwordx4 v[{W1+4*i}:{W1+4*i+3}], v{VOFF}, s[4:7], s{S_W1} offen offset:{i*128} sc1")
    vm.issue(("w", i))
def ldi(reg, k, tag):
    e(f"buffer_load_dwordx4 v[{reg}:{reg+3}], v{VOFF}, s[4:7], s{S_IDX if k < 8 else S_IDX2} offen offset:{(k%8)*128} sc1")
    vm.issue(tag)
def mf(vt, i, base=D0):
    s, par = i // 2, i % 2
    d = base + 16 * par
    c = "0" if s == 0 else f"v[{d}:{d+15}]"
    e(f"v_mfma_f32_32x32x16_bf16 v[{d}:{d+15}], v[{TAB+16*vt+4*s}:{TAB+16*vt+4*s+3}], v[{W1+16*par+4*s}:{W1+16*par+4*s+3}], {c}")
def frag_of(i): return (i % 2) * 4 + i // 2
def cvt(dst, r, base=D0): e(f"v_cvt_pk_bf16_f32 v{dst}, v{base+r}, v{base+16+r}")
def wr(src, vt, r):
    off = (vt % 2) * 32768 + r * 256 + (DELTA if vt >= 2 else 0)
    e(f"ds_write_addtid_b32 v{src} offset:{off}")
SD = "dst_sel:DWORD dst_unused:UNUSED_PAD src0_sel:DWORD"
def unpack(w0):
    e(f"v_lshlrev_b32_sdwa v{T0}, 3, v{w0} {SD} src1_sel:WORD_1")
    e(f"v_lshlrev_b32_sdwa v{w0}, 3, v{w0} {SD} src1_sel:WORD_0")
    e(f"v_lshlrev_b32_sdwa v{T1}, 3, v{w0+1} {SD} src1_sel:WORD_1")
    e(f"v_lshlrev_b32_sdwa v{w0+1}, 3, v{w0+1} {SD} src1_sel:WORD_0")
def reads(w0, slot):
    d = DAT + 8 * slot
    for i, a in enumerate((w0, T0, w0 + 1, T1)):
        e(f"ds_read_b64 v[{d+2*i}:{d+2*i+1}], v{a}")
def smf(g, slot):
    d = DAT + 8 * slot; a = ACC + 4 * g
    e(f"v_smfmac_f32_16x16x64_bf16 v[{a}:{a+3}], v[{AC}:{AC+3}], v[{d}:{d+7}], v{SIDX}")
def cpf_code(dst):
    e(f"s_getpc_b64 s[70:71]\ncpf_base:\ns_lshr_b32 s{S_U}, s2, 3\ns_mul_i32 s{S_U}, s{S_U}, {CPL*128}\nv_min_u32 v2, {CPL-1}, v{LANE}\nv_lshl_add_u32 v2, v2, 7, s{S_U}\nv_min_u32 v2, done-cpf_base, v2\nv_mov_b32 v3, s71")
    e("v_add_co_u32 v2, vcc, s70, v2\ns_nop 1\nv_addc_co_u32 v3, vcc, 0, v3, vcc")
    e(f"global_load_dword v{dst}, v[2:3], off")
def poll_issue():
    if CPF == 2:
        e(f"s_cmp_lg_u32 s{S_WAVE}, 7\ns_cbranch_scc1 1f")
        cpf_code(11)
        e("1:")
    stamp(5)
    e(f"s_mov_b32 s{S_T}, {FLG:#x}")
    e(f"buffer_load_dword v10, v19, s[4:7], s{S_T} offen sc1"); vm.issue("poll")
def poll_check():
    e(f"s_mov_b32 s{S_CNT}, 0\ns_mov_b32 s{S_T}, {FLG:#x}")
    wait_vm("pollw", "poll")
    e("poll1:")
    e(f"v_cmp_ne_u32 vcc, s{S_N}, v10\ns_cbranch_vccz poll1_done")
    e(f"s_sleep 8\nbuffer_load_dword v10, v19, s[4:7], s{S_T} offen sc1")
    e(f"s_add_u32 s{S_CNT}, s{S_CNT}, 1\ns_waitcnt vmcnt(0)\ns_cmp_lt_u32 s{S_CNT}, 0x40000\ns_cbranch_scc1 poll1")
    e("poll1_done:")
    stamp(6)
    e(f"s_lshl_b32 s{S_T}, s{S_WAVE}, 7\ns_add_u32 s{S_T}, s{S_T}, s{S_W1}")
    e(f"buffer_load_dwordx4 v[24:27], v{VOFF}, s[4:7], s{S_T} offen sc1"); vm.issue("w1x")
    for i in range(8): vm.tag[("w", i)] = vm.n
    for k in range(KA): ldi(POOL + 4 * k, k, ("i", k))

e("s_cmp_ge_u32 s2, 256\ns_cbranch_scc1 done")
e("s_load_dwordx16 s[32:47], s[0:1], 0")
e("s_load_dwordx8 s[48:55], s[0:1], 64")
if STAMP: e(f"s_memtime s[{SB}:{SB+1}]")
if STAMP or FIX: e("s_memrealtime s[100:101]")
e(f"v_lshrrev_b32 v1, 6, v0\nv_and_b32 v{LANE}, 63, v0")
e(f"v_readfirstlane_b32 s{S_WAVE}, v1")
if XMAP == 3:
    e(f"s_bfe_u32 s{S_BS}, s2, 0x10002\ns_lshl_b32 s{S_BS}, s{S_BS}, 1\ns_bfe_u32 s{S_T}, s2, 0x10003\ns_add_u32 s{S_BS}, s{S_BS}, s{S_T}\ns_and_b32 s{S_CS}, s2, 3\ns_lshl_b32 s{S_CS}, s{S_CS}, 4\ns_lshr_b32 s{S_T}, s2, 4\ns_add_u32 s{S_CS}, s{S_CS}, s{S_T}")
elif XMAP == 2:
    e(f"s_and_b32 s{S_BS}, s2, 3\ns_and_b32 s{S_CS}, s2, 4\ns_lshl_b32 s{S_CS}, s{S_CS}, 3\ns_lshr_b32 s{S_T}, s2, 3\ns_add_u32 s{S_CS}, s{S_CS}, s{S_T}")
elif XMAP:
    e(f"s_bfe_u32 s{S_BS}, s2, 0x20002\ns_and_b32 s{S_CS}, s2, 3\ns_lshl_b32 s{S_CS}, s{S_CS}, 4\ns_lshr_b32 s{S_T}, s2, 4\ns_add_u32 s{S_CS}, s{S_CS}, s{S_T}")
else:
    e(f"s_and_b32 s{S_BS}, s2, 3\ns_lshr_b32 s{S_CS}, s2, 2")
e(f"s_lshl_b32 s{S_PID}, s{S_BS}, 6\ns_add_u32 s{S_PID}, s{S_PID}, s{S_CS}")
e(f"s_lshl_b32 s{S_M0A}, s{S_WAVE}, 12\nv_mov_b32 v18, 0\nv_mov_b32 v14, 0\nv_mov_b32 v15, 0\nv_mov_b32 v19, 0\ns_mul_i32 s71, s{S_PID}, 25600")
e("s_mov_b32 s10, 0x640000\ns_mov_b32 s11, 0x20000\ns_mov_b32 s18, 0x320000\ns_mov_b32 s19, 0x20000")
e(f"s_cmp_lt_u32 s{S_WAVE}, 4\ns_cbranch_scc1 a_old")
e(f"s_cmp_eq_u32 s{S_WAVE}, 7\ns_cbranch_scc1 a_w7\ns_cmp_eq_u32 s{S_WAVE}, 6\ns_cbranch_scc1 a_pc")
e(f"s_setprio 3\ns_sub_u32 s{S_CNT}, s{S_WAVE}, 4")
e(f"v_lshrrev_b32 v10, 2, v{LANE}\nv_mul_u32_u24 v10, 400, v10\nv_and_b32 v11, 3, v{LANE}\nv_lshl_add_u32 v10, v11, 4, v10")
e(f"s_lshl_b32 s{S_T}, s{S_CNT}, 6\ns_add_u32 s{S_T}, s{S_T}, s71")
e(f"s_lshl_b32 s{S_U}, s{S_CNT}, 12\ns_add_u32 s{S_U}, s{S_U}, {L_STG}\ns_mov_b32 m0, s{S_U}\nv_lshl_add_u32 v17, v{LANE}, 6, s{S_U}")
e("s_waitcnt lgkmcnt(0)\ns_mov_b32 s8, s32\ns_mov_b32 s9, s33")
for i in range(4):
    e(f"buffer_load_dwordx4 v10, s[8:11], s{S_T} offen lds")
    if i < 3: e(f"s_add_u32 m0, m0, 1024\ns_add_u32 s{S_T}, s{S_T}, 6400")
e("s_barrier\ns_branch b_x")
e("a_pc:\ns_setprio 3")
piece_lane(); piece_src(16)
e(f"s_waitcnt lgkmcnt(0)\ns_mov_b32 s16, s42\ns_mov_b32 s17, s43")
hstamp(10)
if not A("NOP", 0): piece_ld(POOL)
hstamp(11)
e("s_barrier")
hstamp(12)
e("s_branch b_pc")
e("a_old:")
e(f"v_mov_b32 v10, {L_CTR}\nds_write_b64 v10, v[18:19]")
if PFW:
    if XMAP >= 2: e(f"v_lshlrev_b32 v16, 9, v{LANE}\ns_and_b32 s{S_U}, s{S_CS}, 15\ns_lshl_b32 s{S_U}, s{S_U}, 15\ns_lshl_b32 s{S_T}, s{S_CS}, 3\ns_add_u32 s{S_U}, s{S_U}, s{S_T}")
    else: e(f"v_and_b32 v16, 31, v{LANE}\nv_lshlrev_b32 v16, 9, v16\ns_lshr_b32 s{S_U}, s2, 3\ns_lshl_b32 s{S_U}, s{S_U}, 14\ns_lshl_b32 s{S_T}, s{S_CS}, 3\ns_add_u32 s{S_U}, s{S_U}, s{S_T}")
e(f"s_and_b32 s{S_T}, s{S_BS}, 1\ns_lshl_b32 s{S_T}, s{S_T}, 19\ns_add_u32 s{S_U}, s{S_U}, s{S_T}\ns_waitcnt lgkmcnt(0)")
TCH = A("TCH", 0)
def touch():
    e(f"s_cmp_lg_u32 s{S_WAVE}, 2\ns_cbranch_scc1 1f")
    srd(4, 54, WS_SZ)
    e(f"v_lshlrev_b32 v17, {A('TSH', 19)}, v{LANE}\nbuffer_load_dword v{D0}, v17, s[4:7], 0 offen offset:3968")
    if A("TOUT", 1):
        srd(12, 50, 32768)
        e(f"buffer_load_dword v{D0}, off, s[12:15], 0")
    if A("TPAR", 1):
        for b in (36, 38, 40, 44, 46, 48): e(f"global_load_ushort v{D0}, v18, s[{b}:{b+1}]")
    e("1:")
if TCH == 1: touch()
if PFW == 2: e("s_barrier")
if TCH == 2: touch()
if PFW:
    e(f"s_mov_b32 s16, s42\ns_mov_b32 s17, s43\ns_cmp_lg_u32 s{S_WAVE}, 3\ns_cbranch_scc1 1f\nbuffer_load_dword v{D0}, v16, s[16:19], s{S_U} offen\n1:")
if PFW != 2: e("s_barrier")
e("s_branch c_all")
e("a_w7:")
if CPF == 1: cpf_code(D0)
e("s_setprio 2\ns_barrier")
e(f"v_bfe_u32 v16, v{LANE}, 1, 4\nv_lshlrev_b32 v18, 15, v16\nv_lshrrev_b32 v16, 5, v{LANE}\nv_lshl_or_b32 v18, v16, 12, v18\nv_and_b32 v16, 1, v{LANE}\nv_lshl_or_b32 v18, v16, 2, v18")
e(f"v_and_b32 v16, 31, v{LANE}\nv_lshlrev_b32 v16, 7, v16\ns_lshr_b32 s{S_U}, s2, 3\ns_lshl_b32 s{S_U}, s{S_U}, 12")
e(f"s_lshl_b32 s71, s{S_CS}, 3\ns_and_b32 s{S_T}, s{S_BS}, 1\ns_lshl_b32 s{S_T}, s{S_T}, 19\ns_add_u32 s71, s71, s{S_T}")
e("s_waitcnt lgkmcnt(0)\ns_mov_b32 s16, s42\ns_mov_b32 s17, s43")
srd(12, 34, 128000)
e(f"buffer_load_dword v{D0}, v16, s[12:15], s{S_U} offen")
raw(0, R1)
e("s_branch c_all")
e("b_x:")
voff_ws()
e(f"v_and_b32 v16, 15, v{LANE}\nv_lshl_add_u32 v{XA}, v16, 2, v17\nv_xor_b32 v17, 1, v16\nv_lshl_or_b32 v{XC}, v17, 16, v16")
for t in range(1, 16): e(f"v_xor_b32 v{XA+t}, {4*t}, v{XA}")
for u in range(1, 8): e(f"v_xor_b32 v{XC+u}, {2*u*0x10001:#x}, v{XC}")
idx_dst()
e("s_waitcnt vmcnt(0)")
stamp(1)
xform(0, HOLD, True)
e("s_barrier\ns_branch c_all2")
e("b_pc:")
voff_ws()
piece_dst(16)
e("s_waitcnt vmcnt(0)")
stamp(1)
piece_perm(POOL, HOLD)
e("s_barrier\ns_branch c_all2")
e("c_all:")
voff_ws()
e("c_all2:")
if PROBE == 13: e("s_memrealtime s[96:97]")
sloads(); common()
e(f"s_cmp_eq_u32 s{S_WAVE}, 7\ns_cbranch_scc1 d_w7\ns_cmp_lt_u32 s{S_WAVE}, 4\ns_cbranch_scc1 d_old")
if PROBE == 14: e("s_memrealtime s[96:97]")
if OD < 0: e("s_barrier")
if PROBE == 15: e("s_memrealtime s[96:97]")
e(f"v_mov_b32 v10, {L_CTR}\nv_mov_b32 v11, 1\ns_mov_b64 exec, 1\ns_waitcnt vmcnt(0)")
e("ds_add_rtn_u32 v13, v10, v11")
e(f"s_lshl_b32 s{S_T}, s{S_PID}, 7\ns_add_u32 s{S_T}, s{S_T}, {FLG:#x}\nv_mov_b32 v10, 0\ns_waitcnt lgkmcnt(0)")
e(f"v_readfirstlane_b32 s{S_U}, v13\nv_not_b32 v11, s{S_N}\ns_cmp_lg_u32 s{S_U}, 2\ns_cbranch_scc1 b_nosig")
e(f"buffer_store_dword v11, v10, s[4:7], s{S_T} offen sc1")
e("b_nosig:\ns_mov_b64 exec, -1\ns_setprio 0\ns_branch e_join")
e("d_w7:")
stamp(1)
e("s_mov_b32 s16, s42\ns_mov_b32 s17, s43\ns_barrier")
raw(R1, 32)
for vt in range(W7T): tab_dma(vt, False)
if OD < 0: e("s_barrier")
for vt in range(W7T, PRE - W7A): tab_dma(vt, False)
e(f"s_mov_b32 s{S_T}, {PLO}\ns_mov_b32 s{S_U}, {PHI}")
for s in range(4):
    e(f"s_waitcnt vmcnt({24-8*s+4*(PRE-W7A)})")
    for jj in range(4):
        r0 = POOL + 8 * s + 2 * jj
        e(f"v_perm_b32 v{POOL+32+8*s+jj}, v{r0+1}, v{r0}, s{S_T}")
        e(f"v_perm_b32 v{POOL+36+8*s+jj}, v{r0+1}, v{r0}, s{S_U}")
    e(f"ds_write_b128 v12, v[{POOL+32+8*s}:{POOL+35+8*s}] offset:{s*1024}")
    e(f"ds_write_b128 v12, v[{POOL+36+8*s}:{POOL+39+8*s}] offset:{4096+s*1024}")
if SPIN: e(f"v_mov_b32 v10, {L_CTR}\nv_mov_b32 v11, 1\nds_write_b32 v10, v11 offset:4")
stamp(2)
for vt in range(W7A): tab_dma(vt, False)
e("s_branch b_all")
e("d_old:")
stamp(1)
e("s_barrier")
def warm(tag, nseg, w0):
    if not WARM: return
    e("s_mov_b64 exec, 0")
    for k in range(nseg - 1): e(f"s_cmp_eq_u32 s{S_WAVE}, {w0+k}\ns_cbranch_scc1 @SEG_{tag}_{k}")
    e(f"s_branch @SEG_{tag}_{nseg-1}")
    e(f"warm_ret_{tag}:\ns_mov_b64 exec, -1")
if OD > 0: e(f"s_sleep {OD}")
if OD < 0: e("s_barrier")
e("e_join:")
stamp(2)
for vt in range(PRE): tab_dma(vt)
e("s_setprio 0")
warm("B", 7, 0)
e("b_all:")
if SPIN:
    e(f"s_setprio 0\nv_mov_b32 v10, {L_CTR}\ns_mov_b32 s{S_T}, 0")
    e(f"spin1:\nds_read_b32 v11, v10 offset:4\ns_add_u32 s{S_T}, s{S_T}, 1\ns_waitcnt lgkmcnt(0)\ns_cmp_gt_u32 s{S_T}, 0x1000000\ns_cbranch_scc1 1f")
    e("v_cmp_eq_u32 vcc, 0, v11\ns_cbranch_vccnz spin1\n1:")
else: e("s_setprio 0\ns_waitcnt lgkmcnt(0)\ns_barrier")
pass
stamp(3)
for i in range(8): e(f"ds_read_b128 v[{W1+4*i}:{W1+4*i+3}], v12 offset:{i*1024}")
if PI == -1: poll_issue()
common_b()
if PRE < 4: tab_dma(PRE)
tab_rd(0)
stamp(4)
L_PC = L_XCH; L_EX = 128000 + 64; L_HC = 128000; L_TB = L_XC2
ACCB = TAB; TABH = TAB + 32
def lane_to(r): e(f"v_mbcnt_lo_u32_b32 v{r}, -1, 0\nv_mbcnt_hi_u32_b32 v{r}, -1, v{r}")
DA = D0
def dl12():
    e(f"v_lshrrev_b32 v{DA+1}, 3, v{DA}\nv_mul_u32_u24 v{DA+1}, 400, v{DA+1}\nv_and_b32 v{DA}, 7, v{DA}\nv_lshl_add_u32 v{DA}, v{DA}, 4, v{DA+1}")
    e(f"s_lshl_b32 s{S_T}, s{S_WAVE}, 7\ns_add_u32 s{S_T}, s{S_T}, s71")
    e(f"s_lshl_b32 s{S_U}, s{S_WAVE}, 13\ns_add_u32 m0, s{S_U}, {L_STG}\ns_nop 0")
    for i in range(8):
        e(f"buffer_load_dwordx4 v{DA}, s[8:11], s{S_T} offen lds")
        if i < 7: e(f"s_add_u32 m0, m0, 1024\ns_add_u32 s{S_T}, s{S_T}, 3200")
def dlp(fp0, lds):
    e(f"v_lshrrev_b32 v{DA+1}, 3, v{DA}\nv_and_b32 v{DA}, 7, v{DA}\nv_lshlrev_b32 v{DA}, 4, v{DA}\nv_lshl_or_b32 v{DA}, v{DA+1}, 9, v{DA}")
    piece_src(fp0)
    e(f"s_mov_b32 m0, {lds}\ns_nop 0")
    for i in range(4):
        e(f"buffer_load_dwordx4 v{DA}, s[16:19], s{S_T} offen lds")
        if i < 3: e(f"s_add_u32 m0, m0, 1024\ns_add_u32 s{S_T}, s{S_T}, {(4096, 28672, 4096)[i]}")
def dl3():
    e(f"v_mul_u32_u24 v{DA+2}, 400, v{DA}\ns_add_u32 s{S_T}, s71, 384\ns_mov_b32 m0, {L_EX}\ns_nop 0\nbuffer_load_dwordx4 v{DA+2}, s[8:11], s{S_T} offen lds")
    dlp(48, L_PC + 4096)
    if A("TL", 1):
        k = TAB + 26
        e(f"s_lshl_b32 s{S_T}, s{S_PID}, 16\ns_add_u32 s{S_T}, s{S_T}, {XG:#x}\ns_xor_b32 s{S_U}, s{S_T}, 0x400000\nv_mov_b32 v{DA+3}, 0")
        e(f"buffer_load_dword v{k}, off, s[4:7], s{S_T} offset:896\nbuffer_load_dword v{k}, off, s[4:7], s{S_U} offset:896")
        e(f"s_lshl_b32 s{S_T}, s{S_PID}, 14\ns_lshl_b32 s{S_U}, s{S_CS}, 8\ns_add_u32 s{S_T}, s{S_T}, s{S_U}\ns_add_u32 s{S_T}, s{S_T}, {PART:#x}\nbuffer_load_dword v{k}, off, s[4:7], s{S_T} sc1")
        for b in (38, 40, 44, 46, 48, 50): e(f"global_load_ushort v{k}, v{DA+3}, s[{b}:{b+1}]")
def dl0():
    e(f"v_and_b32 v{DA+1}, 24, v{DA}\nv_and_b32 v{DA+2}, 3, v{DA}\nv_lshl_add_u32 v{DA+1}, v{DA+2}, 1, v{DA+1}\nv_bfe_u32 v{DA+2}, v{DA}, 2, 1\nv_add_u32 v{DA+1}, v{DA+1}, v{DA+2}\nv_lshlrev_b32 v{DA+1}, 7, v{DA+1}\nv_lshrrev_b32 v{DA+2}, 5, v{DA}\nv_lshl_add_u32 v{DA+2}, v{DA+2}, 4, v{DA+1}")
    e(f"s_lshr_b32 s{S_T}, s{S_CS}, 3\ns_lshl_b32 s{S_T}, s{S_T}, 12\ns_bfe_u32 s{S_U}, s{S_CS}, 0x10002\ns_lshl_b32 s{S_U}, s{S_U}, 15\ns_add_u32 s{S_T}, s{S_T}, s{S_U}\ns_and_b32 s{S_U}, s{S_CS}, 3\ns_lshl_b32 s{S_U}, s{S_U}, 5\ns_mov_b32 m0, {L_TB}\ns_add_u32 s{S_T}, s{S_T}, s{S_U}")
    e(f"buffer_load_dwordx4 v{DA+2}, s[12:15], s{S_T} offen lds")
    srd(8, 36, 16384 * 26)
    e(f"s_lshr_b32 s{S_T}, s{S_PID}, 2\ns_lshl_b32 s{S_T}, s{S_T}, 8\ns_and_b32 s{S_U}, s{S_PID}, 3\ns_lshl_b32 s{S_U}, s{S_U}, 4\ns_add_u32 s{S_T}, s{S_T}, s{S_U}\ns_mul_i32 s{S_T}, s{S_T}, 26\ns_mov_b32 m0, {L_TB+1024}")
    e(f"v_lshrrev_b32 v{DA+1}, 4, v{DA}\nv_mul_u32_u24 v{DA+1}, 1664, v{DA+1}\nv_and_b32 v{DA+2}, 15, v{DA}\nv_mul_u32_u24 v{DA+2}, 28, v{DA+2}\nv_add_u32 v{DA+2}, v{DA+2}, v{DA+1}")
    e(f"buffer_load_dword v{DA+2}, s[8:11], s{S_T} offen lds")
    dlp(32, L_PC)
O0 = O1 = ACCB + 16; U0 = ACCB + 24; U1 = ACCB + 25; DD = ACCB
def dx12():
    e(f"s_lshl_b32 s{S_CNT}, s{S_WAVE}, 1")
    idx_dst()
    e(f"s_lshl_b32 s{S_U}, s{S_WAVE}, 13\ns_add_u32 s{S_U}, s{S_U}, {L_STG}")
    e(f"v_and_b32 v{U1}, 15, v{U0}\nv_lshl_add_u32 v{U0}, v{U0}, 7, s{S_U}\nv_lshl_add_u32 v{U0}, v{U1}, 2, v{U0}\nv_xor_b32 v{O0}, 1, v{U1}\nv_lshl_or_b32 v{U1}, v{O0}, 16, v{U1}")
    for h, o in ((0, O0), (1, O1)):
        for t in range(16): e(f"v_xor_b32 v{DD+t}, {4*t}, v{U0}\nds_read_b32 v{DD+t}, v{DD+t} offset:{64*h}")
        for u in range(8):
            e(f"v_xor_b32 v{o+u}, {2*u*0x10001:#x}, v{U1}\ns_waitcnt lgkmcnt({14-2*u})")
            e(f"v_lshl_add_u32 v{DD+2*u}, v{DD+2*u+1}, 16, v{DD+2*u}")
            e(f"v_lshl_add_u32 v{o+u}, v{DD+2*u}, 4, v{o+u}")
            if u % 4 == 3: e(f"buffer_store_dwordx4 v[{o+u-3}:{o+u}], v{VOFF}, s[4:7], s{70+h} offen offset:{(u//4)*128} sc1")
def dxp(fp0, lds):
    e(f"v_lshrrev_b32 v{O0}, 2, v{U0}\nv_and_b32 v{O0+1}, 1, v{U0}\nv_and_b32 v{O0+2}, 2, v{U0}\nv_lshlrev_b32 v{U1}, 3, v{O0}\nv_lshl_or_b32 v{U1}, v{O0+1}, 11, v{U1}\nv_lshl_or_b32 v{U1}, v{O0+2}, 9, v{U1}\nv_add_u32 v{U1}, {lds}, v{U1}")
    for j in range(8): e(f"ds_read_b64 v[{DD+2*j}:{DD+2*j+1}], v{U1} offset:{j*128}")
    e(f"v_mul_u32_u24 v{O0}, {WSTR}, v{O0}\nv_and_b32 v{U0}, 3, v{U0}\nv_lshl_add_u32 v{U0}, v{U0}, 4, v{O0}")
    e(f"s_mul_i32 s70, s{S_BS}, {16*WSTR}\ns_lshr_b32 s{S_T}, s{S_CS}, 2\ns_lshl_b32 s{S_T}, s{S_T}, 10\ns_add_u32 s70, s70, s{S_T}")
    e(f"s_and_b32 s{S_T}, s{S_CS}, 3\ns_lshl_b32 s{S_T}, s{S_T}, 7\ns_add_u32 s70, s70, s{S_T}\ns_add_u32 s70, s70, {W1P + (fp0-16)*1024:#x}")
    e(f"s_mov_b32 s{S_T}, {PLO}\ns_mov_b32 s{S_U}, {PHI}\ns_waitcnt lgkmcnt(0)")
    for cp in range(2):
        for par in range(2):
            r = (O0, O1)[cp] + 4 * par
            for jj in range(4):
                r0 = DD + 4 * jj + cp
                e(f"v_perm_b32 v{r+jj}, v{r0+2}, v{r0}, s{S_U if par else S_T}")
            e(f"buffer_store_dwordx4 v[{r}:{r+3}], v{U0}, s[4:7], s70 offen offset:{par*512+cp*64} sc1")
def dx3():
    a = DD
    e(f"v_lshlrev_b32 v{U1}, 4, v{U0}\nv_add_u32 v{U1}, {L_EX}, v{U1}\nds_read_b128 v[{a}:{a+3}], v{U1}")
    e(f"s_lshr_b32 s70, s{S_PID}, 3\ns_mul_i32 s70, s70, {ISTR}\ns_add_u32 s70, s70, {IDXP + 6*16384:#x}")
    e(f"s_and_b32 s{S_T}, s{S_PID}, 7\ns_lshl_b32 s{S_T}, s{S_T}, 9\ns_add_u32 s70, s70, s{S_T}")
    e(f"v_and_b32 v{U1}, 31, v{U0}\nv_lshlrev_b32 v{U1}, 4, v{U1}\nv_lshrrev_b32 v{a+4}, 5, v{U0}\nv_lshl_or_b32 v{U1}, v{a+4}, 3, v{U1}")
    e(f"s_mov_b32 s{S_T}, 0x40014000\ns_mov_b32 s{S_U}, 0x40034002\ns_waitcnt lgkmcnt(0)")
    e(f"v_lshl_add_u32 v{a}, v{a+1}, 16, v{a}\nv_lshl_add_u32 v{a+2}, v{a+3}, 16, v{a+2}")
    e(f"v_lshl_add_u32 v{a}, v{a}, 2, s{S_T}\nv_lshl_add_u32 v{a+2}, v{a+2}, 2, s{S_U}")
    e(f"v_and_b32 v{a+1}, 1, v{U0}\nv_lshlrev_b32 v{a+1}, 4, v{a+1}\nv_and_b32 v{a+3}, 2, v{U0}\nv_cmp_ne_u32 vcc, 0, v{a+3}")
    e(f"v_alignbit_b32 v{a}, v{a}, v{a}, v{a+1}\nv_alignbit_b32 v{a+2}, v{a+2}, v{a+2}, v{a+1}")
    e(f"v_cndmask_b32 v{O1+6}, v{a}, v{a+2}, vcc\nv_cndmask_b32 v{O1+7}, v{a+2}, v{a}, vcc")
    e(f"buffer_store_dwordx2 v[{O1+6}:{O1+7}], v{U1}, s[4:7], s70 offen sc1")
    e(f"s_cmp_ge_u32 s{S_CS}, 8\ns_cbranch_scc1 g_join")
    dxp(48, L_PC + 4096)
def dx0():
    e(f"v_lshlrev_b32 v{U1}, 4, v{U0}\nv_add_u32 v{U1}, {L_TB}, v{U1}\nds_read_b128 v[{ACCB+28}:{ACCB+31}], v{U1}")
    e(f"s_lshl_b32 s70, s{S_BS}, 17\ns_lshr_b32 s{S_T}, s{S_CS}, 3\ns_lshl_b32 s{S_T}, s{S_T}, 14\ns_add_u32 s70, s70, s{S_T}\ns_and_b32 s{S_T}, s{S_CS}, 7\ns_lshl_b32 s{S_T}, s{S_T}, 7\ns_add_u32 s70, s70, s{S_T}\ns_add_u32 s70, s70, {TABP:#x}\ns_add_u32 s71, s70, 8192\ns_waitcnt lgkmcnt(0)")
    e(f"buffer_store_dwordx4 v[{ACCB+28}:{ACCB+31}], v{VOFF}, s[4:7], s70 offen sc1")
    dxp(32, L_PC)
DB = [ACC, D0, ACC, D0]
PK = [HOLD, HOLD + 16, ACC, D0]
WQ = [0] + [int(c) for c in A("WQ", "033")] + [2]
BU = A("BU", 0)
pend = []; m0cur = [None]; lds_after = [0]
def flush(n):
    for _ in range(n):
        if not pend: return
        t, r = pend.pop(0)
        want = S_M0A if t < 2 else S_M0B
        if m0cur[0] != want: e(f"s_mov_b32 m0, s{want}\ns_nop 0"); m0cur[0] = want
        wr(PK[t] + r, t, r); lds_after[0] += 1
        g = 16 * t + r - 34
        if 0 <= g < 16: e(f"v_mov_b32 v{ACC+g}, 0")
for vt in range(5):
    m0cur[0] = None
    if vt < 4: e(f"s_waitcnt lgkmcnt({min(lds_after[0], 15)})")
    b = DB[vt - 1]
    for i in range(9):
        if vt < 4 and i < 8: mf(vt, i, base=DB[vt])
        if 0 < vt < 4 and i == 0: e("s_nop 10")
        new = []
        if vt > 0 and i < 8:
            for r in (2 * i, 2 * i + 1):
                cvt(PK[vt - 1] + r, r, b); new.append((vt - 1, r))
                if vt == 3: e(f"v_mov_b32 v{ACC+16+r}, 0")
        if BU and vt < 4: flush(8 * WQ[vt] if i == 8 else 0)
        else: flush(WQ[vt] if (vt, i) != (4, 8) else 99)
        pend += new
        if i == TRI and vt < 3: tab_rd(vt + 1); lds_after[0] = 0
    if not DE and PRE + 1 + vt < 4: tab_dma(PRE + 1 + vt)
    if vt == PI: poll_issue()
    if vt == PI + 1: poll_check()
    if vt == KT:
        assert KT >= PI + 1
        for k in range(KA, KPRE): ldi(POOL + 4 * k, k, ("i", k))
    if vt == (3 if B2 else 4):
        fstamp(9)
        wait_vm("w1xw", "w1x")
        fstamp(10)
        e("ds_write_b128 v17, v[24:27]")
        if B2:
            e("s_waitcnt lgkmcnt(0)\ns_barrier")
            fstamp(11)
            for i in range(8): e(f"ds_read_b128 v[{W1+4*i}:{W1+4*i+3}], v16 offset:{i*1024}")
e(f"s_cmp_lg_u32 s{S_WAVE}, 7\ns_cbranch_scc1 1f\nv_mov_b32 v10, {L_HC}\nv_mov_b32 v11, 0\nds_write_b32 v10, v11\n1:")
fstamp(12)
wait_vm("p0i", ("i", 1))
unpack(POOL)
e(f"s_mov_b32 s{S_CNT}, 3")
e("s_waitcnt lgkmcnt(0)\ns_barrier")
if not B2:
    for i in range(8): e(f"ds_read_b128 v[{W1+4*i}:{W1+4*i+3}], v16 offset:{i*1024}")
e("@ENDREGION")
if not B2: e("s_waitcnt lgkmcnt(0)")
stamp(7)
if STAMP == 1: e(f"s_waitcnt lgkmcnt(0)\ns_mov_b32 s40, s{SB+14}\ns_mov_b32 s42, s{SB+14}\ns_mov_b32 s44, 0\ns_mov_b32 s45, 0\ns_mov_b32 s46, 0")

assert B2
a_, b_, c_, d_ = POOL, POOL + 16, POOL + 32, POOL + 48
def g4(*bases): return [b + 4 * i for b in bases for i in range(4)]
WG = [W1 + 4 * frag_of(i) for i in range(8)]
GRP = [g4(a_, b_, c_, d_), g4(d_) + WG + g4(D1), g4(d_, b_, c_, a_), g4(d_, b_, c_, a_), g4(a_, b_, c_, d_), g4(a_, b_, c_, d_)]
for k in range(KPRE): vm.tag[("i", 0, k)] = vm.tag[("i", k)]
def ld(reg, base, off, tag, extra=""):
    e(f"s_add_u32 s{S_T}, s{base}, {off & ~1023}\nbuffer_load_dwordx4 v[{reg}:{reg+3}], v{VOFF}, s[4:7], s{S_T} offen offset:{off & 1023} sc1")
    vm.issue(tag)
def L(h, k): return lambda: ld(GRP[h][k], S_IDX2 if h % 2 else S_IDX, (h // 2) * 32768 + (k // 8) * 8192 + (k % 8) * 128, ("i", h, k))
def LW(i, off): return lambda: ld(W1 + 4 * i, S_W1, off + i * 128, ("w", i))
S_TB = 54; S_XS = 55; S_XR = 24 + 0
def LT(vt, sx): return lambda: ld(TABH + 16 * (vt % 2) + 4 * sx, S_TB, (vt // 2) * 8192 + ((vt % 2) * 4 + sx) * 128, ("tb", vt))
skip_n = [0]
def wv(tag):
    n = vm.younger(tag); assert n < 64
    if vm.tag[tag] <= skip_n[0]: e(f"s_cmp_lt_u32 s{S_WAVE}, 4\ns_cbranch_scc1 1f\ns_waitcnt vmcnt({n})\n1:")
    else: e(f"s_waitcnt vmcnt({n})")
def smf2(a, slot):
    d = DAT + 8 * slot
    e(f"v_smfmac_f32_16x16x64_bf16 v[{a}:{a+3}], v[{AC}:{AC+3}], v[{d}:{d+7}], v{SIDX}")
def mf2(tb, i):
    sx, par = i // 2, i % 2
    d = D0 + 16 * par
    c = "0" if sx == 0 else f"v[{d}:{d+15}]"
    e(f"v_mfma_f32_32x32x16_bf16 v[{d}:{d+15}], v[{tb+4*sx}:{tb+4*sx+3}], v[{W1+16*par+4*sx}:{W1+16*par+4*sx+3}], {c}")
def qunits(h): return [(GRP[h][q // 2] + 2 * (q % 2), (ACCB if h % 2 else ACC) + 4 * (q // 4), ("i", h, q // 2 + 1) if q % 4 == 0 else None) for q in range(32)]
def run(units, pre, mid, end):
    for i, u in enumerate(units):
        if i >= 3:
            e("s_waitcnt lgkmcnt(8)"); smf2(units[i - 3][1], i % 3)
        for f in pre.get(i, []): f()
        reads(u[0], i % 3)
        for f in mid.get(i, []): f()
        if i + 1 < len(units):
            if units[i + 1][2]: wv(units[i + 1][2])
            unpack(units[i + 1][0])
        for f in end.get(i, []): f()
def add(d, i, *f): d.setdefault(i, []).extend(f)
def pgen(mid, end, o, tbs, stg, waitw, waitt):
    for t in range(4):
        for i in range(8):
            if t == 0 and i % 2 == 0 and waitw: add(mid, o + MQ[i], lambda i=i: wv(("w", frag_of(i + 1))))
            if i == 0 and waitt[t] is not None: add(mid, o + 8 * t + MQ[0], lambda t=t: wv(("tb", waitt[t])))
            add(mid, o + 8 * t + MQ[i], lambda t=t, i=i: mf2(tbs[t], i))
        if stg[t] is not None: add(end, o + 8 * t + 7, lambda t=t: [cvt(stg[t] + r, r) for r in range(16)])
def tail(units, before_bar):
    n = len(units)
    e("s_waitcnt lgkmcnt(8)"); smf2(units[n - 3][1], n % 3)
    e("s_waitcnt lgkmcnt(4)"); smf2(units[n - 2][1], (n + 1) % 3)
    before_bar()
    e("s_waitcnt lgkmcnt(0)\ns_barrier")
def wphase(last, order, acts, nxt):
    n = 0; cur = None
    for vt, src in order:
        want = S_M0A if vt < 2 else S_M0B
        if want != cur: e(f"s_mov_b32 m0, s{want}\ns_nop 0"); cur = want
        for r in range(16):
            for f in acts.get(n, []): f()
            wr(src + r, vt, r)
            if n == SP: smf2(*last)
            n += 1
    wv(nxt[2]); unpack(nxt[0])
    e("s_waitcnt lgkmcnt(0)\ns_barrier")
def pst(i, f=4):
    if f == 4 and PROBE == 20 + i: e("s_memrealtime s[96:97]")
    if FINE == f and STAMP: e(f"s_memtime s[{SB+2*i}:{SB+1+2*i}]")

XQ = A("XQ", 32); SQ = A("SQ", 40)
units = qunits(0) + qunits(1); pre = {}; mid = {}; end = {}
pgen(mid, end, 0, [TAB, TAB + 16, TAB + 32, TAB + 48], [a_, b_, c_, D0], False, [None] * 4)
for j, k in enumerate(range(KPRE, 16)): add(mid, j * A("LS", 10) // (16 - KPRE), L(0, k))
for k in range(4): add(mid, 25 + 2 * k, L(1, k))
for k in range(4, 12): add(mid, (26, 28, 30, 32, 34, 36, 38, 40)[k - 4], L(1, k))
for k in range(12, 16): add(mid, 42 + 2 * (k - 12), L(1, k))
def hook_d():
    e(f"s_cmp_ge_u32 s{S_WAVE}, 4\ns_cbranch_scc1 d_join")
    e("s_mov_b32 s8, s32\ns_mov_b32 s9, s33\ns_mov_b32 s16, s42\ns_mov_b32 s17, s43\ns_waitcnt vmcnt(0)")
    lane_to(DA); role_old("d", dl12, dl3, dl0); skip_n[0] = vm.n
def hook_x():
    e(f"s_cmp_ge_u32 s{S_WAVE}, 4\ns_cbranch_scc1 g_join")
    lane_to(U0); e("s_waitcnt vmcnt(0)"); role_old("g", dx12, dx3, dx0); skip_n[0] = vm.n; vm.tag["dst"] = vm.n
def hook_s():
    r = ACCB + 28
    e(f"s_cmp_ge_u32 s{S_WAVE}, 4\ns_cbranch_scc1 s_join")
    e(f"v_mov_b32 v{r}, {L_HC}\nv_mov_b32 v{r+1}, 1\ns_mov_b64 exec, 1\ns_waitcnt vmcnt({vm.younger('dst')})\nds_add_rtn_u32 v{r+2}, v{r}, v{r+1}")
    e(f"s_lshl_b32 s{S_T}, s{S_PID}, 7\ns_add_u32 s{S_T}, s{S_T}, {FLGB:#x}\nv_mov_b32 v{r}, 0\nv_mov_b32 v{r+1}, s{S_N}\ns_waitcnt lgkmcnt(0)")
    e(f"v_readfirstlane_b32 s{S_U}, v{r+2}\ns_nop 0\ns_cmp_lg_u32 s{S_U}, 3\ns_cbranch_scc1 1f\nbuffer_store_dword v{r+1}, v{r}, s[4:7], s{S_T} offen sc1\n1:\ns_mov_b64 exec, -1\ns_join:")
assert A("HD", 15) == 15
add(end, A("HD", 15), hook_d); add(end, XQ, lambda: pst(1, 6), hook_x, lambda: pst(2, 6)); add(end, SQ, hook_s, lambda: pst(3, 6))
assert 15 <= XQ <= 32 and XQ < SQ < 58
for g in range(8): add(end, 33 + 4 * g, lambda g=g: [e(f"v_mov_b32 v{ACCB+4*g+c}, 0") for c in range(4)])
add(pre, 32, lambda: pst(1))
def pb_issue():
    r = W1
    lane_to(r)
    e(f"s_lshr_b32 s{S_T}, s{S_CS}, 4\nv_mov_b32 v{r+1}, s{S_T}\nv_lshrrev_b32 v{r+2}, 3, v{r}\nv_xor_b32 v{r+2}, s{S_BS}, v{r+2}\nv_cmp_gt_u32 vcc, 16, v{r}\nv_and_b32 v{r}, 7, v{r}\ns_lshl_b32 s70, s{S_WAVE}, 10")
    e(f"v_cndmask_b32 v{r+1}, v{r+1}, v{r+2}, vcc\nv_lshl_add_u32 v{r}, v{r+1}, 6, v{r}\nv_lshlrev_b32 v{r}, 7, v{r}\ns_add_u32 s70, s70, {FLGB:#x}")
    e(f"buffer_load_dword v{r+1}, v{r}, s[4:7], s70 offen sc1"); vm.issue("pb")
add(end, A("PQ", 56), pb_issue)
run(units, pre, mid, end)
def poll_b():
    r = W1
    e(f"s_mov_b32 s{S_U}, 0\npb_loop:\ns_waitcnt vmcnt(0)\nv_cmp_ne_u32 vcc, s{S_N}, v{r+1}\ns_cbranch_vccz pb_done")
    e(f"s_add_u32 s{S_U}, s{S_U}, 1\ns_cmp_gt_u32 s{S_U}, 0x40000\ns_cbranch_scc1 pb_done\ns_sleep 8\nbuffer_load_dword v{r+1}, v{r}, s[4:7], s70 offen sc1\ns_branch pb_loop\npb_done:")
tail(units, lambda: (pst(4, 6), poll_b(), pst(5, 6)))
pst(6, 6)
skip_n[0] = 0
pst(2)
params()
e(f"s_lshr_b32 s{S_TB}, s{S_CS}, 4\ns_lshl_b32 s{S_TB}, s{S_TB}, 3\ns_add_u32 s{S_TB}, s{S_TB}, s{S_WAVE}\ns_lshl_b32 s{S_TB}, s{S_TB}, 14\ns_add_u32 s{S_TB}, s{S_TB}, {TABP:#x}")
wphase((units[-1][1], (len(units) + 2) % 3), [(1, b_), (0, a_), (2, c_), (3, D0)], {0: [L(2, 0)], 4: [L(2, 1)], 16: [L(2, 2)], 32: [L(2, 3)]}, qunits(2)[0])
pst(3)
WA = W1 + 16; TL = W1 + 17; TM = W1 + 18
def xfr():
    lane_to(TL)
    e(f"v_and_b32 v{WA}, 0x7f, v{VOFF}\nv_and_b32 v{TM}, 4, v{TL}\nv_lshl_or_b32 v{WA}, v{TM}, 8, v{WA}\nv_and_b32 v{TM}, 8, v{TL}\nv_lshl_or_b32 v{WA}, v{TM}, 6, v{WA}\nv_and_b32 v{TM}, 16, v{TL}\nv_lshl_or_b32 v{WA}, v{TM}, 4, v{WA}")
    e(f"s_and_b32 s{S_U}, s{S_BS}, 1\ns_lshl_b32 s{S_U}, s{S_U}, 13\ns_sub_u32 s{S_U}, s{S_W1}, s{S_U}\ns_add_u32 s{S_U}, s{S_U}, 32768")
    for i in range(2): e(f"buffer_load_dwordx4 v[{W1+4*i}:{W1+4*i+3}], v{WA}, s[4:7], s{S_U} offen offset:{i*128} sc1"); vm.issue("xf")
def xgaddr():
    e(f"s_xor_b32 s{S_XS}, s{S_PID}, 64\ns_lshl_b32 s{S_XS}, s{S_XS}, 3\ns_add_u32 s{S_XS}, s{S_XS}, s{S_WAVE}\ns_lshl_b32 s{S_XS}, s{S_XS}, 13\ns_add_u32 s{S_XS}, s{S_XS}, {XG:#x}\ns_xor_b32 s{S_XR}, s{S_XS}, {64*8*8192:#x}")
def xmerge():
    wv("xf")
    for r in range(8): e(f"v_permlane16_swap_b32 v{W1+r}, v{W1+8+r}")
def xaddr():
    e(f"v_and_b32 v{WA}, 24, v{TL}\nv_and_b32 v{TM}, 3, v{TL}\nv_lshl_add_u32 v{WA}, v{TM}, 1, v{WA}\nv_bfe_u32 v{TM}, v{TL}, 2, 1\nv_add_u32 v{WA}, v{WA}, v{TM}")
    e(f"v_lshrrev_b32 v{TM}, 5, v{TL}\nv_lshl_add_u32 v{WA}, v{WA}, 1, v{TM}\ns_lshl_b32 s{S_T}, s{S_WAVE}, 10\ns_add_u32 s{S_T}, s{S_T}, {L_XT}\nv_lshl_add_u32 v{WA}, v{WA}, 4, s{S_T}")
def xm(vt, sx):
    d = D0 + 16 * (vt % 2); tb = TABH + 16 * (vt % 2) + 4 * sx
    e(f"v_mfma_f32_32x32x16_bf16 v[{d}:{d+15}], v[{W1+4*sx}:{W1+4*sx+3}], v[{tb}:{tb+3}], " + ("0" if sx == 0 else f"v[{d}:{d+15}]"))
def xw(vt):
    d = D0 + 16 * (vt % 2)
    for r in range(4): e(f"v_cvt_pk_bf16_f32 v{d+r}, v{d+r}, v{d+4+r}")
    e(f"ds_write_b128 v{WA}, v[{d}:{d+3}] offset:{vt*8192}")
def px(mid, end, o, tiles):
    add(mid, o, xfr); add(end, o + 6, xmerge); add(end, o + 7, xaddr)
    for j, vt in enumerate(tiles):
        for sx in range(4): add(mid, o + 8 + 4 * j + sx, lambda vt=vt, sx=sx: xm(vt, sx))
        add(end, o + 13 + 4 * j, lambda vt=vt: xw(vt))
units = qunits(2) + qunits(3); pre = {}; mid = {}; end = {}
px(mid, end, 2, (2, 3))
for k in range(4, 16): add(mid, (0, 1, 3, 4, 5, 6, 8, 9, 11, 12, 14, 15)[k - 4], L(2, k))
for k in range(4): add(mid, 16 + k, L(3, k))
for i in range(8): add(mid, 20 + i, LW(frag_of(i), 16384))
pgen(mid, end, 32, [TABH, TABH + 16, TABH, TABH + 16], [d_, b_, c_, None], True, [None, None, 0, 1])
for k in range(4, 16): add(mid, [int(x) for x in A("L3", "30.31.32.33.34.35.37.38.43.44.45.46").split(".")][k - 4], L(3, k))
for sx in range(4): add(mid, 39 + sx, LT(0, sx)); add(mid, 47 + sx, LT(1, sx))
for k in range(4): add(mid, 57 + 2 * k, L(4, k))
if A("RB", 1): add(pre, 32, lambda: e("s_barrier"))
add(pre, 32, lambda: pst(4))
run(units, pre, mid, end)
tail(units, lambda: [cvt(D0 + r, r) for r in range(16)])
pst(5)
wphase((units[-1][1], (len(units) + 2) % 3), [(3, b_), (2, d_), (0, c_), (1, D0)], {32 + 8 * k: [L(4, 4 + k)] for k in range(4)}, qunits(4)[0])
stamp(8)
XI = W1 + 16
SC = TABH; LN = SC; ROW = SC + 1; PV = SC + 4; RES = SC + 8; XW = SC + 16; X8 = SC + 30
XB = A("XB", 44); SS = A("SS", 5); RQ = A("RQ", 52)
q5 = qunits(5)
units = qunits(4) + q5[:XB - 32] + [(XI + 2 * g, ACCB + 4 * g, None) for g in range(8)] + q5[XB - 32:]
pre = {}; mid = {}; end = {}
add(mid, 0, xgaddr)
px(mid, end, 1, (0, 1))
L4 = [int(x) for x in A("L4", "0.2.4.6.8.10.12.14").split(".")]
L5 = [int(x) for x in A("L5", "15.16.17.18.22.24.26.29.30.31.33.34.35.37.38.39").split(".")]
for k in range(8, 16): add(mid, L4[k - 8], L(4, k))
for k in range(16): add(mid, L5[k], L(5, k))
GB = [ACC, ACC + 8, ACC + 14, ACC + 22, ACC + 28]
def send(i):
    b = GB[i]
    if i < 4:
        v = ACC + 7 * i
        for c in range(4): e(f"v_cvt_pk_bf16_f32 v{b+c}, v{v+2*c}, v{v+2*c+(1 if c < 3 else 0)}")
        e(f"v_mov_b32_sdwa v{b+3}, s{S_N} dst_sel:WORD_1 dst_unused:UNUSED_PRESERVE src0_sel:WORD_0")
    else:
        for c in range(4): e(f"v_mov_b32_sdwa v{b+c}, s{S_N} dst_sel:BYTE_0 dst_unused:UNUSED_PRESERVE src0_sel:BYTE_0")
    e(f"s_nop 0\nbuffer_store_dwordx4 v[{b}:{b+3}], v{VOFF}, s[4:7], s{S_XS} offen offset:{i*128} sc1"); vm.issue()
def recv(i, cnt=True):
    b = GB[i]
    e(f"buffer_load_dwordx4 v[{b}:{b+3}], v{VOFF}, s[4:7], s{S_XR} offen offset:{i*128} sc1")
    if cnt: vm.issue(("r", i))
slow = []
def rcheck(i):
    b = GB[i]; t = SC + 31
    wv(("r", i))
    e(f"s_mov_b32 s{S_CNT}, 0\nrc{i}:")
    if i < 4: e(f"v_cmp_ne_u32_sdwa vcc, v{b+3}, s{S_N} src0_sel:WORD_1 src1_sel:WORD_0")
    else:
        for c in range(4): e(f"v_xor_b32 v{b+c}, v{PV+2}, v{b+c}")
        e(f"v_or3_b32 v{t}, v{b}, v{b+1}, v{b+2}\nv_or_b32 v{t}, v{t}, v{b+3}\nv_and_b32 v{t}, 255, v{t}\nv_cmp_ne_u32 vcc, 0, v{t}")
    e(f"s_cbranch_vccnz rs{i}\nrd{i}:")
    slow.append(i)
def IL(k, d): return [int(x) for x in A(k, d).split(".")]
TS = IL("TS", "12.20.28.32.36"); TR = IL("TR", "46.49.53.57.61"); TC = IL("TC", "53.57.61.65.69"); TE = IL("TE", "54.58.59.62.64.68")
for i in range(5):
    assert TS[i] >= 4 * (min(7 * i + 6, 31) // 4) + 8 and TS[i] < TR[i] < TC[i]
    add(end, TS[i], lambda i=i: send(i)); add(end, TR[i], lambda i=i: recv(i)); add(end, TC[i], lambda i=i: rcheck(i))
for g in range(6): assert TE[g] >= TC[(4 * g + 3) // 7]
def setup():
    lane_to(LN)
    e(f"v_lshlrev_b32 v{X8}, 4, v{LN}\ns_and_b32 s{S_U}, s{S_BS}, 1\ns_lshl_b32 s{S_U}, s{S_U}, 14\ns_sub_u32 s{S_IDX}, s{S_IDX2}, s{S_U}\ns_add_u32 s{S_IDX}, s{S_IDX}, {6*16384}")
    e(f"v_and_b32 v{PV+1}, 15, v{LN}\nv_lshlrev_b32 v{PV+1}, 4, v{PV+1}\nv_lshrrev_b32 v{PV}, 4, v{LN}\nv_lshl_or_b32 v{PV}, v{PV}, 14, v{PV+1}")
    e(f"s_lshl_b32 s70, s{S_BS}, 20\ns_lshl_b32 s71, s{S_WAVE}, 17\ns_add_u32 s70, s70, s71\ns_lshl_b32 s71, s{S_CS}, 8\ns_add_u32 s70, s70, s71")
    e(f"s_add_u32 s70, s70, {PART:#x}\ns_add_u32 s71, s70, 65536")
    e(f"s_and_b32 s{S_U}, s{S_N}, 255\nv_mov_b32 v{PV+2}, s{S_U}\ns_mov_b32 s{S_W1}, 0xffffff00")
    e("s_lshl_b32 s56, s58, 16\ns_and_b32 s57, s58, 0xffff0000\ns_lshl_b32 s58, s59, 16\ns_and_b32 s59, s59, 0xffff0000")
    e("s_xor_b32 s52, s52, 0x80008000\ns_xor_b32 s53, s53, 0x80008000")
    e("s_lshl_b32 s0, s52, 16\ns_and_b32 s1, s52, 0xffff0000\ns_lshl_b32 s52, s53, 16\ns_and_b32 s53, s53, 0xffff0000")
    e(f"v_mov_b32 v{PV+1}, s0\nv_mul_f32 v{SC+3}, s56, v{PV+1}")
    for c, r in ((1, 1), (2, 52), (3, 53)): e(f"v_mov_b32 v{PV+1}, s{r}\nv_fma_f32 v{SC+3}, v{PV+1}, s{56+c}, v{SC+3}")
    e(f"v_xor_b32 v{SC+3}, 0x80000000, v{SC+3}")
    srd(8, 36, 16384 * 26); srd(12, 50, 32768)
add(end, 19, setup)
def xld(g):
    e(f"buffer_load_dwordx4 v[{XI+4*g}:{XI+4*g+3}], v{X8}, s[4:7], s{S_IDX} offen offset:{g*1024} sc1"); vm.issue(("x", g))
for g in range(4): add(mid, A('XL', 21) + 2 * g, lambda g=g: xld(g))
def xswap():
    wv(("x", 3))
    for g in range(4): e(f"v_permlane32_swap_b32 v{XI+4*g}, v{XI+4*g+2}\nv_permlane32_swap_b32 v{XI+4*g+1}, v{XI+4*g+3}")
add(mid, XB - 2, xswap)
add(pre, A("XBAR", 24), lambda: e("s_barrier"))
for b in IL("BARS", "52"): add(pre, b, lambda: e("s_barrier"))
add(pre, A("PY", 99), lambda: e(f"s_cmp_ge_u32 s{S_WAVE}, 4\ns_cbranch_scc0 1f\ns_setprio 1\n1:"))
add(pre, 32, lambda: pst(6))
def wide():
    e(f"s_cmp_lg_u32 s{S_WAVE}, 0\ns_cbranch_scc1 nowide")
    e(f"s_lshr_b32 s{S_T}, s{S_PID}, 2\ns_lshl_b32 s{S_T}, s{S_T}, 8\ns_and_b32 s{S_U}, s{S_PID}, 3\ns_lshl_b32 s{S_U}, s{S_U}, 4\ns_add_u32 s{S_T}, s{S_T}, s{S_U}")
    e(f"v_lshrrev_b32 v{ROW}, 4, v{LN}\nv_and_b32 v{ROW+1}, 15, v{LN}\nv_lshl_add_u32 v{ROW}, v{ROW}, 6, v{ROW+1}\nv_add_u32 v{ROW}, s{S_T}, v{ROW}")
    e(f"v_mul_u32_u24 v{ROW+1}, 26, v{ROW}")
    for j in range(13): e(f"buffer_load_ushort v{XW+j}, v{ROW+1}, s[8:11], 0 offen offset:{2*j}")
    e("nowide:")
add(end, A('XBAR', 24) - 1, wide)
def epi(g):
    a = ACCB + 4 * g
    t = SC + 31
    for c in range(4):
        n = 4 * g + c
        if g == 7: e(f"v_add_f32 v{a+c}, v{a+c}, v{GB[4]+c}"); continue
        r = GB[n // 7] + (n % 7) // 2
        e((f"v_and_b32 v{t}, 0xffff0000, v{r}" if n % 7 % 2 else f"v_lshlrev_b32 v{t}, 16, v{r}") + f"\nv_add_f32 v{a+c}, v{a+c}, v{t}")
    for c in range(4): e(f"v_max_f32 v{a+c}, s{(0, 1, 52, 53)[c]}, v{a+c}")
    e(f"v_fma_f32 v{RES+g}, v{a}, s56, v{SC+3}")
    for c in range(1, 4): e(f"v_fma_f32 v{RES+g}, v{a+c}, s{56+c}, v{RES+g}")
    e(f"v_and_or_b32 v{RES+g}, v{RES+g}, s{S_W1}, v{PV+2}")
    if g % 4 == 3: e(f"buffer_store_dwordx4 v[{RES+g-3}:{RES+g}], v{PV}, s[4:7], s{70 + g//4} offen sc1"); vm.issue()
for g, st in enumerate(TE):
    assert st >= max(i for i, u in enumerate(units) if u[1] == ACCB + 4 * g) + 5
    add(end, st, lambda g=g: epi(g))
for j, st in enumerate((16, 32, 44, 52, 60, 68)): add(pre, st, lambda j=j: pst(1 + j, 7))
run(units, pre, mid, end)
n = len(units)
e("s_waitcnt lgkmcnt(8)"); smf2(ACCB + 28, n % 3)
e("s_waitcnt lgkmcnt(4)"); smf2(ACCB + 28, (n + 1) % 3)
epi(6)
e("s_waitcnt lgkmcnt(0)"); smf2(ACCB + 28, (n + 2) % 3)
e(f"v_lshlrev_b32 v{PV+1}, 4, v{LN}")
e(f"s_lshl_b32 s70, s{S_PID}, 14\ns_lshl_b32 s{S_T}, s{S_WAVE}, 11\ns_add_u32 s70, s70, s{S_T}\ns_add_u32 s70, s70, {PART:#x}")
e(f"s_lshl_b32 s{S_T}, s{S_WAVE}, 8\ns_add_u32 s{S_T}, s{S_T}, {128000}\nv_lshl_add_u32 v{PV+3}, v{LN}, 2, s{S_T}")
e("s_nop 0")
epi(7)
stamp(9)
e(f"s_cmp_lg_u32 s{S_WAVE}, 0\ns_cbranch_scc1 nowide2")
e("s_waitcnt vmcnt(2)")
e(f"s_lshl_b32 s68, s68, 16\ns_lshl_b32 s69, s69, 16\nv_mov_b32 v{XW+13}, s68\nv_add_f32 v{XW+13}, s69, v{XW+13}")
for j in range(13):
    sw = 60 + j // 2
    if j % 2 == 0: e(f"s_lshl_b32 s{S_T}, s{sw}, 16")
    else: e(f"s_and_b32 s{S_T}, s{sw}, 0xffff0000")
    e(f"v_lshlrev_b32 v{XW+j}, 16, v{XW+j}")
    e(f"v_fma_f32 v{XW+13}, v{XW+j}, s{S_T}, v{XW+13}")
e("nowide2:")
e(f"s_mov_b32 s{S_CNT}, 0")
if A("EB", 1) < 2: e("s_waitcnt vmcnt(0)")
if A("EB", 1): e("s_barrier")
stamp(10)
e("poll2:")
e(f"buffer_load_dwordx4 v[{D1}:{D1+3}], v{PV+1}, s[4:7], s70 offen sc1")
e(f"buffer_load_dwordx4 v[{D1+4}:{D1+7}], v{PV+1}, s[4:7], s70 offen offset:1024 sc1")
e(f"s_add_u32 s{S_CNT}, s{S_CNT}, 1\ns_cmp_gt_u32 s{S_CNT}, 0x40000\ns_cbranch_scc1 poll2_done")
e("s_waitcnt vmcnt(0)")
for i in range(8): e(f"v_xor_b32 v{D1+i}, v{PV+2}, v{D1+i}")
e(f"v_or3_b32 v{D1+8}, v{D1}, v{D1+1}, v{D1+2}\nv_or3_b32 v{D1+9}, v{D1+3}, v{D1+4}, v{D1+5}\nv_or3_b32 v{D1+8}, v{D1+8}, v{D1+6}, v{D1+7}")
e(f"v_or_b32 v{D1+8}, v{D1+8}, v{D1+9}\nv_and_b32 v{D1+8}, 255, v{D1+8}\nv_cmp_ne_u32 vcc, 0, v{D1+8}")
if A("PS", 0): e(f"s_cbranch_vccz poll2_done\ns_sleep {A('PS', 0)}\ns_branch poll2")
else: e("s_cbranch_vccnz poll2")
e("poll2_done:\ns_waitcnt vmcnt(0)")
stamp(11)
for c in range(4): e(f"v_add_f32 v{D1+c}, v{D1+c}, v{D1+4+c}")
e(f"s_nop 1\nv_permlane32_swap_b32 v{D1}, v{D1+2}\nv_permlane32_swap_b32 v{D1+1}, v{D1+3}")
e(f"v_add_f32 v{D1}, v{D1}, v{D1+2}\nv_add_f32 v{D1+1}, v{D1+1}, v{D1+3}\ns_nop 1")
e(f"v_permlane16_swap_b32 v{D1}, v{D1+1}\nv_add_f32 v{D1}, v{D1}, v{D1+1}")
e(f"ds_write_b32 v{PV+3}, v{D1}\ns_waitcnt lgkmcnt(0)\ns_barrier")
e(f"s_cmp_lg_u32 s{S_WAVE}, 0\ns_cbranch_scc1 fin")
for i in range(1, 8): e(f"ds_read_b32 v{D1+i}, v{PV+3} offset:{256*i}")
e(f"v_add_f32 v{D1}, v{D1}, v{XW+13}\nv_lshlrev_b32 v{ROW}, 1, v{ROW}")
e("s_waitcnt lgkmcnt(0)")
e(f"v_add_f32 v{D1+1}, v{D1+1}, v{D1+2}\nv_add_f32 v{D1+3}, v{D1+3}, v{D1+4}\nv_add_f32 v{D1+5}, v{D1+5}, v{D1+6}\nv_add_f32 v{D1}, v{D1}, v{D1+7}")
e(f"v_add_f32 v{D1+1}, v{D1+1}, v{D1+3}\nv_add_f32 v{D1}, v{D1}, v{D1+5}\nv_add_f32 v{D1}, v{D1}, v{D1+1}")
e(f"v_mul_f32 v{D1}, 0xbfb8aa3b, v{D1}\nv_exp_f32 v{D1}, v{D1}\ns_nop 0\nv_add_f32 v{D1}, 1.0, v{D1}\nv_rcp_f32 v{D1}, v{D1}\ns_nop 0")
e(f"v_cvt_pk_bf16_f32 v{D1}, v{D1}, v{D1}")
e(f"buffer_store_short v{D1}, v{ROW}, s[12:15], 0 offen")
e("s_cmp_lg_u32 s2, 0\ns_cbranch_scc1 fin")
e(f"v_mov_b32 v{D1+1}, s{S_N}\nv_mov_b32 v{D1+2}, {EPOCH}\ns_mov_b64 exec, 1")
e(f"buffer_store_dword v{D1+1}, v{D1+2}, s[4:7], 0 offen\ns_mov_b64 exec, -1")
e("@ENDREGION\nfin:")
if FIX and A("MINS", 0):
    e("s_load_dwordx2 s[32:33], s[0:1], 80\ns_waitcnt lgkmcnt(0)")
    srd(16, 32, 256)
    e("s_not_b32 s98, s100\nv_mov_b32 v8, 0\nv_mov_b32 v9, s98\ns_mov_b64 exec, 1\nbuffer_atomic_umax v9, v8, s[16:19], 0 offen\ns_waitcnt vmcnt(0)")
    e(f"fixm:\ns_memrealtime s[98:99]\ns_waitcnt lgkmcnt(0)\ns_sub_u32 s98, s98, s100\ns_cmp_lt_u32 s98, {FIX - 1500}\ns_cbranch_scc1 fixm")
    e("buffer_load_dword v9, v8, s[16:19], 0 offen sc1\ns_waitcnt vmcnt(0)\nv_readfirstlane_b32 s100, v9\ns_nop 3\ns_not_b32 s100, s100\ns_mov_b64 exec, -1")
if FIX and A("PW", 255) != 255:
    e(f"s_mov_b32 s98, {A('PW', 255)}\ns_bitcmp0_b32 s98, s{S_WAVE}\ns_cbranch_scc1 done")
if FIX:
    e(f"fixl:\ns_memrealtime s[98:99]\ns_waitcnt lgkmcnt(0)\ns_sub_u32 s98, s98, s{96 if PROBE else 100}")
    e(f"s_cmp_lt_u32 s98, {FIX}\ns_cbranch_scc1 fixl")
if STAMP:
    stamp(12)
    e("s_memrealtime s[98:99]\ns_waitcnt lgkmcnt(0)")
    e(f"s_lshl_b32 s70, s2, 3\ns_add_u32 s70, s70, s{S_WAVE}\ns_lshl_b32 s70, s70, 7\ns_add_u32 s70, s70, {STMP:#x}")
    e("v_mov_b32 v8, 0")
    for i in range(1, 13):
        e(f"s_sub_u32 s{SB+2*i}, s{SB+2*i}, s{SB}\nv_mov_b32 v9, s{SB+2*i}")
        e(f"buffer_store_dword v9, v8, s[4:7], s70 offen offset:{4*(i-1)}")
    for i, r in enumerate((44, 45, 46, 100, 98, 38, 39)):
        e(f"v_mov_b32 v9, s{r}\nbuffer_store_dword v9, v8, s[4:7], s70 offen offset:{48+4*i}")
e("s_endpgm")
for h in slow:
    e(f"rs{h}:\ns_add_u32 s{S_CNT}, s{S_CNT}, 1\ns_cmp_gt_u32 s{S_CNT}, 0x40000\ns_cbranch_scc1 rd{h}\ns_sleep 4")
    recv(h, False)
    e(f"s_waitcnt vmcnt(0)\ns_branch rc{h}")
e("done:\ns_endpgm")

e(f""".section .rodata,"a"
.p2align 6
.amdhsa_kernel {KN}
  .amdhsa_next_free_vgpr 256
  .amdhsa_next_free_sgpr 102
  .amdhsa_accum_offset 256
  .amdhsa_group_segment_fixed_size 0
  .amdhsa_kernarg_size 96
  .amdhsa_user_sgpr_count 2
  .amdhsa_user_sgpr_kernarg_segment_ptr 1
  .amdhsa_system_sgpr_workgroup_id_x 1
.end_amdhsa_kernel""")

bysite = {str(k): v for k, v in waits.items()}
res = []
for l in out:
    if l.startswith("@VM "):
        n = bysite[l[4:]]
        assert 0 <= n <= 63
        l = f"s_waitcnt vmcnt({n})"
    res.append(l)
import re, subprocess, tempfile, os
def is_instr(l): return bool(re.match(r"^(s_|v_|ds_|buffer_|global_)\w*( |$)", l)) and not l.endswith(":")
tmp = [re.sub(r"@SEG_\w+", "done", l) for l in res if not l.startswith("@")]
with tempfile.TemporaryDirectory() as d:
    open(d + "/t.s", "w").write("\n".join(tmp) + "\n")
    subprocess.run(["clang", "-x", "assembler", "-target", "amdgcn-amd-amdhsa", "-mcpu=gfx950", "-c", d + "/t.s", "-o", d + "/t.o"], check=True)
    dis = subprocess.run(["llvm-objdump", "-d", "--mcpu=gfx950", d + "/t.o"], capture_output=True, text=True).stdout
sizes = [4 * len(m.group(1).split()) for m in re.finditer(r"// [0-9A-F]{12}: ([0-9A-F ]+)", dis)]
assert len(sizes) == sum(map(is_instr, tmp)), (len(sizes), sum(map(is_instr, tmp)))
al = 0; nal = 0; fin = []; addr = 0; k = 0; region = None; pads = {}; last = -1
for l in res:
    if l.startswith("@REGION"):
        _, tag, nseg = l.split(); region = tag; pads[tag] = [int(nseg), 0]; last = -1; continue
    if l.startswith("@ENDREGION"): region = None; continue
    if l.startswith("@ALIGN"):
        while addr % int(l.split()[1]): fin.append("s_nop 0"); addr += 4
        continue
    if l.startswith("@AL "): al = int(l.split()[1]); continue
    if is_instr(l):
        if al and sizes[k] == 8 and addr % 8 != (0 if AL == 1 else 4): fin.append("s_nop 0"); addr += 4; nal += 1
        if region and WARM and addr // LINE != last:
            last = addr // LINE
            n = pads[region][1]; pads[region][1] += 1
            fin.append(f"pad_{region}_{n}:"); fin.append(f"@PAD {region} {n}"); addr += 4
        addr += sizes[k]; k += 1
    fin.append(l)
def seg_start(tag, j):
    nseg, n = pads[tag]; return (n * j) // nseg
o2 = []
for l in fin:
    if l.startswith("@PAD"):
        _, tag, n = l.split(); n = int(n)
        starts = [seg_start(tag, j) for j in range(pads[tag][0] + 1)]
        l = f"s_cbranch_execz " + (f"warm_ret_{tag}" if n + 1 in starts else f"pad_{tag}_{n+1}")
    m = re.search(r"@SEG_(\w)_(\d+)", l)
    if m: l = l.replace(m.group(0), f"pad_{m.group(1)}_{seg_start(m.group(1), int(m.group(2)))}")
    o2.append(l)
sys.stderr.write(f"nal {nal} pads {pads} size {addr}\n")
DROP = A("DROP", "")
if DROP:
    i0 = o2.index("pb_done:"); keep = o2[:i0]; masked = False
    for l in o2[i0:]:
        if l.startswith("s_mov_b32 exec_hi"): masked = True
        if l.startswith("s_mov_b64 exec, -1"): masked = False
        if "s" in DROP and "buffer_store" in l and f"s{S_XS} offen" in l: l = "s_nop 0"
        if "r" in DROP and f"s{S_XR} off" in l: l = "s_nop 0"
        if ("s" in DROP or "r" in DROP) and l.startswith("s_cbranch_vccnz rs"): l = "s_nop 0"
        if "x" in DROP and masked and "buffer_load" in l: l = "s_nop 0"
        if "w" in DROP and l.startswith("ds_write_b128"): l = "s_nop 0"
        if "u" in DROP and "buffer_load_ushort" in l: l = "s_nop 0"
        keep.append(l)
    o2 = keep
if A("RT", 0): o2 = [l.replace("s_memtime", "s_memrealtime") for l in o2] + ["; s_memtime RT"]
print("\n".join(o2))
```

```python
import sys
args = dict(a.split("=") for a in sys.argv[1:])
def A(k, d): return type(d)(args.get(k, d))
STAMP = A("STAMP", 0); PROBE = A("PROBE", 0); FIX = A("FIX", 0)
PRIOQ = A("PRIOQ", -1); W1W = A("W1W", 0); CPF = A("CPF", 1); POLLT = A("POLLT", 2); PRE = A("PRE", 2); BAR0 = A("BAR0", 1); MAP = A("MAP", 1); CPL = A("CPL", 9); KPRE = A("KPRE", 8); DEFT = A("DEFT", -1); PREO = A("PREO", 1); HPQ = A("HPQ", 16); R1 = A("R1", 12); R2 = A("R2", 28); XT = A("XT", 1); PFW = A("PFW", 2); PI = A("PI", 0); XMAP = A("XMAP", 1); B2 = A("B2", 1); KT = A("KT", 2); KA = A("KA", 2); OD = A("OD", -1); W7T = A("W7T", 0); SPIN = A("SPIN", 0); W7A = A("W7A", 0); AL = A("AL", 0); MW = A("MW", 0); TRI = A("TRI", 4); DE = A("DE", 0); UNR = A("UNR", 1); DQ = A("DQ", 16); DT = A("DT", 3); SPF = A("SPF", 0); WARM = A("WARM", 0); LINE = A("LINE", 128); WB = A("WB", "L")
CS = [int(c, 32) for c in A("CS", "g")]; assert sum(CS) == 16
C0 = A("C0", 7); SP = A("SP", 8); MP = A("MP", 0)
MQ = [int(c) for c in A("MQ", "01123456")]

M2 = [int(c, 16) for c in A("M2", "")] or [2 * x for x in MQ]
M3 = [int(c, 16) for c in A("M3", "")] or M2
CE = C0 + len(CS) - 1 - 8
assert min(M2 + M3) >= 2 * CE + 1 and max(M2) <= 2 * (C0 - 1) and max(M3) <= 12
KN = "standalone__deep_cross_wide_deep__recsys_kernel"
EPOCH = 0x9a80
FLG = 0x1000
IDXP = 0x10000
ISTR = 6 * 16384 + 4096
W1P = 0x340000
WSTR = 34 * 1024
TABP = 0x570000
XG = 0x1000000
PART = 0x600000
STMP = 0xE00000
WS_SZ = 0x2000000
L_STG = 131072; L_XCH = 155648; L_XT = 131072; L_RED = 0

out = []
emit = True
def e(s):
    if emit:
        for l in s.split("\n"): out.append(l)
class Cnt:
    def __init__(self): self.n = 0; self.tag = {}
    def issue(self, tag=None):
        self.n += 1
        if tag is not None: self.tag[tag] = self.n
    def younger(self, tag): return self.n - self.tag[tag]
vm = Cnt()
waits = {}
def wait_vm(site, tag):
    n = vm.younger(tag)
    waits[site] = min(waits.get(site, 99), n)
    e(f"@VM {site}")
def srd(d, lo, nbytes):
    e(f"s_mov_b32 s{d}, s{lo}\ns_mov_b32 s{d+1}, s{lo+1}\ns_mov_b32 s{d+2}, {nbytes:#x}\ns_mov_b32 s{d+3}, 0x20000")
SB = 72
FINE = A("FINE", 0)
def hstamp(i):
    if STAMP and FINE == 3: e(f"s_memtime s[{SB+2*i}:{SB+1+2*i}]")
def gstamp(i):
    if STAMP and FINE == 2: e(f"s_memtime s[{SB+2*i}:{SB+1+2*i}]")
def fstamp(i):
    if STAMP and FINE == 1: e(f"s_memtime s[{SB+2*i}:{SB+1+2*i}]")
def stamp(i):
    if FINE == 1 and 9 <= i <= 12: return
    if FINE in (2, 4, 6, 7) and 1 <= i <= 6: return
    if FINE == 3 and 10 <= i <= 12: return
    if FINE == 5 and (5 <= i <= 12 or i == 1):
        if i == 7: e(f's_memtime s[{SB+2}:{SB+3}]')
        return
    if PROBE == i: e("s_memrealtime s[96:97]")
    if STAMP: e(f"s_memtime s[{SB+2*i}:{SB+1+2*i}]")

e(f"""; Wide & Deep recsys forward for gfx950, one launch, 256 workgroups x 8 waves (one per CU). Generated by my own script.
; @launch grid=(256,1,1) block=(512,1,1) lds=163840
.amdgcn_target "amdgcn-amd-amdhsa--gfx950"
.text
.globl {KN}
.p2align 8
.type {KN},@function
{KN}:""")

VOFF = 0; SIDX = 1; T0 = 2; T1 = 3; AC = 4
DAT = 8; TAB = 32; ACC = 96; POOL = 128; D0 = 192; D1 = 208; W1 = 224
S_WAVE = 3; S_IDX = 20; S_IDX2 = 21; S_W1 = 22; S_M0A = 23; S_M0B = 24; S_CNT = 25; S_BS = 26; S_CS = 27; S_PID = 28; S_N = 29
S_T = 30; S_U = 31
LANE = 8; L16 = 9
XA = POOL; XF = POOL + 16; XC = POOL + 48; XD = POOL + 16
PLO = "0x05040100"; PHI = "0x07060302"

HOLD = POOL + 32
FLGB = 0x330000
S_FB = 55; S_HP = 54
L_CTR = L_STG + 8192; L_XC2 = L_STG
DELTA = 28800
def piece_lane():
    e(f"v_lshrrev_b32 v10, 2, v{LANE}\nv_and_b32 v11, 1, v{LANE}\nv_and_b32 v12, 2, v{LANE}")
    e("v_lshlrev_b32 v13, 3, v10\nv_lshl_or_b32 v13, v11, 15, v13\nv_lshl_or_b32 v13, v12, 11, v13")
def piece_src(fp0):
    e(f"s_lshr_b32 s{S_T}, s{S_CS}, 2\ns_lshl_b32 s{S_T}, s{S_T}, 16\ns_and_b32 s{S_U}, s{S_CS}, 3\ns_lshl_b32 s{S_U}, s{S_U}, 13\ns_add_u32 s{S_T}, s{S_T}, s{S_U}")
    e(f"s_lshl_b32 s{S_U}, s{S_BS}, 7\ns_add_u32 s{S_T}, s{S_T}, s{S_U}\ns_add_u32 s{S_T}, s{S_T}, {fp0*65536:#x}")
def piece_ld(b):
    for j in range(8): e(f"buffer_load_dwordx2 v[{b+2*j}:{b+2*j+1}], v13, s[16:19], s{S_T} offen offset:{j*512}")
def piece_dst(fp0):
    e(f"v_mul_u32_u24 v18, {WSTR}, v10\nv_and_b32 v10, 3, v{LANE}\nv_lshl_add_u32 v18, v10, 4, v18")
    e(f"s_mul_i32 s70, s{S_BS}, {16*WSTR}\ns_lshr_b32 s{S_T}, s{S_CS}, 2\ns_lshl_b32 s{S_T}, s{S_T}, 10\ns_add_u32 s70, s70, s{S_T}")
    e(f"s_and_b32 s{S_T}, s{S_CS}, 3\ns_lshl_b32 s{S_T}, s{S_T}, 7\ns_add_u32 s70, s70, s{S_T}\ns_add_u32 s70, s70, {W1P + (fp0-16)*1024:#x}")
def piece_perm(src, dst):
    e(f"s_mov_b32 s{S_T}, {PLO}\ns_mov_b32 s{S_U}, {PHI}")
    for cp in range(2):
        for par in range(2):
            r = dst + 8 * cp + 4 * par
            for jj in range(4):
                r0 = src + 4 * jj + cp
                e(f"v_perm_b32 v{r+jj}, v{r0+2}, v{r0}, s{S_U if par else S_T}")
            e(f"buffer_store_dwordx4 v[{r}:{r+3}], v18, s[4:7], s70 offen offset:{par*512+cp*64} sc1")
def tab_dma(vt, count=True):
    e(f"s_add_u32 s{S_T}, s{S_M0A}, {vt*32768}\ns_mov_b32 m0, s{S_T}\ns_nop 0")
    for i in range(4):
        e(f"buffer_load_dwordx4 v{14 + i%2}, s[12:15], s{S_T} offen offset:{i*1024} lds")
        if count: vm.issue(("t", vt))
def xconsts(rowshift):
    e(f"v_lshl_add_u32 v17, v{LANE}, {rowshift}, s{S_T}")
    for t in range(16):
        e(f"v_add_u32 v16, {t}, v{LANE}\nv_and_b32 v{XF+t}, 15, v16\nv_lshl_add_u32 v{XA+t}, v{XF+t}, 2, v17")
    for u in range(8): e(f"v_lshl_or_b32 v{XC+u}, v{XF+2*u+1}, 16, v{XF+2*u}")
def idx_dst():
    e(f"s_lshr_b32 s70, s{S_PID}, 3\ns_mul_i32 s70, s70, {ISTR}\ns_add_u32 s70, s70, {IDXP:#x}")
    e(f"s_bfe_u32 s{S_T}, s{S_PID}, 0x10002\ns_lshl_b32 s{S_T}, s{S_T}, 13\ns_add_u32 s70, s70, s{S_T}")
    e(f"s_and_b32 s{S_T}, s{S_PID}, 3\ns_lshl_b32 s{S_T}, s{S_T}, 8\ns_add_u32 s70, s70, s{S_T}")
    e(f"s_lshl_b32 s{S_T}, s{S_CNT}, 14\ns_add_u32 s70, s70, s{S_T}\ns_add_u32 s71, s70, 16384")
def xform(off, dst, store):
    for t in range(16): e(f"ds_read_b32 v{XD+t}, v{XA+t} offset:{off}")
    for u in range(8):
        e(f"s_waitcnt lgkmcnt({14-2*u})")
        e(f"v_lshl_add_u32 v{XD+2*u}, v{XD+2*u+1}, 16, v{XD+2*u}")
        e(f"v_lshl_add_u32 v{dst+u}, v{XD+2*u}, 4, v{XC+u}")
        if store and u % 4 == 3: e(f"buffer_store_dwordx4 v[{dst+u-3}:{dst+u}], v{VOFF}, s[4:7], s70 offen offset:{(u//4)*128} sc1")
def role_old(tag, f12, f3, f0):
    e(f"s_cmp_eq_u32 s{S_WAVE}, 0\ns_cbranch_scc1 {tag}_w0\ns_cmp_eq_u32 s{S_WAVE}, 3\ns_cbranch_scc1 {tag}_w3")
    f12(); e(f"s_branch {tag}_join\n{tag}_w3:"); f3(); e(f"s_branch {tag}_join\n{tag}_w0:"); f0(); e(f"{tag}_join:")
def xf3():
    e(f"s_mov_b32 s{S_T}, 0x40014000\ns_mov_b32 s{S_U}, 0x40034002")
    e("v_lshl_add_u32 v28, v29, 16, v28\nv_lshl_add_u32 v30, v31, 16, v30")
    e(f"v_lshl_add_u32 v28, v28, 2, s{S_T}\nv_lshl_add_u32 v30, v30, 2, s{S_U}")
    e(f"v_and_b32 v29, 1, v{LANE}\nv_lshlrev_b32 v29, 4, v29\nv_and_b32 v31, 2, v{LANE}\nv_cmp_ne_u32 vcc, 0, v31")
    e("v_alignbit_b32 v28, v28, v28, v29\nv_alignbit_b32 v30, v30, v30, v29")
    e(f"v_cndmask_b32 v{HOLD}, v28, v30, vcc\nv_cndmask_b32 v{HOLD+1}, v30, v28, vcc")
def raw(lo, hi):
    for n in range(lo, hi):
        s_, j = n // 8, n % 8
        e(f"buffer_load_dword v{POOL+n}, v18, s[16:19], s71 offen offset:{j*512}")
        if j == 7 and s_ < 3: e("s_add_u32 s71, s71, 8192")
def voff_ws():
    e(f"s_load_dword s{S_N}, s[54:55], {EPOCH}")
    srd(4, 54, WS_SZ)
    srd(12, 34, 128000)
    e(f"v_and_b32 v16, 28, v{LANE}\nv_lshlrev_b32 v{VOFF}, 8, v16\nv_and_b32 v16, 1, v{LANE}\nv_lshl_or_b32 v{VOFF}, v16, 6, v{VOFF}")
    e(f"v_and_b32 v16, 32, v{LANE}\nv_or_b32 v{VOFF}, v{VOFF}, v16\nv_and_b32 v16, 2, v{LANE}\nv_lshl_or_b32 v{VOFF}, v16, 3, v{VOFF}")
def sloads(): pass
def params():
    e(f"s_lshl_b32 s{S_T}, s{S_CS}, 3")
    e(f"s_load_dwordx2 s[52:53], s[44:45], s{S_T}")
    e(f"s_load_dwordx2 s[58:59], s[46:47], s{S_T}")
    e("s_load_dwordx8 s[60:67], s[38:39], 0")
    e("s_load_dword s68, s[40:41], 0\ns_load_dword s69, s[48:49], 0")
def common():
    e(f"v_lshlrev_b32 v{L16}, 4, v{LANE}")
    e(f"v_lshrrev_b32 v16, 4, v{LANE}\nv_and_b32 v17, 7, v{LANE}\nv_xor_b32 v16, v16, v17\nv_lshlrev_b32 v16, 4, v16")
    e(f"v_lshrrev_b32 v17, 3, v{LANE}\nv_lshl_or_b32 v14, v17, 7, v16\nv_xor_b32 v15, 64, v14")
    e(f"v_bfe_u32 v19, v{LANE}, 2, 2\nv_bfe_u32 v20, v{LANE}, 4, 1\nv_lshlrev_b32 v20, 1, v20\nv_mov_b32 v21, 0x3f80")
    e("v_cmp_eq_u32 vcc, v19, v20\nv_add_u32 v20, 1, v20\ns_nop 0")
    e(f"v_cndmask_b32 v{AC}, 0, v21, vcc\nv_cndmask_b32 v{AC+1}, 0, v21, vcc")
    e(f"v_cmp_eq_u32 vcc, v19, v20\nv_and_b32 v19, 3, v{LANE}\ns_nop 0")
    e(f"v_cndmask_b32 v{AC+2}, 0, v21, vcc\nv_cndmask_b32 v{AC+3}, 0, v21, vcc")
    e(f"v_mul_u32_u24 v{SIDX}, 0x5555, v19")
    e(f"s_and_b32 s{S_U}, s{S_BS}, 1\ns_lshl_b32 s{S_U}, s{S_U}, 13\ns_mul_i32 s{S_W1}, s{S_CS}, {WSTR}\ns_add_u32 s{S_W1}, s{S_W1}, s{S_U}\ns_add_u32 s{S_W1}, s{S_W1}, {W1P:#x}")
    e(f"s_lshl_b32 s{S_U}, s{S_U}, 1\ns_add_u32 s{S_U}, s{S_U}, {IDXP:#x}\ns_lshl_b32 s{S_T}, s{S_BS}, 3\ns_add_u32 s{S_T}, s{S_T}, s{S_WAVE}\ns_mul_i32 s{S_IDX2}, s{S_T}, {ISTR}\ns_add_u32 s{S_IDX2}, s{S_IDX2}, s{S_U}")
    e(f"s_xor_b32 s{S_T}, s{S_T}, 8\ns_mul_i32 s{S_IDX}, s{S_T}, {ISTR}\ns_add_u32 s{S_IDX}, s{S_IDX}, s{S_U}")
    e(f"s_add_u32 s{S_M0B}, s{S_M0A}, {65536-DELTA}")
    e(f"s_lshl_b32 s{S_U}, s{S_WAVE}, 3\nv_and_b32 v13, 7, v{LANE}\nv_add_u32 v10, s{S_U}, v13")
    e(f"s_and_b32 s{S_U}, s{S_WAVE}, 3\ns_and_b32 s{S_T}, s{S_BS}, 1\ns_lshl_b32 s{S_T}, s{S_T}, 5\ns_add_u32 s{S_U}, s{S_U}, s{S_T}\nv_lshl_add_u32 v11, v13, 2, s{S_U}\nv_lshrrev_b32 v13, 3, v{LANE}\nv_cmp_eq_u32 vcc, 1, v13\ns_nop 1\nv_cndmask_b32 v10, v10, v11, vcc")
    e(f"s_lshr_b32 s{S_T}, s{S_CS}, 4\nv_mov_b32 v11, s{S_T}\nv_mov_b32 v16, s{S_BS}\nv_cmp_eq_u32 vcc, 0, v13\ns_nop 1\nv_cndmask_b32 v11, v11, v16, vcc")
    e(f"v_xor_b32 v16, 1, v16\nv_cmp_eq_u32 vcc, 2, v13\ns_nop 1\nv_cndmask_b32 v11, v11, v16, vcc\nv_lshl_add_u32 v10, v11, 6, v10\nv_lshlrev_b32 v19, 7, v10")
    e(f"v_and_b32 v10, 24, v{LANE}\nv_and_b32 v11, 3, v{LANE}\nv_lshl_add_u32 v10, v11, 1, v10\nv_bfe_u32 v12, v{LANE}, 2, 1\nv_add_u32 v10, v10, v12\nv_lshlrev_b32 v10, 7, v10")
    e(f"v_bfe_u32 v12, v{LANE}, 3, 1\nv_lshl_or_b32 v11, v12, 2, v11\nv_lshrrev_b32 v12, 5, v{LANE}\nv_xor_b32 v11, v11, v12\nv_lshl_or_b32 v10, v11, 4, v10")
    e(f"v_add_u32 v20, s{S_M0A}, v10\nv_add_u32 v12, {L_XCH}, v{L16}")
    for s_ in range(1, 4): e(f"v_xor_b32 v{20+s_}, {s_*32}, v20")
    e(f"v_add_u32 v16, {L_XC2}, v{L16}\ns_lshl_b32 s{S_U}, s{S_WAVE}, 10\nv_add_u32 v17, s{S_U}, v16")
def common_b():
    e(f"s_not_b32 s{S_N}, s{S_N}")
def tab_rd(vt):
    if STAMP and FINE == 5: e(f"s_memtime s[{SB+10+4*vt}:{SB+11+4*vt}]")
    wait_vm(("td", vt), ("t", vt))
    if STAMP and FINE == 5: e(f"s_memtime s[{SB+12+4*vt}:{SB+13+4*vt}]")
    if vt == 2:
        for s in range(4): e(f"v_add_u32 v{20+s}, 0x10000, v{20+s}")
    for s in range(4):
        r = TAB + 16 * vt + 4 * s
        e(f"ds_read_b128 v[{r}:{r+3}], v{20+s} offset:{(vt%2)*32768}")
def ldw(i):
    e(f"buffer_load_dwordx4 v[{W1+4*i}:{W1+4*i+3}], v{VOFF}, s[4:7], s{S_W1} offen offset:{i*128} sc1")
    vm.issue(("w", i))
def ldi(reg, k, tag):
    e(f"buffer_load_dwordx4 v[{reg}:{reg+3}], v{VOFF}, s[4:7], s{S_IDX if k < 8 else S_IDX2} offen offset:{(k%8)*128} sc1")
    vm.issue(tag)
def mf(vt, i, base=D0):
    s, par = i // 2, i % 2
    d = base + 16 * par
    c = "0" if s == 0 else f"v[{d}:{d+15}]"
    e(f"v_mfma_f32_32x32x16_bf16 v[{d}:{d+15}], v[{TAB+16*vt+4*s}:{TAB+16*vt+4*s+3}], v[{W1+16*par+4*s}:{W1+16*par+4*s+3}], {c}")
def frag_of(i): return (i % 2) * 4 + i // 2
def cvt(dst, r, base=D0): e(f"v_cvt_pk_bf16_f32 v{dst}, v{base+r}, v{base+16+r}")
def wr(src, vt, r):
    off = (vt % 2) * 32768 + r * 256 + (DELTA if vt >= 2 else 0)
    e(f"ds_write_addtid_b32 v{src} offset:{off}")
SD = "dst_sel:DWORD dst_unused:UNUSED_PAD src0_sel:DWORD"
def unpack(w0):
    e(f"v_lshlrev_b32_sdwa v{T0}, 3, v{w0} {SD} src1_sel:WORD_1")
    e(f"v_lshlrev_b32_sdwa v{w0}, 3, v{w0} {SD} src1_sel:WORD_0")
    e(f"v_lshlrev_b32_sdwa v{T1}, 3, v{w0+1} {SD} src1_sel:WORD_1")
    e(f"v_lshlrev_b32_sdwa v{w0+1}, 3, v{w0+1} {SD} src1_sel:WORD_0")
def reads(w0, slot):
    d = DAT + 8 * slot
    for i, a in enumerate((w0, T0, w0 + 1, T1)):
        e(f"ds_read_b64 v[{d+2*i}:{d+2*i+1}], v{a}")
def smf(g, slot):
    d = DAT + 8 * slot; a = ACC + 4 * g
    e(f"v_smfmac_f32_16x16x64_bf16 v[{a}:{a+3}], v[{AC}:{AC+3}], v[{d}:{d+7}], v{SIDX}")
def cpf_code(dst):
    e(f"s_getpc_b64 s[70:71]\ncpf_base:\ns_lshr_b32 s{S_U}, s2, 3\ns_mul_i32 s{S_U}, s{S_U}, {CPL*128}\nv_min_u32 v2, {CPL-1}, v{LANE}\nv_lshl_add_u32 v2, v2, 7, s{S_U}\nv_min_u32 v2, done-cpf_base, v2\nv_mov_b32 v3, s71")
    e("v_add_co_u32 v2, vcc, s70, v2\ns_nop 1\nv_addc_co_u32 v3, vcc, 0, v3, vcc")
    e(f"global_load_dword v{dst}, v[2:3], off")
def poll_issue():
    if CPF == 2:
        e(f"s_cmp_lg_u32 s{S_WAVE}, 7\ns_cbranch_scc1 1f")
        cpf_code(11)
        e("1:")
    stamp(5)
    e(f"s_mov_b32 s{S_T}, {FLG:#x}")
    e(f"buffer_load_dword v10, v19, s[4:7], s{S_T} offen sc1"); vm.issue("poll")
def poll_check():
    e(f"s_mov_b32 s{S_CNT}, 0\ns_mov_b32 s{S_T}, {FLG:#x}")
    wait_vm("pollw", "poll")
    e("poll1:")
    e(f"v_cmp_ne_u32 vcc, s{S_N}, v10\ns_cbranch_vccz poll1_done")
    e(f"s_sleep 8\nbuffer_load_dword v10, v19, s[4:7], s{S_T} offen sc1")
    e(f"s_add_u32 s{S_CNT}, s{S_CNT}, 1\ns_waitcnt vmcnt(0)\ns_cmp_lt_u32 s{S_CNT}, 0x40000\ns_cbranch_scc1 poll1")
    e("poll1_done:")
    stamp(6)
    e(f"s_lshl_b32 s{S_T}, s{S_WAVE}, 7\ns_add_u32 s{S_T}, s{S_T}, s{S_W1}")
    e(f"buffer_load_dwordx4 v[24:27], v{VOFF}, s[4:7], s{S_T} offen sc1"); vm.issue("w1x")
    for i in range(8): vm.tag[("w", i)] = vm.n
    for k in range(KA): ldi(POOL + 4 * k, k, ("i", k))

e("s_cmp_ge_u32 s2, 256\ns_cbranch_scc1 done")
e("s_load_dwordx16 s[32:47], s[0:1], 0")
e("s_load_dwordx8 s[48:55], s[0:1], 64")
if STAMP: e(f"s_memtime s[{SB}:{SB+1}]")
if STAMP or FIX: e("s_memrealtime s[100:101]")
e(f"v_lshrrev_b32 v1, 6, v0\nv_and_b32 v{LANE}, 63, v0")
e(f"v_readfirstlane_b32 s{S_WAVE}, v1")
if XMAP == 3:
    e(f"s_bfe_u32 s{S_BS}, s2, 0x10002\ns_lshl_b32 s{S_BS}, s{S_BS}, 1\ns_bfe_u32 s{S_T}, s2, 0x10003\ns_add_u32 s{S_BS}, s{S_BS}, s{S_T}\ns_and_b32 s{S_CS}, s2, 3\ns_lshl_b32 s{S_CS}, s{S_CS}, 4\ns_lshr_b32 s{S_T}, s2, 4\ns_add_u32 s{S_CS}, s{S_CS}, s{S_T}")
elif XMAP == 2:
    e(f"s_and_b32 s{S_BS}, s2, 3\ns_and_b32 s{S_CS}, s2, 4\ns_lshl_b32 s{S_CS}, s{S_CS}, 3\ns_lshr_b32 s{S_T}, s2, 3\ns_add_u32 s{S_CS}, s{S_CS}, s{S_T}")
elif XMAP:
    e(f"s_bfe_u32 s{S_BS}, s2, 0x20002\ns_and_b32 s{S_CS}, s2, 3\ns_lshl_b32 s{S_CS}, s{S_CS}, 4\ns_lshr_b32 s{S_T}, s2, 4\ns_add_u32 s{S_CS}, s{S_CS}, s{S_T}")
else:
    e(f"s_and_b32 s{S_BS}, s2, 3\ns_lshr_b32 s{S_CS}, s2, 2")
e(f"s_lshl_b32 s{S_PID}, s{S_BS}, 6\ns_add_u32 s{S_PID}, s{S_PID}, s{S_CS}")
if A("PERT0", 0): e(f"s_bitcmp1_b32 s2, {A('PERT0', 0) - 1}\ns_cbranch_scc0 1f\ns_sleep 127\ns_sleep 127\n1:")
if A("PERTW", 0): e(f"s_bitcmp1_b32 s{S_WAVE}, {A('PERTW', 0) - 1}\ns_cbranch_scc0 1f\ns_sleep 60\n1:")
e(f"s_lshl_b32 s{S_M0A}, s{S_WAVE}, 12\nv_mov_b32 v18, 0\nv_mov_b32 v14, 0\nv_mov_b32 v15, 0\nv_mov_b32 v19, 0\ns_mul_i32 s71, s{S_PID}, 25600")
e("s_mov_b32 s10, 0x640000\ns_mov_b32 s11, 0x20000\ns_mov_b32 s18, 0x320000\ns_mov_b32 s19, 0x20000")
e(f"s_cmp_lt_u32 s{S_WAVE}, 4\ns_cbranch_scc1 a_old")
e(f"s_cmp_eq_u32 s{S_WAVE}, 7\ns_cbranch_scc1 a_w7\ns_cmp_eq_u32 s{S_WAVE}, 6\ns_cbranch_scc1 a_pc")
e(f"s_setprio 3\ns_sub_u32 s{S_CNT}, s{S_WAVE}, 4")
e(f"v_lshrrev_b32 v10, 2, v{LANE}\nv_mul_u32_u24 v10, 400, v10\nv_and_b32 v11, 3, v{LANE}\nv_lshl_add_u32 v10, v11, 4, v10")
e(f"s_lshl_b32 s{S_T}, s{S_CNT}, 6\ns_add_u32 s{S_T}, s{S_T}, s71")
e(f"s_lshl_b32 s{S_U}, s{S_CNT}, 12\ns_add_u32 s{S_U}, s{S_U}, {L_STG}\ns_mov_b32 m0, s{S_U}\nv_lshl_add_u32 v17, v{LANE}, 6, s{S_U}")
e("s_waitcnt lgkmcnt(0)\ns_mov_b32 s8, s32\ns_mov_b32 s9, s33")
for i in range(4):
    e(f"buffer_load_dwordx4 v10, s[8:11], s{S_T} offen lds")
    if i < 3: e(f"s_add_u32 m0, m0, 1024\ns_add_u32 s{S_T}, s{S_T}, 6400")
e("s_barrier\ns_branch b_x")
e("a_pc:\ns_setprio 3")
piece_lane(); piece_src(16)
e(f"s_waitcnt lgkmcnt(0)\ns_mov_b32 s16, s42\ns_mov_b32 s17, s43")
hstamp(10)
if not A("NOP", 0): piece_ld(POOL)
hstamp(11)
e("s_barrier")
hstamp(12)
e("s_branch b_pc")
e("a_old:")
e(f"v_mov_b32 v10, {L_CTR}\nds_write_b64 v10, v[18:19]")
if PFW:
    if XMAP >= 2: e(f"v_lshlrev_b32 v16, 9, v{LANE}\ns_and_b32 s{S_U}, s{S_CS}, 15\ns_lshl_b32 s{S_U}, s{S_U}, 15\ns_lshl_b32 s{S_T}, s{S_CS}, 3\ns_add_u32 s{S_U}, s{S_U}, s{S_T}")
    else: e(f"v_and_b32 v16, 31, v{LANE}\nv_lshlrev_b32 v16, 9, v16\ns_lshr_b32 s{S_U}, s2, 3\ns_lshl_b32 s{S_U}, s{S_U}, 14\ns_lshl_b32 s{S_T}, s{S_CS}, 3\ns_add_u32 s{S_U}, s{S_U}, s{S_T}")
e(f"s_and_b32 s{S_T}, s{S_BS}, 1\ns_lshl_b32 s{S_T}, s{S_T}, 19\ns_add_u32 s{S_U}, s{S_U}, s{S_T}\ns_waitcnt lgkmcnt(0)")
TCH = A("TCH", 0)
def touch():
    e(f"s_cmp_lg_u32 s{S_WAVE}, 2\ns_cbranch_scc1 1f")
    srd(4, 54, WS_SZ)
    e(f"v_lshlrev_b32 v17, {A('TSH', 19)}, v{LANE}\nbuffer_load_dword v{D0}, v17, s[4:7], 0 offen offset:3968")
    if A("TOUT", 1):
        srd(12, 50, 32768)
        e(f"buffer_load_dword v{D0}, off, s[12:15], 0")
    if A("TPAR", 1):
        for b in (36, 38, 40, 44, 46, 48): e(f"global_load_ushort v{D0}, v18, s[{b}:{b+1}]")
    e("1:")
if TCH == 1: touch()
if PFW == 2: e("s_barrier")
if TCH == 2: touch()
if PFW:
    e(f"s_mov_b32 s16, s42\ns_mov_b32 s17, s43\ns_cmp_lg_u32 s{S_WAVE}, 3\ns_cbranch_scc1 1f\nbuffer_load_dword v{D0}, v16, s[16:19], s{S_U} offen\n1:")
if PFW != 2: e("s_barrier")
e("s_branch c_all")
e("a_w7:")
if CPF == 1: cpf_code(D0)
e("s_setprio 2\ns_barrier")
e(f"v_bfe_u32 v16, v{LANE}, 1, 4\nv_lshlrev_b32 v18, 15, v16\nv_lshrrev_b32 v16, 5, v{LANE}\nv_lshl_or_b32 v18, v16, 12, v18\nv_and_b32 v16, 1, v{LANE}\nv_lshl_or_b32 v18, v16, 2, v18")
e(f"v_and_b32 v16, 31, v{LANE}\nv_lshlrev_b32 v16, 7, v16\ns_lshr_b32 s{S_U}, s2, 3\ns_lshl_b32 s{S_U}, s{S_U}, 12")
e(f"s_lshl_b32 s71, s{S_CS}, 3\ns_and_b32 s{S_T}, s{S_BS}, 1\ns_lshl_b32 s{S_T}, s{S_T}, 19\ns_add_u32 s71, s71, s{S_T}")
e("s_waitcnt lgkmcnt(0)\ns_mov_b32 s16, s42\ns_mov_b32 s17, s43")
srd(12, 34, 128000)
e(f"buffer_load_dword v{D0}, v16, s[12:15], s{S_U} offen")
raw(0, R1)
e("s_branch c_all")
e("b_x:")
voff_ws()
e(f"v_and_b32 v16, 15, v{LANE}\nv_lshl_add_u32 v{XA}, v16, 2, v17\nv_xor_b32 v17, 1, v16\nv_lshl_or_b32 v{XC}, v17, 16, v16")
for t in range(1, 16): e(f"v_xor_b32 v{XA+t}, {4*t}, v{XA}")
for u in range(1, 8): e(f"v_xor_b32 v{XC+u}, {2*u*0x10001:#x}, v{XC}")
idx_dst()
e("s_waitcnt vmcnt(0)")
stamp(1)
xform(0, HOLD, True)
e("s_barrier\ns_branch c_all2")
e("b_pc:")
voff_ws()
piece_dst(16)
e("s_waitcnt vmcnt(0)")
stamp(1)
piece_perm(POOL, HOLD)
e("s_barrier\ns_branch c_all2")
e("c_all:")
voff_ws()
e("c_all2:")
if PROBE == 13: e("s_memrealtime s[96:97]")
sloads(); common()
e(f"s_cmp_eq_u32 s{S_WAVE}, 7\ns_cbranch_scc1 d_w7\ns_cmp_lt_u32 s{S_WAVE}, 4\ns_cbranch_scc1 d_old")
if PROBE == 14: e("s_memrealtime s[96:97]")
if OD < 0: e("s_barrier")
if PROBE == 15: e("s_memrealtime s[96:97]")
e(f"v_mov_b32 v10, {L_CTR}\nv_mov_b32 v11, 1\ns_mov_b64 exec, 1\ns_waitcnt vmcnt(0)")
e("ds_add_rtn_u32 v13, v10, v11")
e(f"s_lshl_b32 s{S_T}, s{S_PID}, 7\ns_add_u32 s{S_T}, s{S_T}, {FLG:#x}\nv_mov_b32 v10, 0\ns_waitcnt lgkmcnt(0)")
e(f"v_readfirstlane_b32 s{S_U}, v13\nv_not_b32 v11, s{S_N}\ns_cmp_lg_u32 s{S_U}, 2\ns_cbranch_scc1 b_nosig")
e(f"buffer_store_dword v11, v10, s[4:7], s{S_T} offen sc1")
e("b_nosig:\ns_mov_b64 exec, -1\ns_setprio 0\ns_branch e_join")
e("d_w7:")
stamp(1)
e("s_mov_b32 s16, s42\ns_mov_b32 s17, s43\ns_barrier")
raw(R1, 32)
for vt in range(W7T): tab_dma(vt, False)
if OD < 0: e("s_barrier")
for vt in range(W7T, PRE - W7A): tab_dma(vt, False)
e(f"s_mov_b32 s{S_T}, {PLO}\ns_mov_b32 s{S_U}, {PHI}")
for s in range(4):
    e(f"s_waitcnt vmcnt({24-8*s+4*(PRE-W7A)})")
    for jj in range(4):
        r0 = POOL + 8 * s + 2 * jj
        e(f"v_perm_b32 v{POOL+32+8*s+jj}, v{r0+1}, v{r0}, s{S_T}")
        e(f"v_perm_b32 v{POOL+36+8*s+jj}, v{r0+1}, v{r0}, s{S_U}")
    e(f"ds_write_b128 v12, v[{POOL+32+8*s}:{POOL+35+8*s}] offset:{s*1024}")
    e(f"ds_write_b128 v12, v[{POOL+36+8*s}:{POOL+39+8*s}] offset:{4096+s*1024}")
if SPIN: e(f"v_mov_b32 v10, {L_CTR}\nv_mov_b32 v11, 1\nds_write_b32 v10, v11 offset:4")
stamp(2)
for vt in range(W7A): tab_dma(vt, False)
e("s_branch b_all")
e("d_old:")
stamp(1)
e("s_barrier")
def warm(tag, nseg, w0):
    if not WARM: return
    e("s_mov_b64 exec, 0")
    for k in range(nseg - 1): e(f"s_cmp_eq_u32 s{S_WAVE}, {w0+k}\ns_cbranch_scc1 @SEG_{tag}_{k}")
    e(f"s_branch @SEG_{tag}_{nseg-1}")
    e(f"warm_ret_{tag}:\ns_mov_b64 exec, -1")
if OD > 0: e(f"s_sleep {OD}")
if OD < 0: e("s_barrier")
e("e_join:")
stamp(2)
for vt in range(PRE): tab_dma(vt)
e("s_setprio 0")
warm("B", 7, 0)
e("b_all:")
if SPIN:
    e(f"s_setprio 0\nv_mov_b32 v10, {L_CTR}\ns_mov_b32 s{S_T}, 0")
    e(f"spin1:\nds_read_b32 v11, v10 offset:4\ns_add_u32 s{S_T}, s{S_T}, 1\ns_waitcnt lgkmcnt(0)\ns_cmp_gt_u32 s{S_T}, 0x1000000\ns_cbranch_scc1 1f")
    e("v_cmp_eq_u32 vcc, 0, v11\ns_cbranch_vccnz spin1\n1:")
else: e("s_setprio 0\ns_waitcnt lgkmcnt(0)\ns_barrier")
pass
stamp(3)
for i in range(8): e(f"ds_read_b128 v[{W1+4*i}:{W1+4*i+3}], v12 offset:{i*1024}")
if PI == -1: poll_issue()
common_b()
if PRE < 4: tab_dma(PRE)
tab_rd(0)
stamp(4)
L_PC = L_XCH; L_EX = 128000 + 64; L_HC = 128000; L_TB = L_XC2
ACCB = TAB; TABH = TAB + 32
def lane_to(r): e(f"v_mbcnt_lo_u32_b32 v{r}, -1, 0\nv_mbcnt_hi_u32_b32 v{r}, -1, v{r}")
DA = D0
def dl12():
    e(f"v_lshrrev_b32 v{DA+1}, 3, v{DA}\nv_mul_u32_u24 v{DA+1}, 400, v{DA+1}\nv_and_b32 v{DA}, 7, v{DA}\nv_lshl_add_u32 v{DA}, v{DA}, 4, v{DA+1}")
    e(f"s_lshl_b32 s{S_T}, s{S_WAVE}, 7\ns_add_u32 s{S_T}, s{S_T}, s71")
    e(f"s_lshl_b32 s{S_U}, s{S_WAVE}, 13\ns_add_u32 m0, s{S_U}, {L_STG}\ns_nop 0")
    for i in range(8):
        e(f"buffer_load_dwordx4 v{DA}, s[8:11], s{S_T} offen lds")
        if i < 7: e(f"s_add_u32 m0, m0, 1024\ns_add_u32 s{S_T}, s{S_T}, 3200")
def dlp(fp0, lds):
    e(f"v_lshrrev_b32 v{DA+1}, 3, v{DA}\nv_and_b32 v{DA}, 7, v{DA}\nv_lshlrev_b32 v{DA}, 4, v{DA}\nv_lshl_or_b32 v{DA}, v{DA+1}, 9, v{DA}")
    piece_src(fp0)
    e(f"s_mov_b32 m0, {lds}\ns_nop 0")
    for i in range(4):
        e(f"buffer_load_dwordx4 v{DA}, s[16:19], s{S_T} offen lds")
        if i < 3: e(f"s_add_u32 m0, m0, 1024\ns_add_u32 s{S_T}, s{S_T}, {(4096, 28672, 4096)[i]}")
def dl3():
    e(f"v_mul_u32_u24 v{DA+2}, 400, v{DA}\ns_add_u32 s{S_T}, s71, 384\ns_mov_b32 m0, {L_EX}\ns_nop 0\nbuffer_load_dwordx4 v{DA+2}, s[8:11], s{S_T} offen lds")
    dlp(48, L_PC + 4096)
    if A("TL", 0):
        k = TAB + 26
        e(f"s_lshl_b32 s{S_T}, s{S_PID}, 16\ns_add_u32 s{S_T}, s{S_T}, {XG:#x}\ns_xor_b32 s{S_U}, s{S_T}, 0x400000\nv_mov_b32 v{DA+3}, 0")
        e(f"buffer_load_dword v{k}, off, s[4:7], s{S_T} offset:896\nbuffer_load_dword v{k}, off, s[4:7], s{S_U} offset:896")
        e(f"s_lshl_b32 s{S_T}, s{S_PID}, 14\ns_lshl_b32 s{S_U}, s{S_CS}, 8\ns_add_u32 s{S_T}, s{S_T}, s{S_U}\ns_add_u32 s{S_T}, s{S_T}, {PART:#x}\nbuffer_load_dword v{k}, off, s[4:7], s{S_T} sc1")
        for b in (38, 40, 44, 46, 48, 50): e(f"global_load_ushort v{k}, v{DA+3}, s[{b}:{b+1}]")
def dl0():
    e(f"v_and_b32 v{DA+1}, 24, v{DA}\nv_and_b32 v{DA+2}, 3, v{DA}\nv_lshl_add_u32 v{DA+1}, v{DA+2}, 1, v{DA+1}\nv_bfe_u32 v{DA+2}, v{DA}, 2, 1\nv_add_u32 v{DA+1}, v{DA+1}, v{DA+2}\nv_lshlrev_b32 v{DA+1}, 7, v{DA+1}\nv_lshrrev_b32 v{DA+2}, 5, v{DA}\nv_lshl_add_u32 v{DA+2}, v{DA+2}, 4, v{DA+1}")
    e(f"s_lshr_b32 s{S_T}, s{S_CS}, 3\ns_lshl_b32 s{S_T}, s{S_T}, 12\ns_bfe_u32 s{S_U}, s{S_CS}, 0x10002\ns_lshl_b32 s{S_U}, s{S_U}, 15\ns_add_u32 s{S_T}, s{S_T}, s{S_U}\ns_and_b32 s{S_U}, s{S_CS}, 3\ns_lshl_b32 s{S_U}, s{S_U}, 5\ns_mov_b32 m0, {L_TB}\ns_add_u32 s{S_T}, s{S_T}, s{S_U}")
    e(f"buffer_load_dwordx4 v{DA+2}, s[12:15], s{S_T} offen lds")
    srd(8, 36, 16384 * 26)
    e(f"s_lshr_b32 s{S_T}, s{S_PID}, 2\ns_lshl_b32 s{S_T}, s{S_T}, 8\ns_and_b32 s{S_U}, s{S_PID}, 3\ns_lshl_b32 s{S_U}, s{S_U}, 4\ns_add_u32 s{S_T}, s{S_T}, s{S_U}\ns_mul_i32 s{S_T}, s{S_T}, 26\ns_mov_b32 m0, {L_TB+1024}")
    e(f"v_lshrrev_b32 v{DA+1}, 4, v{DA}\nv_mul_u32_u24 v{DA+1}, 1664, v{DA+1}\nv_and_b32 v{DA+2}, 15, v{DA}\nv_mul_u32_u24 v{DA+2}, 28, v{DA+2}\nv_add_u32 v{DA+2}, v{DA+2}, v{DA+1}")
    e(f"buffer_load_dword v{DA+2}, s[8:11], s{S_T} offen lds")
    dlp(32, L_PC)
O0 = O1 = ACCB + 16; U0 = ACCB + 24; U1 = ACCB + 25; DD = ACCB
def dx12():
    e(f"s_lshl_b32 s{S_CNT}, s{S_WAVE}, 1")
    idx_dst()
    e(f"s_lshl_b32 s{S_U}, s{S_WAVE}, 13\ns_add_u32 s{S_U}, s{S_U}, {L_STG}")
    e(f"v_and_b32 v{U1}, 15, v{U0}\nv_lshl_add_u32 v{U0}, v{U0}, 7, s{S_U}\nv_lshl_add_u32 v{U0}, v{U1}, 2, v{U0}\nv_xor_b32 v{O0}, 1, v{U1}\nv_lshl_or_b32 v{U1}, v{O0}, 16, v{U1}")
    for h, o in ((0, O0), (1, O1)):
        for t in range(16): e(f"v_xor_b32 v{DD+t}, {4*t}, v{U0}\nds_read_b32 v{DD+t}, v{DD+t} offset:{64*h}")
        for u in range(8):
            e(f"v_xor_b32 v{o+u}, {2*u*0x10001:#x}, v{U1}\ns_waitcnt lgkmcnt({14-2*u})")
            e(f"v_lshl_add_u32 v{DD+2*u}, v{DD+2*u+1}, 16, v{DD+2*u}")
            e(f"v_lshl_add_u32 v{o+u}, v{DD+2*u}, 4, v{o+u}")
            if u % 4 == 3: e(f"buffer_store_dwordx4 v[{o+u-3}:{o+u}], v{VOFF}, s[4:7], s{70+h} offen offset:{(u//4)*128} sc1")
def dxp(fp0, lds):
    e(f"v_lshrrev_b32 v{O0}, 2, v{U0}\nv_and_b32 v{O0+1}, 1, v{U0}\nv_and_b32 v{O0+2}, 2, v{U0}\nv_lshlrev_b32 v{U1}, 3, v{O0}\nv_lshl_or_b32 v{U1}, v{O0+1}, 11, v{U1}\nv_lshl_or_b32 v{U1}, v{O0+2}, 9, v{U1}\nv_add_u32 v{U1}, {lds}, v{U1}")
    for j in range(8): e(f"ds_read_b64 v[{DD+2*j}:{DD+2*j+1}], v{U1} offset:{j*128}")
    e(f"v_mul_u32_u24 v{O0}, {WSTR}, v{O0}\nv_and_b32 v{U0}, 3, v{U0}\nv_lshl_add_u32 v{U0}, v{U0}, 4, v{O0}")
    e(f"s_mul_i32 s70, s{S_BS}, {16*WSTR}\ns_lshr_b32 s{S_T}, s{S_CS}, 2\ns_lshl_b32 s{S_T}, s{S_T}, 10\ns_add_u32 s70, s70, s{S_T}")
    e(f"s_and_b32 s{S_T}, s{S_CS}, 3\ns_lshl_b32 s{S_T}, s{S_T}, 7\ns_add_u32 s70, s70, s{S_T}\ns_add_u32 s70, s70, {W1P + (fp0-16)*1024:#x}")
    e(f"s_mov_b32 s{S_T}, {PLO}\ns_mov_b32 s{S_U}, {PHI}\ns_waitcnt lgkmcnt(0)")
    for cp in range(2):
        for par in range(2):
            r = (O0, O1)[cp] + 4 * par
            for jj in range(4):
                r0 = DD + 4 * jj + cp
                e(f"v_perm_b32 v{r+jj}, v{r0+2}, v{r0}, s{S_U if par else S_T}")
            e(f"buffer_store_dwordx4 v[{r}:{r+3}], v{U0}, s[4:7], s70 offen offset:{par*512+cp*64} sc1")
def dx3():
    a = DD
    e(f"v_lshlrev_b32 v{U1}, 4, v{U0}\nv_add_u32 v{U1}, {L_EX}, v{U1}\nds_read_b128 v[{a}:{a+3}], v{U1}")
    e(f"s_lshr_b32 s70, s{S_PID}, 3\ns_mul_i32 s70, s70, {ISTR}\ns_add_u32 s70, s70, {IDXP + 6*16384:#x}")
    e(f"s_and_b32 s{S_T}, s{S_PID}, 7\ns_lshl_b32 s{S_T}, s{S_T}, 9\ns_add_u32 s70, s70, s{S_T}")
    e(f"v_and_b32 v{U1}, 31, v{U0}\nv_lshlrev_b32 v{U1}, 4, v{U1}\nv_lshrrev_b32 v{a+4}, 5, v{U0}\nv_lshl_or_b32 v{U1}, v{a+4}, 3, v{U1}")
    e(f"s_mov_b32 s{S_T}, 0x40014000\ns_mov_b32 s{S_U}, 0x40034002\ns_waitcnt lgkmcnt(0)")
    e(f"v_lshl_add_u32 v{a}, v{a+1}, 16, v{a}\nv_lshl_add_u32 v{a+2}, v{a+3}, 16, v{a+2}")
    e(f"v_lshl_add_u32 v{a}, v{a}, 2, s{S_T}\nv_lshl_add_u32 v{a+2}, v{a+2}, 2, s{S_U}")
    e(f"v_and_b32 v{a+1}, 1, v{U0}\nv_lshlrev_b32 v{a+1}, 4, v{a+1}\nv_and_b32 v{a+3}, 2, v{U0}\nv_cmp_ne_u32 vcc, 0, v{a+3}")
    e(f"v_alignbit_b32 v{a}, v{a}, v{a}, v{a+1}\nv_alignbit_b32 v{a+2}, v{a+2}, v{a+2}, v{a+1}")
    e(f"v_cndmask_b32 v{O1+6}, v{a}, v{a+2}, vcc\nv_cndmask_b32 v{O1+7}, v{a+2}, v{a}, vcc")
    e(f"buffer_store_dwordx2 v[{O1+6}:{O1+7}], v{U1}, s[4:7], s70 offen sc1")
    e(f"s_cmp_ge_u32 s{S_CS}, 8\ns_cbranch_scc1 g_join")
    dxp(48, L_PC + 4096)
def dx0():
    e(f"v_lshlrev_b32 v{U1}, 4, v{U0}\nv_add_u32 v{U1}, {L_TB}, v{U1}\nds_read_b128 v[{ACCB+28}:{ACCB+31}], v{U1}")
    e(f"s_lshl_b32 s70, s{S_BS}, 17\ns_lshr_b32 s{S_T}, s{S_CS}, 3\ns_lshl_b32 s{S_T}, s{S_T}, 14\ns_add_u32 s70, s70, s{S_T}\ns_and_b32 s{S_T}, s{S_CS}, 7\ns_lshl_b32 s{S_T}, s{S_T}, 7\ns_add_u32 s70, s70, s{S_T}\ns_add_u32 s70, s70, {TABP:#x}\ns_add_u32 s71, s70, 8192\ns_waitcnt lgkmcnt(0)")
    e(f"buffer_store_dwordx4 v[{ACCB+28}:{ACCB+31}], v{VOFF}, s[4:7], s70 offen sc1")
    dxp(32, L_PC)
DB = [ACC, D0, ACC, D0]
PK = [HOLD, HOLD + 16, ACC, D0]
WQ = [0] + [int(c) for c in A("WQ", "033")] + [2]
BU = A("BU", 0)
pend = []; m0cur = [None]; lds_after = [0]
def flush(n):
    for _ in range(n):
        if not pend: return
        t, r = pend.pop(0)
        want = S_M0A if t < 2 else S_M0B
        if m0cur[0] != want: e(f"s_mov_b32 m0, s{want}\ns_nop 0"); m0cur[0] = want
        wr(PK[t] + r, t, r); lds_after[0] += 1
        g = 16 * t + r - 34
        if 0 <= g < 16: e(f"v_mov_b32 v{ACC+g}, 0")
for vt in range(5):
    m0cur[0] = None
    if vt < 4: e(f"s_waitcnt lgkmcnt({min(lds_after[0], 15)})")
    b = DB[vt - 1]
    for i in range(9):
        if vt < 4 and i < 8: mf(vt, i, base=DB[vt])
        if 0 < vt < 4 and i == 0: e("s_nop 10")
        new = []
        if vt > 0 and i < 8:
            for r in (2 * i, 2 * i + 1):
                cvt(PK[vt - 1] + r, r, b); new.append((vt - 1, r))
                if vt == 3: e(f"v_mov_b32 v{ACC+16+r}, 0")
        if BU and vt < 4: flush(8 * WQ[vt] if i == 8 else 0)
        else: flush(WQ[vt] if (vt, i) != (4, 8) else 99)
        pend += new
        if i == TRI and vt < 3: tab_rd(vt + 1); lds_after[0] = 0
    if not DE and PRE + 1 + vt < 4: tab_dma(PRE + 1 + vt)
    if vt == PI: poll_issue()
    if vt == PI + 1: poll_check()
    if vt == KT:
        assert KT >= PI + 1
        for k in range(KA, KPRE): ldi(POOL + 4 * k, k, ("i", k))
    if vt == (3 if B2 else 4):
        fstamp(9)
        wait_vm("w1xw", "w1x")
        fstamp(10)
        e("ds_write_b128 v17, v[24:27]")
        if B2:
            e("s_waitcnt lgkmcnt(0)\ns_barrier")
            fstamp(11)
            for i in range(8): e(f"ds_read_b128 v[{W1+4*i}:{W1+4*i+3}], v16 offset:{i*1024}")
e(f"s_cmp_lg_u32 s{S_WAVE}, 7\ns_cbranch_scc1 1f\nv_mov_b32 v10, {L_HC}\nv_mov_b32 v11, 0\nds_write_b32 v10, v11\n1:")
fstamp(12)
wait_vm("p0i", ("i", 1))
unpack(POOL)
e(f"s_mov_b32 s{S_CNT}, 3")
e("s_waitcnt lgkmcnt(0)\ns_barrier")
if not B2:
    for i in range(8): e(f"ds_read_b128 v[{W1+4*i}:{W1+4*i+3}], v16 offset:{i*1024}")
e("@ENDREGION")
if not B2: e("s_waitcnt lgkmcnt(0)")
stamp(7)
if A("PERTW", 0): e(f"s_bitcmp1_b32 s{S_WAVE}, {A('PERTW', 0) - 1}\ns_cbranch_scc0 1f\ns_sleep 100\n1:")
if STAMP == 1: e(f"s_waitcnt lgkmcnt(0)\ns_mov_b32 s40, s{SB+14}\ns_mov_b32 s42, s{SB+14}\ns_mov_b32 s44, 0\ns_mov_b32 s45, 0\ns_mov_b32 s46, 0")

assert B2
a_, b_, c_, d_ = POOL, POOL + 16, POOL + 32, POOL + 48
def g4(*bases): return [b + 4 * i for b in bases for i in range(4)]
WG = [W1 + 4 * frag_of(i) for i in range(8)]
GRP = [g4(a_, b_, c_, d_), g4(d_) + WG + g4(D1), g4(d_, b_, c_, a_), g4(d_, b_, c_, a_), g4(a_, b_, c_, d_), g4(a_, b_, c_, d_)]
for k in range(KPRE): vm.tag[("i", 0, k)] = vm.tag[("i", k)]
def ld(reg, base, off, tag, extra=""):
    e(f"s_add_u32 s{S_T}, s{base}, {off & ~1023}\nbuffer_load_dwordx4 v[{reg}:{reg+3}], v{VOFF}, s[4:7], s{S_T} offen offset:{off & 1023} sc1")
    vm.issue(tag)
def L(h, k): return lambda: ld(GRP[h][k], S_IDX2 if h % 2 else S_IDX, (h // 2) * 32768 + (k // 8) * 8192 + (k % 8) * 128, ("i", h, k))
def LW(i, off): return lambda: ld(W1 + 4 * i, S_W1, off + i * 128, ("w", i))
S_TB = 54; S_XS = 55; S_XR = 24 + 0
def LT(vt, sx): return lambda: ld(TABH + 16 * (vt % 2) + 4 * sx, S_TB, (vt // 2) * 8192 + ((vt % 2) * 4 + sx) * 128, ("tb", vt))
skip_n = [0]
def wv(tag):
    n = vm.younger(tag); assert n < 64
    if vm.tag[tag] <= skip_n[0]: e(f"s_cmp_lt_u32 s{S_WAVE}, 4\ns_cbranch_scc1 1f\ns_waitcnt vmcnt({n})\n1:")
    else: e(f"s_waitcnt vmcnt({n})")
def smf2(a, slot):
    d = DAT + 8 * slot
    e(f"v_smfmac_f32_16x16x64_bf16 v[{a}:{a+3}], v[{AC}:{AC+3}], v[{d}:{d+7}], v{SIDX}")
def mf2(tb, i):
    sx, par = i // 2, i % 2
    d = D0 + 16 * par
    c = "0" if sx == 0 else f"v[{d}:{d+15}]"
    e(f"v_mfma_f32_32x32x16_bf16 v[{d}:{d+15}], v[{tb+4*sx}:{tb+4*sx+3}], v[{W1+16*par+4*sx}:{W1+16*par+4*sx+3}], {c}")
def qunits(h): return [(GRP[h][q // 2] + 2 * (q % 2), (ACCB if h % 2 else ACC) + 4 * (q // 4), ("i", h, q // 2 + 1) if q % 4 == 0 else None) for q in range(32)]
def run(units, pre, mid, end):
    for i, u in enumerate(units):
        if i >= 3:
            e("s_waitcnt lgkmcnt(8)"); smf2(units[i - 3][1], i % 3)
        for f in pre.get(i, []): f()
        reads(u[0], i % 3)
        for f in mid.get(i, []): f()
        if i + 1 < len(units):
            if units[i + 1][2]: wv(units[i + 1][2])
            unpack(units[i + 1][0])
        for f in end.get(i, []): f()
def add(d, i, *f): d.setdefault(i, []).extend(f)
def pgen(mid, end, o, tbs, stg, waitw, waitt):
    for t in range(4):
        for i in range(8):
            if t == 0 and i % 2 == 0 and waitw: add(mid, o + MQ[i], lambda i=i: wv(("w", frag_of(i + 1))))
            if i == 0 and waitt[t] is not None: add(mid, o + 8 * t + MQ[0], lambda t=t: wv(("tb", waitt[t])))
            add(mid, o + 8 * t + MQ[i], lambda t=t, i=i: mf2(tbs[t], i))
        if stg[t] is not None: add(end, o + 8 * t + 7, lambda t=t: [cvt(stg[t] + r, r) for r in range(16)])
def tail(units, before_bar):
    n = len(units)
    e("s_waitcnt lgkmcnt(8)"); smf2(units[n - 3][1], n % 3)
    e("s_waitcnt lgkmcnt(4)"); smf2(units[n - 2][1], (n + 1) % 3)
    before_bar()
    e("s_waitcnt lgkmcnt(0)\ns_barrier")
def wphase(last, order, acts, nxt):
    n = 0; cur = None
    for vt, src in order:
        want = S_M0A if vt < 2 else S_M0B
        if want != cur: e(f"s_mov_b32 m0, s{want}\ns_nop 0"); cur = want
        for r in range(16):
            for f in acts.get(n, []): f()
            wr(src + r, vt, r)
            if n == SP: smf2(*last)
            n += 1
    wv(nxt[2]); unpack(nxt[0])
    e("s_waitcnt lgkmcnt(0)\ns_barrier")
def pst(i, f=4):
    if f == 4 and PROBE == 20 + i: e("s_memrealtime s[96:97]")
    if FINE == f and STAMP: e(f"s_memtime s[{SB+2*i}:{SB+1+2*i}]")

XQ = A("XQ", 32); SQ = A("SQ", 40)
units = qunits(0) + qunits(1); pre = {}; mid = {}; end = {}
pgen(mid, end, 0, [TAB, TAB + 16, TAB + 32, TAB + 48], [a_, b_, c_, D0], False, [None] * 4)
for j, k in enumerate(range(KPRE, 16)): add(mid, j * A("LS", 10) // (16 - KPRE), L(0, k))
for k in range(4): add(mid, 25 + 2 * k, L(1, k))
for k in range(4, 12): add(mid, (26, 28, 30, 32, 34, 36, 38, 40)[k - 4], L(1, k))
for k in range(12, 16): add(mid, 42 + 2 * (k - 12), L(1, k))
def hook_d():
    e(f"s_cmp_ge_u32 s{S_WAVE}, 4\ns_cbranch_scc1 d_join")
    e("s_mov_b32 s8, s32\ns_mov_b32 s9, s33\ns_mov_b32 s16, s42\ns_mov_b32 s17, s43\ns_waitcnt vmcnt(0)")
    lane_to(DA); role_old("d", dl12, dl3, dl0); skip_n[0] = vm.n
def hook_x():
    e(f"s_cmp_ge_u32 s{S_WAVE}, 4\ns_cbranch_scc1 g_join")
    lane_to(U0); e("s_waitcnt vmcnt(0)"); role_old("g", dx12, dx3, dx0); skip_n[0] = vm.n; vm.tag["dst"] = vm.n
def hook_s():
    r = ACCB + 28
    e(f"s_cmp_ge_u32 s{S_WAVE}, 4\ns_cbranch_scc1 s_join")
    e(f"v_mov_b32 v{r}, {L_HC}\nv_mov_b32 v{r+1}, 1\ns_mov_b64 exec, 1\ns_waitcnt vmcnt({vm.younger('dst')})\nds_add_rtn_u32 v{r+2}, v{r}, v{r+1}")
    e(f"s_lshl_b32 s{S_T}, s{S_PID}, 7\ns_add_u32 s{S_T}, s{S_T}, {FLGB:#x}\nv_mov_b32 v{r}, 0\nv_mov_b32 v{r+1}, s{S_N}\ns_waitcnt lgkmcnt(0)")
    e(f"v_readfirstlane_b32 s{S_U}, v{r+2}\ns_nop 0\ns_cmp_lg_u32 s{S_U}, 3\ns_cbranch_scc1 1f\nbuffer_store_dword v{r+1}, v{r}, s[4:7], s{S_T} offen sc1\n1:\ns_mov_b64 exec, -1\ns_join:")
assert A("HD", 15) == 15
add(end, A("HD", 15), hook_d); add(end, XQ, lambda: pst(1, 6), hook_x, lambda: pst(2, 6)); add(end, SQ, hook_s, lambda: pst(3, 6))
assert 15 <= XQ <= 32 and XQ < SQ < 58
for g in range(8): add(end, 33 + 4 * g, lambda g=g: [e(f"v_mov_b32 v{ACCB+4*g+c}, 0") for c in range(4)])
add(pre, 32, lambda: pst(1))
def pb_issue():
    r = W1
    lane_to(r)
    e(f"s_lshr_b32 s{S_T}, s{S_CS}, 4\nv_mov_b32 v{r+1}, s{S_T}\nv_lshrrev_b32 v{r+2}, 3, v{r}\nv_xor_b32 v{r+2}, s{S_BS}, v{r+2}\nv_cmp_gt_u32 vcc, 16, v{r}\nv_and_b32 v{r}, 7, v{r}\ns_lshl_b32 s70, s{S_WAVE}, 10")
    e(f"v_cndmask_b32 v{r+1}, v{r+1}, v{r+2}, vcc\nv_lshl_add_u32 v{r}, v{r+1}, 6, v{r}\nv_lshlrev_b32 v{r}, 7, v{r}\ns_add_u32 s70, s70, {FLGB:#x}")
    e(f"buffer_load_dword v{r+1}, v{r}, s[4:7], s70 offen sc1"); vm.issue("pb")
add(end, A("PQ", 56), pb_issue)
run(units, pre, mid, end)
def poll_b():
    r = W1
    e(f"s_mov_b32 s{S_U}, 0\npb_loop:\ns_waitcnt vmcnt(0)\nv_cmp_ne_u32 vcc, s{S_N}, v{r+1}\ns_cbranch_vccz pb_done")
    e(f"s_add_u32 s{S_U}, s{S_U}, 1\ns_cmp_gt_u32 s{S_U}, 0x40000\ns_cbranch_scc1 pb_done\ns_sleep 8\nbuffer_load_dword v{r+1}, v{r}, s[4:7], s70 offen sc1\ns_branch pb_loop\npb_done:")
tail(units, lambda: (pst(4, 6), poll_b(), pst(5, 6)))
pst(6, 6)
skip_n[0] = 0
pst(2)
params()
e(f"s_lshr_b32 s{S_TB}, s{S_CS}, 4\ns_lshl_b32 s{S_TB}, s{S_TB}, 3\ns_add_u32 s{S_TB}, s{S_TB}, s{S_WAVE}\ns_lshl_b32 s{S_TB}, s{S_TB}, 14\ns_add_u32 s{S_TB}, s{S_TB}, {TABP:#x}")
wphase((units[-1][1], (len(units) + 2) % 3), [(1, b_), (0, a_), (2, c_), (3, D0)], {0: [L(2, 0)], 4: [L(2, 1)], 16: [L(2, 2)], 32: [L(2, 3)]}, qunits(2)[0])
pst(3)
WA = W1 + 16; TL = W1 + 17; TM = W1 + 18
def xfr():
    lane_to(TL)
    e(f"v_and_b32 v{WA}, 0x7f, v{VOFF}\nv_and_b32 v{TM}, 4, v{TL}\nv_lshl_or_b32 v{WA}, v{TM}, 8, v{WA}\nv_and_b32 v{TM}, 8, v{TL}\nv_lshl_or_b32 v{WA}, v{TM}, 6, v{WA}\nv_and_b32 v{TM}, 16, v{TL}\nv_lshl_or_b32 v{WA}, v{TM}, 4, v{WA}")
    e(f"s_and_b32 s{S_U}, s{S_BS}, 1\ns_lshl_b32 s{S_U}, s{S_U}, 13\ns_sub_u32 s{S_U}, s{S_W1}, s{S_U}\ns_add_u32 s{S_U}, s{S_U}, 32768")
    for i in range(2): e(f"buffer_load_dwordx4 v[{W1+4*i}:{W1+4*i+3}], v{WA}, s[4:7], s{S_U} offen offset:{i*128} sc1"); vm.issue("xf")
def xgaddr():
    e(f"s_xor_b32 s{S_XS}, s{S_PID}, 64\ns_lshl_b32 s{S_XS}, s{S_XS}, 3\ns_add_u32 s{S_XS}, s{S_XS}, s{S_WAVE}\ns_lshl_b32 s{S_XS}, s{S_XS}, 13\ns_add_u32 s{S_XS}, s{S_XS}, {XG:#x}\ns_xor_b32 s{S_XR}, s{S_XS}, {64*8*8192:#x}")
def xmerge():
    wv("xf")
    for r in range(8): e(f"v_permlane16_swap_b32 v{W1+r}, v{W1+8+r}")
def xaddr():
    e(f"v_and_b32 v{WA}, 24, v{TL}\nv_and_b32 v{TM}, 3, v{TL}\nv_lshl_add_u32 v{WA}, v{TM}, 1, v{WA}\nv_bfe_u32 v{TM}, v{TL}, 2, 1\nv_add_u32 v{WA}, v{WA}, v{TM}")
    e(f"v_lshrrev_b32 v{TM}, 5, v{TL}\nv_lshl_add_u32 v{WA}, v{WA}, 1, v{TM}\ns_lshl_b32 s{S_T}, s{S_WAVE}, 10\ns_add_u32 s{S_T}, s{S_T}, {L_XT}\nv_lshl_add_u32 v{WA}, v{WA}, 4, s{S_T}")
def xm(vt, sx):
    d = D0 + 16 * (vt % 2); tb = TABH + 16 * (vt % 2) + 4 * sx
    e(f"v_mfma_f32_32x32x16_bf16 v[{d}:{d+15}], v[{W1+4*sx}:{W1+4*sx+3}], v[{tb}:{tb+3}], " + ("0" if sx == 0 else f"v[{d}:{d+15}]"))
def xw(vt):
    d = D0 + 16 * (vt % 2)
    for r in range(4): e(f"v_cvt_pk_bf16_f32 v{d+r}, v{d+r}, v{d+4+r}")
    e(f"ds_write_b128 v{WA}, v[{d}:{d+3}] offset:{vt*8192}")
def px(mid, end, o, tiles):
    add(mid, o, xfr); add(end, o + 6, xmerge); add(end, o + 7, xaddr)
    for j, vt in enumerate(tiles):
        for sx in range(4): add(mid, o + 8 + 4 * j + sx, lambda vt=vt, sx=sx: xm(vt, sx))
        add(end, o + 13 + 4 * j, lambda vt=vt: xw(vt))
units = qunits(2) + qunits(3); pre = {}; mid = {}; end = {}
px(mid, end, 2, (2, 3))
for k in range(4, 16): add(mid, (0, 1, 3, 4, 5, 6, 8, 9, 11, 12, 14, 15)[k - 4], L(2, k))
for k in range(4): add(mid, 16 + k, L(3, k))
for i in range(8): add(mid, 20 + i, LW(frag_of(i), 16384))
pgen(mid, end, 32, [TABH, TABH + 16, TABH, TABH + 16], [d_, b_, c_, None], True, [None, None, 0, 1])
for k in range(4, 16): add(mid, [int(x) for x in A("L3", "30.31.32.33.34.35.37.38.43.44.45.46").split(".")][k - 4], L(3, k))
for sx in range(4): add(mid, 39 + sx, LT(0, sx)); add(mid, 47 + sx, LT(1, sx))
for k in range(4): add(mid, 57 + 2 * k, L(4, k))
if A("RB", 0): add(pre, 32, lambda: e("s_barrier"))
add(pre, 32, lambda: pst(4))
run(units, pre, mid, end)
tail(units, lambda: [cvt(D0 + r, r) for r in range(16)])
pst(5)
wphase((units[-1][1], (len(units) + 2) % 3), [(3, b_), (2, d_), (0, c_), (1, D0)], {32 + 8 * k: [L(4, 4 + k)] for k in range(4)}, qunits(4)[0])
stamp(8)
if A("PERT", 0): e(f"s_bitcmp1_b32 s2, {A('PERT', 0) - 1}\ns_cbranch_scc0 1f\ns_sleep 127\ns_sleep 127\n1:")
XI = W1 + 16
SC = TABH; LN = SC; ROW = SC + 1; PV = SC + 4; RES = SC + 8; XW = SC + 16; X8 = SC + 30
XB = A("XB", 44); SS = A("SS", 5); RQ = A("RQ", 52)
q5 = qunits(5)
units = qunits(4) + q5[:XB - 32] + [(XI + 2 * g, ACCB + 4 * g, None) for g in range(8)] + q5[XB - 32:]
pre = {}; mid = {}; end = {}
add(mid, 0, xgaddr)
px(mid, end, 1, (0, 1))
L4 = [int(x) for x in A("L4", "0.2.4.6.8.10.12.14").split(".")]
L5 = [int(x) for x in A("L5", "15.16.17.18.22.24.26.29.30.31.33.34.35.37.38.39").split(".")]
for k in range(8, 16): add(mid, L4[k - 8], L(4, k))
for k in range(16): add(mid, L5[k], L(5, k))
GB = [ACC, ACC + 8, ACC + 14, ACC + 22, ACC + 28]
def send(i):
    b = GB[i]
    if i < 4:
        v = ACC + 7 * i
        for c in range(4): e(f"v_cvt_pk_bf16_f32 v{b+c}, v{v+2*c}, v{v+2*c+(1 if c < 3 else 0)}")
        e(f"v_mov_b32_sdwa v{b+3}, s{S_N} dst_sel:WORD_1 dst_unused:UNUSED_PRESERVE src0_sel:WORD_1")
    else:
        for c in range(4): e(f"v_mov_b32_sdwa v{b+c}, s{S_N} dst_sel:BYTE_0 dst_unused:UNUSED_PRESERVE src0_sel:BYTE_0")
    e(f"s_nop 0\nbuffer_store_dwordx4 v[{b}:{b+3}], v{VOFF}, s[4:7], s{S_XS} offen offset:{i*128} sc1"); vm.issue()
def recv(i, cnt=True):
    b = GB[i]
    e(f"buffer_load_dwordx4 v[{b}:{b+3}], v{VOFF}, s[4:7], s{S_XR} offen offset:{i*128} sc1")
    if cnt: vm.issue(("r", i))
slow = []
def rcheck(i):
    b = GB[i]; t = SC + 31
    wv(("r", i))
    e(f"s_mov_b32 s{S_CNT}, 0\nrc{i}:")
    if i < 4: e(f"v_cmp_ne_u32_sdwa vcc, v{b+3}, s{S_N} src0_sel:WORD_1 src1_sel:WORD_1")
    else:
        for c in range(4): e(f"v_xor_b32 v{b+c}, v{PV+2}, v{b+c}")
        e(f"v_or3_b32 v{t}, v{b}, v{b+1}, v{b+2}\nv_or_b32 v{t}, v{t}, v{b+3}\nv_and_b32 v{t}, 255, v{t}\nv_cmp_ne_u32 vcc, 0, v{t}")
    e(f"s_cbranch_vccnz rs{i}\nrd{i}:")
    slow.append(i)
def IL(k, d): return [int(x) for x in A(k, d).split(".")]
TS = IL("TS", "12.20.28.32.36"); TR = IL("TR", "46.49.53.57.61"); TC = IL("TC", "53.57.61.65.69"); TE = IL("TE", "54.58.59.62.64.68")
for i in range(5):
    assert TS[i] >= 4 * (min(7 * i + 6, 31) // 4) + 8 and TS[i] < TR[i] < TC[i]
    add(end, TS[i], lambda i=i: send(i)); add(end, TR[i], lambda i=i: recv(i)); add(end, TC[i], lambda i=i: rcheck(i))
for g in range(6): assert TE[g] >= TC[(4 * g + 3) // 7]
def setup():
    lane_to(LN)
    e(f"v_lshlrev_b32 v{X8}, 4, v{LN}\ns_and_b32 s{S_U}, s{S_BS}, 1\ns_lshl_b32 s{S_U}, s{S_U}, 14\ns_sub_u32 s{S_IDX}, s{S_IDX2}, s{S_U}\ns_add_u32 s{S_IDX}, s{S_IDX}, {6*16384}")
    e(f"v_and_b32 v{PV+1}, 15, v{LN}\nv_lshlrev_b32 v{PV+1}, 4, v{PV+1}\nv_lshrrev_b32 v{PV}, 4, v{LN}\nv_lshl_or_b32 v{PV}, v{PV}, 14, v{PV+1}")
    e(f"s_lshl_b32 s70, s{S_BS}, 20\ns_lshl_b32 s71, s{S_WAVE}, 17\ns_add_u32 s70, s70, s71\ns_lshl_b32 s71, s{S_CS}, 8\ns_add_u32 s70, s70, s71")
    e(f"s_add_u32 s70, s70, {PART:#x}\ns_add_u32 s71, s70, 65536")
    e(f"s_and_b32 s{S_U}, s{S_N}, 255\nv_mov_b32 v{PV+2}, s{S_U}\ns_mov_b32 s{S_W1}, 0xffffff00")
    e("s_lshl_b32 s56, s58, 16\ns_and_b32 s57, s58, 0xffff0000\ns_lshl_b32 s58, s59, 16\ns_and_b32 s59, s59, 0xffff0000")
    e("s_xor_b32 s52, s52, 0x80008000\ns_xor_b32 s53, s53, 0x80008000")
    e("s_lshl_b32 s0, s52, 16\ns_and_b32 s1, s52, 0xffff0000\ns_lshl_b32 s52, s53, 16\ns_and_b32 s53, s53, 0xffff0000")
    e(f"v_mov_b32 v{PV+1}, s0\nv_mul_f32 v{SC+3}, s56, v{PV+1}")
    for c, r in ((1, 1), (2, 52), (3, 53)): e(f"v_mov_b32 v{PV+1}, s{r}\nv_fma_f32 v{SC+3}, v{PV+1}, s{56+c}, v{SC+3}")
    e(f"v_xor_b32 v{SC+3}, 0x80000000, v{SC+3}")
    srd(8, 36, 16384 * 26); srd(12, 50, 32768)
add(end, 19, setup)
def xld(g):
    e(f"buffer_load_dwordx4 v[{XI+4*g}:{XI+4*g+3}], v{X8}, s[4:7], s{S_IDX} offen offset:{g*1024} sc1"); vm.issue(("x", g))
for g in range(4): add(mid, A('XL', 21) + 2 * g, lambda g=g: xld(g))
def xswap():
    wv(("x", 3))
    for g in range(4): e(f"v_permlane32_swap_b32 v{XI+4*g}, v{XI+4*g+2}\nv_permlane32_swap_b32 v{XI+4*g+1}, v{XI+4*g+3}")
add(mid, XB - 2, xswap)
add(pre, A("XBAR", 24), lambda: e("s_barrier"))
for b in IL("BARS", "52"): add(pre, b, lambda: e("s_barrier"))
add(pre, A("PY", 99), lambda: e(f"s_cmp_ge_u32 s{S_WAVE}, 4\ns_cbranch_scc0 1f\ns_setprio 1\n1:"))
add(pre, 32, lambda: pst(6))
def wide():
    e(f"s_cmp_lg_u32 s{S_WAVE}, 0\ns_cbranch_scc1 nowide")
    e(f"s_lshr_b32 s{S_T}, s{S_PID}, 2\ns_lshl_b32 s{S_T}, s{S_T}, 8\ns_and_b32 s{S_U}, s{S_PID}, 3\ns_lshl_b32 s{S_U}, s{S_U}, 4\ns_add_u32 s{S_T}, s{S_T}, s{S_U}")
    e(f"v_lshrrev_b32 v{ROW}, 4, v{LN}\nv_and_b32 v{ROW+1}, 15, v{LN}\nv_lshl_add_u32 v{ROW}, v{ROW}, 6, v{ROW+1}\nv_add_u32 v{ROW}, s{S_T}, v{ROW}")
    e(f"v_mul_u32_u24 v{ROW+1}, 26, v{ROW}")
    for j in range(13): e(f"buffer_load_ushort v{XW+j}, v{ROW+1}, s[8:11], 0 offen offset:{2*j}")
    e("nowide:")
add(end, A('XBAR', 24) - 1, wide)
def epi(g):
    a = ACCB + 4 * g
    t = SC + 31
    for c in range(4):
        n = 4 * g + c
        if g == 7: e(f"v_add_f32 v{a+c}, v{a+c}, v{GB[4]+c}"); continue
        r = GB[n // 7] + (n % 7) // 2
        e((f"v_and_b32 v{t}, 0xffff0000, v{r}" if n % 7 % 2 else f"v_lshlrev_b32 v{t}, 16, v{r}") + f"\nv_add_f32 v{a+c}, v{a+c}, v{t}")
    for c in range(4): e(f"v_max_f32 v{a+c}, s{(0, 1, 52, 53)[c]}, v{a+c}")
    e(f"v_fma_f32 v{RES+g}, v{a}, s56, v{SC+3}")
    for c in range(1, 4): e(f"v_fma_f32 v{RES+g}, v{a+c}, s{56+c}, v{RES+g}")
    e(f"v_and_or_b32 v{RES+g}, v{RES+g}, s{S_W1}, v{PV+2}")
    if g % 4 == 3: e(f"buffer_store_dwordx4 v[{RES+g-3}:{RES+g}], v{PV}, s[4:7], s{70 + g//4} offen sc1"); vm.issue()
for g, st in enumerate(TE):
    assert st >= max(i for i, u in enumerate(units) if u[1] == ACCB + 4 * g) + 5
    add(end, st, lambda g=g: epi(g))
for j, st in enumerate((16, 32, 44, 52, 60, 68)): add(pre, st, lambda j=j: pst(1 + j, 7))
run(units, pre, mid, end)
n = len(units)
e("s_waitcnt lgkmcnt(8)"); smf2(ACCB + 28, n % 3)
e("s_waitcnt lgkmcnt(4)"); smf2(ACCB + 28, (n + 1) % 3)
epi(6)
e("s_waitcnt lgkmcnt(0)"); smf2(ACCB + 28, (n + 2) % 3)
e(f"v_lshlrev_b32 v{PV+1}, 4, v{LN}")
e(f"s_lshl_b32 s70, s{S_PID}, 14\ns_lshl_b32 s{S_T}, s{S_WAVE}, 11\ns_add_u32 s70, s70, s{S_T}\ns_add_u32 s70, s70, {PART:#x}")
e(f"s_lshl_b32 s{S_T}, s{S_WAVE}, 8\ns_add_u32 s{S_T}, s{S_T}, {128000}\nv_lshl_add_u32 v{PV+3}, v{LN}, 2, s{S_T}")
e("s_nop 0")
epi(7)
stamp(9)
e(f"s_cmp_lg_u32 s{S_WAVE}, 0\ns_cbranch_scc1 nowide2")
e("s_waitcnt vmcnt(2)")
e(f"s_lshl_b32 s68, s68, 16\ns_lshl_b32 s69, s69, 16\nv_mov_b32 v{XW+13}, s68\nv_add_f32 v{XW+13}, s69, v{XW+13}")
for j in range(13):
    sw = 60 + j // 2
    if j % 2 == 0: e(f"s_lshl_b32 s{S_T}, s{sw}, 16")
    else: e(f"s_and_b32 s{S_T}, s{sw}, 0xffff0000")
    e(f"v_lshlrev_b32 v{XW+j}, 16, v{XW+j}")
    e(f"v_fma_f32 v{XW+13}, v{XW+j}, s{S_T}, v{XW+13}")
e("nowide2:")
e(f"s_mov_b32 s{S_CNT}, 0")
if A("EB", 1) < 2: e("s_waitcnt vmcnt(0)")
if A("EB", 1): e("s_barrier")
stamp(10)
e("poll2:")
e(f"buffer_load_dwordx4 v[{D1}:{D1+3}], v{PV+1}, s[4:7], s70 offen sc1")
e(f"buffer_load_dwordx4 v[{D1+4}:{D1+7}], v{PV+1}, s[4:7], s70 offen offset:1024 sc1")
e(f"s_add_u32 s{S_CNT}, s{S_CNT}, 1\ns_cmp_gt_u32 s{S_CNT}, 0x40000\ns_cbranch_scc1 poll2_done")
e("s_waitcnt vmcnt(0)")
for i in range(8): e(f"v_xor_b32 v{D1+i}, v{PV+2}, v{D1+i}")
e(f"v_or3_b32 v{D1+8}, v{D1}, v{D1+1}, v{D1+2}\nv_or3_b32 v{D1+9}, v{D1+3}, v{D1+4}, v{D1+5}\nv_or3_b32 v{D1+8}, v{D1+8}, v{D1+6}, v{D1+7}")
e(f"v_or_b32 v{D1+8}, v{D1+8}, v{D1+9}\nv_and_b32 v{D1+8}, 255, v{D1+8}\nv_cmp_ne_u32 vcc, 0, v{D1+8}")
if A("PS", 0): e(f"s_cbranch_vccz poll2_done\ns_sleep {A('PS', 0)}\ns_branch poll2")
else: e("s_cbranch_vccnz poll2")
e("poll2_done:\ns_waitcnt vmcnt(0)")
stamp(11)
for c in range(4): e(f"v_add_f32 v{D1+c}, v{D1+c}, v{D1+4+c}")
e(f"s_nop 1\nv_permlane32_swap_b32 v{D1}, v{D1+2}\nv_permlane32_swap_b32 v{D1+1}, v{D1+3}")
e(f"v_add_f32 v{D1}, v{D1}, v{D1+2}\nv_add_f32 v{D1+1}, v{D1+1}, v{D1+3}\ns_nop 1")
e(f"v_permlane16_swap_b32 v{D1}, v{D1+1}\nv_add_f32 v{D1}, v{D1}, v{D1+1}")
e(f"ds_write_b32 v{PV+3}, v{D1}\ns_waitcnt lgkmcnt(0)\ns_barrier")
e(f"s_cmp_lg_u32 s{S_WAVE}, 0\ns_cbranch_scc1 fin")
for i in range(1, 8): e(f"ds_read_b32 v{D1+i}, v{PV+3} offset:{256*i}")
e(f"v_add_f32 v{D1}, v{D1}, v{XW+13}\nv_lshlrev_b32 v{ROW}, 1, v{ROW}")
e("s_waitcnt lgkmcnt(0)")
e(f"v_add_f32 v{D1+1}, v{D1+1}, v{D1+2}\nv_add_f32 v{D1+3}, v{D1+3}, v{D1+4}\nv_add_f32 v{D1+5}, v{D1+5}, v{D1+6}\nv_add_f32 v{D1}, v{D1}, v{D1+7}")
e(f"v_add_f32 v{D1+1}, v{D1+1}, v{D1+3}\nv_add_f32 v{D1}, v{D1}, v{D1+5}\nv_add_f32 v{D1}, v{D1}, v{D1+1}")
e(f"v_mul_f32 v{D1}, 0xbfb8aa3b, v{D1}\nv_exp_f32 v{D1}, v{D1}\ns_nop 0\nv_add_f32 v{D1}, 1.0, v{D1}\nv_rcp_f32 v{D1}, v{D1}\ns_nop 0")
e(f"v_cvt_pk_bf16_f32 v{D1}, v{D1}, v{D1}")
e(f"buffer_store_short v{D1}, v{ROW}, s[12:15], 0 offen {A('OF', '').replace('+', ' ')}".rstrip())
e("s_cmp_lg_u32 s2, 0\ns_cbranch_scc1 fin")
e(f"v_mov_b32 v{D1+1}, s{S_N}\nv_mov_b32 v{D1+2}, {EPOCH}\ns_mov_b64 exec, 1")
e(f"buffer_store_dword v{D1+1}, v{D1+2}, s[4:7], 0 offen {A('OF', '').replace('+', ' ')}\ns_mov_b64 exec, -1")
e("@ENDREGION\nfin:")
if FIX and A("MINS", 0):
    e("s_load_dwordx2 s[32:33], s[0:1], 80\ns_waitcnt lgkmcnt(0)")
    srd(16, 32, 256)
    e("s_not_b32 s98, s100\nv_mov_b32 v8, 0\nv_mov_b32 v9, s98\ns_mov_b64 exec, 1\nbuffer_atomic_umax v9, v8, s[16:19], 0 offen\ns_waitcnt vmcnt(0)")
    e(f"fixm:\ns_memrealtime s[98:99]\ns_waitcnt lgkmcnt(0)\ns_sub_u32 s98, s98, s100\ns_cmp_lt_u32 s98, {FIX - 1500}\ns_cbranch_scc1 fixm")
    e("buffer_load_dword v9, v8, s[16:19], 0 offen sc1\ns_waitcnt vmcnt(0)\nv_readfirstlane_b32 s100, v9\ns_nop 3\ns_not_b32 s100, s100\ns_mov_b64 exec, -1")
if FIX and A("PW", 255) != 255:
    e(f"s_mov_b32 s98, {A('PW', 255)}\ns_bitcmp0_b32 s98, s{S_WAVE}\ns_cbranch_scc1 done")
if FIX:
    e(f"fixl:\ns_memrealtime s[98:99]\ns_waitcnt lgkmcnt(0)\ns_sub_u32 s98, s98, s{96 if PROBE else 100}")
    e(f"s_cmp_lt_u32 s98, {FIX}\ns_cbranch_scc1 fixl")
if STAMP:
    stamp(12)
    e("s_memrealtime s[98:99]\ns_waitcnt lgkmcnt(0)")
    e(f"s_lshl_b32 s70, s2, 3\ns_add_u32 s70, s70, s{S_WAVE}\ns_lshl_b32 s70, s70, 7\ns_add_u32 s70, s70, {STMP:#x}")
    e("v_mov_b32 v8, 0")
    for i in range(1, 13):
        e(f"s_sub_u32 s{SB+2*i}, s{SB+2*i}, s{SB}\nv_mov_b32 v9, s{SB+2*i}")
        e(f"buffer_store_dword v9, v8, s[4:7], s70 offen offset:{4*(i-1)}")
    for i, r in enumerate((44, 45, 46, 100, 98, 38, 39)):
        e(f"v_mov_b32 v9, s{r}\nbuffer_store_dword v9, v8, s[4:7], s70 offen offset:{48+4*i}")
e("s_endpgm")
for h in slow:
    e(f"rs{h}:\ns_add_u32 s{S_CNT}, s{S_CNT}, 1\ns_cmp_gt_u32 s{S_CNT}, 0x40000\ns_cbranch_scc1 rd{h}\ns_sleep 4")
    recv(h, False)
    e(f"s_waitcnt vmcnt(0)\ns_branch rc{h}")
e("done:\ns_endpgm")

e(f""".section .rodata,"a"
.p2align 6
.amdhsa_kernel {KN}
  .amdhsa_next_free_vgpr 256
  .amdhsa_next_free_sgpr 102
  .amdhsa_accum_offset 256
  .amdhsa_group_segment_fixed_size 0
  .amdhsa_kernarg_size 96
  .amdhsa_user_sgpr_count 2
  .amdhsa_user_sgpr_kernarg_segment_ptr 1
  .amdhsa_system_sgpr_workgroup_id_x 1
.end_amdhsa_kernel""")

bysite = {str(k): v for k, v in waits.items()}
res = []
for l in out:
    if l.startswith("@VM "):
        n = bysite[l[4:]]
        assert 0 <= n <= 63
        l = f"s_waitcnt vmcnt({n})"
    res.append(l)
import re, subprocess, tempfile, os
def is_instr(l): return bool(re.match(r"^(s_|v_|ds_|buffer_|global_)\w*( |$)", l)) and not l.endswith(":")
tmp = [re.sub(r"@SEG_\w+", "done", l) for l in res if not l.startswith("@")]
with tempfile.TemporaryDirectory() as d:
    open(d + "/t.s", "w").write("\n".join(tmp) + "\n")
    subprocess.run(["clang", "-x", "assembler", "-target", "amdgcn-amd-amdhsa", "-mcpu=gfx950", "-c", d + "/t.s", "-o", d + "/t.o"], check=True)
    dis = subprocess.run(["llvm-objdump", "-d", "--mcpu=gfx950", d + "/t.o"], capture_output=True, text=True).stdout
sizes = [4 * len(m.group(1).split()) for m in re.finditer(r"// [0-9A-F]{12}: ([0-9A-F ]+)", dis)]
assert len(sizes) == sum(map(is_instr, tmp)), (len(sizes), sum(map(is_instr, tmp)))
al = 0; nal = 0; fin = []; addr = 0; k = 0; region = None; pads = {}; last = -1
for l in res:
    if l.startswith("@REGION"):
        _, tag, nseg = l.split(); region = tag; pads[tag] = [int(nseg), 0]; last = -1; continue
    if l.startswith("@ENDREGION"): region = None; continue
    if l.startswith("@ALIGN"):
        while addr % int(l.split()[1]): fin.append("s_nop 0"); addr += 4
        continue
    if l.startswith("@AL "): al = int(l.split()[1]); continue
    if is_instr(l):
        if al and sizes[k] == 8 and addr % 8 != (0 if AL == 1 else 4): fin.append("s_nop 0"); addr += 4; nal += 1
        if region and WARM and addr // LINE != last:
            last = addr // LINE
            n = pads[region][1]; pads[region][1] += 1
            fin.append(f"pad_{region}_{n}:"); fin.append(f"@PAD {region} {n}"); addr += 4
        addr += sizes[k]; k += 1
    fin.append(l)
def seg_start(tag, j):
    nseg, n = pads[tag]; return (n * j) // nseg
o2 = []
for l in fin:
    if l.startswith("@PAD"):
        _, tag, n = l.split(); n = int(n)
        starts = [seg_start(tag, j) for j in range(pads[tag][0] + 1)]
        l = f"s_cbranch_execz " + (f"warm_ret_{tag}" if n + 1 in starts else f"pad_{tag}_{n+1}")
    m = re.search(r"@SEG_(\w)_(\d+)", l)
    if m: l = l.replace(m.group(0), f"pad_{m.group(1)}_{seg_start(m.group(1), int(m.group(2)))}")
    o2.append(l)
sys.stderr.write(f"nal {nal} pads {pads} size {addr}\n")
DROP = A("DROP", "")
if DROP:
    i0 = o2.index("pb_done:"); keep = o2[:i0]; masked = False
    for l in o2[i0:]:
        if l.startswith("s_mov_b32 exec_hi"): masked = True
        if l.startswith("s_mov_b64 exec, -1"): masked = False
        if "s" in DROP and "buffer_store" in l and f"s{S_XS} offen" in l: l = "s_nop 0"
        if "r" in DROP and f"s{S_XR} off" in l: l = "s_nop 0"
        if ("s" in DROP or "r" in DROP) and l.startswith("s_cbranch_vccnz rs"): l = "s_nop 0"
        if "x" in DROP and masked and "buffer_load" in l: l = "s_nop 0"
        if "w" in DROP and l.startswith("ds_write_b128"): l = "s_nop 0"
        if "u" in DROP and "buffer_load_ushort" in l: l = "s_nop 0"
        keep.append(l)
    o2 = keep
if A("RT", 0): o2 = [l.replace("s_memtime", "s_memrealtime") for l in o2] + ["; s_memtime RT"]
print("\n".join(o2))
```
